```python
import torch

def _softmax(x, axis=-1):
    return torch.softmax(x, dim=axis)
def _gelu(x):
    return torch.nn.functional.gelu(x, approximate="tanh")
def _silu(x):
    return torch.nn.functional.silu(x)
def _sigmoid(x):
    return torch.sigmoid(x)
def _layernorm(x, axis=-1, eps=1e-5):
    m = x.mean(dim=axis, keepdim=True)
    v = x.var(dim=axis, keepdim=True, unbiased=False)
    return (x - m) / torch.sqrt(v + eps)
def _scatter_add(tgt, idx, src, axis=0):
    return tgt.clone().index_add_(axis, idx, src)
def _segment_sum(src, seg, n):
    out = torch.zeros((n,) + src.shape[1:], dtype=src.dtype)
    return out.index_add_(0, seg, src)
def _pad(x, pw):
    flat = tuple(v for pair in reversed(pw) for v in pair)
    return torch.nn.functional.pad(x, flat)

kernel_name = 'gated_mix__gqa_block_cached__swiglu_ffn__decode'

def setup_inputs():

    _w = (lambda a: (lambda t: t.to(torch.bfloat16) if t.is_floating_point() else t)(torch.as_tensor(a)))
    def _A_setup():
        B, Sq, D = 2, 1, 512
        Hq, Hkv, Sk, Dh = 32, 8, 8192, 128
        assert Hq % Hkv == 0, (Hq, Hkv)
        return {
            "x": _w((lambda *s: torch.randn(*s, dtype=torch.bfloat16) * 0.05)(B, Sq, D)),
            "k_cache": _w((lambda *s: torch.randn(*s, dtype=torch.bfloat16) * 6.4)(B, Hkv, Sk, Dh)),
            "v_cache": _w((lambda *s: torch.randn(*s, dtype=torch.bfloat16) * 0.2)(B, Hkv, Sk, Dh)),
            "wq": _w((lambda *s: torch.randn(*s, dtype=torch.bfloat16) * 6.4)(D, Hq * Dh) * (D ** -0.5)),
            "wo": _w((lambda *s: torch.randn(*s, dtype=torch.bfloat16) * 0.2)(Hq * Dh, D) * ((Hq * Dh) ** -0.5)),
        }
    _A_in = _A_setup()

    def _B_setup():
        B, S, D, F = 2, 1, 512, 1792
        return {
            "x": _w((lambda *s: torch.randn(*s, dtype=torch.bfloat16) * 0.05)(B, S, D)),
            "w_gate": _w((lambda *s: torch.randn(*s, dtype=torch.bfloat16) * 0.05)(D, F)),
            "w_up": _w((lambda *s: torch.randn(*s, dtype=torch.bfloat16) * 0.05)(D, F)),
            "w_down": _w((lambda *s: torch.randn(*s, dtype=torch.bfloat16) * 0.05)(F, D)),
        }
    _B_in = _B_setup()

    return {
        "A_x": _A_in["x"],
        "A_k_cache": _A_in["k_cache"],
        "A_v_cache": _A_in["v_cache"],
        "A_wq": _A_in["wq"],
        "A_wo": _A_in["wo"],
        "B_x": _B_in["x"],
        "B_w_gate": _B_in["w_gate"],
        "B_w_up": _B_in["w_up"],
        "B_w_down": _B_in["w_down"],
        "gate_w": _w((lambda *s: torch.randn(*s, dtype=torch.bfloat16) * 0.05)(512) * 16.0),
    }

def reference(A_x, A_k_cache, A_v_cache, A_wq, A_wo, B_x, B_w_gate, B_w_up, B_w_down, gate_w):
    def _A_ref(x, k_cache, v_cache, wq, wo):
        B, Sq, D = x.shape
        Hq, Dh = 32, 128
        Hkv = k_cache.shape[1]
        rep = Hq // Hkv
        q = (lambda x, *d: x.permute(*d))((x @ wq).reshape(B, Sq, Hq, Dh), 0, 2, 1, 3)
        k = (lambda x, n, axis: torch.repeat_interleave(x, n, dim=axis))(k_cache, rep, axis=1)
        v = (lambda x, n, axis: torch.repeat_interleave(x, n, dim=axis))(v_cache, rep, axis=1)
        scores = torch.einsum("bhqd,bhkd->bhqk", q, k) * (Dh ** -0.5)
        p = _softmax(scores, axis=-1)
        o = torch.einsum("bhqk,bhkd->bhqd", p, v)
        return (lambda x, *d: x.permute(*d))(o, 0, 2, 1, 3).reshape(B, Sq, Hq * Dh) @ wo

    def _B_ref(x, w_gate, w_up, w_down):
        g = _silu(x @ w_gate)
        u = x @ w_up
        return (g * u) @ w_down

    x = A_x
    g = _sigmoid((x * gate_w).sum(-1, keepdims=True))
    a = _A_ref(x, A_k_cache, A_v_cache, A_wq, A_wo)
    b = _B_ref(x, B_w_gate, B_w_up, B_w_down)
    return g * a + (1 - g) * b
```

```python
import re

REG_RE = re.compile(r'^(-|abs\()?\s*([vsa])(\d+|\[(\d+):(\d+)\])\)?$')

def regs_of(tok):
    tok = tok.strip()
    if tok in ('vcc',): return {('s', 'vcc')}
    if tok in ('exec',): return {('s', 'exec')}
    if tok == 'm0': return {('s', 'm0')}
    m = REG_RE.match(tok)
    if not m: return set()
    k = m.group(2)
    if m.group(4) is not None:
        return {(k, i) for i in range(int(m.group(4)), int(m.group(5)) + 1)}
    return {(k, int(m.group(3)))}

TRANS = ('v_exp_f32', 'v_log_f32', 'v_rcp_f32', 'v_rsq_f32', 'v_sqrt_f32', 'v_sin_f32', 'v_cos_f32')

class Ins:
    __slots__ = ('text', 'mn', 'kind', 'wr', 'rd', 'dpp', 'srcC', 'lds', 'wide_store', 'nop')

def parse(text):
    t = text.split(';')[0].strip()
    ins = Ins(); ins.text = text; ins.dpp = False; ins.srcC = set(); ins.lds = False; ins.wide_store = set(); ins.nop = 1
    parts = t.split(None, 1)
    mn = parts[0]; ins.mn = mn
    rest = parts[1] if len(parts) > 1 else ''
    ops = []; depth = 0; cur = ''
    for ch in rest:
        if ch == '[' or ch == '(': depth += 1
        if ch == ']' or ch == ')': depth -= 1
        if ch == ',' and depth == 0:
            ops.append(cur.strip()); cur = ''
        else:
            cur += ch
    if cur.strip(): ops.append(cur.strip())
    mods = ''
    if ops:
        sp = ops[-1].split(None, 1)
        if len(sp) > 1 and not sp[0].endswith(':'):
            ops[-1] = sp[0]; mods = sp[1]
    wr = set(); rd = set()
    if mn.startswith('v_mfma'):
        ins.kind = 'mfma'
        wr = regs_of(ops[0]); rd = regs_of(ops[1]) | regs_of(ops[2]) | regs_of(ops[3]); ins.srcC = regs_of(ops[3])
    elif mn.startswith('v_cmp'):
        ins.kind = 'valu'
        wr = regs_of(ops[0])
        for o in ops[1:]: rd |= regs_of(o)
    elif mn.startswith('v_readfirstlane') or mn.startswith('v_readlane'):
        ins.kind = 'readlane'
        wr = regs_of(ops[0])
        for o in ops[1:]: rd |= regs_of(o)
    elif mn.startswith('v_permlane'):
        ins.kind = 'permlane'
        wr = regs_of(ops[0]) | regs_of(ops[1]); rd = set(wr)
    elif mn.startswith('v_'):
        ins.kind = 'valu'
        wr = regs_of(ops[0])
        srcs = ops[1:]
        if mn.startswith(('v_add_co', 'v_sub_co', 'v_addc_co')):
            wr |= regs_of(ops[1]); srcs = ops[2:]
        for o in srcs: rd |= regs_of(o)
        if mn.startswith(('v_fmac', 'v_dot2c', 'v_pk_fmac')): rd |= regs_of(ops[0])
        if mn.startswith('v_cndmask') and len(ops) == 3: rd |= regs_of('vcc')
        if 'dpp' in mn or 'row_' in mods or 'quad_perm' in mods:
            ins.dpp = True; rd |= regs_of(ops[0])
    elif mn.startswith('ds_read'):
        ins.kind = 'ds'; wr = regs_of(ops[0]); rd = regs_of(ops[1])
    elif mn.startswith('ds_'):
        ins.kind = 'ds'
        for o in ops: rd |= regs_of(o)
    elif mn.startswith(('buffer_load', 'global_load')):
        ins.kind = 'vmem'
        if ' lds' in (' ' + mods) or mods.endswith('lds'):
            ins.lds = True
            for o in ops: rd |= regs_of(o)
            rd |= regs_of('m0')
        else:
            wr = regs_of(ops[0])
            for o in ops[1:]: rd |= regs_of(o)
    elif mn.startswith(('buffer_store', 'global_store', 'buffer_atomic', 'global_atomic')):
        ins.kind = 'vmem'
        for o in ops: rd |= regs_of(o)
        if 'x3' in mn or 'x4' in mn:
            ins.wide_store = regs_of(ops[0] if mn.startswith('buffer') else ops[1])
    elif mn == 's_nop':
        ins.kind = 'salu'; ins.nop = int(ops[0], 0) + 1
    elif mn.startswith('s_'):
        ins.kind = 'salu'
        nodst = ('s_cmp', 's_cbranch', 's_branch', 's_waitcnt', 's_barrier', 's_endpgm', 's_sleep', 's_setprio', 's_bitcmp')
        if mn.startswith(nodst):
            for o in ops: rd |= regs_of(o)
        else:
            wr = regs_of(ops[0]) if ops else set()
            for o in ops[1:]: rd |= regs_of(o)
            if 'saveexec' in mn: wr |= regs_of('exec')
    else:
        raise ValueError('unknown instruction: ' + text)
    ins.wr = wr; ins.rd = rd
    return ins

def isv(s): return {r for r in s if r[0] in 'va'}
def iss(s): return {r for r in s if r[0] == 's'}

def need(p, c):
    n = 0
    pv = isv(p.wr); ps = iss(p.wr)
    if p.kind == 'mfma':
        if c.kind == 'mfma':
            if (pv & c.srcC) and c.srcC != pv: n = max(n, 6)
            ab = c.rd - c.srcC
            if pv & ab: n = max(n, 8)
            if (pv & c.wr) and not (c.srcC == pv): n = max(n, 8)
        elif c.kind != 'salu':
            if pv & (c.rd | c.wr): n = max(n, 8)
        if c.kind in ('valu', 'readlane', 'permlane') and (p.srcC & c.wr): n = max(n, 3)
    if p.kind in ('valu', 'permlane', 'readlane'):
        if pv:
            if c.kind == 'mfma' and (pv & c.rd): n = max(n, 2)
            if c.dpp and (pv & c.rd): n = max(n, 2)
            if c.kind == 'permlane' and (pv & c.rd): n = max(n, 2)
            if c.kind == 'readlane' and (pv & c.rd): n = max(n, 1)
            if p.mn.startswith(TRANS) and c.kind in ('valu', 'permlane', 'readlane', 'mfma') and (pv & c.rd): n = max(n, 1)
        if ps:
            if c.kind in ('valu', 'permlane') and (ps & c.rd): n = max(n, 2)
            if c.kind == 'readlane' and (ps & c.rd): n = max(n, 4)
            if c.kind == 'vmem' and (ps & c.rd): n = max(n, 5)
            if c.kind == 'salu' and (ps & c.rd) and not c.mn.startswith('s_cbranch'): n = max(n, 1)
    if p.kind == 'salu' and ('s', 'm0') in p.wr and c.lds: n = max(n, 1)
    if p.wide_store and c.kind in ('valu', 'permlane', 'readlane') and (p.wide_store & c.wr): n = max(n, 2)
    return n

class Asm:
    def __init__(self):
        self.out = []
        self.hists = [[]]
        self.pending = {}
        self.seen = set()
        self.nops = 0
    def raw(self, s):
        self.out.append(s)
    def comment(self, s):
        self.out.append('  ; ' + s)
    def label(self, name):
        self.out.append(name + ':')
        self.seen.add(name)
        self.hists = [h for h in self.hists] + self.pending.pop(name, [])
        hs = [h for h in self.hists if h]
        self.hists = hs if hs else [[]]
    def I(self, text):
        for line in text.split('\n'):
            line = line.strip()
            if not line or line.startswith(';'):
                if line: self.out.append('  ' + line)
                continue
            if line.endswith(':'):
                self.label(line[:-1]); continue
            ins = parse(line)
            req = 0
            for hist in self.hists:
                dist = 0
                for p in reversed(hist):
                    r = need(p, ins) - dist
                    if r > req: req = r
                    dist += p.nop
                    if dist > 20: break
            if req > 0 and ins.mn != 's_nop':
                nop = parse(f's_nop {req-1}')
                self.out.append(f'  s_nop {req-1}')
                for h in self.hists: h.append(nop)
                self.nops += 1
            self.out.append('  ' + line)
            for h in self.hists:
                h.append(ins)
                if len(h) > 30: del h[:len(h)-30]
            if ins.mn.startswith(('s_cbranch', 's_branch')):
                tgt = line.split(';')[0].split()[-1]
                if tgt not in self.seen:
                    self.pending.setdefault(tgt, []).extend([list(h) for h in self.hists])
            if ins.mn in ('s_endpgm', 's_branch'):
                self.hists = [[]]
            if len(self.hists) > 1:
                tails = [tuple(id(x) for x in h[-24:]) for h in self.hists]
                if all(len(h) >= 24 for h in self.hists) and len(set(tails)) == 1:
                    self.hists = [self.hists[0]]
    def text(self):
        return '\n'.join(self.out) + '\n'
```

```python
import sys, math, struct

def fhex(x): return '0x%08x' % struct.unpack('<I', struct.pack('<f', x))[0]
from emit import Asm

KNAME = 'gated_mix__gqa_block_cached__swiglu_ffn__decode_kernel'

WS_Q  = 0x000000
WS_F  = 0x020000
WS_ST = 0x040000
WS_FL = 0x044000
WS_T1 = 0x080000
WS_T3 = 0x100000
WS_DBG = 0x200000
WS_SIZE = 0x400000

V_OFF = 0
STG0 = 0
STG1 = 16384
WO_OFF = 131072
WD_OFF = 147456
P_OFF = 155648
Q_OFF = 159744
MISC = 160768
MX = MISC
LX = MISC + 128
A1 = MISC + 256
A2 = MISC + 512
GATE = MISC + 640
CNT = MISC + 704
C_J, C_F, C_Q, C_H, C_K, C_1, C_2 = 0, 4, 8, 12, 16, 20, 24
LDS_BYTES = 163840

SPIN_LIMIT = 300000
SC = ' sc1'

DEF = dict(nt_k=True, nt_v=True, nt_w=True, dk=2, dv=4, stamps=False, na=14, ksig=0)

class G:
    def __init__(self, **kw):
        self.p = dict(DEF); self.p.update(kw)
        self.a = Asm()
        self.uid = 0
        self.nstamp = 0
    def I(self, s): self.a.I(s)
    def lab(self, base):
        self.uid += 1
        return f'L_{base}_{self.uid}'
    def stamp(self, i):
        if self.p['stamps']:
            self.I(f's_memrealtime s[{64+2*i}:{65+2*i}]')
            self.I('s_waitcnt lgkmcnt(0)')
    def stamp_dump(self, srd, n=12):
        if not self.p['stamps']: return
        I = self.I
        I('s_mov_b64 exec, -1')
        I('s_lshl_b32 s6, s2, 4')
        I('s_add_u32 s6, s6, s3')
        I('s_lshl_b32 s6, s6, 6')
        I(f's_add_u32 s6, s6, {WS_DBG}')
        I('v_mov_b32 v1, s6')
        I('s_mov_b64 exec, 1')
        for j in range(0, n, 4):
            for t in range(4):
                I(f'v_mov_b32 v{4+t}, s{64+2*(j+t)}')
            I(f'buffer_store_dwordx4 v[4:7], v1, {srd}, 0 offen offset:{j*4}')
        I('s_mov_b64 exec, -1')
    def stamps_init(self):
        if self.p['stamps']:
            for i in range(16): self.I(f's_mov_b32 s{64+2*i}, 0')
    def signal(self, vC, vOne, off):
        self.I(f'''s_mov_b64 exec, 1
ds_add_u32 {vC}, {vOne} offset:{off}
s_mov_b64 exec, -1''')
    def lds_wait(self, vC, vT, off, n, sleep=1):
        L = self.lab('lw'); D = self.lab('lwd')
        self.I(f'''{L}:
ds_read_b32 {vT}, {vC} offset:{off}
s_add_u32 s48, s48, 1
s_waitcnt lgkmcnt(0)
v_readfirstlane_b32 s49, {vT}
s_cmp_ge_u32 s49, {n}
s_cbranch_scc1 {D}
s_cmp_gt_u32 s48, {SPIN_LIMIT}
s_cbranch_scc1 {D}''')
        if sleep: self.I(f's_sleep {sleep}')
        self.I(f'''s_branch {L}
{D}:''')
    def srd(self, base, karg_off, size):
        self.I(f's_load_dwordx2 s[{base}:{base+1}], s[0:1], {karg_off}')
        self.I(f's_mov_b32 s{base+2}, {size}')
        self.I(f's_mov_b32 s{base+3}, 0x20000')

    def tile_job(self, stg, pitch, srdW, srdX, sBase, sKs, nt):
        I = self.I
        ntf = ' nt' if nt else ''
        I(f'''v_lshrrev_b32 v4, 5, v1
v_lshlrev_b32 v4, 3, v4
v_bfe_u32 v5, v1, 3, 2
v_add_u32 v4, v4, v5
v_mul_u32_u24 v4, {pitch}, v4
v_and_b32 v5, 7, v1
v_bfe_u32 v6, v1, 4, 2
v_lshlrev_b32 v6, 1, v6
v_xor_b32 v5, v5, v6
v_lshlrev_b32 v5, 4, v5
v_add_u32 v4, v4, v5''')
        I(f'''v_and_b32 v5, 1, v3
v_lshlrev_b32 v5, 10, v5
v_lshlrev_b32 v6, 4, v2
v_add_u32 v5, v5, v6
s_lshl_b32 s6, {sKs}, 8
v_add_u32 v5, s6, v5''')
        for i in range(16):
            rowi = 32*(i >> 2) + 16*(i & 1) + 4*((i >> 1) & 1)
            I(f's_mov_b32 m0, {stg + i*1024}')
            I(f's_add_u32 s7, {sBase}, {rowi*pitch}')
            I(f'buffer_load_dwordx4 v4, {srdW}, s7 offen{ntf} lds')
        for kk in range(4):
            I(f'buffer_load_dwordx4 v[{8+4*kk}:{11+4*kk}], v5, {srdX}, 0 offen offset:{kk*64}')
        I(f'''v_lshrrev_b32 v6, 2, v3
v_and_b32 v7, 3, v3
v_lshlrev_b32 v28, 2, v2
v_add_u32 v28, v28, v6
v_lshlrev_b32 v28, 7, v28
v_lshlrev_b32 v7, 3, v7
v_add_u32 v28, v28, v7
v_add_u32 v28, {stg}, v28
v_lshlrev_b32 v29, 1, v2
v_lshrrev_b32 v6, 1, v6
v_add_u32 v29, v29, v6
v_and_b32 v29, 3, v29''')
        for nt_ in range(4):
            I(f'''v_xor_b32 v6, {nt_}, v29
v_lshlrev_b32 v6, 5, v6
v_add_u32 v{24+nt_}, v28, v6''')
    def tile_compute(self):
        I = self.I
        def reads(kk, setb):
            for nt_ in range(4):
                for hf in range(2):
                    r = setb + 4*nt_ + 2*hf
                    I(f'ds_read_b64_tr_b16 v[{r}:{r+1}], v{24+nt_} offset:{kk*4096 + hf*2048}')
        def mf(kk, setb):
            for nt_ in range(4):
                c = '0' if kk == 0 else f'v[{64+4*nt_}:{67+4*nt_}]'
                I(f'v_mfma_f32_16x16x32_bf16 v[{64+4*nt_}:{67+4*nt_}], v[{8+4*kk}:{11+4*kk}], v[{setb+4*nt_}:{setb+4*nt_+3}], {c}')
        sets = (32, 48)
        reads(0, sets[0])
        for kk in range(4):
            I('s_waitcnt lgkmcnt(0)')
            if kk < 3: reads(kk+1, sets[(kk+1) & 1])
            mf(kk, sets[kk & 1])
        I('''s_mov_b32 s40, 0xffff0000
s_mov_b32 s41, 0
s_mov_b32 s42, 0
s_mov_b32 s43, 0x0000ffff
s_mov_b32 s44, 0
s_mov_b32 s45, 0xffff0000''')
        for b in range(2):
            I(f'''v_cndmask_b32 v{40+b}, v{64+b}, v{68+b}, s[40:41]
v_cndmask_b32 v{40+b}, v{40+b}, v{72+b}, s[42:43]
v_cndmask_b32 v{40+b}, v{40+b}, v{76+b}, s[44:45]''')

    def lane_setup(self):
        self.I('''v_and_b32 v1, 63, v0
v_lshrrev_b32 v2, 4, v1
v_and_b32 v3, 15, v1''')

    def role_j0(self):
        I = self.I; p = self.p
        I('L_J0:')
        self.srd(16, 24, 0x400000)
        self.srd(20, 0, 2048)
        self.srd(24, 96, WS_SIZE)
        self.srd(28, 88, 256)
        self.lane_setup()
        I('''s_lshr_b32 s8, s5, 2          ; qcl
s_and_b32 s9, s5, 3           ; ks
s_mul_i32 s10, s9, 128*8192
s_lshl_b32 s6, s4, 10
s_add_u32 s10, s10, s6
s_lshl_b32 s6, s8, 7
s_add_u32 s10, s10, s6        ; byte offset of tile origin
v_mov_b32 v90, %d
v_mov_b32 v91, 1
s_waitcnt lgkmcnt(0)''' % CNT)
        self.tile_job(STG0, 8192, 's[16:19]', 's[20:23]', 's10', 's9', p['nt_w'])
        I('s_barrier')
        self.stamp(1)
        I('s_waitcnt vmcnt(0)')
        self.stamp(2)
        self.tile_compute()
        I(f'''s_lshl_b32 s6, s4, 3
s_add_u32 s6, s6, s9
s_lshl_b32 s6, s6, 11
s_lshl_b32 s7, s8, 8
s_add_u32 s6, s6, s7
v_lshlrev_b32 v4, 2, v1
v_add_u32 v4, s6, v4
buffer_store_dword v40, v4, s[24:27], 0 offen{SC}
v_add_u32 v5, {4*2048}, v4
buffer_store_dword v41, v5, s[24:27], 0 offen{SC}''')
        self.stamp(3)
        L = self.lab('dbg'); D = self.lab('dbgd')
        I(f'''v_mov_b32 v6, 0
{L}:
buffer_load_dword v7, v6, s[28:31], 0 offen{SC}
s_add_u32 s48, s48, 1
s_waitcnt vmcnt(0)
v_readfirstlane_b32 s49, v7
s_cmp_eq_u32 s49, 1
s_cbranch_scc1 {D}
s_cmp_gt_u32 s48, {SPIN_LIMIT}
s_cbranch_scc1 {D}
s_branch {L}
{D}:''')
        self.lds_wait('v90', 'v7', C_J, 2, sleep=0)
        I(f'''s_lshl_b32 s6, s4, 7
s_lshl_b32 s7, s5, 2
s_add_u32 s6, s6, s7
s_add_u32 s6, s6, {WS_FL}
v_mov_b32 v6, s6
s_mov_b64 exec, 1
buffer_store_dword v91, v6, s[24:27], 0 offen{SC}
s_mov_b64 exec, -1
v_lshlrev_b32 v6, 4, v1
v_add_u32 v6, {WS_FL}, v6''')
        self.stamp(4)
        L = self.lab('fl'); D = self.lab('fld')
        I(f'''{L}:
buffer_load_dwordx4 v[8:11], v6, s[24:27], 0 offen{SC}
s_add_u32 s48, s48, 1
s_waitcnt vmcnt(0)
v_and_b32 v8, v8, v9
v_and_b32 v10, v10, v11
v_and_b32 v8, v8, v10
v_cmp_ne_u32 vcc, 1, v8
s_cbranch_vccz {D}
s_cmp_gt_u32 s48, {SPIN_LIMIT}
s_cbranch_scc1 {D}
s_sleep 2
s_branch {L}
{D}:''')
        self.stamp(5)
        self.signal('v90', 'v91', C_F)
        I(f'''s_lshl_b32 s6, s4, 1
s_lshr_b32 s7, s5, 4          ; b
s_add_u32 s6, s6, s7
s_lshl_b32 s6, s6, 13
v_lshlrev_b32 v4, 4, v1
v_add_u32 v4, s6, v4''')
        for ks in range(4):
            I(f's_mov_b32 s7, {ks*2048}')
            for i in range(2):
                r = 8 + 8*ks + 4*i
                I(f'buffer_load_dwordx4 v[{r}:{r+3}], v4, s[24:27], s7 offen offset:{i*1024}{SC}')
        I('s_waitcnt vmcnt(0)')
        for e in range(8):
            I(f'v_add_f32 v{8+e}, v{8+e}, v{16+e}')
            I(f'v_add_f32 v{24+e}, v{24+e}, v{32+e}')
        for e in range(8):
            I(f'v_add_f32 v{8+e}, v{8+e}, v{24+e}')
        I(f'''v_cvt_pk_bf16_f32 v40, v8, v9
v_cvt_pk_bf16_f32 v41, v10, v11
v_cvt_pk_bf16_f32 v42, v12, v13
v_cvt_pk_bf16_f32 v43, v14, v15
v_lshlrev_b32 v4, 3, v1
v_add_u32 v4, {Q_OFF}, v4
ds_write_b64 v4, v[40:41]
ds_write_b64 v4, v[42:43] offset:512''')
        self.signal('v90', 'v91', C_Q)
        I('s_waitcnt lgkmcnt(0)')
        self.stamp(6)
        self.stamp_dump('s[24:27]')
        I('s_endpgm')

    def role_j1(self):
        I = self.I; p = self.p
        I('L_J1:')
        I('s_load_dwordx4 s[8:11], s[0:1], 48')
        self.srd(20, 0, 2048)
        self.srd(24, 96, WS_SIZE)
        self.srd(28, 72, 1024)
        self.lane_setup()
        I('''s_mul_i32 s12, s2, 2341
s_lshr_b32 s12, s12, 16       ; rest = wg / 28
s_mul_i32 s13, s12, 28
s_sub_u32 s13, s2, s13        ; cgf
s_and_b32 s14, s12, 1         ; mat
s_lshr_b32 s15, s12, 1        ; ks
v_mov_b32 v90, %d
v_mov_b32 v91, 1
s_waitcnt lgkmcnt(0)
s_cmp_eq_u32 s14, 0
s_cselect_b32 s16, s8, s10
s_cselect_b32 s17, s9, s11
s_mov_b32 s18, %d
s_mov_b32 s19, 0x20000
s_mul_i32 s8, s15, 128*3584
s_lshl_b32 s6, s13, 7
s_add_u32 s8, s8, s6''' % (CNT, 512*1792*2))
        Lskip = self.lab('nof1'); Lj = self.lab('f1j')
        I(f'''s_cmp_ge_u32 s2, 224
s_cbranch_scc1 {Lskip}''')
        self.tile_job(STG1, 3584, 's[16:19]', 's[20:23]', 's8', 's15', p['nt_w'])
        I(f'{Lskip}:')
        I('''v_lshlrev_b32 v80, 4, v1
buffer_load_dwordx4 v[92:95], v80, s[20:23], 0 offen
buffer_load_dwordx4 v[96:99], v80, s[20:23], 0 offen offset:1024
buffer_load_dwordx4 v[100:103], v80, s[28:31], 0 offen
s_barrier''')
        self.stamp(1)
        I('s_waitcnt vmcnt(0)')
        self.stamp(2)
        I(f'''s_cmp_ge_u32 s2, 224
s_cbranch_scc1 {Lj}''')
        self.tile_compute()
        I(f'''s_lshl_b32 s6, s14, 2
s_add_u32 s6, s6, s15
s_mul_i32 s6, s6, {2*7168}
s_lshl_b32 s7, s13, 8
s_add_u32 s6, s6, s7
s_add_u32 s6, s6, {WS_F}
v_lshlrev_b32 v4, 2, v1
v_add_u32 v4, s6, v4
buffer_store_dword v40, v4, s[24:27], 0 offen{SC}
v_add_u32 v5, 7168, v4
buffer_store_dword v41, v5, s[24:27], 0 offen{SC}''')
        I(f'{Lj}:')
        I('v_mov_b32 v8, 0\nv_mov_b32 v9, 0')
        for e in range(4):
            I(f'''v_lshlrev_b32 v10, 16, v{100+e}
v_and_b32 v11, 0xffff0000, v{100+e}
v_lshlrev_b32 v12, 16, v{92+e}
v_and_b32 v13, 0xffff0000, v{92+e}
v_lshlrev_b32 v14, 16, v{96+e}
v_and_b32 v15, 0xffff0000, v{96+e}
v_fmac_f32 v8, v10, v12
v_fmac_f32 v9, v10, v14
v_fmac_f32 v8, v11, v13
v_fmac_f32 v9, v11, v15''')
        for rr in (8, 4, 2, 1):
            I(f'v_add_f32_dpp v8, v8, v8 row_ror:{rr} row_mask:0xf bank_mask:0xf')
            I(f'v_add_f32_dpp v9, v9, v9 row_ror:{rr} row_mask:0xf bank_mask:0xf')
        for sw in ('v_permlane16_swap_b32', 'v_permlane32_swap_b32'):
            I(f'''v_mov_b32 v10, v8
v_mov_b32 v11, v9
{sw} v8, v10
{sw} v9, v11
v_add_f32 v8, v8, v10
v_add_f32 v9, v9, v11''')
        I(f'''v_mul_f32 v8, {fhex(-math.log2(math.e))}, v8
v_mul_f32 v9, {fhex(-math.log2(math.e))}, v9
v_exp_f32 v8, v8
v_exp_f32 v9, v9
v_add_f32 v8, 1.0, v8
v_add_f32 v9, 1.0, v9
v_rcp_f32 v8, v8
v_rcp_f32 v9, v9
v_mov_b32 v10, {GATE}
s_mov_b64 exec, 1
ds_write_b64 v10, v[8:9]
s_mov_b64 exec, -1
s_mov_b32 s40, 0
s_mov_b32 s41, -1
v_cndmask_b32 v16, v8, v9, s[40:41]
v_sub_f32 v16, 1.0, v16''')
        I('s_waitcnt vmcnt(0)')
        self.stamp(3)
        self.signal('v90', 'v91', C_J)
        self.lds_wait('v90', 'v7', C_F, 1, sleep=2)
        self.stamp(5)
        I(f'''s_lshl_b32 s6, s4, 3
s_lshr_b32 s7, s5, 2
s_add_u32 s6, s6, s7          ; rg
s_mul_i32 s6, s6, 112
s_add_u32 s6, s6, {WS_F}
v_and_b32 v4, 31, v1
v_min_u32 v5, 27, v4
v_lshlrev_b32 v5, 2, v5
v_lshrrev_b32 v6, 5, v1
v_mul_u32_u24 v6, 7168, v6
v_add_u32 v5, v5, v6
v_add_u32 v5, s6, v5''')
        for m in range(2):
            for ks in range(4):
                I(f's_mov_b32 s7, {(m*4+ks)*2*7168}')
                I(f'buffer_load_dword v{24+m*4+ks}, v5, s[24:27], s7 offen{SC}')
        I(f'''s_waitcnt vmcnt(0)
v_add_f32 v24, v24, v25
v_add_f32 v26, v26, v27
v_add_f32 v28, v28, v29
v_add_f32 v30, v30, v31
v_add_f32 v24, v24, v26
v_add_f32 v28, v28, v30
v_mul_f32 v25, {fhex(-math.log2(math.e))}, v24
v_exp_f32 v25, v25
v_add_f32 v25, 1.0, v25
v_rcp_f32 v25, v25
v_mul_f32 v24, v24, v25
v_mul_f32 v24, v24, v28
v_mul_f32 v24, v24, v16
v_cmp_gt_u32 vcc, 28, v4
v_cndmask_b32 v24, 0, v24, vcc
v_cvt_pk_bf16_f32 v24, v24, v24
v_bfe_u32 v6, v4, 2, 2
v_lshlrev_b32 v6, 4, v6
v_lshrrev_b32 v7, 4, v4
v_lshlrev_b32 v7, 3, v7
v_add_u32 v6, v6, v7
v_and_b32 v7, 3, v4
v_lshlrev_b32 v7, 1, v7
v_add_u32 v6, v6, v7
v_lshrrev_b32 v7, 5, v1
v_lshlrev_b32 v7, 6, v7
v_add_u32 v6, v6, v7
v_add_u32 v6, {A2}, v6
ds_write_b16 v6, v24''')
        self.signal('v90', 'v91', C_H)
        I('s_waitcnt lgkmcnt(0)')
        self.stamp(6)
        self.stamp_dump('s[24:27]')
        I('s_endpgm')

    def role_loader(self):
        I = self.I; p = self.p
        ntv = ' nt' if p['nt_v'] else ''
        ntw = ' nt' if p['nt_w'] else ''
        I('L_LD:')
        self.srd(16, 16, 0x2000000)
        self.srd(20, 32, 0x400000)
        self.srd(24, 64, 1792*512*2)
        self.srd(28, 96, WS_SIZE)
        self.srd(32, 88, 256)
        self.lane_setup()
        I(f'''s_sub_u32 s8, s3, 2           ; loader j
v_mov_b32 v90, {CNT}
v_mov_b32 v91, 1
s_cmp_lg_u32 s8, 0
s_cbranch_scc1 L_LD_noinit
v_mov_b32 v8, 0
v_mov_b32 v9, 0
v_mov_b32 v10, 0
v_mov_b32 v11, 0
ds_write_b128 v90, v[8:11]
ds_write_b128 v90, v[8:11] offset:16
L_LD_noinit:
s_waitcnt lgkmcnt(0)
s_barrier''')
        I(f'''s_cmp_lg_u32 s8, 0
s_cbranch_scc1 L_LD_noclear
v_mov_b32 v8, -1
v_mov_b32 v9, -1
v_mov_b32 v10, -1
v_mov_b32 v11, -1
s_lshl_b32 s6, s4, 5
s_add_u32 s6, s6, s5
s_lshl_b32 s7, s6, 11
s_add_u32 s7, s7, {WS_T1}
v_lshlrev_b32 v4, 4, v1
buffer_store_dwordx4 v[8:11], v4, s[28:31], s7 offen{SC}
buffer_store_dwordx4 v[8:11], v4, s[28:31], s7 offen offset:1024{SC}
s_lshl_b32 s7, s6, 5
s_add_u32 s7, s7, {WS_ST}
s_mov_b64 exec, 3
buffer_store_dwordx4 v[8:11], v4, s[28:31], s7 offen{SC}
s_mov_b64 exec, -1
s_and_b32 s7, s5, 3           ; cg
s_lshl_b32 s7, s7, 16         ; cg*8*8192
s_lshl_b32 s9, s4, 3
s_lshr_b32 s10, s5, 2
s_add_u32 s9, s9, s10         ; rg
s_lshl_b32 s9, s9, 7
s_add_u32 s7, s7, s9
s_add_u32 s7, s7, {WS_T3}
v_lshrrev_b32 v5, 3, v1
v_lshlrev_b32 v5, 13, v5
v_and_b32 v6, 7, v1
v_lshlrev_b32 v6, 4, v6
v_add_u32 v5, v5, v6
buffer_store_dwordx4 v[8:11], v5, s[28:31], s7 offen{SC}
s_waitcnt vmcnt(0)''')
        self.signal('v90', 'v91', C_J)
        I('L_LD_noclear:')
        I(f'''s_cmp_lg_u32 s8, 1
s_cbranch_scc1 L_LD_nofl
s_cmp_lg_u32 s2, 0
s_cbranch_scc1 L_LD_nofl
v_mov_b32 v8, 0
v_mov_b32 v9, 0
v_mov_b32 v10, 0
v_mov_b32 v11, 0
v_lshlrev_b32 v4, 4, v1
v_add_u32 v4, {WS_FL}, v4
buffer_store_dwordx4 v[8:11], v4, s[28:31], 0 offen{SC}
s_waitcnt vmcnt(0)
v_mov_b32 v4, 0
s_mov_b64 exec, 1
buffer_store_dword v91, v4, s[32:35], 0 offen{SC}
s_mov_b64 exec, -1
L_LD_nofl:''')
        I(f'''s_and_b32 s6, s8, 1
s_lshl_b32 s6, s6, 2
v_add_u32 v5, s6, v2          ; (4*(j&1) + rho)
v_lshlrev_b32 v5, 1, v5
v_xor_b32 v5, v5, v3          ; chunk
v_lshlrev_b32 v5, 4, v5
v_lshlrev_b32 v6, 8, v2
v_add_u32 v10, v5, v6         ; V voffset
v_lshlrev_b32 v6, 17, v2
v_add_u32 v11, v5, v6
v_lshlrev_b32 v6, 10, v2
v_add_u32 v12, v5, v6
s_lshr_b32 s6, s5, 4          ; b
s_lshl_b32 s6, s6, 3
s_add_u32 s6, s6, s4          ; bh
s_lshl_b32 s10, s6, 21
s_and_b32 s6, s5, 15          ; t
s_lshl_b32 s6, s6, 17
s_add_u32 s10, s10, s6
s_lshl_b32 s6, s8, 10
s_add_u32 s10, s10, s6
s_lshr_b32 s11, s5, 2         ; w'
s_and_b32 s12, s5, 3          ; cg
s_lshl_b32 s13, s4, 9
s_lshl_b32 s6, s11, 4
s_add_u32 s13, s13, s6
s_add_u32 s13, s13, s8
s_lshl_b32 s13, s13, 10
s_lshl_b32 s6, s12, 8
s_add_u32 s13, s13, s6
s_lshl_b32 s14, s4, 3
s_add_u32 s14, s14, s11       ; rg
s_mul_i32 s14, s14, 28
s_lshl_b32 s6, s8, 2
s_add_u32 s15, s14, s6
s_add_u32 s6, s8, 4
s_min_u32 s6, s6, 6
s_lshl_b32 s6, s6, 2
s_add_u32 s14, s14, s6
s_lshl_b32 s15, s15, 10
s_lshl_b32 s14, s14, 10
s_lshl_b32 s6, s12, 8
s_add_u32 s15, s15, s6
s_add_u32 s14, s14, s6
s_lshl_b32 s9, s8, 10         ; j*1024''')
        self.stamp(1)
        self.lds_wait('v90', 'v7', C_K, 8, sleep=2)
        self.stamp(2)
        loads = []
        for q in range(32):
            loads.append([f's_add_u32 m0, s9, {V_OFF + q*4096}',
                          f's_add_u32 s6, s10, {q*4096}',
                          f'buffer_load_dwordx4 v10, s[16:19], s6 offen{ntv} lds'])
        for q in range(4):
            loads.append([f's_add_u32 m0, s9, {WO_OFF + q*4096}',
                          f's_add_u32 s6, s13, {q*4096}',
                          f'buffer_load_dwordx4 v11, s[20:23], s6 offen{ntw} lds'])
        loads.append([f's_add_u32 m0, s9, {WD_OFF}', 's_nop 0', f'buffer_load_dwordx4 v12, s[24:27], s15 offen{ntw} lds'])
        loads.append([f's_add_u32 m0, s9, {WD_OFF + 4096}', 's_nop 0', f'buffer_load_dwordx4 v12, s[24:27], s14 offen{ntw} lds'])
        D = p['dv']; n = len(loads)
        nA = 2 * p['na']
        done_marks = {nA - 1: 'A', 31: 'V'}
        issued = 0
        for i in range(n):
            if i >= D:
                I(f's_waitcnt vmcnt({D-1})')
            for l in loads[i]: I(l)
            if i >= D and (i - D) in done_marks:
                I('s_barrier')
                self.stamp(3 if done_marks[i-D] == 'A' else 4)
        for j in range(min(D, n) - 1, -1, -1):
            c = n - 1 - j
            I(f's_waitcnt vmcnt({j})')
            if c in done_marks:
                I('s_barrier')
                self.stamp(3 if done_marks[c] == 'A' else 4)
        self.stamp(5)
        I('s_barrier')
        self.stamp_dump('s[28:31]')
        I('s_endpgm')

    def role_compute(self):
        I = self.I; p = self.p
        ntk = ' nt' if p['nt_k'] else ''
        cexp = math.log2(math.e) / math.sqrt(128.0)
        I('L_CW:')
        self.srd(16, 8, 0x2000000)
        self.srd(20, 96, WS_SIZE)
        self.srd(24, 80, 2048)
        self.lane_setup()
        I(f'''s_sub_u32 s8, s3, 6           ; cw
s_lshr_b32 s6, s5, 4          ; b
s_lshl_b32 s6, s6, 3
s_add_u32 s6, s6, s4
s_lshl_b32 s10, s6, 21
s_and_b32 s6, s5, 15
s_lshl_b32 s6, s6, 17
s_add_u32 s10, s10, s6
s_lshl_b32 s6, s8, 14
s_add_u32 s10, s10, s6
v_lshlrev_b32 v4, 8, v3
v_lshlrev_b32 v5, 4, v2
v_add_u32 v4, v4, v5          ; K voffset
s_waitcnt lgkmcnt(0)''')
        D = p['dk']
        def kload(i):
            tt, kk = divmod(i, 4)
            if kk == 0: I(f's_add_u32 s11, s10, {tt*4096}')
            I(f'buffer_load_dwordx4 v[{64+4*i}:{67+4*i}], v4, s[16:19], s11 offen offset:{kk*64}{ntk}')
        for i in range(D): kload(i)
        I(f'''v_mov_b32 v62, {CNT}
v_mov_b32 v63, 1
s_barrier''')
        self.stamp(1)
        vC, vOne = 'v62', 'v63'
        for i in range(D, 16):
            I(f's_waitcnt vmcnt({D-1})')
            kload(i)
            if i == 15 - p['ksig']:
                self.signal(vC, vOne, C_K)
        self.stamp(2)
        I(f'''v_and_b32 v5, 3, v3           ; head = n&3
v_lshlrev_b32 v6, 8, v5
v_lshlrev_b32 v7, 4, v2
v_add_u32 v60, v6, v7
v_add_u32 v60, {Q_OFF}, v60
v_lshlrev_b32 v61, 5, v5
v_add_u32 v61, {MX}, v61
s_lshl_b32 s6, s8, 2
v_add_u32 v59, s6, v61''')
        self.lds_wait(vC, 'v5', C_Q, 1, sleep=1)
        self.stamp(3)
        for kk in range(4):
            I(f'ds_read_b128 v[{32+4*kk}:{35+4*kk}], v60 offset:{kk*64}')
        I('s_waitcnt lgkmcnt(0)')
        for tt in range(4):
            I(f's_waitcnt vmcnt({12 - 4*tt})')
            for kk in range(4):
                c = '0' if kk == 0 else f'v[{16+4*tt}:{19+4*tt}]'
                r = 64 + 16*tt + 4*kk
                I(f'v_mfma_f32_16x16x32_bf16 v[{16+4*tt}:{19+4*tt}], v[{r}:{r+3}], v[{32+4*kk}:{35+4*kk}], {c}')
        I('v_max3_f32 v5, v16, v17, v18')
        for e in range(19, 31, 2):
            I(f'v_max3_f32 v5, v5, v{e}, v{e+1}')
        I('v_max_f32 v5, v5, v31')
        for sw in ('v_permlane16_swap_b32', 'v_permlane32_swap_b32'):
            I(f'''v_mov_b32 v6, v5
{sw} v5, v6
v_max_f32 v5, v5, v6''')
        I('''s_mov_b64 exec, 15
ds_write_b32 v59, v5
s_mov_b64 exec, -1''')
        self.signal(vC, vOne, C_1)
        self.lds_wait(vC, 'v6', C_1, 8, sleep=0)
        I(f'''ds_read_b128 v[48:51], v61
ds_read_b128 v[52:55], v61 offset:16
s_mov_b32 s50, {fhex(cexp)}
s_waitcnt lgkmcnt(0)
v_max3_f32 v48, v48, v49, v50
v_max3_f32 v51, v51, v52, v53
v_max3_f32 v48, v48, v54, v55
v_max_f32 v48, v48, v51
v_mul_f32 v58, s50, v48''')
        for e in range(16):
            I(f'v_fma_f32 v{16+e}, v{16+e}, s50, -v58')
        for e in range(16):
            I(f'v_exp_f32 v{16+e}, v{16+e}')
        for q in range(8):
            I(f'v_cvt_pk_bf16_f32 v{48+q}, v{16+2*q}, v{17+2*q}')
        I(f'''s_lshl_b32 s6, s8, 9
s_add_u32 s6, s6, {P_OFF}
v_lshlrev_b32 v6, 6, v2
v_lshlrev_b32 v7, 4, v3
v_add_u32 v6, v6, v7
v_add_u32 v6, s6, v6
s_mov_b32 s40, 0x000f000f
s_mov_b32 s41, 0x000f000f
s_mov_b64 exec, s[40:41]
ds_write_b128 v6, v[48:51]
ds_write_b128 v6, v[52:55] offset:256
s_mov_b64 exec, -1''')
        for e in range(8): I(f'v_add_f32 v{16+e}, v{16+e}, v{24+e}')
        for e in range(4): I(f'v_add_f32 v{16+e}, v{16+e}, v{20+e}')
        I('''v_add_f32 v16, v16, v17
v_add_f32 v18, v18, v19
v_add_f32 v5, v16, v18''')
        for sw in ('v_permlane16_swap_b32', 'v_permlane32_swap_b32'):
            I(f'''v_mov_b32 v6, v5
{sw} v5, v6
v_add_f32 v5, v5, v6''')
        I('''s_mov_b64 exec, 15
ds_write_b32 v59, v5 offset:128
s_mov_b64 exec, -1''')
        self.signal(vC, vOne, C_2)
        self.lds_wait(vC, 'v6', C_2, 8, sleep=0)
        self.stamp(4)
        Ls = self.lab('nostat')
        I(f'''s_lshl_b32 s12, s4, 5
s_add_u32 s12, s12, s5        ; slot
s_cmp_lg_u32 s8, 0
s_cbranch_scc1 {Ls}
ds_read_b128 v[48:51], v61 offset:128
ds_read_b128 v[52:55], v61 offset:144
s_waitcnt lgkmcnt(0)
v_add_f32 v48, v48, v49
v_add_f32 v50, v50, v51
v_add_f32 v52, v52, v53
v_add_f32 v54, v54, v55
v_add_f32 v48, v48, v50
v_add_f32 v52, v52, v54
v_add_f32 v48, v48, v52
s_mov_b32 s40, 0xf0
s_mov_b32 s41, 0
v_cndmask_b32 v48, v58, v48, s[40:41]
s_lshl_b32 s6, s12, 5
s_add_u32 s6, s6, {WS_ST}
v_lshlrev_b32 v6, 2, v1
s_mov_b64 exec, 0xff
buffer_store_dword v48, v6, s[20:23], s6 offen{SC}
s_mov_b64 exec, -1
{Ls}:''')
        I(f'''v_and_b32 v5, 3, v3
v_lshlrev_b32 v5, 4, v5
v_lshlrev_b32 v6, 6, v2
v_add_u32 v5, v5, v6
v_add_u32 v5, {P_OFF}, v5''')
        for st in range(16):
            if st == 8: I('s_waitcnt lgkmcnt(0)')
            I(f'ds_read_b128 v[{64+4*st}:{67+4*st}], v5 offset:{st*256}')
        I(f'''v_lshrrev_b32 v5, 2, v3       ; r
v_and_b32 v6, 3, v3           ; c4
v_lshlrev_b32 v7, 2, v2
v_add_u32 v7, v7, v5          ; 4s + r
v_and_b32 v48, 7, v7          ; (4(s&1) + r)
v_xor_b32 v48, s8, v48
v_lshlrev_b32 v48, 5, v48
v_lshlrev_b32 v7, 8, v7
v_add_u32 v7, v7, v48
v_lshlrev_b32 v6, 3, v6
v_add_u32 v56, v7, v6
v_add_u32 v57, 0x10000, v56
v_add_u32 v59, 0x20000, v56''')
        self.lds_wait(vC, 'v5', C_H, 1, sleep=1)
        I(f'''v_mov_b32 v5, {GATE}
ds_read_b64 v[6:7], v5
v_and_b32 v48, 1, v3
v_lshlrev_b32 v48, 6, v48
v_lshlrev_b32 v49, 4, v2
v_add_u32 v48, v48, v49
v_add_u32 v48, {A2}, v48
ds_read_b128 v[52:55], v48    ; A2 operand
s_mov_b32 s40, 0
s_mov_b32 s41, -1
s_waitcnt lgkmcnt(0)
v_cndmask_b32 v60, v6, v7, s[40:41]   ; g_b (b = lane>>5)''')
        I(f'''v_lshrrev_b32 v5, 5, v1
v_lshlrev_b32 v5, 4, v5
v_add_u32 v5, v5, v3          ; b'*16 + t'
s_lshl_b32 s6, s4, 5
v_add_u32 v61, s6, v5         ; slot'
v_lshlrev_b32 v5, 5, v61
v_add_u32 v5, {WS_ST}, v5''')
        L = self.lab('st'); Dn = self.lab('std')
        I(f'''{L}:
buffer_load_dwordx4 v[16:19], v5, s[20:23], 0 offen{SC}
buffer_load_dwordx4 v[20:23], v5, s[20:23], 0 offen offset:16{SC}
s_add_u32 s48, s48, 1
s_waitcnt vmcnt(0)
v_max3_u32 v6, v16, v17, v18
v_max3_u32 v7, v19, v20, v21
v_max3_u32 v6, v6, v22, v23
v_max_u32 v6, v6, v7
v_cmp_eq_u32 vcc, -1, v6
s_cbranch_vccz {Dn}
s_cmp_gt_u32 s48, {SPIN_LIMIT}
s_cbranch_scc1 {Dn}
s_sleep 4
s_branch {L}
{Dn}:''')
        for h in range(4): I(f'v_mov_b32 v{24+h}, v{16+h}')
        for rr in (8, 4, 2, 1):
            for h in range(4): I(f'v_max_f32_dpp v{24+h}, v{24+h}, v{24+h} row_ror:{rr} row_mask:0xf bank_mask:0xf')
        for h in range(4): I(f'v_sub_f32 v{16+h}, v{16+h}, v{24+h}')
        for h in range(4): I(f'v_exp_f32 v{16+h}, v{16+h}')
        for h in range(4): I(f'v_mul_f32 v{20+h}, v{20+h}, v{16+h}')
        for rr in (8, 4, 2, 1):
            for h in range(4): I(f'v_add_f32_dpp v{20+h}, v{20+h}, v{20+h} row_ror:{rr} row_mask:0xf bank_mask:0xf')
        for h in range(4): I(f'v_rcp_f32 v{20+h}, v{20+h}')
        for h in range(4): I(f'v_mul_f32 v{16+h}, v{16+h}, v60')
        for h in range(4): I(f'v_mul_f32 v{12+h}, v{16+h}, v{20+h}')
        I(f'''s_lshr_b32 s13, s5, 2         ; w'
s_and_b32 s14, s5, 3          ; cg
v_lshlrev_b32 v61, 11, v61
v_bfe_u32 v5, v1, 4, 1        ; dd
s_lshl_b32 s6, s8, 1
v_add_u32 v5, s6, v5
s_lshl_b32 s6, s13, 4
v_add_u32 v6, s6, v5
v_lshlrev_b32 v6, 4, v6
v_add_u32 v61, v61, v6
v_add_u32 v61, {WS_T1}, v61
v_lshrrev_b32 v6, 3, v5
v_lshlrev_b32 v6, 6, v6       ; kk*64
v_bfe_u32 v7, v5, 2, 1
v_lshlrev_b32 v7, 3, v7       ; half*8
v_add_u32 v6, v6, v7
v_and_b32 v7, 3, v5
v_lshlrev_b32 v7, 4, v7       ; sA*16
v_add_u32 v6, v6, v7
v_lshrrev_b32 v7, 5, v1
v_lshlrev_b32 v7, 7, v7       ; b'*128
v_add_u32 v6, v6, v7
v_add_u32 v60, {A1}, v6
s_lshl_b32 s6, s12, 11
s_lshl_b32 s7, s8, 8
s_add_u32 s6, s6, s7
s_add_u32 s6, s6, {WS_T1}
v_lshlrev_b32 v58, 4, v3
v_add_u32 v58, s6, v58
v_and_b32 v6, 1, v3
v_lshlrev_b32 v6, 7, v6
v_lshlrev_b32 v7, 4, v2
v_add_u32 v6, v6, v7
v_add_u32 v62, {A1}, v6
s_lshl_b32 s6, s14, 3
s_add_u32 s6, s6, s8
s_lshl_b32 s6, s6, 6
s_lshl_b32 s7, s4, 3
s_add_u32 s7, s7, s13
s_add_u32 s6, s6, s7
s_lshl_b32 s6, s6, 7
s_add_u32 s6, s6, {WS_T3}
v_lshlrev_b32 v63, 3, v3
v_add_u32 v63, s6, v63''')
        self.stamp(5)
        I('s_barrier')
        self.stamp(6)
        def vread(st, r):
            base = 'v56' if st < 8 else 'v57'
            o = (st & 7) * 8192
            I(f'ds_read_b64_tr_b16 v[{r}:{r+1}], {base} offset:{o}')
            I(f'ds_read_b64_tr_b16 v[{r+2}:{r+3}], {base} offset:{o+4096}')
        def vmfma(st, r):
            c = '0' if st == 0 else 'v[8:11]'
            I(f'v_mfma_f32_16x16x32_bf16 v[8:11], v[{64+4*st}:{67+4*st}], v[{r}:{r+3}], {c}')
        na = p['na']
        batches = []
        st = 0
        while st < na:
            b = list(range(st, min(st + 4, na))); batches.append(b); st += len(b)
        sets = (16, 32)
        for k, b in enumerate(batches):
            if k == 0:
                for j, st in enumerate(b): vread(st, sets[0] + 4*j)
            I('s_waitcnt lgkmcnt(0)')
            if k + 1 < len(batches):
                for j, st in enumerate(batches[k+1]): vread(st, sets[(k+1) & 1] + 4*j)
            for j, st in enumerate(b): vmfma(st, sets[k & 1] + 4*j)
        I('s_barrier')
        self.stamp(7)
        rest = list(range(na, 16))
        for j, st in enumerate(rest): vread(st, 16 + 4*j)
        for j, st in enumerate(rest):
            I(f's_waitcnt lgkmcnt({2*(len(rest)-1-j)})')
            vmfma(st, 16 + 4*j)
        I(f'''s_mov_b64 exec, 0xffff
buffer_store_dwordx4 v[8:11], v58, s[20:23], 0 offen{SC}
s_mov_b64 exec, -1''')
        self.stamp(8)
        L = self.lab('t2'); Dn = self.lab('t2d')
        I(f'''{L}:
buffer_load_dwordx4 v[16:19], v61, s[20:23], 0 offen{SC}
s_add_u32 s48, s48, 1
s_waitcnt vmcnt(0)
v_max3_u32 v6, v16, v17, v18
v_max_u32 v6, v6, v19
v_cmp_eq_u32 vcc, -1, v6
s_cbranch_vccz {Dn}
s_cmp_gt_u32 s48, {SPIN_LIMIT}
s_cbranch_scc1 {Dn}
s_branch {L}
{Dn}:''')
        self.stamp(9)
        for h in range(4): I(f'v_mul_f32 v{16+h}, v{16+h}, v{12+h}')
        for rr in (8, 4, 2, 1):
            for h in range(4): I(f'v_add_f32_dpp v{16+h}, v{16+h}, v{16+h} row_ror:{rr} row_mask:0xf bank_mask:0xf')
        I('''v_cvt_pk_bf16_f32 v16, v16, v17
v_cvt_pk_bf16_f32 v17, v18, v19
s_mov_b32 s40, 0x00010001
s_mov_b32 s41, 0x00010001
s_mov_b64 exec, s[40:41]
ds_write_b64 v60, v[16:17]
s_mov_b64 exec, -1
s_waitcnt lgkmcnt(0)
s_barrier''')
        self.stamp(10)
        I('''ds_read_b64_tr_b16 v[16:17], v59 offset:16384
ds_read_b64_tr_b16 v[18:19], v59 offset:20480
ds_read_b128 v[32:35], v62
ds_read_b64_tr_b16 v[20:21], v59
ds_read_b64_tr_b16 v[22:23], v59 offset:4096
ds_read_b128 v[36:39], v62 offset:64
ds_read_b64_tr_b16 v[24:25], v59 offset:8192
ds_read_b64_tr_b16 v[26:27], v59 offset:12288
s_waitcnt lgkmcnt(6)
v_mfma_f32_16x16x32_bf16 v[8:11], v[52:55], v[16:19], 0
s_waitcnt lgkmcnt(3)
v_mfma_f32_16x16x32_bf16 v[8:11], v[32:35], v[20:23], v[8:11]
s_waitcnt lgkmcnt(0)
v_mfma_f32_16x16x32_bf16 v[8:11], v[36:39], v[24:27], v[8:11]''')
        I(f'''s_mov_b64 exec, 0xffff
buffer_store_dwordx2 v[8:9], v63, s[20:23], 0 offen{SC}
s_mov_b64 exec, -1''')
        self.stamp(11)
        Lend = 'L_CW_end'
        I(f'''s_cmp_ge_u32 s2, 32
s_cbranch_scc1 {Lend}
s_cmp_lg_u32 s8, 0
s_cbranch_scc1 {Lend}
s_and_b32 s13, s2, 3          ; cg3
s_lshr_b32 s14, s2, 2         ; o8
s_lshl_b32 s6, s13, 3
s_add_u32 s6, s6, s14
s_lshl_b32 s6, s6, 13
s_add_u32 s6, s6, {WS_T3}
v_lshlrev_b32 v5, 4, v1
v_add_u32 v5, s6, v5
s_mov_b32 s7, 4096''')
        L = self.lab('t3'); Dn = self.lab('t3d')
        I(f'{L}:')
        for i in range(8):
            so = '0' if i < 4 else 's7'
            I(f'buffer_load_dwordx4 v[{64+4*i}:{67+4*i}], v5, s[20:23], {so} offen offset:{(i & 3)*1024}{SC}')
        I('s_add_u32 s48, s48, 1\ns_waitcnt vmcnt(0)')
        for i in range(4):
            for e in range(4): I(f'v_add_f32 v{64+4*i+e}, v{64+4*i+e}, v{80+4*i+e}')
        for i in range(2):
            for e in range(4): I(f'v_add_f32 v{64+4*i+e}, v{64+4*i+e}, v{72+4*i+e}')
        for e in range(4): I(f'v_add_f32 v{64+e}, v{64+e}, v{68+e}')
        I(f'''v_cmp_u_f32 vcc, v64, v65
v_cmp_u_f32 s[40:41], v66, v67
s_or_b64 vcc, vcc, s[40:41]
s_cbranch_vccz {Dn}
s_cmp_gt_u32 s48, {SPIN_LIMIT}
s_cbranch_scc1 {Dn}
s_branch {L}
{Dn}:''')
        for e in range(4): I(f'v_add_f32_dpp v{64+e}, v{64+e}, v{64+e} row_ror:8 row_mask:0xf bank_mask:0xf')
        for sw in ('v_permlane16_swap_b32', 'v_permlane32_swap_b32'):
            for e in range(4): I(f'v_mov_b32 v{68+e}, v{64+e}')
            for e in range(4): I(f'{sw} v{64+e}, v{68+e}')
            for e in range(4): I(f'v_add_f32 v{64+e}, v{64+e}, v{68+e}')
        I(f'''v_cvt_pk_bf16_f32 v68, v64, v66
v_cvt_pk_bf16_f32 v69, v65, v67
s_mov_b32 s40, 0xff00
s_mov_b32 s41, 0
v_cndmask_b32 v68, v68, v69, s[40:41]
s_lshl_b32 s6, s13, 8
s_lshl_b32 s7, s14, 5
s_add_u32 s6, s6, s7
v_bfe_u32 v5, v1, 3, 1
v_lshlrev_b32 v5, 10, v5
v_and_b32 v6, 7, v1
v_lshlrev_b32 v6, 2, v6
v_add_u32 v5, v5, v6
v_add_u32 v5, s6, v5
s_mov_b64 exec, 0xffff
buffer_store_dword v68, v5, s[24:27], 0 offen
s_mov_b64 exec, -1''')
        self.stamp(12)
        I(f'{Lend}:')
        self.stamp_dump('s[20:23]', 16)
        I('s_endpgm')

    def build(self):
        I = self.I
        I('''s_cmp_ge_u32 s2, 256
s_cbranch_scc1 L_exit''')
        if self.p['stamps']:
            self.stamps_init()
            self.stamp(0)
        I('''v_lshrrev_b32 v1, 6, v0
s_and_b32 s4, s2, 7           ; hkv
s_lshr_b32 s5, s2, 3          ; idx
s_mov_b32 s48, 0
v_readfirstlane_b32 s3, v1
s_cmp_ge_u32 s3, 6
s_cbranch_scc1 L_CW
s_cmp_ge_u32 s3, 2
s_cbranch_scc1 L_LD
s_cmp_eq_u32 s3, 1
s_cbranch_scc1 L_J1''')
        self.role_j0()
        self.role_j1()
        self.role_loader()
        self.role_compute()
        I('L_exit:\ns_endpgm')
        head = f'''; Fused decode step: GQA attention over the KV cache + SwiGLU FFN + sigmoid-gated mix.
; @launch grid=(256,1,1) block=(896,1,1) lds={LDS_BYTES}
.amdgcn_target "amdgcn-amd-amdhsa--gfx950"
.text
.globl {KNAME}
.p2align 8
.type {KNAME},@function
{KNAME}:
'''
        foot = f'''.section .rodata,"a"
.p2align 6
.amdhsa_kernel {KNAME}
  .amdhsa_next_free_vgpr 128
  .amdhsa_next_free_sgpr 102
  .amdhsa_accum_offset 128
  .amdhsa_group_segment_fixed_size 0
  .amdhsa_kernarg_size 104
  .amdhsa_user_sgpr_count 2
  .amdhsa_user_sgpr_kernarg_segment_ptr 1
  .amdhsa_system_sgpr_workgroup_id_x 1
.end_amdhsa_kernel
'''
        return head + self.a.text() + foot

def main():
    out = sys.argv[1]
    kw = {}
    for arg in sys.argv[2:]:
        k, v = arg.split('=')
        kw[k] = (v == 'True') if v in ('True', 'False') else int(v)
    open(out, 'w').write(G(**kw).build())

if __name__ == '__main__':
    main()
```

```python
import sys, math, struct
from emit import Asm

def fhex(x): return '0x%08x' % struct.unpack('<I', struct.pack('<f', x))[0]
KNAME = 'gated_mix__gqa_block_cached__swiglu_ffn__decode_kernel'

WS_Q  = 0x000000
WS_F  = 0x020000
WS_ID = 0x030000
COPYB = 0x040000
WS_ST = 0x080000
WS_E  = 0x088000
WS_T1 = 0x100000
WS_T3 = 0x180000
WS_DBG = 0x200000
WS_SIZE = 0x400000

V_OFF = 0
STG0 = 0
STG1 = 16384
WO_OFF = 131072
WD_OFF = 147456
P_OFF = 155648
Q_OFF = 159744
MISC = 160768
MX = MISC
LX = MISC + 128
A1 = MISC + 256
A2 = MISC + 512
GATE = MISC + 640
CNT = MISC + 704
WL = MISC + 1024
C_Q, C_H, C_K, C_1, C_2, C_A, C_M = 0, 4, 8, 12, 16, 20, 24
LDS_BYTES = 163840

SPIN_LIMIT = 300000
SC = ' sc1'
W_J0, W_J1, W_C0, W_L0 = 0, 1, 2, 10

DEF = dict(nt_k=True, nt_v=True, nt_w=True, dk=2, dv=4, dv2=4, dvn=0, stamps=False, na=14, ksig=0, kthr=8,
           slq=2, slf=2, sls=2, sl2=0, sl3=0, pf=False, na_polls=10, force_remote=False, nopoll=False)

class G:
    def __init__(self, **kw):
        self.p = dict(DEF); self.p.update(kw)
        self.a = Asm()
        self.uid = 0
        self.glim = 0 if self.p['nopoll'] else SPIN_LIMIT
    def I(self, s): self.a.I(s)
    def lab(self, base):
        self.uid += 1
        return f'L_{base}_{self.uid}'
    def stamp(self, i):
        if self.p['stamps']:
            self.I(f's_memrealtime s[{64+2*i}:{65+2*i}]')
            self.I('s_waitcnt lgkmcnt(0)')
    def stamp_dump(self, srd, n=12):
        if not self.p['stamps']: return
        I = self.I
        I('s_mov_b64 exec, -1')
        I('s_lshl_b32 s6, s2, 4')
        I('s_add_u32 s6, s6, s3')
        I('s_lshl_b32 s6, s6, 6')
        I(f's_add_u32 s6, s6, {WS_DBG}')
        I('v_mov_b32 v1, s6')
        I('s_mov_b64 exec, 1')
        for j in range(0, n, 4):
            for t in range(4):
                I(f'v_mov_b32 v{4+t}, s{64+2*(j+t)}')
            I(f'buffer_store_dwordx4 v[4:7], v1, {srd}, 0 offen offset:{j*4}')
        I('s_mov_b64 exec, -1')
    def signal(self, vC, vOne, off):
        self.I(f'''s_mov_b64 exec, 1
ds_add_u32 {vC}, {vOne} offset:{off}
s_mov_b64 exec, -1''')
    def lds_wait(self, vC, vT, off, n, sleep=1):
        L = self.lab('lw'); D = self.lab('lwd')
        self.I(f'''{L}:
ds_read_b32 {vT}, {vC} offset:{off}
s_add_u32 s48, s48, 1
s_waitcnt lgkmcnt(0)
v_readfirstlane_b32 s49, {vT}
s_cmp_ge_u32 s49, {n}
s_cbranch_scc1 {D}
s_cmp_gt_u32 s48, {SPIN_LIMIT}
s_cbranch_scc1 {D}''')
        if sleep: self.I(f's_sleep {sleep}')
        self.I(f'''s_branch {L}
{D}:''')
    def tag_load(self, wsbase):
        self.I(f's_load_dword s52, s[{wsbase}:{wsbase+1}], {WS_E}')
        for i in range(4): self.I(f's_mov_b32 s{53+i}, 0x0706050{i}')
        self.I('s_mov_b32 s57, 0x0c0c0400\ns_mov_b32 s58, 0x04000c0c')
    def tag_ready(self):
        self.I('s_waitcnt lgkmcnt(0)\ns_add_u32 s52, s52, 1')
    def tag_acc(self, r, first, acc='v16', t1='v17', t2='v18', t3='v19'):
        self.I(f'v_perm_b32 {t2}, v{r+1}, v{r}, s57\nv_perm_b32 {t3}, v{r+3}, v{r+2}, s58\nv_or_b32 {t2}, {t2}, {t3}')
        if first: self.I(f'v_xor_b32 {acc}, s52, {t2}')
        else: self.I(f'v_xor_b32 {t1}, s52, {t2}\nv_or_b32 {acc}, {acc}, {t1}')
    def poll_tail(self, L, D, acc, sleep):
        self.I(f'''v_cmp_ne_u32 vcc, 0, {acc}
s_cbranch_vccz {D}
s_cmp_gt_u32 s48, {self.glim}
s_cbranch_scc1 {D}''')
        if sleep: self.I(f's_sleep {sleep}')
    def srd(self, base, karg_off, size):
        self.I(f's_load_dwordx2 s[{base}:{base+1}], s[0:1], {karg_off}')
        self.I(f's_mov_b32 s{base+2}, {size}')
        self.I(f's_mov_b32 s{base+3}, 0x20000')
    def lane_setup(self):
        self.I('''v_and_b32 v1, 63, v0
v_lshrrev_b32 v2, 4, v1
v_and_b32 v3, 15, v1''')
    def mode_store(self, ins, smode):
        Lr = self.lab('ms'); Le = self.lab('mse')
        self.I(f'''s_cmp_eq_u32 {smode}, 0
s_cbranch_scc1 {Lr}
{ins}
s_branch {Le}
{Lr}:
{ins}{SC}
{Le}:''')

    def qtile_issue(self, srdW, srdX, sBase, sKs):
        I = self.I; pitch = 8192; stg = STG0
        ntf = ' nt' if self.p['nt_w'] else ''
        I(f'''v_lshrrev_b32 v4, 5, v1
v_lshlrev_b32 v4, 3, v4
v_bfe_u32 v5, v1, 3, 2
v_add_u32 v4, v4, v5
v_mul_u32_u24 v4, {pitch}, v4
v_and_b32 v5, 7, v1
v_bfe_u32 v6, v1, 4, 2
v_lshlrev_b32 v6, 1, v6
v_xor_b32 v5, v5, v6
v_lshlrev_b32 v5, 4, v5
v_add_u32 v4, v4, v5''')
        for i in range(16):
            rowi = 32*(i >> 2) + 16*(i & 1) + 4*((i >> 1) & 1)
            I(f's_mov_b32 m0, {stg + i*1024}')
            I(f's_add_u32 s7, {sBase}, {rowi*pitch}')
            I(f'buffer_load_dwordx4 v4, {srdW}, s7 offen{ntf} lds')
        I(f'''v_and_b32 v5, 1, v3
v_lshlrev_b32 v5, 10, v5
v_lshlrev_b32 v6, 4, v2
v_add_u32 v5, v5, v6
s_lshl_b32 s6, {sKs}, 8
v_add_u32 v5, s6, v5''')
        for kk in range(4):
            I(f'buffer_load_dwordx4 v[{8+4*kk}:{11+4*kk}], v5, {srdX}, 0 offen offset:{kk*64}')
        I(f'''v_lshrrev_b32 v6, 2, v3
v_and_b32 v7, 3, v3
v_lshlrev_b32 v28, 2, v2
v_add_u32 v28, v28, v6
v_lshlrev_b32 v28, 7, v28
v_lshlrev_b32 v7, 3, v7
v_add_u32 v28, v28, v7
v_add_u32 v28, {stg}, v28
v_lshlrev_b32 v29, 1, v2
v_lshrrev_b32 v6, 1, v6
v_add_u32 v29, v29, v6
v_and_b32 v29, 3, v29''')
        for nt_ in range(4):
            I(f'''v_xor_b32 v6, {nt_}, v29
v_lshlrev_b32 v6, 5, v6
v_add_u32 v{24+nt_}, v28, v6''')
    def qtile_compute(self):
        I = self.I
        def reads(kk, setb):
            for nt_ in range(4):
                for hf in range(2):
                    r = setb + 4*nt_ + 2*hf
                    I(f'ds_read_b64_tr_b16 v[{r}:{r+1}], v{24+nt_} offset:{kk*4096 + hf*2048}')
        def mf(kk, setb):
            for nt_ in range(4):
                c = '0' if kk == 0 else f'v[{64+4*nt_}:{67+4*nt_}]'
                I(f'v_mfma_f32_16x16x32_bf16 v[{64+4*nt_}:{67+4*nt_}], v[{8+4*kk}:{11+4*kk}], v[{setb+4*nt_}:{setb+4*nt_+3}], {c}')
        sets = (32, 48)
        reads(0, sets[0])
        for kk in range(4):
            I('s_waitcnt lgkmcnt(0)')
            if kk < 3: reads(kk+1, sets[(kk+1) & 1])
            mf(kk, sets[kk & 1])
        I('''s_mov_b32 s40, 0xffff0000
s_mov_b32 s41, 0
s_mov_b32 s42, 0
s_mov_b32 s43, 0x0000ffff
s_mov_b32 s44, 0
s_mov_b32 s45, 0xffff0000''')
        for b in range(2):
            I(f'''v_cndmask_b32 v{40+b}, v{64+b}, v{68+b}, s[40:41]
v_cndmask_b32 v{40+b}, v{40+b}, v{72+b}, s[42:43]
v_cndmask_b32 v{40+b}, v{40+b}, v{76+b}, s[44:45]''')

    def ftile_issue(self, srdW, srdX, sBase, sKs):
        I = self.I; pitch = 3584; stg = STG1
        ntf = ' nt' if self.p['nt_w'] else ''
        I(f'''v_lshrrev_b32 v4, 4, v1
v_lshlrev_b32 v4, 3, v4
v_bfe_u32 v5, v1, 2, 2
v_add_u32 v4, v4, v5
v_mul_u32_u24 v4, {pitch}, v4
v_and_b32 v5, 3, v1
v_bfe_u32 v6, v1, 4, 1
v_lshlrev_b32 v6, 1, v6
v_xor_b32 v5, v5, v6
v_lshlrev_b32 v5, 4, v5
v_add_u32 v4, v4, v5''')
        for i in range(16):
            rowi = 32*(i >> 1) + 4*(i & 1)
            I(f's_mov_b32 m0, {stg + i*1024}')
            I(f's_add_u32 s7, {sBase}, {rowi*pitch}')
            I(f'buffer_load_dwordx4 v4, {srdW}, s7 offen{ntf} lds')
        I(f'''v_and_b32 v5, 1, v3
v_lshlrev_b32 v5, 10, v5
v_lshlrev_b32 v6, 4, v2
v_add_u32 v5, v5, v6
s_lshl_b32 s6, {sKs}, 9
v_add_u32 v5, s6, v5''')
        for kk in range(8):
            I(f'buffer_load_dwordx4 v[{96+4*kk}:{99+4*kk}], v5, {srdX}, 0 offen offset:{kk*64}')
        I(f'''v_lshrrev_b32 v6, 2, v3
v_and_b32 v7, 3, v3
v_lshlrev_b32 v28, 2, v2
v_add_u32 v28, v28, v6
v_lshlrev_b32 v28, 6, v28
v_lshlrev_b32 v7, 3, v7
v_add_u32 v28, v28, v7
v_add_u32 v28, {stg}, v28
v_and_b32 v29, 1, v2
v_lshlrev_b32 v6, 5, v29
v_add_u32 v24, v28, v6
v_xor_b32 v6, 1, v29
v_lshlrev_b32 v6, 5, v6
v_add_u32 v25, v28, v6''')
    def ftile_compute(self):
        I = self.I
        def reads(k2, setb):
            for kq in range(2):
                kk = 2*k2 + kq
                for nt_ in range(2):
                    for hf in range(2):
                        r = setb + 8*kq + 4*nt_ + 2*hf
                        I(f'ds_read_b64_tr_b16 v[{r}:{r+1}], v{24+nt_} offset:{kk*2048 + hf*1024}')
        def mf(k2, setb):
            for kq in range(2):
                kk = 2*k2 + kq
                for nt_ in range(2):
                    c = '0' if kk == 0 else f'v[{64+4*nt_}:{67+4*nt_}]'
                    r = setb + 8*kq + 4*nt_
                    I(f'v_mfma_f32_16x16x32_bf16 v[{64+4*nt_}:{67+4*nt_}], v[{96+4*kk}:{99+4*kk}], v[{r}:{r+3}], {c}')
        sets = (32, 48)
        reads(0, sets[0])
        for k2 in range(4):
            I('s_waitcnt lgkmcnt(0)')
            if k2 < 3: reads(k2+1, sets[(k2+1) & 1])
            mf(k2, sets[k2 & 1])
        I('''s_mov_b32 s40, 0xffff0000
s_mov_b32 s41, 0
s_mov_b32 s42, 0
s_mov_b32 s43, 0x0000ffff
s_mov_b32 s44, 0
s_mov_b32 s45, 0xffff0000
v_cndmask_b32 v40, v64, v68, s[40:41]
v_cndmask_b32 v40, v40, v65, s[42:43]
v_cndmask_b32 v40, v40, v69, s[44:45]''')

    def role_j0(self):
        I = self.I; p = self.p
        I('L_J0:')
        self.srd(16, 24, 0x400000)
        self.srd(20, 0, 2048)
        self.srd(24, 96, WS_SIZE)
        I('s_barrier')
        self.lane_setup()
        I(f"""s_lshr_b32 s8, s5, 2          ; qcl
s_and_b32 s9, s5, 3           ; ks
s_mul_i32 s10, s9, 128*8192
s_lshl_b32 s6, s4, 10
s_add_u32 s10, s10, s6
s_lshl_b32 s6, s8, 7
s_add_u32 s10, s10, s6
s_getreg_b32 s12, hwreg(HW_REG_XCC_ID, 0, 4)
v_mov_b32 v90, {CNT}
v_mov_b32 v91, 1
s_waitcnt lgkmcnt(0)""")
        self.qtile_issue('s[16:19]', 's[20:23]', 's10', 's9')
        self.tag_load(24)
        I("""v_and_b32 v81, 3, v1
v_add_u32 v81, 0x07060500, v81
s_lshl_b32 s13, s12, 8
v_mov_b32 v82, s13""")
        self.stamp(1)
        I('s_waitcnt vmcnt(0)')
        self.tag_ready()
        I('v_mov_b32 v80, s52')
        self.stamp(2)
        self.qtile_compute()
        I(f"""v_perm_b32 v40, v40, v80, v81
v_perm_b32 v41, v41, v80, v81
v_perm_b32 v82, v82, v80, v81
s_lshl_b32 s6, s4, 3
s_add_u32 s6, s6, s9
s_lshl_b32 s6, s6, 11         ; (g*8 + ks)*2048
s_lshl_b32 s7, s8, 8
s_add_u32 s6, s6, s7
v_lshlrev_b32 v4, 2, v1
v_add_u32 v5, s6, v4
v_add_u32 v6, {4*2048}, v5
s_lshl_b32 s6, s4, 5
s_add_u32 s6, s6, s5
s_lshl_b32 s6, s6, 7
s_add_u32 s6, s6, {WS_ID}
v_add_u32 v7, s6, v4
s_mov_b32 s14, {COPYB}
buffer_store_dword v40, v5, s[24:27], 0 offen
buffer_store_dword v41, v6, s[24:27], 0 offen
s_mov_b32 exec_hi, 0
buffer_store_dword v82, v7, s[24:27], 0 offen
s_mov_b32 exec_hi, -1
buffer_store_dword v40, v5, s[24:27], s14 offen{SC}
buffer_store_dword v41, v6, s[24:27], s14 offen{SC}
s_mov_b32 exec_hi, 0
buffer_store_dword v82, v7, s[24:27], s14 offen{SC}
s_mov_b32 exec_hi, -1""")
        self.stamp(3)
        I(f"""s_lshl_b32 s6, s4, 1
s_lshr_b32 s7, s5, 4          ; b
s_add_u32 s6, s6, s7
s_lshl_b32 s6, s6, 13
v_lshlrev_b32 v4, 4, v1
v_add_u32 v4, s6, v4
v_and_b32 v5, 31, v1
v_lshlrev_b32 v5, 7, v5
s_lshl_b32 s6, s4, 12
s_add_u32 s6, s6, {WS_ID}
v_add_u32 v5, s6, v5
s_mov_b32 s15, {COPYB if p['force_remote'] else 0}
s_mov_b32 s11, 0""")
        L = self.lab('qg'); D = self.lab('qgd'); Lk = self.lab('qgk')
        I(f'{L}:')
        for ks in range(4):
            I(f's_add_u32 s7, s15, {ks*2048}')
            for i in range(2):
                r = 8 + 8*ks + 4*i
                I(f'buffer_load_dwordx4 v[{r}:{r+3}], v4, s[24:27], s7 offen offset:{i*1024}{SC}')
        I(f'buffer_load_dwordx4 v[40:43], v5, s[24:27], s15 offen{SC}')
        I('s_add_u32 s48, s48, 1\ns_add_u32 s11, s11, 1\ns_waitcnt vmcnt(0)')
        for j in range(9):
            self.tag_acc(8 + 4*j, j == 0, 'v44', 'v45', 'v46', 'v47')
        self.poll_tail(L, D, 'v44', p['slq'])
        if not p['force_remote']:
            I(f"""s_cmp_lt_u32 s11, {p['na_polls']}
s_cbranch_scc1 {L}
s_xor_b32 s15, s15, {COPYB}""")
        I(f"""s_branch {L}
{D}:""")
        self.stamp(5)
        I(f"""v_bfe_u32 v40, v40, 8, 4
v_cmp_ne_u32 vcc, s12, v40
s_cmp_eq_u64 vcc, 0
s_cselect_b32 s6, {0 if p['force_remote'] else 1}, 0
v_mov_b32 v44, s6
s_mov_b64 exec, 1
ds_write_b32 v90, v44 offset:{C_M}
s_mov_b64 exec, -1""")
        for e in range(8):
            I(f'v_add_f32 v{8+e}, v{8+e}, v{16+e}')
            I(f'v_add_f32 v{24+e}, v{24+e}, v{32+e}')
        for e in range(8):
            I(f'v_add_f32 v{8+e}, v{8+e}, v{24+e}')
        I(f"""v_cvt_pk_bf16_f32 v40, v8, v9
v_cvt_pk_bf16_f32 v41, v10, v11
v_cvt_pk_bf16_f32 v42, v12, v13
v_cvt_pk_bf16_f32 v43, v14, v15
v_lshlrev_b32 v4, 3, v1
v_add_u32 v4, {Q_OFF}, v4
ds_write_b64 v4, v[40:41]
ds_write_b64 v4, v[42:43] offset:512""")
        self.signal('v90', 'v91', C_Q)
        I('s_waitcnt lgkmcnt(0)')
        self.stamp(6)
        self.stamp_dump('s[24:27]')
        I('s_endpgm')

    def role_j1(self):
        I = self.I; p = self.p
        I('L_J1:')
        I('s_load_dwordx4 s[8:11], s[0:1], 48')
        self.srd(20, 0, 2048)
        self.srd(24, 96, WS_SIZE)
        self.srd(28, 72, 1024)
        I('s_barrier')
        self.lane_setup()
        I(f"""s_mul_i32 s12, s5, 9363
s_lshr_b32 s12, s12, 16
s_mul_i32 s13, s12, 7
s_sub_u32 s13, s5, s13        ; cf
s_and_b32 s14, s12, 1         ; mat
s_lshr_b32 s15, s12, 1        ; ks
v_mov_b32 v90, {CNT}
v_mov_b32 v91, 1
s_waitcnt lgkmcnt(0)
s_cmp_eq_u32 s14, 0
s_cselect_b32 s16, s8, s10
s_cselect_b32 s17, s9, s11
s_mov_b32 s18, {512*1792*2}
s_mov_b32 s19, 0x20000
s_mul_i32 s8, s15, 256*3584
s_mul_i32 s6, s4, 448
s_add_u32 s8, s8, s6
s_lshl_b32 s6, s13, 6
s_add_u32 s8, s8, s6""")
        Lskip = self.lab('nof1'); Lj = self.lab('f1j')
        I(f"""s_cmp_ge_u32 s5, 28
s_cbranch_scc1 {Lskip}""")
        self.ftile_issue('s[16:19]', 's[20:23]', 's8', 's15')
        I(f'{Lskip}:')
        I("""v_lshlrev_b32 v80, 4, v1
buffer_load_dwordx4 v[84:87], v80, s[20:23], 0 offen
buffer_load_dwordx4 v[88:91], v80, s[20:23], 0 offen offset:1024
buffer_load_dwordx4 v[92:95], v80, s[28:31], 0 offen""")
        self.tag_load(24)
        I("""v_and_b32 v81, 3, v1
v_add_u32 v81, 0x07060500, v81""")
        self.stamp(1)
        I('s_waitcnt vmcnt(0)')
        self.tag_ready()
        I('v_mov_b32 v80, s52')
        self.stamp(2)
        I(f"""s_cmp_ge_u32 s5, 28
s_cbranch_scc1 {Lj}""")
        self.ftile_compute()
        I(f"""v_perm_b32 v40, v40, v80, v81
s_lshl_b32 s6, s4, 2
s_add_u32 s6, s6, s12
s_lshl_b32 s6, s4, 2
s_lshl_b32 s7, s14, 1
s_add_u32 s6, s6, s7
s_add_u32 s6, s6, s15
s_lshl_b32 s6, s6, 11         ; *[b 2][256] f32
s_lshl_b32 s7, s13, 7
s_add_u32 s6, s6, s7
s_add_u32 s6, s6, {WS_F}
v_lshrrev_b32 v4, 5, v1
v_lshlrev_b32 v4, 10, v4
v_and_b32 v5, 31, v1
v_lshlrev_b32 v5, 2, v5
v_add_u32 v4, v4, v5
v_add_u32 v4, s6, v4
s_mov_b32 s7, {COPYB}
buffer_store_dword v40, v4, s[24:27], 0 offen
buffer_store_dword v40, v4, s[24:27], s7 offen{SC}""")
        I(f'{Lj}:')
        self.stamp(3)
        I('v_mov_b32 v8, 0\nv_mov_b32 v9, 0')
        for e in range(4):
            I(f"""v_lshlrev_b32 v10, 16, v{92+e}
v_and_b32 v11, 0xffff0000, v{92+e}
v_lshlrev_b32 v12, 16, v{84+e}
v_and_b32 v13, 0xffff0000, v{84+e}
v_lshlrev_b32 v14, 16, v{88+e}
v_and_b32 v15, 0xffff0000, v{88+e}
v_fmac_f32 v8, v10, v12
v_fmac_f32 v9, v10, v14
v_fmac_f32 v8, v11, v13
v_fmac_f32 v9, v11, v15""")
        for rr in (8, 4, 2, 1):
            I(f'v_add_f32_dpp v8, v8, v8 row_ror:{rr} row_mask:0xf bank_mask:0xf')
            I(f'v_add_f32_dpp v9, v9, v9 row_ror:{rr} row_mask:0xf bank_mask:0xf')
        for sw in ('v_permlane16_swap_b32', 'v_permlane32_swap_b32'):
            I(f"""v_mov_b32 v10, v8
v_mov_b32 v11, v9
{sw} v8, v10
{sw} v9, v11
v_add_f32 v8, v8, v10
v_add_f32 v9, v9, v11""")
        I(f"""v_mul_f32 v8, {fhex(-math.log2(math.e))}, v8
v_mul_f32 v9, {fhex(-math.log2(math.e))}, v9
v_exp_f32 v8, v8
v_exp_f32 v9, v9
v_add_f32 v8, 1.0, v8
v_add_f32 v9, 1.0, v9
v_rcp_f32 v8, v8
v_rcp_f32 v9, v9
v_mov_b32 v10, {GATE}
s_mov_b64 exec, 1
ds_write_b64 v10, v[8:9]
s_mov_b64 exec, -1
s_mov_b32 s40, 0
s_mov_b32 s41, -1
v_cndmask_b32 v16, v8, v9, s[40:41]
v_sub_f32 v16, 1.0, v16""")
        I('v_mov_b32 v90, %d\nv_mov_b32 v91, 1' % CNT)
        self.signal('v90', 'v91', C_H)
        self.lds_wait('v90', 'v7', C_Q, 1, sleep=2)
        I(f"""ds_read_b32 v7, v90 offset:{C_M}
s_lshl_b32 s6, s4, 13         ; g*[mat][ks][b][256]*4
s_lshr_b32 s7, s5, 2
s_mul_i32 s7, s7, 112
s_add_u32 s6, s6, s7
s_add_u32 s6, s6, {WS_F}
v_and_b32 v4, 31, v1
v_min_u32 v5, 27, v4
v_and_b32 v17, 3, v5
v_lshlrev_b32 v17, 3, v17
v_lshrrev_b32 v17, v17, v80
v_lshlrev_b32 v5, 2, v5
v_lshrrev_b32 v6, 5, v1
v_lshlrev_b32 v6, 10, v6
v_add_u32 v5, v5, v6
v_add_u32 v5, s6, v5
s_waitcnt lgkmcnt(0)
v_readfirstlane_b32 s6, v7
s_cmp_eq_u32 s6, 0
s_cselect_b32 s15, {COPYB}, 0""")
        L = self.lab('hg'); D = self.lab('hgd')
        I(f'{L}:')
        for m in range(4):
            I(f's_add_u32 s7, s15, {m*2048}')
            I(f'buffer_load_dword v{24+m}, v5, s[24:27], s7 offen{SC}')
        I('s_add_u32 s48, s48, 1\ns_waitcnt vmcnt(0)')
        I('v_xor_b32 v18, v24, v17')
        for j in range(1, 4):
            I(f'v_xor_b32 v19, v{24+j}, v17\nv_or_b32 v18, v18, v19')
        I('v_and_b32 v18, 0xff, v18')
        self.poll_tail(L, D, 'v18', p['slf'])
        I(f"""s_branch {L}
{D}:""")
        self.stamp(5)
        I(f"""v_add_f32 v24, v24, v25
v_add_f32 v28, v26, v27
v_mul_f32 v25, {fhex(-math.log2(math.e))}, v24
v_exp_f32 v25, v25
v_add_f32 v25, 1.0, v25
v_rcp_f32 v25, v25
v_mul_f32 v24, v24, v25
v_mul_f32 v24, v24, v28
v_mul_f32 v24, v24, v16
v_cmp_gt_u32 vcc, 28, v4
v_cndmask_b32 v24, 0, v24, vcc
v_cvt_pk_bf16_f32 v24, v24, v24
v_bfe_u32 v6, v4, 2, 2
v_lshlrev_b32 v6, 4, v6
v_lshrrev_b32 v7, 4, v4
v_lshlrev_b32 v7, 3, v7
v_add_u32 v6, v6, v7
v_and_b32 v7, 3, v4
v_lshlrev_b32 v7, 1, v7
v_add_u32 v6, v6, v7
v_lshrrev_b32 v7, 5, v1
v_lshlrev_b32 v7, 6, v7
v_add_u32 v6, v6, v7
v_add_u32 v6, {A2}, v6
ds_write_b16 v6, v24
s_waitcnt lgkmcnt(0)""")
        self.stamp(6)
        self.stamp_dump('s[24:27]')
        I('s_endpgm')

    def role_loader(self):
        I = self.I; p = self.p
        ntv = ' nt' if p['nt_v'] else ''
        ntw = ' nt' if p['nt_w'] else ''
        I('L_LD:')
        I(f"""s_sub_u32 s8, s3, {W_L0}           ; loader j
v_mov_b32 v90, {CNT}
v_mov_b32 v91, 1
s_cmp_lg_u32 s8, 0
s_cbranch_scc1 L_LD_noinit
v_mov_b32 v8, 0
v_mov_b32 v9, 0
v_mov_b32 v10, 0
v_mov_b32 v11, 0
ds_write_b128 v90, v[8:11]
ds_write_b128 v90, v[8:11] offset:16
s_waitcnt lgkmcnt(0)
L_LD_noinit:
s_barrier""")
        self.srd(16, 16, 0x2000000)
        self.srd(20, 32, 0x400000)
        self.srd(24, 64, 1792*512*2)
        self.srd(28, 96, WS_SIZE)
        self.lane_setup()
        if p['pf']:
            I(f"""s_cmp_lg_u32 s8, 3
s_cbranch_scc1 L_LD_nopf
s_getpc_b64 s[36:37]
L_PC:
s_add_u32 s36, s36, {KNAME}-L_PC
s_addc_u32 s37, s37, -1
v_lshlrev_b32 v4, 4, v1
s_mov_b32 s6, L_codeend-{KNAME}-16""")
            for j in range(p.get('pfn', 14)):
                I(f"""v_min_u32 v5, s6, v4
global_load_dwordx4 v[12:15], v5, s[36:37]
v_add_u32 v4, 1024, v4""")
            I('L_LD_nopf:')
        I('s_waitcnt lgkmcnt(0)')
        I(f"""s_and_b32 s6, s8, 1
s_lshl_b32 s6, s6, 2
v_add_u32 v5, s6, v2          ; (4*(j&1) + rho)
v_lshlrev_b32 v5, 1, v5
v_xor_b32 v5, v5, v3          ; chunk
v_lshlrev_b32 v5, 4, v5
v_lshlrev_b32 v6, 8, v2
v_add_u32 v10, v5, v6         ; V voffset
v_lshlrev_b32 v6, 17, v2
v_add_u32 v11, v5, v6
v_lshlrev_b32 v6, 10, v2
v_add_u32 v16, v5, v6
s_lshr_b32 s6, s5, 4          ; b
s_lshl_b32 s6, s6, 3
s_add_u32 s6, s6, s4          ; bh
s_lshl_b32 s10, s6, 21
s_and_b32 s6, s5, 15          ; t
s_lshl_b32 s6, s6, 17
s_add_u32 s10, s10, s6
s_lshl_b32 s6, s8, 10
s_add_u32 s10, s10, s6
s_lshr_b32 s11, s5, 2         ; w'
s_and_b32 s12, s5, 3          ; cg
s_lshl_b32 s13, s4, 9
s_lshl_b32 s6, s11, 4
s_add_u32 s13, s13, s6
s_add_u32 s13, s13, s8
s_lshl_b32 s13, s13, 10
s_lshl_b32 s6, s12, 8
s_add_u32 s13, s13, s6
s_lshl_b32 s14, s4, 3
s_add_u32 s14, s14, s11       ; rg
s_mul_i32 s14, s14, 28
s_lshl_b32 s6, s8, 2
s_add_u32 s15, s14, s6
s_add_u32 s6, s8, 4
s_min_u32 s6, s6, 6
s_lshl_b32 s6, s6, 2
s_add_u32 s14, s14, s6
s_lshl_b32 s15, s15, 10
s_lshl_b32 s14, s14, 10
s_lshl_b32 s6, s12, 8
s_add_u32 s15, s15, s6
s_add_u32 s14, s14, s6
s_lshl_b32 s9, s8, 10         ; j*1024""")
        self.stamp(1)
        self.lds_wait('v90', 'v7', C_K, p['kthr'], sleep=2)
        I('s_waitcnt vmcnt(0)')
        self.stamp(2)
        loads = []
        for q in range(32):
            loads.append([f's_add_u32 m0, s9, {V_OFF + q*4096}',
                          f's_add_u32 s6, s10, {q*4096}',
                          f'buffer_load_dwordx4 v10, s[16:19], s6 offen{ntv} lds'])
        for q in range(4):
            loads.append([f's_add_u32 m0, s9, {WO_OFF + q*4096}',
                          f's_add_u32 s6, s13, {q*4096}',
                          f'buffer_load_dwordx4 v11, s[20:23], s6 offen{ntw} lds'])
        loads.append([f's_add_u32 m0, s9, {WD_OFF}', 's_nop 0', f'buffer_load_dwordx4 v16, s[24:27], s15 offen{ntw} lds'])
        loads.append([f's_add_u32 m0, s9, {WD_OFF + 4096}', 's_nop 0', f'buffer_load_dwordx4 v16, s[24:27], s14 offen{ntw} lds'])
        n = len(loads)
        nA = 2 * p['na']
        marks = {nA - 1: 'A', 31: 'V'}
        def mark(m):
            if m == 'A': self.signal('v90', 'v91', C_A)
            else: I('s_barrier')
            self.stamp(3 if m == 'A' else 4)
        def depth(i): return p['dv2'] if i >= n - p['dvn'] else p['dv']
        done = -1
        issued = 0
        pend = sorted(marks)
        while issued < n:
            D = depth(issued)
            need_done = issued - D
            if need_done > done:
                I(f's_waitcnt vmcnt({issued - 1 - need_done})')
                done = need_done
            for l in loads[issued]: I(l)
            issued += 1
            while pend and pend[0] <= done:
                mark(marks[pend.pop(0)])
        while done < n - 1:
            done += 1
            if pend and pend[0] == done or done == n - 1:
                I(f's_waitcnt vmcnt({n - 1 - done})')
            while pend and pend[0] <= done:
                mark(marks[pend.pop(0)])
        self.stamp(5)
        I('s_barrier')
        self.stamp_dump('s[28:31]')
        I('s_endpgm')

    def role_compute(self):
        I = self.I; p = self.p
        ntk = ' nt' if p['nt_k'] else ''
        cexp = math.log2(math.e) / math.sqrt(128.0)
        I('L_CW:')
        self.srd(16, 8, 0x2000000)
        self.srd(20, 96, WS_SIZE)
        self.srd(24, 80, 2048)
        I('s_barrier')
        self.lane_setup()
        I(f"""s_sub_u32 s8, s3, {W_C0}           ; cw
s_lshr_b32 s6, s5, 4          ; b
s_lshl_b32 s6, s6, 3
s_add_u32 s6, s6, s4
s_lshl_b32 s10, s6, 21
s_and_b32 s6, s5, 15
s_lshl_b32 s6, s6, 17
s_add_u32 s10, s10, s6
s_lshl_b32 s6, s8, 14
s_add_u32 s10, s10, s6
v_lshlrev_b32 v4, 8, v3
v_lshlrev_b32 v5, 4, v2
v_add_u32 v4, v4, v5          ; K voffset
v_mov_b32 v62, {CNT}
v_mov_b32 v63, 1
s_waitcnt lgkmcnt(0)""")
        D = p['dk']
        def kload(i):
            tt, kk = divmod(i, 4)
            if kk == 0: I(f's_add_u32 s11, s10, {tt*4096}')
            I(f'buffer_load_dwordx4 v[{64+4*i}:{67+4*i}], v4, s[16:19], s11 offen offset:{kk*64}{ntk}')
        for i in range(D): kload(i)
        self.tag_load(20)
        self.stamp(1)
        vC, vOne = 'v62', 'v63'
        for i in range(D, 16):
            I(f's_waitcnt vmcnt({D-1})')
            kload(i)
            if i == 15 - p['ksig']:
                self.signal(vC, vOne, C_K)
        self.stamp(2)
        self.tag_ready()
        I(f"""v_and_b32 v5, 3, v3           ; head = n&3
v_lshlrev_b32 v6, 8, v5
v_lshlrev_b32 v7, 4, v2
v_add_u32 v60, v6, v7
v_add_u32 v60, {Q_OFF}, v60
v_lshlrev_b32 v61, 5, v5
v_add_u32 v61, {MX}, v61
s_lshl_b32 s6, s8, 2
v_add_u32 v59, s6, v61""")
        self.lds_wait(vC, 'v5', C_Q, 1, sleep=2)
        self.stamp(3)
        for kk in range(4):
            I(f'ds_read_b128 v[{32+4*kk}:{35+4*kk}], v60 offset:{kk*64}')
        I(f'ds_read_b32 v5, {vC} offset:{C_M}')
        I('s_waitcnt lgkmcnt(0)\nv_readfirstlane_b32 s51, v5')
        for tt in range(4):
            I(f's_waitcnt vmcnt({12 - 4*tt})')
            for kk in range(4):
                c = '0' if kk == 0 else f'v[{16+4*tt}:{19+4*tt}]'
                r = 64 + 16*tt + 4*kk
                I(f'v_mfma_f32_16x16x32_bf16 v[{16+4*tt}:{19+4*tt}], v[{r}:{r+3}], v[{32+4*kk}:{35+4*kk}], {c}')
        I('v_max3_f32 v5, v16, v17, v18')
        for e in range(19, 31, 2):
            I(f'v_max3_f32 v5, v5, v{e}, v{e+1}')
        I('v_max_f32 v5, v5, v31')
        for sw in ('v_permlane16_swap_b32', 'v_permlane32_swap_b32'):
            I(f"""v_mov_b32 v6, v5
{sw} v5, v6
v_max_f32 v5, v5, v6""")
        I("""s_mov_b64 exec, 15
ds_write_b32 v59, v5
s_mov_b64 exec, -1""")
        self.signal(vC, vOne, C_1)
        self.lds_wait(vC, 'v6', C_1, 8, sleep=0)
        I(f"""ds_read_b128 v[48:51], v61
ds_read_b128 v[52:55], v61 offset:16
s_mov_b32 s50, {fhex(cexp)}
s_waitcnt lgkmcnt(0)
v_max3_f32 v48, v48, v49, v50
v_max3_f32 v51, v51, v52, v53
v_max3_f32 v48, v48, v54, v55
v_max_f32 v48, v48, v51
v_mul_f32 v58, s50, v48""")
        for e in range(16):
            I(f'v_fma_f32 v{16+e}, v{16+e}, s50, -v58')
        for e in range(16):
            I(f'v_exp_f32 v{16+e}, v{16+e}')
        for q in range(8):
            I(f'v_cvt_pk_bf16_f32 v{48+q}, v{16+2*q}, v{17+2*q}')
        I(f"""s_lshl_b32 s6, s8, 9
s_add_u32 s6, s6, {P_OFF}
v_lshlrev_b32 v6, 6, v2
v_lshlrev_b32 v7, 4, v3
v_add_u32 v6, v6, v7
v_add_u32 v6, s6, v6
s_mov_b32 s40, 0x000f000f
s_mov_b32 s41, 0x000f000f
s_mov_b64 exec, s[40:41]
ds_write_b128 v6, v[48:51]
ds_write_b128 v6, v[52:55] offset:256
s_mov_b64 exec, -1""")
        for e in range(8): I(f'v_add_f32 v{16+e}, v{16+e}, v{24+e}')
        for e in range(4): I(f'v_add_f32 v{16+e}, v{16+e}, v{20+e}')
        I("""v_add_f32 v16, v16, v17
v_add_f32 v18, v18, v19
v_add_f32 v5, v16, v18""")
        for sw in ('v_permlane16_swap_b32', 'v_permlane32_swap_b32'):
            I(f"""v_mov_b32 v6, v5
{sw} v5, v6
v_add_f32 v5, v5, v6""")
        I("""s_mov_b64 exec, 15
ds_write_b32 v59, v5 offset:128
s_mov_b64 exec, -1""")
        self.signal(vC, vOne, C_2)
        self.lds_wait(vC, 'v6', C_2, 8, sleep=0)
        self.stamp(4)
        I(f"""s_lshl_b32 s12, s4, 5
s_add_u32 s12, s12, s5        ; slot
v_mov_b32 v47, s52""")
        Ls = self.lab('nostat')
        I(f"""s_cmp_lg_u32 s8, 0
s_cbranch_scc1 {Ls}
ds_read_b128 v[48:51], v61 offset:128
ds_read_b128 v[52:55], v61 offset:144
v_and_b32 v6, 3, v1
v_add_u32 v6, 0x07060500, v6
s_waitcnt lgkmcnt(0)
v_add_f32 v48, v48, v49
v_add_f32 v50, v50, v51
v_add_f32 v52, v52, v53
v_add_f32 v54, v54, v55
v_add_f32 v48, v48, v50
v_add_f32 v52, v52, v54
v_add_f32 v48, v48, v52
s_mov_b32 s40, 0xf0f0f0f0
s_mov_b32 s41, 0
v_cndmask_b32 v48, v58, v48, s[40:41]
v_perm_b32 v48, v48, v47, v6
s_lshl_b32 s6, s12, 7
s_add_u32 s6, s6, {WS_ST}
v_lshlrev_b32 v6, 2, v1
s_mov_b32 exec_hi, 0""")
        self.mode_store('buffer_store_dword v48, v6, s[20:23], s6 offen', 's51')
        I('s_mov_b32 exec_hi, -1')
        self.lds_wait(vC, 'v5', C_H, 1, sleep=1)
        I(f"""v_mov_b32 v5, {GATE}
ds_read_b64 v[6:7], v5
s_mov_b32 s40, 0
s_mov_b32 s41, -1
v_lshrrev_b32 v5, 5, v1
v_lshlrev_b32 v5, 4, v5
v_add_u32 v5, v5, v3          ; b'*16 + t'
v_lshlrev_b32 v49, 4, v5
v_add_u32 v49, {WL}, v49
s_lshl_b32 s6, s4, 5
v_add_u32 v5, s6, v5          ; slot'
v_lshlrev_b32 v5, 7, v5
v_add_u32 v5, {WS_ST}, v5
s_waitcnt lgkmcnt(0)
v_cndmask_b32 v48, v6, v7, s[40:41]   ; g_b (b = lane>>5)""")
        L = self.lab('st'); Dn = self.lab('std')
        I(f"""{L}:
buffer_load_dwordx4 v[16:19], v5, s[20:23], 0 offen{SC}
buffer_load_dwordx4 v[20:23], v5, s[20:23], 0 offen offset:16{SC}
s_add_u32 s48, s48, 1
s_waitcnt vmcnt(0)""")
        self.tag_acc(16, True, 'v50', 'v51', 'v6', 'v7')
        self.tag_acc(20, False, 'v50', 'v51', 'v6', 'v7')
        self.poll_tail(L, Dn, 'v50', p['sls'])
        I(f"""s_branch {L}
{Dn}:""")
        for h in range(4): I(f'v_mov_b32 v{24+h}, v{16+h}')
        for rr in (8, 4, 2, 1):
            for h in range(4): I(f'v_max_f32_dpp v{24+h}, v{24+h}, v{24+h} row_ror:{rr} row_mask:0xf bank_mask:0xf')
        for h in range(4): I(f'v_sub_f32 v{16+h}, v{16+h}, v{24+h}')
        for h in range(4): I(f'v_exp_f32 v{16+h}, v{16+h}')
        for h in range(4): I(f'v_mul_f32 v{20+h}, v{20+h}, v{16+h}')
        for rr in (8, 4, 2, 1):
            for h in range(4): I(f'v_add_f32_dpp v{20+h}, v{20+h}, v{20+h} row_ror:{rr} row_mask:0xf bank_mask:0xf')
        for h in range(4): I(f'v_rcp_f32 v{20+h}, v{20+h}')
        for h in range(4): I(f'v_mul_f32 v{16+h}, v{16+h}, v48')
        for h in range(4): I(f'v_mul_f32 v{16+h}, v{16+h}, v{20+h}')
        I(f"""ds_write_b128 v49, v[16:19]
s_waitcnt lgkmcnt(0)
{Ls}:""")
        I(f"""v_and_b32 v5, 3, v3
v_lshlrev_b32 v5, 4, v5
v_lshlrev_b32 v6, 6, v2
v_add_u32 v5, v5, v6
v_add_u32 v5, {P_OFF}, v5""")
        for st in range(16):
            if st == 8: I('s_waitcnt lgkmcnt(0)')
            I(f'ds_read_b128 v[{64+4*st}:{67+4*st}], v5 offset:{st*256}')
        I(f"""v_lshrrev_b32 v5, 2, v3       ; r
v_and_b32 v6, 3, v3           ; c4
v_lshlrev_b32 v7, 2, v2
v_add_u32 v7, v7, v5          ; 4s + r
v_and_b32 v48, 7, v7          ; (4(s&1) + r)
v_xor_b32 v48, s8, v48
v_lshlrev_b32 v48, 5, v48
v_lshlrev_b32 v7, 8, v7
v_add_u32 v7, v7, v48
v_lshlrev_b32 v6, 3, v6
v_add_u32 v56, v7, v6
v_add_u32 v57, 0x10000, v56
v_add_u32 v59, 0x20000, v56""")
        I(f"""s_lshr_b32 s13, s5, 2         ; w'
s_and_b32 s14, s5, 3          ; cg
s_and_b32 s15, s8, 1
s_lshl_b32 s6, s15, 4
v_add_u32 v5, s6, v2          ; b*16 + tq
v_lshlrev_b32 v12, 4, v5
v_add_u32 v12, {WL}, v12
s_lshl_b32 s6, s4, 5
v_add_u32 v61, s6, v5         ; slot' (i = 0)
v_lshlrev_b32 v61, 11, v61
s_lshl_b32 s6, s13, 4
v_add_u32 v6, s6, v3
v_lshlrev_b32 v6, 4, v6
v_add_u32 v61, v61, v6
v_add_u32 v61, {WS_T1}, v61
v_lshrrev_b32 v6, 3, v3
v_lshlrev_b32 v6, 6, v6
v_bfe_u32 v7, v3, 2, 1
v_lshlrev_b32 v7, 3, v7       ; half*8
v_add_u32 v6, v6, v7
v_and_b32 v7, 3, v3
v_lshlrev_b32 v7, 4, v7       ; sA*16
v_add_u32 v6, v6, v7
s_lshl_b32 s6, s15, 7
s_add_u32 s6, s6, {A1}
v_add_u32 v60, s6, v6
s_lshl_b32 s6, s12, 11
s_lshl_b32 s7, s8, 8
s_add_u32 s6, s6, s7
s_add_u32 s6, s6, {WS_T1}
v_lshlrev_b32 v58, 4, v3
v_add_u32 v58, s6, v58
v_and_b32 v6, 1, v3
v_lshlrev_b32 v44, 1, v6
v_add_u32 v50, 0x07060500, v44
v_add_u32 v51, 1, v50
v_mov_b32 v49, s52               ; T
v_lshlrev_b32 v7, 6, v6
v_lshlrev_b32 v6, 7, v6
v_lshlrev_b32 v48, 4, v2
v_add_u32 v6, v6, v48
v_add_u32 v62, {A1}, v6
v_add_u32 v7, v7, v48
v_add_u32 v48, {A2}, v7
s_lshl_b32 s6, s14, 3
s_add_u32 s6, s6, s8
s_lshl_b32 s6, s6, 6
s_lshl_b32 s7, s4, 3
s_add_u32 s7, s7, s13
s_add_u32 s6, s6, s7
s_lshl_b32 s6, s6, 7
s_add_u32 s6, s6, {WS_T3}
v_lshlrev_b32 v63, 3, v3
v_add_u32 v63, s6, v63
v_mov_b32 v13, {CNT}
s_waitcnt lgkmcnt(0)""")
        self.stamp(5)
        self.lds_wait('v13', 'v5', C_A, 4, sleep=1)
        self.stamp(6)
        def vread(st, r):
            base = 'v56' if st < 8 else 'v57'
            o = (st & 7) * 8192
            I(f'ds_read_b64_tr_b16 v[{r}:{r+1}], {base} offset:{o}')
            I(f'ds_read_b64_tr_b16 v[{r+2}:{r+3}], {base} offset:{o+4096}')
        def vmfma(st, r):
            c = '0' if st == 0 else 'v[8:11]'
            I(f'v_mfma_f32_16x16x32_bf16 v[8:11], v[{64+4*st}:{67+4*st}], v[{r}:{r+3}], {c}')
        na = p['na']
        batches = []
        st = 0
        while st < na:
            b = list(range(st, min(st + 4, na))); batches.append(b); st += len(b)
        sets = (16, 32)
        for k, b in enumerate(batches):
            if k == 0:
                for j, st in enumerate(b): vread(st, sets[0] + 4*j)
            I('s_waitcnt lgkmcnt(0)')
            if k + 1 < len(batches):
                for j, st in enumerate(batches[k+1]): vread(st, sets[(k+1) & 1] + 4*j)
            for j, st in enumerate(b): vmfma(st, sets[k & 1] + 4*j)
        I('s_barrier')
        self.stamp(7)
        rest = list(range(na, 16))
        for j, st in enumerate(rest): vread(st, 16 + 4*j)
        for j, st in enumerate(rest):
            I(f's_waitcnt lgkmcnt({2*(len(rest)-1-j)})')
            vmfma(st, 16 + 4*j)
        for e in range(4): I(f'v_perm_b32 v{8+e}, v{8+e}, v49, s{53+e}')
        I('s_mov_b64 exec, 0xffff')
        self.mode_store('buffer_store_dwordx4 v[8:11], v58, s[20:23], 0 offen', 's51')
        I('s_mov_b64 exec, -1')
        I('ds_read_b128 v[52:55], v48')
        self.stamp(8)
        Lng = self.lab('nog')
        I(f"""s_cmp_gt_u32 s8, 1
s_cbranch_scc1 {Lng}""")
        for i in range(4): I(f'ds_read_b128 v[{80+4*i}:{83+4*i}], v12 offset:{i*64}')
        I(f's_mov_b32 s6, {4*2048}\ns_mov_b32 s7, {8*2048}\ns_mov_b32 s9, {12*2048}')
        L = self.lab('t2'); Dn = self.lab('t2d')
        I(f'{L}:')
        for i, so in enumerate(('0', 's6', 's7', 's9')):
            I(f'buffer_load_dwordx4 v[{64+4*i}:{67+4*i}], v61, s[20:23], {so} offen{SC}')
        I('s_add_u32 s48, s48, 1')
        for i in range(4):
            I(f's_waitcnt vmcnt({3-i})')
            self.tag_acc(64 + 4*i, i == 0)
        self.poll_tail(L, Dn, 'v16', p['sl2'])
        I(f"""s_branch {L}
{Dn}:""")
        self.stamp(9)
        I('s_waitcnt lgkmcnt(0)')
        for h in range(4): I(f'v_mul_f32 v{16+h}, v{64+h}, v{80+h}')
        for i in range(1, 4):
            for h in range(4): I(f'v_fmac_f32 v{16+h}, v{64+4*i+h}, v{80+4*i+h}')
        for sw in ('v_permlane16_swap_b32', 'v_permlane32_swap_b32'):
            for h in range(4): I(f'v_mov_b32 v{20+h}, v{16+h}')
            for h in range(4): I(f'{sw} v{16+h}, v{20+h}')
            for h in range(4): I(f'v_add_f32 v{16+h}, v{16+h}, v{20+h}')
        I(f"""v_cvt_pk_bf16_f32 v16, v16, v17
v_cvt_pk_bf16_f32 v17, v18, v19
s_mov_b64 exec, 0xffff
ds_write_b64 v60, v[16:17]
s_mov_b64 exec, -1
s_waitcnt lgkmcnt(0)
{Lng}:
s_barrier""")
        self.stamp(10)
        I("""ds_read_b64_tr_b16 v[16:17], v59 offset:16384
ds_read_b64_tr_b16 v[18:19], v59 offset:20480
ds_read_b128 v[32:35], v62
ds_read_b64_tr_b16 v[20:21], v59
ds_read_b64_tr_b16 v[22:23], v59 offset:4096
ds_read_b128 v[36:39], v62 offset:64
ds_read_b64_tr_b16 v[24:25], v59 offset:8192
ds_read_b64_tr_b16 v[26:27], v59 offset:12288
s_waitcnt lgkmcnt(6)
v_mfma_f32_16x16x32_bf16 v[8:11], v[52:55], v[16:19], 0
s_waitcnt lgkmcnt(3)
v_mfma_f32_16x16x32_bf16 v[8:11], v[32:35], v[20:23], v[8:11]
s_waitcnt lgkmcnt(0)
v_mfma_f32_16x16x32_bf16 v[8:11], v[36:39], v[24:27], v[8:11]""")
        I(f"""v_perm_b32 v8, v8, v49, v50
v_perm_b32 v9, v9, v49, v51
s_mov_b64 exec, 0xffff
buffer_store_dwordx2 v[8:9], v63, s[20:23], 0 offen{SC}
s_mov_b64 exec, -1""")
        self.stamp(11)
        Lend = 'L_CW_end'
        I(f"""s_cmp_ge_u32 s2, 32
s_cbranch_scc1 {Lend}
s_cmp_lg_u32 s8, 0
s_cbranch_scc1 {Lend}
s_and_b32 s13, s2, 3          ; cg3
s_lshr_b32 s14, s2, 2         ; o8
s_lshl_b32 s6, s13, 3
s_add_u32 s6, s6, s14
s_lshl_b32 s6, s6, 13
s_add_u32 s6, s6, {WS_T3}
v_lshlrev_b32 v5, 4, v1
v_add_u32 v5, s6, v5
s_mov_b32 s7, 4096
s_lshl_b32 s6, s13, 8
s_lshl_b32 s9, s14, 5
s_add_u32 s6, s6, s9
v_bfe_u32 v60, v1, 3, 1
v_lshlrev_b32 v60, 10, v60
v_and_b32 v6, 7, v1
v_lshlrev_b32 v6, 2, v6
v_add_u32 v60, v60, v6
v_add_u32 v60, s6, v60""")
        L = self.lab('t3'); Dn = self.lab('t3d')
        I(f'{L}:')
        for i in range(8):
            so = '0' if i < 4 else 's7'
            I(f'buffer_load_dwordx4 v[{64+4*i}:{67+4*i}], v5, s[20:23], {so} offen offset:{(i & 3)*1024}{SC}')
        I('s_add_u32 s48, s48, 1')
        for i in range(8):
            I(f's_waitcnt vmcnt({7-i})')
            self.tag_acc(64 + 4*i, i == 0)
        self.poll_tail(L, Dn, 'v16', p['sl3'])
        I(f"""s_branch {L}
{Dn}:""")
        for i in range(4):
            for e in range(4): I(f'v_add_f32 v{64+4*i+e}, v{64+4*i+e}, v{80+4*i+e}')
        for i in range(2):
            for e in range(4): I(f'v_add_f32 v{64+4*i+e}, v{64+4*i+e}, v{72+4*i+e}')
        for e in range(4): I(f'v_add_f32 v{64+e}, v{64+e}, v{68+e}')
        for e in range(4): I(f'v_add_f32_dpp v{64+e}, v{64+e}, v{64+e} row_ror:8 row_mask:0xf bank_mask:0xf')
        for sw in ('v_permlane16_swap_b32', 'v_permlane32_swap_b32'):
            for e in range(4): I(f'v_mov_b32 v{68+e}, v{64+e}')
            for e in range(4): I(f'{sw} v{64+e}, v{68+e}')
            for e in range(4): I(f'v_add_f32 v{64+e}, v{64+e}, v{68+e}')
        I(f"""v_cvt_pk_bf16_f32 v68, v64, v66
v_cvt_pk_bf16_f32 v69, v65, v67
s_mov_b32 s40, 0xff00
s_mov_b32 s41, 0
v_cndmask_b32 v68, v68, v69, s[40:41]
s_mov_b64 exec, 0xffff
buffer_store_dword v68, v60, s[24:27], 0 offen
s_mov_b64 exec, -1""")
        I(f"""s_cmp_lg_u32 s2, 0
s_cbranch_scc1 L_CW_noe
v_mov_b32 v5, {WS_E}
s_mov_b64 exec, 1
buffer_store_dword v49, v5, s[20:23], 0 offen{SC}
s_mov_b64 exec, -1
L_CW_noe:""")
        self.stamp(12)
        I(f'{Lend}:')
        self.stamp_dump('s[20:23]', 16)
        I('s_endpgm')

    def build(self):
        I = self.I
        I('''s_cmp_ge_u32 s2, 256
s_cbranch_scc1 L_exit''')
        if self.p['stamps']:
            for i in range(16): I(f's_mov_b32 s{64+2*i}, 0')
            self.stamp(0)
        I(f'''v_lshrrev_b32 v1, 6, v0
s_and_b32 s4, s2, 7
s_lshr_b32 s5, s2, 3
s_mov_b32 s48, 0
v_readfirstlane_b32 s3, v1
s_cmp_ge_u32 s3, {W_L0}
s_cbranch_scc1 L_LD
s_cmp_ge_u32 s3, {W_C0}
s_cbranch_scc1 L_CW
s_cmp_eq_u32 s3, {W_J1}
s_cbranch_scc1 L_J1''')
        self.role_j0()
        self.role_j1()
        self.role_compute()
        self.role_loader()
        I('L_exit:\ns_endpgm\nL_codeend:')
        head = f'''; Fused decode step: GQA attention over the KV cache + SwiGLU FFN + sigmoid-gated mix.
; @launch grid=(256,1,1) block=(896,1,1) lds={LDS_BYTES}
.amdgcn_target "amdgcn-amd-amdhsa--gfx950"
.text
.globl {KNAME}
.p2align 8
.type {KNAME},@function
{KNAME}:
'''
        foot = f'''.section .rodata,"a"
.p2align 6
.amdhsa_kernel {KNAME}
  .amdhsa_next_free_vgpr 128
  .amdhsa_next_free_sgpr 102
  .amdhsa_accum_offset 128
  .amdhsa_group_segment_fixed_size 0
  .amdhsa_kernarg_size 104
  .amdhsa_user_sgpr_count 2
  .amdhsa_user_sgpr_kernarg_segment_ptr 1
  .amdhsa_system_sgpr_workgroup_id_x 1
.end_amdhsa_kernel
'''
        return head + self.a.text() + foot

def main():
    out = sys.argv[1]
    kw = {}
    for arg in sys.argv[2:]:
        k, v = arg.split('=')
        assert k in DEF or k in ('pfn',), k
        kw[k] = (v == 'True') if v in ('True', 'False') else int(v)
    open(out, 'w').write(G(**kw).build())

if __name__ == '__main__':
    main()
```

```python
import sys, math, struct
from emit import Asm

def fhex(x): return '0x%08x' % struct.unpack('<I', struct.pack('<f', x))[0]
KNAME = 'gated_mix__gqa_block_cached__swiglu_ffn__decode_kernel'

WS_Q  = 0x000000
WS_F  = 0x020000
WS_ID = 0x030000
COPYB = 0x040000
WS_ST = 0x080000
WS_E  = 0x088000
WS_T1 = 0x100000
WS_T3 = 0x180000
WS_DBG = 0x200000
WS_SIZE = 0x400000

V_OFF = 0
STG0 = 0
STG1 = 16384
WO_OFF = 131072
WD_OFF = 147456
P_OFF = 155648
Q_OFF = 159744
MISC = 160768
MX = MISC
LX = MISC + 128
A1 = MISC + 256
A2 = MISC + 512
GATE = MISC + 640
CNT = MISC + 704
WL = MISC + 1024
C_Q, C_H, C_K, C_1, C_2, C_A, C_M, C_W = 0, 4, 8, 12, 16, 20, 24, 28
LDS_BYTES = 163840

SPIN_LIMIT = 300000
SC = ' sc1'
W_J0, W_J1, W_C0, W_L0 = 0, 1, 2, 10

DEF = dict(nt_k=True, nt_v=True, nt_w=True, dk=2, dv=4, dv2=4, dvn=0, stamps=False, na=14, ksig=0, kthr=8,
           slq=2, slf=2, sls=2, sl2=0, sl3=0, pf=False, na_polls=10, force_remote=False, nopoll=False,
           t3sets=3, t3st=4, tlb=False, sw=2, t3delay=0, t3ld=0, t3stf=0)

class G:
    def __init__(self, **kw):
        self.p = dict(DEF); self.p.update(kw)
        self.a = Asm()
        self.uid = 0
        self.glim = 0 if self.p['nopoll'] else SPIN_LIMIT
    def I(self, s): self.a.I(s)
    def lab(self, base):
        self.uid += 1
        return f'L_{base}_{self.uid}'
    def stamp(self, i):
        if self.p['stamps']:
            self.I(f's_memrealtime s[{64+2*i}:{65+2*i}]')
            self.I('s_waitcnt lgkmcnt(0)')
    def stamp_dump(self, srd, n=12):
        if not self.p['stamps']: return
        I = self.I
        I('s_mov_b64 exec, -1')
        I('s_lshl_b32 s6, s2, 4')
        I('s_add_u32 s6, s6, s3')
        I('s_lshl_b32 s6, s6, 6')
        I(f's_add_u32 s6, s6, {WS_DBG}')
        I('v_mov_b32 v1, s6')
        I('s_mov_b64 exec, 1')
        for j in range(0, n, 4):
            for t in range(4):
                I(f'v_mov_b32 v{4+t}, s{64+2*(j+t)}')
            I(f'buffer_store_dwordx4 v[4:7], v1, {srd}, 0 offen offset:{j*4}')
        I('s_mov_b64 exec, -1')
    def signal(self, vC, vOne, off):
        self.I(f'''s_mov_b64 exec, 1
ds_add_u32 {vC}, {vOne} offset:{off}
s_mov_b64 exec, -1''')
    def lds_wait(self, vC, vT, off, n, sleep=1):
        L = self.lab('lw'); D = self.lab('lwd')
        self.I(f'''{L}:
ds_read_b32 {vT}, {vC} offset:{off}
s_add_u32 s48, s48, 1
s_waitcnt lgkmcnt(0)
v_readfirstlane_b32 s49, {vT}
s_cmp_ge_u32 s49, {n}
s_cbranch_scc1 {D}
s_cmp_gt_u32 s48, {SPIN_LIMIT}
s_cbranch_scc1 {D}''')
        if sleep: self.I(f's_sleep {sleep}')
        self.I(f'''s_branch {L}
{D}:''')
    def tag_load(self, wsbase):
        self.I(f's_load_dword s52, s[{wsbase}:{wsbase+1}], {WS_E}')
        for i in range(4): self.I(f's_mov_b32 s{53+i}, 0x0706050{i}')
        self.I('s_mov_b32 s57, 0x0c0c0400\ns_mov_b32 s58, 0x04000c0c')
    def tag_ready(self):
        self.I('s_waitcnt lgkmcnt(0)\ns_add_u32 s52, s52, 1')
    def tag_acc(self, r, first, acc='v16', t1='v17', t2='v18', t3='v19'):
        self.I(f'v_perm_b32 {t2}, v{r+1}, v{r}, s57\nv_perm_b32 {t3}, v{r+3}, v{r+2}, s58\nv_or_b32 {t2}, {t2}, {t3}')
        if first: self.I(f'v_xor_b32 {acc}, s52, {t2}')
        else: self.I(f'v_xor_b32 {t1}, s52, {t2}\nv_or_b32 {acc}, {acc}, {t1}')
    def poll_tail(self, L, D, acc, sleep):
        self.I(f'''v_cmp_ne_u32 vcc, 0, {acc}
s_cbranch_vccz {D}
s_cmp_gt_u32 s48, {self.glim}
s_cbranch_scc1 {D}''')
        if sleep: self.I(f's_sleep {sleep}')
    def srd(self, base, karg_off, size):
        self.I(f's_load_dwordx2 s[{base}:{base+1}], s[0:1], {karg_off}')
        self.I(f's_mov_b32 s{base+2}, {size}')
        self.I(f's_mov_b32 s{base+3}, 0x20000')
    def stats_loads(self):
        self.I(f"""buffer_load_dwordx4 v[64:67], v61, s[20:23], 0 offen{SC}
buffer_load_dwordx4 v[68:71], v61, s[20:23], 0 offen offset:16{SC}""")
    def stats_check(self):
        self.tag_acc(64, True, 'v5', 'v6', 'v7', 'v4')
        self.tag_acc(68, False, 'v5', 'v6', 'v7', 'v4')
    def lane_setup(self):
        self.I('''v_and_b32 v1, 63, v0
v_lshrrev_b32 v2, 4, v1
v_and_b32 v3, 15, v1''')
    def mode_store(self, ins, smode):
        Lr = self.lab('ms'); Le = self.lab('mse')
        self.I(f'''s_cmp_eq_u32 {smode}, 0
s_cbranch_scc1 {Lr}
{ins}
s_branch {Le}
{Lr}:
{ins}{SC}
{Le}:''')

    def qtile_issue(self, srdW, srdX, sBase, sKs):
        I = self.I; pitch = 8192; stg = STG0
        ntf = ' nt' if self.p['nt_w'] else ''
        I(f'''v_lshrrev_b32 v4, 5, v1
v_lshlrev_b32 v4, 3, v4
v_bfe_u32 v5, v1, 3, 2
v_add_u32 v4, v4, v5
v_mul_u32_u24 v4, {pitch}, v4
v_and_b32 v5, 7, v1
v_bfe_u32 v6, v1, 4, 2
v_lshlrev_b32 v6, 1, v6
v_xor_b32 v5, v5, v6
v_lshlrev_b32 v5, 4, v5
v_add_u32 v4, v4, v5''')
        for i in range(16):
            rowi = 32*(i >> 2) + 16*(i & 1) + 4*((i >> 1) & 1)
            I(f's_mov_b32 m0, {stg + i*1024}')
            I(f's_add_u32 s7, {sBase}, {rowi*pitch}')
            I(f'buffer_load_dwordx4 v4, {srdW}, s7 offen{ntf} lds')
        I(f'''v_and_b32 v5, 1, v3
v_lshlrev_b32 v5, 10, v5
v_lshlrev_b32 v6, 4, v2
v_add_u32 v5, v5, v6
s_lshl_b32 s6, {sKs}, 8
v_add_u32 v5, s6, v5''')
        for kk in range(4):
            I(f'buffer_load_dwordx4 v[{8+4*kk}:{11+4*kk}], v5, {srdX}, 0 offen offset:{kk*64}')
        I(f'''v_lshrrev_b32 v6, 2, v3
v_and_b32 v7, 3, v3
v_lshlrev_b32 v28, 2, v2
v_add_u32 v28, v28, v6
v_lshlrev_b32 v28, 7, v28
v_lshlrev_b32 v7, 3, v7
v_add_u32 v28, v28, v7
v_add_u32 v28, {stg}, v28
v_lshlrev_b32 v29, 1, v2
v_lshrrev_b32 v6, 1, v6
v_add_u32 v29, v29, v6
v_and_b32 v29, 3, v29''')
        for nt_ in range(4):
            I(f'''v_xor_b32 v6, {nt_}, v29
v_lshlrev_b32 v6, 5, v6
v_add_u32 v{24+nt_}, v28, v6''')
    def qtile_compute(self):
        I = self.I
        def reads(kk, setb):
            for nt_ in range(4):
                for hf in range(2):
                    r = setb + 4*nt_ + 2*hf
                    I(f'ds_read_b64_tr_b16 v[{r}:{r+1}], v{24+nt_} offset:{kk*4096 + hf*2048}')
        def mf(kk, setb):
            for nt_ in range(4):
                c = '0' if kk == 0 else f'v[{64+4*nt_}:{67+4*nt_}]'
                I(f'v_mfma_f32_16x16x32_bf16 v[{64+4*nt_}:{67+4*nt_}], v[{8+4*kk}:{11+4*kk}], v[{setb+4*nt_}:{setb+4*nt_+3}], {c}')
        sets = (32, 48)
        reads(0, sets[0])
        for kk in range(4):
            I('s_waitcnt lgkmcnt(0)')
            if kk < 3: reads(kk+1, sets[(kk+1) & 1])
            mf(kk, sets[kk & 1])
        I('''s_mov_b32 s40, 0xffff0000
s_mov_b32 s41, 0
s_mov_b32 s42, 0
s_mov_b32 s43, 0x0000ffff
s_mov_b32 s44, 0
s_mov_b32 s45, 0xffff0000''')
        for b in range(2):
            I(f'''v_cndmask_b32 v{40+b}, v{64+b}, v{68+b}, s[40:41]
v_cndmask_b32 v{40+b}, v{40+b}, v{72+b}, s[42:43]
v_cndmask_b32 v{40+b}, v{40+b}, v{76+b}, s[44:45]''')

    def ftile_issue(self, srdW, srdX, sBase, sKs):
        I = self.I; pitch = 3584; stg = STG1
        ntf = ' nt' if self.p['nt_w'] else ''
        I(f'''v_lshrrev_b32 v4, 4, v1
v_lshlrev_b32 v4, 3, v4
v_bfe_u32 v5, v1, 2, 2
v_add_u32 v4, v4, v5
v_mul_u32_u24 v4, {pitch}, v4
v_and_b32 v5, 3, v1
v_bfe_u32 v6, v1, 4, 1
v_lshlrev_b32 v6, 1, v6
v_xor_b32 v5, v5, v6
v_lshlrev_b32 v5, 4, v5
v_add_u32 v4, v4, v5''')
        for i in range(16):
            rowi = 32*(i >> 1) + 4*(i & 1)
            I(f's_mov_b32 m0, {stg + i*1024}')
            I(f's_add_u32 s7, {sBase}, {rowi*pitch}')
            I(f'buffer_load_dwordx4 v4, {srdW}, s7 offen{ntf} lds')
        I(f'''v_and_b32 v5, 1, v3
v_lshlrev_b32 v5, 10, v5
v_lshlrev_b32 v6, 4, v2
v_add_u32 v5, v5, v6
s_lshl_b32 s6, {sKs}, 9
v_add_u32 v5, s6, v5''')
        for kk in range(8):
            I(f'buffer_load_dwordx4 v[{96+4*kk}:{99+4*kk}], v5, {srdX}, 0 offen offset:{kk*64}')
        I(f'''v_lshrrev_b32 v6, 2, v3
v_and_b32 v7, 3, v3
v_lshlrev_b32 v28, 2, v2
v_add_u32 v28, v28, v6
v_lshlrev_b32 v28, 6, v28
v_lshlrev_b32 v7, 3, v7
v_add_u32 v28, v28, v7
v_add_u32 v28, {stg}, v28
v_and_b32 v29, 1, v2
v_lshlrev_b32 v6, 5, v29
v_add_u32 v24, v28, v6
v_xor_b32 v6, 1, v29
v_lshlrev_b32 v6, 5, v6
v_add_u32 v25, v28, v6''')
    def ftile_compute(self):
        I = self.I
        def reads(k2, setb):
            for kq in range(2):
                kk = 2*k2 + kq
                for nt_ in range(2):
                    for hf in range(2):
                        r = setb + 8*kq + 4*nt_ + 2*hf
                        I(f'ds_read_b64_tr_b16 v[{r}:{r+1}], v{24+nt_} offset:{kk*2048 + hf*1024}')
        def mf(k2, setb):
            for kq in range(2):
                kk = 2*k2 + kq
                for nt_ in range(2):
                    c = '0' if kk == 0 else f'v[{64+4*nt_}:{67+4*nt_}]'
                    r = setb + 8*kq + 4*nt_
                    I(f'v_mfma_f32_16x16x32_bf16 v[{64+4*nt_}:{67+4*nt_}], v[{96+4*kk}:{99+4*kk}], v[{r}:{r+3}], {c}')
        sets = (32, 48)
        reads(0, sets[0])
        for k2 in range(4):
            I('s_waitcnt lgkmcnt(0)')
            if k2 < 3: reads(k2+1, sets[(k2+1) & 1])
            mf(k2, sets[k2 & 1])
        I('''s_mov_b32 s40, 0xffff0000
s_mov_b32 s41, 0
s_mov_b32 s42, 0
s_mov_b32 s43, 0x0000ffff
s_mov_b32 s44, 0
s_mov_b32 s45, 0xffff0000
v_cndmask_b32 v40, v64, v68, s[40:41]
v_cndmask_b32 v40, v40, v65, s[42:43]
v_cndmask_b32 v40, v40, v69, s[44:45]''')

    def role_j0(self):
        I = self.I; p = self.p
        I('L_J0:')
        self.srd(16, 24, 0x400000)
        self.srd(20, 0, 2048)
        self.srd(24, 96, WS_SIZE)
        I('s_barrier')
        self.lane_setup()
        I(f"""s_lshr_b32 s8, s5, 2          ; qcl
s_and_b32 s9, s5, 3           ; ks
s_mul_i32 s10, s9, 128*8192
s_lshl_b32 s6, s4, 10
s_add_u32 s10, s10, s6
s_lshl_b32 s6, s8, 7
s_add_u32 s10, s10, s6
s_getreg_b32 s12, hwreg(HW_REG_XCC_ID, 0, 4)
v_mov_b32 v90, {CNT}
v_mov_b32 v91, 1
s_waitcnt lgkmcnt(0)""")
        self.qtile_issue('s[16:19]', 's[20:23]', 's10', 's9')
        self.tag_load(24)
        I("""v_and_b32 v81, 3, v1
v_add_u32 v81, 0x07060500, v81
s_lshl_b32 s13, s12, 8
v_mov_b32 v82, s13""")
        self.stamp(1)
        I('s_waitcnt vmcnt(0)')
        self.tag_ready()
        I('v_mov_b32 v80, s52')
        self.stamp(2)
        self.qtile_compute()
        I(f"""v_perm_b32 v40, v40, v80, v81
v_perm_b32 v41, v41, v80, v81
v_perm_b32 v82, v82, v80, v81
s_lshl_b32 s6, s4, 3
s_add_u32 s6, s6, s9
s_lshl_b32 s6, s6, 11         ; (g*8 + ks)*2048
s_lshl_b32 s7, s8, 8
s_add_u32 s6, s6, s7
v_lshlrev_b32 v4, 2, v1
v_add_u32 v5, s6, v4
v_add_u32 v6, {4*2048}, v5
s_lshl_b32 s6, s4, 5
s_add_u32 s6, s6, s5
s_lshl_b32 s6, s6, 7
s_add_u32 s6, s6, {WS_ID}
v_add_u32 v7, s6, v4
s_mov_b32 s14, {COPYB}
buffer_store_dword v40, v5, s[24:27], 0 offen
buffer_store_dword v41, v6, s[24:27], 0 offen
s_mov_b32 exec_hi, 0
buffer_store_dword v82, v7, s[24:27], 0 offen
s_mov_b32 exec_hi, -1
buffer_store_dword v40, v5, s[24:27], s14 offen{SC}
buffer_store_dword v41, v6, s[24:27], s14 offen{SC}
s_mov_b32 exec_hi, 0
buffer_store_dword v82, v7, s[24:27], s14 offen{SC}
s_mov_b32 exec_hi, -1""")
        self.stamp(3)
        I(f"""s_lshl_b32 s6, s4, 1
s_lshr_b32 s7, s5, 4          ; b
s_add_u32 s6, s6, s7
s_lshl_b32 s6, s6, 13
v_lshlrev_b32 v4, 4, v1
v_add_u32 v4, s6, v4
v_and_b32 v5, 31, v1
v_lshlrev_b32 v5, 7, v5
s_lshl_b32 s6, s4, 12
s_add_u32 s6, s6, {WS_ID}
v_add_u32 v5, s6, v5
s_mov_b32 s15, {COPYB if p['force_remote'] else 0}
s_mov_b32 s11, 0""")
        L = self.lab('qg'); D = self.lab('qgd'); Lk = self.lab('qgk')
        I(f'{L}:')
        for ks in range(4):
            I(f's_add_u32 s7, s15, {ks*2048}')
            for i in range(2):
                r = 8 + 8*ks + 4*i
                I(f'buffer_load_dwordx4 v[{r}:{r+3}], v4, s[24:27], s7 offen offset:{i*1024}{SC}')
        I(f'buffer_load_dwordx4 v[40:43], v5, s[24:27], s15 offen{SC}')
        I('s_add_u32 s48, s48, 1\ns_add_u32 s11, s11, 1\ns_waitcnt vmcnt(0)')
        for j in range(9):
            self.tag_acc(8 + 4*j, j == 0, 'v44', 'v45', 'v46', 'v47')
        self.poll_tail(L, D, 'v44', p['slq'])
        if not p['force_remote']:
            I(f"""s_cmp_lt_u32 s11, {p['na_polls']}
s_cbranch_scc1 {L}
s_xor_b32 s15, s15, {COPYB}""")
        I(f"""s_branch {L}
{D}:""")
        self.stamp(5)
        I(f"""v_bfe_u32 v40, v40, 8, 4
v_cmp_ne_u32 vcc, s12, v40
s_cmp_eq_u64 vcc, 0
s_cselect_b32 s6, {0 if p['force_remote'] else 1}, 0
v_mov_b32 v44, s6
s_mov_b64 exec, 1
ds_write_b32 v90, v44 offset:{C_M}
s_mov_b64 exec, -1""")
        for e in range(8):
            I(f'v_add_f32 v{8+e}, v{8+e}, v{16+e}')
            I(f'v_add_f32 v{24+e}, v{24+e}, v{32+e}')
        for e in range(8):
            I(f'v_add_f32 v{8+e}, v{8+e}, v{24+e}')
        I(f"""v_cvt_pk_bf16_f32 v40, v8, v9
v_cvt_pk_bf16_f32 v41, v10, v11
v_cvt_pk_bf16_f32 v42, v12, v13
v_cvt_pk_bf16_f32 v43, v14, v15
v_lshlrev_b32 v4, 3, v1
v_add_u32 v4, {Q_OFF}, v4
ds_write_b64 v4, v[40:41]
ds_write_b64 v4, v[42:43] offset:512""")
        self.signal('v90', 'v91', C_Q)
        I('s_waitcnt lgkmcnt(0)')
        self.stamp(6)
        self.stamp_dump('s[24:27]')
        I('s_endpgm')

    def role_j1(self):
        I = self.I; p = self.p
        I('L_J1:')
        I('s_load_dwordx4 s[8:11], s[0:1], 48')
        self.srd(20, 0, 2048)
        self.srd(24, 96, WS_SIZE)
        self.srd(28, 72, 1024)
        I('s_barrier')
        self.lane_setup()
        I(f"""s_mul_i32 s12, s5, 9363
s_lshr_b32 s12, s12, 16
s_mul_i32 s13, s12, 7
s_sub_u32 s13, s5, s13        ; cf
s_and_b32 s14, s12, 1         ; mat
s_lshr_b32 s15, s12, 1        ; ks
v_mov_b32 v90, {CNT}
v_mov_b32 v91, 1
s_waitcnt lgkmcnt(0)
s_cmp_eq_u32 s14, 0
s_cselect_b32 s16, s8, s10
s_cselect_b32 s17, s9, s11
s_mov_b32 s18, {512*1792*2}
s_mov_b32 s19, 0x20000
s_mul_i32 s8, s15, 256*3584
s_mul_i32 s6, s4, 448
s_add_u32 s8, s8, s6
s_lshl_b32 s6, s13, 6
s_add_u32 s8, s8, s6""")
        Lskip = self.lab('nof1'); Lj = self.lab('f1j')
        I(f"""s_cmp_ge_u32 s5, 28
s_cbranch_scc1 {Lskip}""")
        self.ftile_issue('s[16:19]', 's[20:23]', 's8', 's15')
        I(f'{Lskip}:')
        I("""v_lshlrev_b32 v80, 4, v1
buffer_load_dwordx4 v[84:87], v80, s[20:23], 0 offen
buffer_load_dwordx4 v[88:91], v80, s[20:23], 0 offen offset:1024
buffer_load_dwordx4 v[92:95], v80, s[28:31], 0 offen""")
        self.tag_load(24)
        I("""v_and_b32 v81, 3, v1
v_add_u32 v81, 0x07060500, v81""")
        self.stamp(1)
        I('s_waitcnt vmcnt(0)')
        self.tag_ready()
        I('v_mov_b32 v80, s52')
        self.stamp(2)
        I(f"""s_cmp_ge_u32 s5, 28
s_cbranch_scc1 {Lj}""")
        self.ftile_compute()
        I(f"""v_perm_b32 v40, v40, v80, v81
s_lshl_b32 s6, s4, 2
s_add_u32 s6, s6, s12
s_lshl_b32 s6, s4, 2
s_lshl_b32 s7, s14, 1
s_add_u32 s6, s6, s7
s_add_u32 s6, s6, s15
s_lshl_b32 s6, s6, 11         ; *[b 2][256] f32
s_lshl_b32 s7, s13, 7
s_add_u32 s6, s6, s7
s_add_u32 s6, s6, {WS_F}
v_lshrrev_b32 v4, 5, v1
v_lshlrev_b32 v4, 10, v4
v_and_b32 v5, 31, v1
v_lshlrev_b32 v5, 2, v5
v_add_u32 v4, v4, v5
v_add_u32 v4, s6, v4
s_mov_b32 s7, {COPYB}
buffer_store_dword v40, v4, s[24:27], 0 offen
buffer_store_dword v40, v4, s[24:27], s7 offen{SC}""")
        I(f'{Lj}:')
        self.stamp(3)
        I('v_mov_b32 v8, 0\nv_mov_b32 v9, 0')
        for e in range(4):
            I(f"""v_lshlrev_b32 v10, 16, v{92+e}
v_and_b32 v11, 0xffff0000, v{92+e}
v_lshlrev_b32 v12, 16, v{84+e}
v_and_b32 v13, 0xffff0000, v{84+e}
v_lshlrev_b32 v14, 16, v{88+e}
v_and_b32 v15, 0xffff0000, v{88+e}
v_fmac_f32 v8, v10, v12
v_fmac_f32 v9, v10, v14
v_fmac_f32 v8, v11, v13
v_fmac_f32 v9, v11, v15""")
        for rr in (8, 4, 2, 1):
            I(f'v_add_f32_dpp v8, v8, v8 row_ror:{rr} row_mask:0xf bank_mask:0xf')
            I(f'v_add_f32_dpp v9, v9, v9 row_ror:{rr} row_mask:0xf bank_mask:0xf')
        for sw in ('v_permlane16_swap_b32', 'v_permlane32_swap_b32'):
            I(f"""v_mov_b32 v10, v8
v_mov_b32 v11, v9
{sw} v8, v10
{sw} v9, v11
v_add_f32 v8, v8, v10
v_add_f32 v9, v9, v11""")
        I(f"""v_mul_f32 v8, {fhex(-math.log2(math.e))}, v8
v_mul_f32 v9, {fhex(-math.log2(math.e))}, v9
v_exp_f32 v8, v8
v_exp_f32 v9, v9
v_add_f32 v8, 1.0, v8
v_add_f32 v9, 1.0, v9
v_rcp_f32 v8, v8
v_rcp_f32 v9, v9
v_mov_b32 v10, {GATE}
s_mov_b64 exec, 1
ds_write_b64 v10, v[8:9]
s_mov_b64 exec, -1
s_mov_b32 s40, 0
s_mov_b32 s41, -1
v_cndmask_b32 v16, v8, v9, s[40:41]
v_sub_f32 v16, 1.0, v16""")
        I('v_mov_b32 v90, %d\nv_mov_b32 v91, 1' % CNT)
        self.signal('v90', 'v91', C_H)
        I(f"""s_lshl_b32 s6, s4, 13         ; g*[mat][ks][b][256]*4
s_lshr_b32 s7, s5, 2
s_mul_i32 s7, s7, 112
s_add_u32 s6, s6, s7
s_add_u32 s6, s6, {WS_F}
v_and_b32 v4, 31, v1
v_min_u32 v5, 27, v4
v_and_b32 v17, 3, v5
v_lshlrev_b32 v17, 3, v17
v_lshrrev_b32 v17, v17, v80
v_lshlrev_b32 v5, 2, v5
v_lshrrev_b32 v6, 5, v1
v_lshlrev_b32 v6, 10, v6
v_add_u32 v5, v5, v6
v_add_u32 v5, s6, v5
s_mov_b32 s15, {COPYB if p['force_remote'] else 0}
s_mov_b32 s11, 0""")
        L = self.lab('hg'); D = self.lab('hgd')
        I(f'{L}:')
        for m in range(4):
            I(f's_add_u32 s7, s15, {m*2048}')
            I(f'buffer_load_dword v{24+m}, v5, s[24:27], s7 offen{SC}')
        I('s_add_u32 s48, s48, 1\ns_add_u32 s11, s11, 1\ns_waitcnt vmcnt(0)')
        I('v_xor_b32 v18, v24, v17')
        for j in range(1, 4):
            I(f'v_xor_b32 v19, v{24+j}, v17\nv_or_b32 v18, v18, v19')
        I('v_and_b32 v18, 0xff, v18')
        self.poll_tail(L, D, 'v18', p['slf'])
        if not p['force_remote']:
            I(f"""s_cmp_lt_u32 s11, {p['na_polls']}
s_cbranch_scc1 {L}
s_xor_b32 s15, s15, {COPYB}""")
        I(f"""s_branch {L}
{D}:""")
        self.stamp(5)
        I(f"""v_add_f32 v24, v24, v25
v_add_f32 v28, v26, v27
v_mul_f32 v25, {fhex(-math.log2(math.e))}, v24
v_exp_f32 v25, v25
v_add_f32 v25, 1.0, v25
v_rcp_f32 v25, v25
v_mul_f32 v24, v24, v25
v_mul_f32 v24, v24, v28
v_mul_f32 v24, v24, v16
v_cmp_gt_u32 vcc, 28, v4
v_cndmask_b32 v24, 0, v24, vcc
v_cvt_pk_bf16_f32 v24, v24, v24
v_bfe_u32 v6, v4, 2, 2
v_lshlrev_b32 v6, 4, v6
v_lshrrev_b32 v7, 4, v4
v_lshlrev_b32 v7, 3, v7
v_add_u32 v6, v6, v7
v_and_b32 v7, 3, v4
v_lshlrev_b32 v7, 1, v7
v_add_u32 v6, v6, v7
v_lshrrev_b32 v7, 5, v1
v_lshlrev_b32 v7, 6, v7
v_add_u32 v6, v6, v7
v_add_u32 v6, {A2}, v6
ds_write_b16 v6, v24
s_waitcnt lgkmcnt(0)""")
        self.stamp(6)
        self.stamp_dump('s[24:27]')
        I('s_endpgm')

    def role_loader(self):
        I = self.I; p = self.p
        ntv = ' nt' if p['nt_v'] else ''
        ntw = ' nt' if p['nt_w'] else ''
        I('L_LD:')
        I(f"""s_sub_u32 s8, s3, {W_L0}           ; loader j
v_mov_b32 v90, {CNT}
v_mov_b32 v91, 1
s_cmp_lg_u32 s8, 0
s_cbranch_scc1 L_LD_noinit
v_mov_b32 v8, 0
v_mov_b32 v9, 0
v_mov_b32 v10, 0
v_mov_b32 v11, 0
ds_write_b128 v90, v[8:11]
ds_write_b128 v90, v[8:11] offset:16
s_waitcnt lgkmcnt(0)
L_LD_noinit:
s_barrier""")
        self.srd(16, 16, 0x2000000)
        self.srd(20, 32, 0x400000)
        self.srd(24, 64, 1792*512*2)
        self.srd(28, 96, WS_SIZE)
        self.lane_setup()
        if p['pf']:
            I(f"""s_cmp_lg_u32 s8, 3
s_cbranch_scc1 L_LD_nopf
s_getpc_b64 s[36:37]
L_PC:
s_add_u32 s36, s36, {KNAME}-L_PC
s_addc_u32 s37, s37, -1
v_lshlrev_b32 v4, 4, v1
s_mov_b32 s6, L_codeend-{KNAME}-16""")
            for j in range(p.get('pfn', 14)):
                I(f"""v_min_u32 v5, s6, v4
global_load_dwordx4 v[12:15], v5, s[36:37]
v_add_u32 v4, 1024, v4""")
            I('L_LD_nopf:')
        I('s_waitcnt lgkmcnt(0)')
        TLBMARK = True
        I(f"""s_and_b32 s6, s8, 1
s_lshl_b32 s6, s6, 2
v_add_u32 v5, s6, v2          ; (4*(j&1) + rho)
v_lshlrev_b32 v5, 1, v5
v_xor_b32 v5, v5, v3          ; chunk
v_lshlrev_b32 v5, 4, v5
v_lshlrev_b32 v6, 8, v2
v_add_u32 v10, v5, v6         ; V voffset
v_lshlrev_b32 v6, 17, v2
v_add_u32 v11, v5, v6
v_lshlrev_b32 v6, 10, v2
v_add_u32 v16, v5, v6
s_lshr_b32 s6, s5, 4          ; b
s_lshl_b32 s6, s6, 3
s_add_u32 s6, s6, s4          ; bh
s_lshl_b32 s10, s6, 21
s_and_b32 s6, s5, 15          ; t
s_lshl_b32 s6, s6, 17
s_add_u32 s10, s10, s6
s_lshl_b32 s6, s8, 10
s_add_u32 s10, s10, s6
s_lshr_b32 s11, s5, 2         ; w'
s_and_b32 s12, s5, 3          ; cg
s_lshl_b32 s13, s4, 9
s_lshl_b32 s6, s11, 4
s_add_u32 s13, s13, s6
s_add_u32 s13, s13, s8
s_lshl_b32 s13, s13, 10
s_lshl_b32 s6, s12, 8
s_add_u32 s13, s13, s6
s_lshl_b32 s14, s4, 3
s_add_u32 s14, s14, s11       ; rg
s_mul_i32 s14, s14, 28
s_lshl_b32 s6, s8, 2
s_add_u32 s15, s14, s6
s_add_u32 s6, s8, 4
s_min_u32 s6, s6, 6
s_lshl_b32 s6, s6, 2
s_add_u32 s14, s14, s6
s_lshl_b32 s15, s15, 10
s_lshl_b32 s14, s14, 10
s_lshl_b32 s6, s12, 8
s_add_u32 s15, s15, s6
s_add_u32 s14, s14, s6
s_lshl_b32 s9, s8, 10         ; j*1024""")
        if p['tlb']:
            Lt = self.lab('tlb')
            I(f"""s_cmp_lg_u32 s8, 2
s_cbranch_scc1 {Lt}
v_mov_b32 v20, 0
s_mov_b64 exec, 1
buffer_load_dword v21, v20, s[16:19], s10 offen
buffer_load_dword v22, v20, s[20:23], s13 offen
buffer_load_dword v23, v20, s[24:27], s15 offen
s_mov_b32 s6, {WS_T1}
buffer_load_dword v24, v20, s[28:31], s6 offen
s_mov_b32 s6, {WS_T3}
buffer_load_dword v25, v20, s[28:31], s6 offen
s_mov_b32 s6, {WS_ST}
buffer_load_dword v26, v20, s[28:31], s6 offen
s_mov_b64 exec, -1
{Lt}:""")
        self.stamp(1)
        self.lds_wait('v90', 'v7', C_K, p['kthr'], sleep=2)
        I('s_waitcnt vmcnt(0)')
        self.stamp(2)
        loads = []
        for q in range(32):
            loads.append([f's_add_u32 m0, s9, {V_OFF + q*4096}',
                          f's_add_u32 s6, s10, {q*4096}',
                          f'buffer_load_dwordx4 v10, s[16:19], s6 offen{ntv} lds'])
        for q in range(4):
            loads.append([f's_add_u32 m0, s9, {WO_OFF + q*4096}',
                          f's_add_u32 s6, s13, {q*4096}',
                          f'buffer_load_dwordx4 v11, s[20:23], s6 offen{ntw} lds'])
        loads.append([f's_add_u32 m0, s9, {WD_OFF}', 's_nop 0', f'buffer_load_dwordx4 v16, s[24:27], s15 offen{ntw} lds'])
        loads.append([f's_add_u32 m0, s9, {WD_OFF + 4096}', 's_nop 0', f'buffer_load_dwordx4 v16, s[24:27], s14 offen{ntw} lds'])
        n = len(loads)
        nA = 2 * p['na']
        marks = {nA - 1: 'A', 31: 'V'}
        def mark(m):
            if m == 'A': self.signal('v90', 'v91', C_A)
            else: I('s_barrier')
            self.stamp(3 if m == 'A' else 4)
        def depth(i): return p['dv2'] if i >= n - p['dvn'] else p['dv']
        done = -1
        issued = 0
        pend = sorted(marks)
        while issued < n:
            D = depth(issued)
            need_done = issued - D
            if need_done > done:
                I(f's_waitcnt vmcnt({issued - 1 - need_done})')
                done = need_done
            for l in loads[issued]: I(l)
            issued += 1
            while pend and pend[0] <= done:
                mark(marks[pend.pop(0)])
        while done < n - 1:
            done += 1
            if pend and pend[0] == done or done == n - 1:
                I(f's_waitcnt vmcnt({n - 1 - done})')
            while pend and pend[0] <= done:
                mark(marks[pend.pop(0)])
        self.stamp(5)
        I('s_barrier')
        self.stamp_dump('s[28:31]')
        I('s_endpgm')

    def role_compute(self):
        I = self.I; p = self.p
        ntk = ' nt' if p['nt_k'] else ''
        cexp = math.log2(math.e) / math.sqrt(128.0)
        I('L_CW:')
        self.srd(16, 8, 0x2000000)
        self.srd(20, 96, WS_SIZE)
        self.srd(24, 80, 2048)
        I('s_barrier')
        self.lane_setup()
        I(f"""s_sub_u32 s8, s3, {W_C0}           ; cw
s_lshr_b32 s6, s5, 4          ; b
s_lshl_b32 s6, s6, 3
s_add_u32 s6, s6, s4
s_lshl_b32 s10, s6, 21
s_and_b32 s6, s5, 15
s_lshl_b32 s6, s6, 17
s_add_u32 s10, s10, s6
s_lshl_b32 s6, s8, 14
s_add_u32 s10, s10, s6
v_lshlrev_b32 v4, 8, v3
v_lshlrev_b32 v5, 4, v2
v_add_u32 v4, v4, v5          ; K voffset
v_mov_b32 v62, {CNT}
v_mov_b32 v63, 1
s_waitcnt lgkmcnt(0)""")
        D = p['dk']
        def kload(i):
            tt, kk = divmod(i, 4)
            if kk == 0: I(f's_add_u32 s11, s10, {tt*4096}')
            I(f'buffer_load_dwordx4 v[{64+4*i}:{67+4*i}], v4, s[16:19], s11 offen offset:{kk*64}{ntk}')
        for i in range(D): kload(i)
        self.tag_load(20)
        self.stamp(1)
        vC, vOne = 'v62', 'v63'
        for i in range(D, 16):
            I(f's_waitcnt vmcnt({D-1})')
            kload(i)
            if i == 15 - p['ksig']:
                self.signal(vC, vOne, C_K)
        self.stamp(2)
        self.tag_ready()
        I(f"""v_and_b32 v5, 3, v3           ; head = n&3
v_lshlrev_b32 v6, 8, v5
v_lshlrev_b32 v7, 4, v2
v_add_u32 v60, v6, v7
v_add_u32 v60, {Q_OFF}, v60
v_lshlrev_b32 v61, 5, v5
v_add_u32 v61, {MX}, v61
s_lshl_b32 s6, s8, 2
v_add_u32 v59, s6, v61""")
        self.lds_wait(vC, 'v5', C_Q, 1, sleep=2)
        self.stamp(3)
        for kk in range(4):
            I(f'ds_read_b128 v[{32+4*kk}:{35+4*kk}], v60 offset:{kk*64}')
        I(f'ds_read_b32 v5, {vC} offset:{C_M}')
        I('s_waitcnt lgkmcnt(0)\nv_readfirstlane_b32 s51, v5')
        for tt in range(4):
            I(f's_waitcnt vmcnt({12 - 4*tt})')
            for kk in range(4):
                c = '0' if kk == 0 else f'v[{16+4*tt}:{19+4*tt}]'
                r = 64 + 16*tt + 4*kk
                I(f'v_mfma_f32_16x16x32_bf16 v[{16+4*tt}:{19+4*tt}], v[{r}:{r+3}], v[{32+4*kk}:{35+4*kk}], {c}')
        I('v_max3_f32 v5, v16, v17, v18')
        for e in range(19, 31, 2):
            I(f'v_max3_f32 v5, v5, v{e}, v{e+1}')
        I('v_max_f32 v5, v5, v31')
        for sw in ('v_permlane16_swap_b32', 'v_permlane32_swap_b32'):
            I(f"""v_mov_b32 v6, v5
{sw} v5, v6
v_max_f32 v5, v5, v6""")
        I("""s_mov_b64 exec, 15
ds_write_b32 v59, v5
s_mov_b64 exec, -1""")
        self.signal(vC, vOne, C_1)
        self.lds_wait(vC, 'v6', C_1, 8, sleep=0)
        I(f"""ds_read_b128 v[48:51], v61
ds_read_b128 v[52:55], v61 offset:16
s_mov_b32 s50, {fhex(cexp)}
s_waitcnt lgkmcnt(0)
v_max3_f32 v48, v48, v49, v50
v_max3_f32 v51, v51, v52, v53
v_max3_f32 v48, v48, v54, v55
v_max_f32 v48, v48, v51
v_mul_f32 v58, s50, v48""")
        for e in range(16):
            I(f'v_fma_f32 v{16+e}, v{16+e}, s50, -v58')
        for e in range(16):
            I(f'v_exp_f32 v{16+e}, v{16+e}')
        for q in range(8):
            I(f'v_cvt_pk_bf16_f32 v{48+q}, v{16+2*q}, v{17+2*q}')
        I(f"""s_lshl_b32 s6, s8, 9
s_add_u32 s6, s6, {P_OFF}
v_lshlrev_b32 v6, 6, v2
v_lshlrev_b32 v7, 4, v3
v_add_u32 v6, v6, v7
v_add_u32 v6, s6, v6
s_mov_b32 s40, 0x000f000f
s_mov_b32 s41, 0x000f000f
s_mov_b64 exec, s[40:41]
ds_write_b128 v6, v[48:51]
ds_write_b128 v6, v[52:55] offset:256
s_mov_b64 exec, -1""")
        for e in range(8): I(f'v_add_f32 v{16+e}, v{16+e}, v{24+e}')
        for e in range(4): I(f'v_add_f32 v{16+e}, v{16+e}, v{20+e}')
        I("""v_add_f32 v16, v16, v17
v_add_f32 v18, v18, v19
v_add_f32 v5, v16, v18""")
        for sw in ('v_permlane16_swap_b32', 'v_permlane32_swap_b32'):
            I(f"""v_mov_b32 v6, v5
{sw} v5, v6
v_add_f32 v5, v5, v6""")
        I("""s_mov_b64 exec, 15
ds_write_b32 v59, v5 offset:128
s_mov_b64 exec, -1""")
        self.signal(vC, vOne, C_2)
        self.lds_wait(vC, 'v6', C_2, 8, sleep=0)
        self.stamp(4)
        I(f"""s_lshl_b32 s12, s4, 5
s_add_u32 s12, s12, s5        ; slot
v_mov_b32 v47, s52""")
        Ls = self.lab('nostat')
        I(f"""s_cmp_lg_u32 s8, 0
s_cbranch_scc1 {Ls}
ds_read_b128 v[48:51], v61 offset:128
ds_read_b128 v[52:55], v61 offset:144
v_and_b32 v6, 3, v1
v_add_u32 v6, 0x07060500, v6
s_waitcnt lgkmcnt(0)
v_add_f32 v48, v48, v49
v_add_f32 v50, v50, v51
v_add_f32 v52, v52, v53
v_add_f32 v54, v54, v55
v_add_f32 v48, v48, v50
v_add_f32 v52, v52, v54
v_add_f32 v48, v48, v52
s_mov_b32 s40, 0xf0f0f0f0
s_mov_b32 s41, 0
v_cndmask_b32 v48, v58, v48, s[40:41]
v_perm_b32 v48, v48, v47, v6
s_lshl_b32 s6, s12, 7
s_add_u32 s6, s6, {WS_ST}
v_lshlrev_b32 v6, 2, v1
s_mov_b32 exec_hi, 0""")
        self.mode_store('buffer_store_dword v48, v6, s[20:23], s6 offen', 's51')
        I('s_mov_b32 exec_hi, -1')
        I(f'{Ls}:')
        I(f"""v_and_b32 v5, 3, v3
v_lshlrev_b32 v5, 4, v5
v_lshlrev_b32 v6, 6, v2
v_add_u32 v5, v5, v6
v_add_u32 v5, {P_OFF}, v5""")
        for st in range(16):
            if st == 8: I('s_waitcnt lgkmcnt(0)')
            I(f'ds_read_b128 v[{64+4*st}:{67+4*st}], v5 offset:{st*256}')
        I(f"""v_lshrrev_b32 v5, 2, v3       ; r
v_and_b32 v6, 3, v3           ; c4
v_lshlrev_b32 v7, 2, v2
v_add_u32 v7, v7, v5          ; 4s + r
v_and_b32 v48, 7, v7          ; (4(s&1) + r)
v_xor_b32 v48, s8, v48
v_lshlrev_b32 v48, 5, v48
v_lshlrev_b32 v7, 8, v7
v_add_u32 v7, v7, v48
v_lshlrev_b32 v6, 3, v6
v_add_u32 v56, v7, v6
v_add_u32 v57, 0x10000, v56
v_add_u32 v59, 0x20000, v56""")
        I(f"""s_lshr_b32 s13, s5, 2         ; w'
s_and_b32 s14, s5, 3          ; cg
s_and_b32 s15, s8, 1
s_lshl_b32 s6, s15, 4
v_add_u32 v5, s6, v2          ; b*16 + tq
v_lshlrev_b32 v12, 4, v5
v_add_u32 v12, {WL}, v12
s_lshl_b32 s6, s4, 5
v_add_u32 v61, s6, v5         ; slot' (i = 0)
v_lshlrev_b32 v61, 11, v61
s_lshl_b32 s6, s13, 4
v_add_u32 v6, s6, v3
v_lshlrev_b32 v6, 4, v6
v_add_u32 v61, v61, v6
v_add_u32 v61, {WS_T1}, v61
v_lshrrev_b32 v6, 3, v3
v_lshlrev_b32 v6, 6, v6
v_bfe_u32 v7, v3, 2, 1
v_lshlrev_b32 v7, 3, v7       ; half*8
v_add_u32 v6, v6, v7
v_and_b32 v7, 3, v3
v_lshlrev_b32 v7, 4, v7       ; sA*16
v_add_u32 v6, v6, v7
s_lshl_b32 s6, s15, 7
s_add_u32 s6, s6, {A1}
v_add_u32 v60, s6, v6
s_lshl_b32 s6, s12, 11
s_lshl_b32 s7, s8, 8
s_add_u32 s6, s6, s7
s_add_u32 s6, s6, {WS_T1}
v_lshlrev_b32 v58, 4, v3
v_add_u32 v58, s6, v58
v_and_b32 v6, 1, v3
v_lshlrev_b32 v44, 1, v6
v_add_u32 v50, 0x07060500, v44
v_add_u32 v51, 1, v50
v_mov_b32 v49, s52               ; T
v_lshlrev_b32 v7, 6, v6
v_lshlrev_b32 v6, 7, v6
v_lshlrev_b32 v48, 4, v2
v_add_u32 v6, v6, v48
v_add_u32 v62, {A1}, v6
v_add_u32 v7, v7, v48
v_add_u32 v48, {A2}, v7
s_lshl_b32 s6, s14, 3
s_add_u32 s6, s6, s8
s_lshl_b32 s6, s6, 6
s_lshl_b32 s7, s4, 3
s_add_u32 s7, s7, s13
s_add_u32 s6, s6, s7
s_lshl_b32 s6, s6, 7
s_add_u32 s6, s6, {WS_T3}
v_lshlrev_b32 v63, 3, v3
v_add_u32 v63, s6, v63
v_mov_b32 v13, {CNT}
s_and_b32 s13, s2, 3          ; cg3
s_lshr_b32 s14, s2, 2         ; o8
s_lshl_b32 s6, s13, 3
s_add_u32 s6, s6, s14
s_lshl_b32 s6, s6, 13
s_lshl_b32 s7, s8, 5
s_add_u32 s6, s6, s7
s_add_u32 s6, s6, {WS_T3}
v_lshrrev_b32 v14, 1, v1
v_lshlrev_b32 v14, 7, v14
v_and_b32 v6, 1, v1
v_lshlrev_b32 v7, 4, v6
v_add_u32 v14, v14, v7
v_add_u32 v14, s6, v14
s_lshl_b32 s6, s13, 8
s_lshl_b32 s7, s14, 5
s_add_u32 s6, s6, s7
s_lshl_b32 s7, s8, 3
s_add_u32 s6, s6, s7
v_bfe_u32 v15, v1, 1, 1
v_lshlrev_b32 v15, 10, v15
v_lshlrev_b32 v6, 2, v6
v_add_u32 v15, v15, v6
v_add_u32 v15, s6, v15
s_waitcnt lgkmcnt(0)""")
        Lsa = self.lab('sa')
        I(f"""s_mov_b32 s60, 0
s_cmp_lg_u32 s8, {p['sw']}
s_cbranch_scc1 {Lsa}""")
        self.lds_wait('v13', 'v5', C_H, 1, sleep=1)
        I(f"""v_mov_b32 v5, {GATE}
ds_read_b64 v[6:7], v5
s_mov_b32 s40, 0
s_mov_b32 s41, -1
v_lshrrev_b32 v5, 5, v1
v_lshlrev_b32 v5, 4, v5
v_add_u32 v5, v5, v3          ; b'*16 + t'
v_lshlrev_b32 v60, 4, v5
v_add_u32 v60, {WL}, v60
s_lshl_b32 s6, s4, 5
v_add_u32 v5, s6, v5          ; slot'
v_lshlrev_b32 v5, 7, v5
v_add_u32 v61, {WS_ST}, v5
s_waitcnt lgkmcnt(0)
v_cndmask_b32 v12, v6, v7, s[40:41]   ; g_b (b = lane>>5)
{Lsa}:""")
        self.stamp(5)
        self.lds_wait('v13', 'v5', C_A, 4, sleep=1)
        self.stamp(6)
        def vread(st, r):
            base = 'v56' if st < 8 else 'v57'
            o = (st & 7) * 8192
            I(f'ds_read_b64_tr_b16 v[{r}:{r+1}], {base} offset:{o}')
            I(f'ds_read_b64_tr_b16 v[{r+2}:{r+3}], {base} offset:{o+4096}')
        def vmfma(st, r):
            c = '0' if st == 0 else 'v[8:11]'
            I(f'v_mfma_f32_16x16x32_bf16 v[8:11], v[{64+4*st}:{67+4*st}], v[{r}:{r+3}], {c}')
        na = p['na']
        batches = []
        st = 0
        while st < na:
            b = list(range(st, min(st + 4, na))); batches.append(b); st += len(b)
        sets = (16, 32)
        for k, b in enumerate(batches):
            if k == 0:
                for j, st in enumerate(b): vread(st, sets[0] + 4*j)
            I('s_waitcnt lgkmcnt(0)')
            if k + 1 < len(batches):
                for j, st in enumerate(batches[k+1]): vread(st, sets[(k+1) & 1] + 4*j)
            for j, st in enumerate(b): vmfma(st, sets[k & 1] + 4*j)
            if k == 0:
                Lq = self.lab('nsl')
                I(f"s_cmp_lg_u32 s8, {p['sw']}\ns_cbranch_scc1 {Lq}")
                self.stats_loads()
                I(f'{Lq}:')
        I('s_barrier')
        self.stamp(7)
        rest = list(range(na, 16))
        for j, st in enumerate(rest): vread(st, 16 + 4*j)
        for j, st in enumerate(rest):
            I(f's_waitcnt lgkmcnt({2*(len(rest)-1-j)})')
            vmfma(st, 16 + 4*j)
        for e in range(4): I(f'v_perm_b32 v{8+e}, v{8+e}, v49, s{53+e}')
        I('s_mov_b64 exec, 0xffff')
        self.mode_store('buffer_store_dwordx4 v[8:11], v58, s[20:23], 0 offen', 's51')
        I('s_mov_b64 exec, -1')
        I('ds_read_b128 v[52:55], v48')
        self.stamp(8)
        Lns = self.lab('nsw'); Lw = self.lab('sw'); Lr = self.lab('swr')
        I(f"""s_cmp_lg_u32 s8, {p['sw']}
s_cbranch_scc1 {Lns}
s_waitcnt vmcnt(1)""")
        self.stats_check()
        I(f"""v_cmp_ne_u32 vcc, 0, v5
s_cbranch_vccz {Lw}
{Lr}:""")
        self.stats_loads()
        I('s_add_u32 s48, s48, 1\ns_waitcnt vmcnt(0)')
        self.stats_check()
        self.poll_tail(Lr, Lw, 'v5', p['sls'])
        I(f"""s_branch {Lr}
{Lw}:""")
        for h in range(4): I(f'v_mov_b32 v{72+h}, v{64+h}')
        for rr in (8, 4, 2, 1):
            for h in range(4): I(f'v_max_f32_dpp v{72+h}, v{72+h}, v{72+h} row_ror:{rr} row_mask:0xf bank_mask:0xf')
        for h in range(4): I(f'v_sub_f32 v{64+h}, v{64+h}, v{72+h}')
        for h in range(4): I(f'v_exp_f32 v{64+h}, v{64+h}')
        for h in range(4): I(f'v_mul_f32 v{68+h}, v{68+h}, v{64+h}')
        for rr in (8, 4, 2, 1):
            for h in range(4): I(f'v_add_f32_dpp v{68+h}, v{68+h}, v{68+h} row_ror:{rr} row_mask:0xf bank_mask:0xf')
        for h in range(4): I(f'v_rcp_f32 v{68+h}, v{68+h}')
        for h in range(4): I(f'v_mul_f32 v{64+h}, v{64+h}, v12')
        for h in range(4): I(f'v_mul_f32 v{64+h}, v{64+h}, v{68+h}')
        I('ds_write_b128 v60, v[64:67]\nv_mov_b32 v5, 1')
        self.signal('v13', 'v5', C_W)
        I(f'{Lns}:')
        Lng = self.lab('nog')
        I(f"""s_cmp_gt_u32 s8, 1
s_cbranch_scc1 {Lng}""")
        I(f's_mov_b32 s6, {4*2048}\ns_mov_b32 s7, {8*2048}\ns_mov_b32 s9, {12*2048}')
        def t2issue():
            for i, so in enumerate(('0', 's6', 's7', 's9')):
                I(f'buffer_load_dwordx4 v[{64+4*i}:{67+4*i}], v61, s[20:23], {so} offen{SC}')
        t2issue()
        self.lds_wait('v13', 'v5', C_W, 1, sleep=0)
        for i in range(4): I(f'ds_read_b128 v[{80+4*i}:{83+4*i}], v12 offset:{i*64}')
        L = self.lab('t2'); Dn = self.lab('t2d')
        I(f'{L}:')
        for i in range(4):
            I(f's_waitcnt vmcnt({3-i})')
            self.tag_acc(64 + 4*i, i == 0)
        I('s_add_u32 s48, s48, 1')
        self.poll_tail(L, Dn, 'v16', p['sl2'])
        t2issue()
        I(f"""s_branch {L}
{Dn}:""")
        self.stamp(9)
        I('s_waitcnt lgkmcnt(0)')
        for h in range(4): I(f'v_mul_f32 v{16+h}, v{64+h}, v{80+h}')
        for i in range(1, 4):
            for h in range(4): I(f'v_fmac_f32 v{16+h}, v{64+4*i+h}, v{80+4*i+h}')
        for sw in ('v_permlane16_swap_b32', 'v_permlane32_swap_b32'):
            for h in range(4): I(f'v_mov_b32 v{20+h}, v{16+h}')
            for h in range(4): I(f'{sw} v{16+h}, v{20+h}')
            for h in range(4): I(f'v_add_f32 v{16+h}, v{16+h}, v{20+h}')
        I(f"""v_cvt_pk_bf16_f32 v16, v16, v17
v_cvt_pk_bf16_f32 v17, v18, v19
s_mov_b64 exec, 0xffff
ds_write_b64 v60, v[16:17]
s_mov_b64 exec, -1
s_waitcnt lgkmcnt(0)
{Lng}:
s_barrier""")
        self.stamp(10)
        I("""ds_read_b64_tr_b16 v[16:17], v59 offset:16384
ds_read_b64_tr_b16 v[18:19], v59 offset:20480
ds_read_b128 v[32:35], v62
ds_read_b64_tr_b16 v[20:21], v59
ds_read_b64_tr_b16 v[22:23], v59 offset:4096
ds_read_b128 v[36:39], v62 offset:64
ds_read_b64_tr_b16 v[24:25], v59 offset:8192
ds_read_b64_tr_b16 v[26:27], v59 offset:12288
s_waitcnt lgkmcnt(6)
v_mfma_f32_16x16x32_bf16 v[8:11], v[52:55], v[16:19], 0
s_waitcnt lgkmcnt(3)
v_mfma_f32_16x16x32_bf16 v[8:11], v[32:35], v[20:23], v[8:11]
s_waitcnt lgkmcnt(0)
v_mfma_f32_16x16x32_bf16 v[8:11], v[36:39], v[24:27], v[8:11]""")
        I(f"""v_perm_b32 v8, v8, v49, v50
v_perm_b32 v9, v9, v49, v51
s_mov_b64 exec, 0xffff
buffer_store_dwordx2 v[8:9], v63, s[20:23], 0 offen{(SC, ' sc0 sc1')[p['t3stf']]}
s_mov_b64 exec, -1""")
        self.stamp(11)
        Lend = 'L_CW_end'
        I(f"""s_cmp_ge_u32 s2, 32
s_cbranch_scc1 {Lend}
s_cmp_gt_u32 s8, 3
s_cbranch_scc1 {Lend}
s_mov_b32 s7, 4096
s_mov_b32 s42, 0xcccccccc
s_mov_b32 s43, 0xcccccccc""")
        NS = p['t3sets']
        L = self.lab('t3'); Dn = self.lab('t3d')
        def issue(k):
            r = 64 + 8*k
            fl = (SC, ' sc0 sc1', ' sc1 nt', ' sc0 sc1 nt')[p['t3ld']]
            I(f'buffer_load_dwordx4 v[{r}:{r+3}], v14, s[20:23], 0 offen{fl}')
            I(f'buffer_load_dwordx4 v[{r+4}:{r+7}], v14, s[20:23], s7 offen{fl}')
        if p['t3delay']: I(f"s_sleep {p['t3delay']}")
        self.stamp(13)
        if p['stamps']: I('s_mov_b32 s59, s48')
        for k in range(NS):
            issue(k)
            if k + 1 < NS and p['t3st']: I(f"s_sleep {p['t3st']}")
        I(f'{L}:')
        hits = []
        for k in range(NS):
            r = 64 + 8*k
            I(f's_waitcnt vmcnt({2*(NS-1)})')
            self.tag_acc(r, True)
            self.tag_acc(r + 4, False)
            H = self.lab('t3h'); hits.append((H, r))
            I(f"""v_cmp_ne_u32 vcc, 0, v16
s_cbranch_vccz {H}""")
            issue(k)
        I(f"""s_add_u32 s48, s48, 1
s_cmp_le_u32 s48, {self.glim}
s_cbranch_scc1 {L}""")
        for j, (H, r) in enumerate(hits):
            I(f'{H}:')
            for e in range(4): I(f'v_add_f32 v{20+e}, v{r+e}, v{r+4+e}')
            if j + 1 < len(hits): I(f's_branch {Dn}')
        I(f'{Dn}:')
        if p['stamps']:
            I('s_sub_u32 s92, s48, s59\ns_add_u32 s92, s92, 1')
            self.stamp(15)
        for rr in (2, 4, 8):
            for e in range(4): I(f'v_add_f32_dpp v{20+e}, v{20+e}, v{20+e} row_ror:{rr} row_mask:0xf bank_mask:0xf')
        for sw in ('v_permlane16_swap_b32', 'v_permlane32_swap_b32'):
            for e in range(4): I(f'v_mov_b32 v{24+e}, v{20+e}')
            for e in range(4): I(f'{sw} v{20+e}, v{24+e}')
            for e in range(4): I(f'v_add_f32 v{20+e}, v{20+e}, v{24+e}')
        I(f"""v_cvt_pk_bf16_f32 v24, v20, v22
v_cvt_pk_bf16_f32 v25, v21, v23
v_cndmask_b32 v24, v24, v25, s[42:43]
s_mov_b64 exec, 15
buffer_store_dword v24, v15, s[24:27], 0 offen
s_mov_b64 exec, -1""")
        I(f"""s_cmp_lg_u32 s2, 0
s_cbranch_scc1 L_CW_noe
s_cmp_lg_u32 s8, 0
s_cbranch_scc1 L_CW_noe
v_mov_b32 v5, {WS_E}
s_mov_b64 exec, 1
buffer_store_dword v49, v5, s[20:23], 0 offen{SC}
s_mov_b64 exec, -1
L_CW_noe:""")
        self.stamp(12)
        I(f'{Lend}:')
        self.stamp_dump('s[20:23]', 16)
        I('s_endpgm')

    def build(self):
        I = self.I
        I('''s_cmp_ge_u32 s2, 256
s_cbranch_scc1 L_exit''')
        if self.p['stamps']:
            for i in range(16): I(f's_mov_b32 s{64+2*i}, 0')
            self.stamp(0)
        I(f'''v_lshrrev_b32 v1, 6, v0
s_and_b32 s4, s2, 7
s_lshr_b32 s5, s2, 3
s_mov_b32 s48, 0
v_readfirstlane_b32 s3, v1
s_cmp_ge_u32 s3, {W_L0}
s_cbranch_scc1 L_LD
s_cmp_ge_u32 s3, {W_C0}
s_cbranch_scc1 L_CW
s_cmp_eq_u32 s3, {W_J1}
s_cbranch_scc1 L_J1''')
        self.role_j0()
        self.role_j1()
        self.role_compute()
        self.role_loader()
        I('L_exit:\ns_endpgm\nL_codeend:')
        head = f'''; Fused decode step: GQA attention over the KV cache + SwiGLU FFN + sigmoid-gated mix.
; @launch grid=(256,1,1) block=(896,1,1) lds={LDS_BYTES}
.amdgcn_target "amdgcn-amd-amdhsa--gfx950"
.text
.globl {KNAME}
.p2align 8
.type {KNAME},@function
{KNAME}:
'''
        foot = f'''.section .rodata,"a"
.p2align 6
.amdhsa_kernel {KNAME}
  .amdhsa_next_free_vgpr 128
  .amdhsa_next_free_sgpr 102
  .amdhsa_accum_offset 128
  .amdhsa_group_segment_fixed_size 0
  .amdhsa_kernarg_size 104
  .amdhsa_user_sgpr_count 2
  .amdhsa_user_sgpr_kernarg_segment_ptr 1
  .amdhsa_system_sgpr_workgroup_id_x 1
.end_amdhsa_kernel
'''
        return head + self.a.text() + foot

def main():
    out = sys.argv[1]
    kw = {}
    for arg in sys.argv[2:]:
        k, v = arg.split('=')
        assert k in DEF or k in ('pfn',), k
        kw[k] = (v == 'True') if v in ('True', 'False') else int(v)
    open(out, 'w').write(G(**kw).build())

if __name__ == '__main__':
    main()
```

```python
import sys, math, struct
from emit import Asm

def fhex(x): return '0x%08x' % struct.unpack('<I', struct.pack('<f', x))[0]
KNAME = 'gated_mix__gqa_block_cached__swiglu_ffn__decode_kernel'

WS_Q  = 0x000000
WS_F  = 0x020000
WS_ID = 0x030000
COPYB = 0x040000
WS_ST = 0x080000
WS_E  = 0x088000
WS_T1 = 0x100000
WS_T3 = 0x180000
WS_DBG = 0x200000
WS_SIZE = 0x400000

V_OFF = 0
STG0 = 0
STG1 = 16384
WO_OFF = 131072
WD_OFF = 147456
P_OFF = 155648
Q_OFF = 159744
MISC = 160768
MX = MISC
LX = MISC + 128
A1 = MISC + 256
A2 = MISC + 512
GATE = MISC + 640
CNT = MISC + 704
WL = MISC + 1024
C_Q, C_H, C_K, C_1, C_2, C_A, C_M, C_W = 0, 4, 8, 12, 16, 20, 24, 28
LDS_BYTES = 163840

SPIN_LIMIT = 300000
SC = ' sc1'
W_J0, W_J1, W_C0, W_L0 = 0, 1, 2, 10

DEF = dict(nt_k=True, nt_v=True, nt_w=True, dk=2, dv=4, dv2=4, dvn=0, stamps=False, na=14, ksig=0, kthr=8,
           slq=2, slf=2, sls=2, sl2=0, sl3=0, pf=False, na_polls=10, force_remote=False, nopoll=False,
           t3sets=3, t3st=4, tlb=False, sw=2, t3delay=0, t3ld=1, t3stf=0, x_nob=False, qdelay=0,
           x_stream=False, rka=1, rkb=3, rkc=0)

class G:
    def __init__(self, **kw):
        self.p = dict(DEF); self.p.update(kw)
        self.a = Asm()
        self.uid = 0
        self.glim = 0 if self.p['nopoll'] else SPIN_LIMIT
    def I(self, s): self.a.I(s)
    def lab(self, base):
        self.uid += 1
        return f'L_{base}_{self.uid}'
    def stamp(self, i):
        if self.p['stamps']:
            self.I(f's_memrealtime s[{64+2*i}:{65+2*i}]')
            self.I('s_waitcnt lgkmcnt(0)')
    def stamp_dump(self, srd, n=12):
        if not self.p['stamps']: return
        I = self.I
        I('s_mov_b64 exec, -1')
        I('s_lshl_b32 s6, s2, 4')
        I('s_add_u32 s6, s6, s3')
        I('s_lshl_b32 s6, s6, 6')
        I(f's_add_u32 s6, s6, {WS_DBG}')
        I('v_mov_b32 v1, s6')
        I('s_mov_b64 exec, 1')
        for j in range(0, n, 4):
            for t in range(4):
                I(f'v_mov_b32 v{4+t}, s{64+2*(j+t)}')
            I(f'buffer_store_dwordx4 v[4:7], v1, {srd}, 0 offen offset:{j*4}')
        I('s_mov_b64 exec, -1')
    def signal(self, vC, vOne, off):
        self.I(f'''s_mov_b64 exec, 1
ds_add_u32 {vC}, {vOne} offset:{off}
s_mov_b64 exec, -1''')
    def lds_wait(self, vC, vT, off, n, sleep=1):
        L = self.lab('lw'); D = self.lab('lwd')
        self.I(f'''{L}:
ds_read_b32 {vT}, {vC} offset:{off}
s_add_u32 s48, s48, 1
s_waitcnt lgkmcnt(0)
v_readfirstlane_b32 s49, {vT}
s_cmp_ge_u32 s49, {n}
s_cbranch_scc1 {D}
s_cmp_gt_u32 s48, {SPIN_LIMIT}
s_cbranch_scc1 {D}''')
        if sleep: self.I(f's_sleep {sleep}')
        self.I(f'''s_branch {L}
{D}:''')
    def tag_load(self, wsbase):
        self.I(f's_load_dword s52, s[{wsbase}:{wsbase+1}], {WS_E}')
        for i in range(4): self.I(f's_mov_b32 s{53+i}, 0x0706050{i}')
        self.I('s_mov_b32 s57, 0x0c0c0400\ns_mov_b32 s58, 0x04000c0c')
    def tag_ready(self):
        self.I('s_waitcnt lgkmcnt(0)\ns_add_u32 s52, s52, 1')
    def tag_acc(self, r, first, acc='v16', t1='v17', t2='v18', t3='v19'):
        self.I(f'v_perm_b32 {t2}, v{r+1}, v{r}, s57\nv_perm_b32 {t3}, v{r+3}, v{r+2}, s58\nv_or_b32 {t2}, {t2}, {t3}')
        if first: self.I(f'v_xor_b32 {acc}, s52, {t2}')
        else: self.I(f'v_xor_b32 {t1}, s52, {t2}\nv_or_b32 {acc}, {acc}, {t1}')
    def poll_tail(self, L, D, acc, sleep):
        self.I(f'''v_cmp_ne_u32 vcc, 0, {acc}
s_cbranch_vccz {D}
s_cmp_gt_u32 s48, {self.glim}
s_cbranch_scc1 {D}''')
        if sleep: self.I(f's_sleep {sleep}')
    def srd(self, base, karg_off, size):
        self.I(f's_load_dwordx2 s[{base}:{base+1}], s[0:1], {karg_off}')
        self.I(f's_mov_b32 s{base+2}, {size}')
        self.I(f's_mov_b32 s{base+3}, 0x20000')
    def stats_loads(self):
        self.I(f"""buffer_load_dwordx4 v[64:67], v61, s[20:23], 0 offen{SC}
buffer_load_dwordx4 v[68:71], v61, s[20:23], 0 offen offset:16{SC}""")
    def stats_check(self):
        self.tag_acc(64, True, 'v5', 'v6', 'v7', 'v4')
        self.tag_acc(68, False, 'v5', 'v6', 'v7', 'v4')
    def lane_setup(self):
        self.I('''v_and_b32 v1, 63, v0
v_lshrrev_b32 v2, 4, v1
v_and_b32 v3, 15, v1''')
    def mode_store(self, ins, smode):
        Lr = self.lab('ms'); Le = self.lab('mse')
        self.I(f'''s_cmp_eq_u32 {smode}, 0
s_cbranch_scc1 {Lr}
{ins}
s_branch {Le}
{Lr}:
{ins}{SC}
{Le}:''')

    def qtile_issue(self, srdW, srdX, sBase, sKs):
        I = self.I; pitch = 8192; stg = STG0
        ntf = ' nt' if self.p['nt_w'] else ''
        I(f'''v_lshrrev_b32 v4, 5, v1
v_lshlrev_b32 v4, 3, v4
v_bfe_u32 v5, v1, 3, 2
v_add_u32 v4, v4, v5
v_mul_u32_u24 v4, {pitch}, v4
v_and_b32 v5, 7, v1
v_bfe_u32 v6, v1, 4, 2
v_lshlrev_b32 v6, 1, v6
v_xor_b32 v5, v5, v6
v_lshlrev_b32 v5, 4, v5
v_add_u32 v4, v4, v5''')
        for i in range(16):
            rowi = 32*(i >> 2) + 16*(i & 1) + 4*((i >> 1) & 1)
            I(f's_mov_b32 m0, {stg + i*1024}')
            I(f's_add_u32 s7, {sBase}, {rowi*pitch}')
            I(f'buffer_load_dwordx4 v4, {srdW}, s7 offen{ntf} lds')
        I(f'''v_and_b32 v5, 1, v3
v_lshlrev_b32 v5, 10, v5
v_lshlrev_b32 v6, 4, v2
v_add_u32 v5, v5, v6
s_lshl_b32 s6, {sKs}, 8
v_add_u32 v5, s6, v5''')
        for kk in range(4):
            I(f'buffer_load_dwordx4 v[{8+4*kk}:{11+4*kk}], v5, {srdX}, 0 offen offset:{kk*64}')
        I(f'''v_lshrrev_b32 v6, 2, v3
v_and_b32 v7, 3, v3
v_lshlrev_b32 v28, 2, v2
v_add_u32 v28, v28, v6
v_lshlrev_b32 v28, 7, v28
v_lshlrev_b32 v7, 3, v7
v_add_u32 v28, v28, v7
v_add_u32 v28, {stg}, v28
v_lshlrev_b32 v29, 1, v2
v_lshrrev_b32 v6, 1, v6
v_add_u32 v29, v29, v6
v_and_b32 v29, 3, v29''')
        for nt_ in range(4):
            I(f'''v_xor_b32 v6, {nt_}, v29
v_lshlrev_b32 v6, 5, v6
v_add_u32 v{24+nt_}, v28, v6''')
    def qtile_compute(self):
        I = self.I
        def reads(kk, setb):
            for nt_ in range(4):
                for hf in range(2):
                    r = setb + 4*nt_ + 2*hf
                    I(f'ds_read_b64_tr_b16 v[{r}:{r+1}], v{24+nt_} offset:{kk*4096 + hf*2048}')
        def mf(kk, setb):
            for nt_ in range(4):
                c = '0' if kk == 0 else f'v[{64+4*nt_}:{67+4*nt_}]'
                I(f'v_mfma_f32_16x16x32_bf16 v[{64+4*nt_}:{67+4*nt_}], v[{8+4*kk}:{11+4*kk}], v[{setb+4*nt_}:{setb+4*nt_+3}], {c}')
        sets = (32, 48)
        reads(0, sets[0])
        for kk in range(4):
            I('s_waitcnt lgkmcnt(0)')
            if kk < 3: reads(kk+1, sets[(kk+1) & 1])
            mf(kk, sets[kk & 1])
        I('''s_mov_b32 s40, 0xffff0000
s_mov_b32 s41, 0
s_mov_b32 s42, 0
s_mov_b32 s43, 0x0000ffff
s_mov_b32 s44, 0
s_mov_b32 s45, 0xffff0000''')
        for b in range(2):
            I(f'''v_cndmask_b32 v{40+b}, v{64+b}, v{68+b}, s[40:41]
v_cndmask_b32 v{40+b}, v{40+b}, v{72+b}, s[42:43]
v_cndmask_b32 v{40+b}, v{40+b}, v{76+b}, s[44:45]''')

    def ftile_issue(self, srdW, srdX, sBase, sKs):
        I = self.I; pitch = 3584; stg = STG1
        ntf = ' nt' if self.p['nt_w'] else ''
        I(f'''v_lshrrev_b32 v4, 4, v1
v_lshlrev_b32 v4, 3, v4
v_bfe_u32 v5, v1, 2, 2
v_add_u32 v4, v4, v5
v_mul_u32_u24 v4, {pitch}, v4
v_and_b32 v5, 3, v1
v_bfe_u32 v6, v1, 4, 1
v_lshlrev_b32 v6, 1, v6
v_xor_b32 v5, v5, v6
v_lshlrev_b32 v5, 4, v5
v_add_u32 v4, v4, v5''')
        for i in range(16):
            rowi = 32*(i >> 1) + 4*(i & 1)
            I(f's_mov_b32 m0, {stg + i*1024}')
            I(f's_add_u32 s7, {sBase}, {rowi*pitch}')
            I(f'buffer_load_dwordx4 v4, {srdW}, s7 offen{ntf} lds')
        I(f'''v_and_b32 v5, 1, v3
v_lshlrev_b32 v5, 10, v5
v_lshlrev_b32 v6, 4, v2
v_add_u32 v5, v5, v6
s_lshl_b32 s6, {sKs}, 9
v_add_u32 v5, s6, v5''')
        for kk in range(8):
            I(f'buffer_load_dwordx4 v[{96+4*kk}:{99+4*kk}], v5, {srdX}, 0 offen offset:{kk*64}')
        I(f'''v_lshrrev_b32 v6, 2, v3
v_and_b32 v7, 3, v3
v_lshlrev_b32 v28, 2, v2
v_add_u32 v28, v28, v6
v_lshlrev_b32 v28, 6, v28
v_lshlrev_b32 v7, 3, v7
v_add_u32 v28, v28, v7
v_add_u32 v28, {stg}, v28
v_and_b32 v29, 1, v2
v_lshlrev_b32 v6, 5, v29
v_add_u32 v24, v28, v6
v_xor_b32 v6, 1, v29
v_lshlrev_b32 v6, 5, v6
v_add_u32 v25, v28, v6''')
    def ftile_compute(self):
        I = self.I
        def reads(k2, setb):
            for kq in range(2):
                kk = 2*k2 + kq
                for nt_ in range(2):
                    for hf in range(2):
                        r = setb + 8*kq + 4*nt_ + 2*hf
                        I(f'ds_read_b64_tr_b16 v[{r}:{r+1}], v{24+nt_} offset:{kk*2048 + hf*1024}')
        def mf(k2, setb):
            for kq in range(2):
                kk = 2*k2 + kq
                for nt_ in range(2):
                    c = '0' if kk == 0 else f'v[{64+4*nt_}:{67+4*nt_}]'
                    r = setb + 8*kq + 4*nt_
                    I(f'v_mfma_f32_16x16x32_bf16 v[{64+4*nt_}:{67+4*nt_}], v[{96+4*kk}:{99+4*kk}], v[{r}:{r+3}], {c}')
        sets = (32, 48)
        reads(0, sets[0])
        for k2 in range(4):
            I('s_waitcnt lgkmcnt(0)')
            if k2 < 3: reads(k2+1, sets[(k2+1) & 1])
            mf(k2, sets[k2 & 1])
        I('''s_mov_b32 s40, 0xffff0000
s_mov_b32 s41, 0
s_mov_b32 s42, 0
s_mov_b32 s43, 0x0000ffff
s_mov_b32 s44, 0
s_mov_b32 s45, 0xffff0000
v_cndmask_b32 v40, v64, v68, s[40:41]
v_cndmask_b32 v40, v40, v65, s[42:43]
v_cndmask_b32 v40, v40, v69, s[44:45]''')

    def role_j0(self):
        I = self.I; p = self.p
        I('L_J0:')
        self.srd(16, 24, 0x400000)
        self.srd(20, 0, 2048)
        self.srd(24, 96, WS_SIZE)
        I('s_barrier')
        if p['x_stream']: I('s_endpgm')
        self.lane_setup()
        I(f"""s_lshr_b32 s8, s5, 2          ; qcl
s_and_b32 s9, s5, 3           ; ks
s_mul_i32 s10, s9, 128*8192
s_lshl_b32 s6, s4, 10
s_add_u32 s10, s10, s6
s_lshl_b32 s6, s8, 7
s_add_u32 s10, s10, s6
s_getreg_b32 s12, hwreg(HW_REG_XCC_ID, 0, 4)
v_mov_b32 v90, {CNT}
v_mov_b32 v91, 1
s_waitcnt lgkmcnt(0)""")
        self.qtile_issue('s[16:19]', 's[20:23]', 's10', 's9')
        self.tag_load(24)
        I("""v_and_b32 v81, 3, v1
v_add_u32 v81, 0x07060500, v81
s_lshl_b32 s13, s12, 8
v_mov_b32 v82, s13""")
        self.stamp(1)
        I('s_waitcnt vmcnt(0)')
        self.tag_ready()
        I('v_mov_b32 v80, s52')
        self.stamp(2)
        self.qtile_compute()
        I(f"""v_perm_b32 v40, v40, v80, v81
v_perm_b32 v41, v41, v80, v81
v_perm_b32 v82, v82, v80, v81
s_lshl_b32 s6, s4, 3
s_add_u32 s6, s6, s9
s_lshl_b32 s6, s6, 11         ; (g*8 + ks)*2048
s_lshl_b32 s7, s8, 8
s_add_u32 s6, s6, s7
v_lshlrev_b32 v4, 2, v1
v_add_u32 v5, s6, v4
v_add_u32 v6, {4*2048}, v5
s_lshl_b32 s6, s4, 5
s_add_u32 s6, s6, s5
s_lshl_b32 s6, s6, 7
s_add_u32 s6, s6, {WS_ID}
v_add_u32 v7, s6, v4
s_mov_b32 s14, {COPYB}
buffer_store_dword v40, v5, s[24:27], 0 offen
buffer_store_dword v41, v6, s[24:27], 0 offen
s_mov_b32 exec_hi, 0
buffer_store_dword v82, v7, s[24:27], 0 offen
s_mov_b32 exec_hi, -1
""")
        if not p['x_nob']:
            I(f"""buffer_store_dword v40, v5, s[24:27], s14 offen{SC}
buffer_store_dword v41, v6, s[24:27], s14 offen{SC}
s_mov_b32 exec_hi, 0
buffer_store_dword v82, v7, s[24:27], s14 offen{SC}
s_mov_b32 exec_hi, -1""")
        if p['qdelay']: I(f"s_sleep {p['qdelay']}")
        self.stamp(3)
        I(f"""s_lshl_b32 s6, s4, 1
s_lshr_b32 s7, s5, 4          ; b
s_add_u32 s6, s6, s7
s_lshl_b32 s6, s6, 13
v_lshlrev_b32 v4, 4, v1
v_add_u32 v4, s6, v4
v_and_b32 v5, 31, v1
v_lshlrev_b32 v5, 7, v5
s_lshl_b32 s6, s4, 12
s_add_u32 s6, s6, {WS_ID}
v_add_u32 v5, s6, v5
s_mov_b32 s15, {COPYB if p['force_remote'] else 0}
s_mov_b32 s11, 0""")
        L = self.lab('qg'); D = self.lab('qgd'); Lk = self.lab('qgk')
        I(f'{L}:')
        for ks in range(4):
            I(f's_add_u32 s7, s15, {ks*2048}')
            for i in range(2):
                r = 8 + 8*ks + 4*i
                I(f'buffer_load_dwordx4 v[{r}:{r+3}], v4, s[24:27], s7 offen offset:{i*1024}{SC}')
        I(f'buffer_load_dwordx4 v[40:43], v5, s[24:27], s15 offen{SC}')
        I('s_add_u32 s48, s48, 1\ns_add_u32 s11, s11, 1\ns_waitcnt vmcnt(0)')
        for j in range(9):
            self.tag_acc(8 + 4*j, j == 0, 'v44', 'v45', 'v46', 'v47')
        self.poll_tail(L, D, 'v44', p['slq'])
        if not p['force_remote']:
            I(f"""s_cmp_lt_u32 s11, {p['na_polls']}
s_cbranch_scc1 {L}
s_xor_b32 s15, s15, {COPYB}""")
        I(f"""s_branch {L}
{D}:""")
        self.stamp(5)
        I(f"""v_bfe_u32 v40, v40, 8, 4
v_cmp_ne_u32 vcc, s12, v40
s_cmp_eq_u64 vcc, 0
s_cselect_b32 s6, {0 if p['force_remote'] else 1}, 0
v_mov_b32 v44, s6
s_mov_b64 exec, 1
ds_write_b32 v90, v44 offset:{C_M}
s_mov_b64 exec, -1""")
        for e in range(8):
            I(f'v_add_f32 v{8+e}, v{8+e}, v{16+e}')
            I(f'v_add_f32 v{24+e}, v{24+e}, v{32+e}')
        for e in range(8):
            I(f'v_add_f32 v{8+e}, v{8+e}, v{24+e}')
        I(f"""v_cvt_pk_bf16_f32 v40, v8, v9
v_cvt_pk_bf16_f32 v41, v10, v11
v_cvt_pk_bf16_f32 v42, v12, v13
v_cvt_pk_bf16_f32 v43, v14, v15
v_lshlrev_b32 v4, 3, v1
v_add_u32 v4, {Q_OFF}, v4
ds_write_b64 v4, v[40:41]
ds_write_b64 v4, v[42:43] offset:512""")
        self.signal('v90', 'v91', C_Q)
        I('s_waitcnt lgkmcnt(0)')
        self.stamp(6)
        self.stamp_dump('s[24:27]')
        I('s_endpgm')

    def role_j1(self):
        I = self.I; p = self.p
        I('L_J1:')
        I('s_load_dwordx4 s[8:11], s[0:1], 48')
        self.srd(20, 0, 2048)
        self.srd(24, 96, WS_SIZE)
        self.srd(28, 72, 1024)
        I('s_barrier')
        if p['x_stream']: I('s_endpgm')
        self.lane_setup()
        I(f"""s_mul_i32 s12, s5, 9363
s_lshr_b32 s12, s12, 16
s_mul_i32 s13, s12, 7
s_sub_u32 s13, s5, s13        ; cf
s_and_b32 s14, s12, 1         ; mat
s_lshr_b32 s15, s12, 1        ; ks
v_mov_b32 v90, {CNT}
v_mov_b32 v91, 1
s_waitcnt lgkmcnt(0)
s_cmp_eq_u32 s14, 0
s_cselect_b32 s16, s8, s10
s_cselect_b32 s17, s9, s11
s_mov_b32 s18, {512*1792*2}
s_mov_b32 s19, 0x20000
s_mul_i32 s8, s15, 256*3584
s_mul_i32 s6, s4, 448
s_add_u32 s8, s8, s6
s_lshl_b32 s6, s13, 6
s_add_u32 s8, s8, s6""")
        Lskip = self.lab('nof1'); Lj = self.lab('f1j')
        I(f"""s_cmp_ge_u32 s5, 28
s_cbranch_scc1 {Lskip}""")
        self.ftile_issue('s[16:19]', 's[20:23]', 's8', 's15')
        I(f'{Lskip}:')
        I("""v_lshlrev_b32 v80, 4, v1
buffer_load_dwordx4 v[84:87], v80, s[20:23], 0 offen
buffer_load_dwordx4 v[88:91], v80, s[20:23], 0 offen offset:1024
buffer_load_dwordx4 v[92:95], v80, s[28:31], 0 offen""")
        self.tag_load(24)
        I("""v_and_b32 v81, 3, v1
v_add_u32 v81, 0x07060500, v81""")
        self.stamp(1)
        I('s_waitcnt vmcnt(0)')
        self.tag_ready()
        I('v_mov_b32 v80, s52')
        self.stamp(2)
        I(f"""s_cmp_ge_u32 s5, 28
s_cbranch_scc1 {Lj}""")
        self.ftile_compute()
        I(f"""v_perm_b32 v40, v40, v80, v81
s_lshl_b32 s6, s4, 2
s_add_u32 s6, s6, s12
s_lshl_b32 s6, s4, 2
s_lshl_b32 s7, s14, 1
s_add_u32 s6, s6, s7
s_add_u32 s6, s6, s15
s_lshl_b32 s6, s6, 11         ; *[b 2][256] f32
s_lshl_b32 s7, s13, 7
s_add_u32 s6, s6, s7
s_add_u32 s6, s6, {WS_F}
v_lshrrev_b32 v4, 5, v1
v_lshlrev_b32 v4, 10, v4
v_and_b32 v5, 31, v1
v_lshlrev_b32 v5, 2, v5
v_add_u32 v4, v4, v5
v_add_u32 v4, s6, v4
s_mov_b32 s7, {COPYB}
buffer_store_dword v40, v4, s[24:27], 0 offen""")
        if not p['x_nob']: I(f'buffer_store_dword v40, v4, s[24:27], s7 offen{SC}')
        if p['qdelay']: I(f"s_sleep {p['qdelay']}")
        I(f'{Lj}:')
        self.stamp(3)
        I('v_mov_b32 v8, 0\nv_mov_b32 v9, 0')
        for e in range(4):
            I(f"""v_lshlrev_b32 v10, 16, v{92+e}
v_and_b32 v11, 0xffff0000, v{92+e}
v_lshlrev_b32 v12, 16, v{84+e}
v_and_b32 v13, 0xffff0000, v{84+e}
v_lshlrev_b32 v14, 16, v{88+e}
v_and_b32 v15, 0xffff0000, v{88+e}
v_fmac_f32 v8, v10, v12
v_fmac_f32 v9, v10, v14
v_fmac_f32 v8, v11, v13
v_fmac_f32 v9, v11, v15""")
        for rr in (8, 4, 2, 1):
            I(f'v_add_f32_dpp v8, v8, v8 row_ror:{rr} row_mask:0xf bank_mask:0xf')
            I(f'v_add_f32_dpp v9, v9, v9 row_ror:{rr} row_mask:0xf bank_mask:0xf')
        for sw in ('v_permlane16_swap_b32', 'v_permlane32_swap_b32'):
            I(f"""v_mov_b32 v10, v8
v_mov_b32 v11, v9
{sw} v8, v10
{sw} v9, v11
v_add_f32 v8, v8, v10
v_add_f32 v9, v9, v11""")
        I(f"""v_mul_f32 v8, {fhex(-math.log2(math.e))}, v8
v_mul_f32 v9, {fhex(-math.log2(math.e))}, v9
v_exp_f32 v8, v8
v_exp_f32 v9, v9
v_add_f32 v8, 1.0, v8
v_add_f32 v9, 1.0, v9
v_rcp_f32 v8, v8
v_rcp_f32 v9, v9
v_mov_b32 v10, {GATE}
s_mov_b64 exec, 1
ds_write_b64 v10, v[8:9]
s_mov_b64 exec, -1
s_mov_b32 s40, 0
s_mov_b32 s41, -1
v_cndmask_b32 v16, v8, v9, s[40:41]
v_sub_f32 v16, 1.0, v16""")
        I('v_mov_b32 v90, %d\nv_mov_b32 v91, 1' % CNT)
        self.signal('v90', 'v91', C_H)
        I(f"""s_lshl_b32 s6, s4, 13         ; g*[mat][ks][b][256]*4
s_lshr_b32 s7, s5, 2
s_mul_i32 s7, s7, 112
s_add_u32 s6, s6, s7
s_add_u32 s6, s6, {WS_F}
v_and_b32 v4, 31, v1
v_min_u32 v5, 27, v4
v_and_b32 v17, 3, v5
v_lshlrev_b32 v17, 3, v17
v_lshrrev_b32 v17, v17, v80
v_lshlrev_b32 v5, 2, v5
v_lshrrev_b32 v6, 5, v1
v_lshlrev_b32 v6, 10, v6
v_add_u32 v5, v5, v6
v_add_u32 v5, s6, v5
s_mov_b32 s15, {COPYB if p['force_remote'] else 0}
s_mov_b32 s11, 0""")
        L = self.lab('hg'); D = self.lab('hgd')
        I(f'{L}:')
        for m in range(4):
            I(f's_add_u32 s7, s15, {m*2048}')
            I(f'buffer_load_dword v{24+m}, v5, s[24:27], s7 offen{SC}')
        I('s_add_u32 s48, s48, 1\ns_add_u32 s11, s11, 1\ns_waitcnt vmcnt(0)')
        I('v_xor_b32 v18, v24, v17')
        for j in range(1, 4):
            I(f'v_xor_b32 v19, v{24+j}, v17\nv_or_b32 v18, v18, v19')
        I('v_and_b32 v18, 0xff, v18')
        self.poll_tail(L, D, 'v18', p['slf'])
        if not p['force_remote']:
            I(f"""s_cmp_lt_u32 s11, {p['na_polls']}
s_cbranch_scc1 {L}
s_xor_b32 s15, s15, {COPYB}""")
        I(f"""s_branch {L}
{D}:""")
        self.stamp(5)
        I(f"""v_add_f32 v24, v24, v25
v_add_f32 v28, v26, v27
v_mul_f32 v25, {fhex(-math.log2(math.e))}, v24
v_exp_f32 v25, v25
v_add_f32 v25, 1.0, v25
v_rcp_f32 v25, v25
v_mul_f32 v24, v24, v25
v_mul_f32 v24, v24, v28
v_mul_f32 v24, v24, v16
v_cmp_gt_u32 vcc, 28, v4
v_cndmask_b32 v24, 0, v24, vcc
v_cvt_pk_bf16_f32 v24, v24, v24
v_bfe_u32 v6, v4, 2, 2
v_lshlrev_b32 v6, 4, v6
v_lshrrev_b32 v7, 4, v4
v_lshlrev_b32 v7, 3, v7
v_add_u32 v6, v6, v7
v_and_b32 v7, 3, v4
v_lshlrev_b32 v7, 1, v7
v_add_u32 v6, v6, v7
v_lshrrev_b32 v7, 5, v1
v_lshlrev_b32 v7, 6, v7
v_add_u32 v6, v6, v7
v_add_u32 v6, {A2}, v6
ds_write_b16 v6, v24
s_waitcnt lgkmcnt(0)""")
        self.stamp(6)
        self.stamp_dump('s[24:27]')
        I('s_endpgm')

    def role_loader(self):
        I = self.I; p = self.p
        ntv = ' nt' if p['nt_v'] else ''
        ntw = ' nt' if p['nt_w'] else ''
        I('L_LD:')
        I(f"""s_sub_u32 s8, s3, {W_L0}           ; loader j
v_mov_b32 v90, {CNT}
v_mov_b32 v91, 1
s_cmp_lg_u32 s8, 0
s_cbranch_scc1 L_LD_noinit
v_mov_b32 v8, 0
v_mov_b32 v9, 0
v_mov_b32 v10, 0
v_mov_b32 v11, 0
ds_write_b128 v90, v[8:11]
ds_write_b128 v90, v[8:11] offset:16
s_waitcnt lgkmcnt(0)
L_LD_noinit:
s_barrier""")
        self.srd(16, 16, 0x2000000)
        self.srd(20, 32, 0x400000)
        self.srd(24, 64, 1792*512*2)
        self.srd(28, 96, WS_SIZE)
        self.lane_setup()
        if p['pf']:
            I(f"""s_cmp_lg_u32 s8, 3
s_cbranch_scc1 L_LD_nopf
s_getpc_b64 s[36:37]
L_PC:
s_add_u32 s36, s36, {KNAME}-L_PC
s_addc_u32 s37, s37, -1
v_lshlrev_b32 v4, 4, v1
s_mov_b32 s6, L_codeend-{KNAME}-16""")
            for j in range(p.get('pfn', 14)):
                I(f"""v_min_u32 v5, s6, v4
global_load_dwordx4 v[12:15], v5, s[36:37]
v_add_u32 v4, 1024, v4""")
            I('L_LD_nopf:')
        I('s_waitcnt lgkmcnt(0)')
        TLBMARK = True
        I(f"""s_and_b32 s6, s8, 1
s_lshl_b32 s6, s6, 2
v_add_u32 v5, s6, v2          ; (4*(j&1) + rho)
v_lshlrev_b32 v5, 1, v5
v_xor_b32 v5, v5, v3          ; chunk
v_lshlrev_b32 v5, 4, v5
v_lshlrev_b32 v6, 8, v2
v_add_u32 v10, v5, v6         ; V voffset
v_lshlrev_b32 v6, 17, v2
v_add_u32 v11, v5, v6
v_lshlrev_b32 v6, 10, v2
v_add_u32 v16, v5, v6
s_lshr_b32 s6, s5, 4          ; b
s_lshl_b32 s6, s6, 3
s_add_u32 s6, s6, s4          ; bh
s_lshl_b32 s10, s6, 21
s_and_b32 s6, s5, 15          ; t
s_lshl_b32 s6, s6, 17
s_add_u32 s10, s10, s6
s_and_b32 s6, s8, 1
s_lshl_b32 s6, s6, 10
s_add_u32 s10, s10, s6        ; V base + (j & 1) * 1024
s_lshr_b32 s11, s5, 2         ; w'
s_and_b32 s12, s5, 3          ; cg
s_lshl_b32 s13, s4, 9
s_lshl_b32 s6, s11, 4
s_add_u32 s13, s13, s6
s_add_u32 s13, s13, s8
s_lshl_b32 s13, s13, 10
s_lshl_b32 s6, s12, 8
s_add_u32 s13, s13, s6
s_lshl_b32 s14, s4, 3
s_add_u32 s14, s14, s11       ; rg
s_mul_i32 s14, s14, 28
s_lshl_b32 s6, s8, 2
s_add_u32 s15, s14, s6
s_add_u32 s6, s8, 4
s_min_u32 s6, s6, 6
s_lshl_b32 s6, s6, 2
s_add_u32 s14, s14, s6
s_lshl_b32 s15, s15, 10
s_lshl_b32 s14, s14, 10
s_lshl_b32 s6, s12, 8
s_add_u32 s15, s15, s6
s_add_u32 s14, s14, s6
s_lshl_b32 s9, s8, 10         ; j*1024""")
        if p['tlb']:
            Lt = self.lab('tlb')
            I(f"""s_cmp_lg_u32 s8, 2
s_cbranch_scc1 {Lt}
v_mov_b32 v20, 0
s_mov_b64 exec, 1
buffer_load_dword v21, v20, s[16:19], s10 offen
buffer_load_dword v22, v20, s[20:23], s13 offen
buffer_load_dword v23, v20, s[24:27], s15 offen
s_mov_b32 s6, {WS_T1}
buffer_load_dword v24, v20, s[28:31], s6 offen
s_mov_b32 s6, {WS_T3}
buffer_load_dword v25, v20, s[28:31], s6 offen
s_mov_b32 s6, {WS_ST}
buffer_load_dword v26, v20, s[28:31], s6 offen
s_mov_b64 exec, -1
{Lt}:""")
        self.stamp(1)
        self.lds_wait('v90', 'v7', C_K, p['kthr'], sleep=2)
        I('s_waitcnt vmcnt(0)')
        self.stamp(2)
        loads = []
        I(f"""s_mul_i32 s61, s5, {p['rkb']}
s_mul_i32 s6, s4, {p['rkc']}
s_add_u32 s61, s61, s6
s_lshr_b32 s6, s8, 1
s_add_u32 s61, s61, s6""")
        for q in range(32):
            cw = q >> 2
            loads.append([f's_add_u32 m0, s9, {V_OFF + q*4096}',
                          f's_add_u32 s6, s61, {cw*p["rka"] + 2*(q & 3)}',
                          f's_and_b32 s6, s6, 7',
                          f's_lshl_b32 s6, s6, 11',
                          f's_add_u32 s6, s6, s10',
                          f's_add_u32 s6, s6, {cw*16384}',
                          f'buffer_load_dwordx4 v10, s[16:19], s6 offen{ntv} lds'])
        for q in range(4):
            loads.append([f's_add_u32 m0, s9, {WO_OFF + q*4096}',
                          f's_add_u32 s6, s13, {q*4096}',
                          f'buffer_load_dwordx4 v11, s[20:23], s6 offen{ntw} lds'])
        loads.append([f's_add_u32 m0, s9, {WD_OFF}', 's_nop 0', f'buffer_load_dwordx4 v16, s[24:27], s15 offen{ntw} lds'])
        loads.append([f's_add_u32 m0, s9, {WD_OFF + 4096}', 's_nop 0', f'buffer_load_dwordx4 v16, s[24:27], s14 offen{ntw} lds'])
        n = len(loads)
        nA = 2 * p['na']
        marks = {nA - 1: 'A', 31: 'V'}
        def mark(m):
            if m == 'A': self.signal('v90', 'v91', C_A)
            elif not p['x_stream']: I('s_barrier')
            self.stamp(3 if m == 'A' else 4)
        def depth(i): return p['dv2'] if i >= n - p['dvn'] else p['dv']
        done = -1
        issued = 0
        pend = sorted(marks)
        while issued < n:
            D = depth(issued)
            need_done = issued - D
            if need_done > done:
                I(f's_waitcnt vmcnt({issued - 1 - need_done})')
                done = need_done
            for l in loads[issued]: I(l)
            issued += 1
            while pend and pend[0] <= done:
                mark(marks[pend.pop(0)])
        while done < n - 1:
            done += 1
            if pend and pend[0] == done or done == n - 1:
                I(f's_waitcnt vmcnt({n - 1 - done})')
            while pend and pend[0] <= done:
                mark(marks[pend.pop(0)])
        self.stamp(5)
        if not p['x_stream']: I('s_barrier')
        self.stamp_dump('s[28:31]')
        I('s_endpgm')

    def role_compute(self):
        I = self.I; p = self.p
        ntk = ' nt' if p['nt_k'] else ''
        cexp = math.log2(math.e) / math.sqrt(128.0)
        I('L_CW:')
        self.srd(16, 8, 0x2000000)
        self.srd(20, 96, WS_SIZE)
        self.srd(24, 80, 2048)
        I('s_barrier')
        self.lane_setup()
        I(f"""s_sub_u32 s8, s3, {W_C0}           ; cw
s_lshr_b32 s6, s5, 4          ; b
s_lshl_b32 s6, s6, 3
s_add_u32 s6, s6, s4
s_lshl_b32 s10, s6, 21
s_and_b32 s6, s5, 15
s_lshl_b32 s6, s6, 17
s_add_u32 s10, s10, s6
s_lshl_b32 s6, s8, 14
s_add_u32 s10, s10, s6
v_and_b32 v4, 7, v1
v_lshlrev_b32 v4, 8, v4
v_bfe_u32 v5, v1, 3, 1
v_lshlrev_b32 v5, 6, v5
v_add_u32 v4, v4, v5
v_lshlrev_b32 v5, 4, v2
v_add_u32 v4, v4, v5          ; K voffset
s_mul_i32 s61, s8, {p['rka']}
s_mul_i32 s6, s5, {p['rkb']}
s_add_u32 s61, s61, s6
s_mul_i32 s6, s4, {p['rkc']}
s_add_u32 s61, s61, s6
v_mov_b32 v62, {CNT}
v_mov_b32 v63, 1
s_waitcnt lgkmcnt(0)""")
        D = p['dk']
        def kload(i):
            o, hx = divmod(i, 2)
            if hx == 0:
                I(f's_add_u32 s11, s61, {o}\ns_and_b32 s11, s11, 7\ns_lshl_b32 s11, s11, 11\ns_add_u32 s11, s11, s10')
            I(f'buffer_load_dwordx4 v[{64+4*i}:{67+4*i}], v4, s[16:19], s11 offen offset:{hx*128}{ntk}')
        for i in range(D): kload(i)
        self.tag_load(20)
        self.stamp(1)
        vC, vOne = 'v62', 'v63'
        for i in range(D, 16):
            I(f's_waitcnt vmcnt({D-1})')
            kload(i)
            if i == 15 - p['ksig']:
                self.signal(vC, vOne, C_K)
        self.stamp(2)
        if p['x_stream']:
            I('s_waitcnt vmcnt(0)')
            self.stamp(3)
            self.stamp_dump('s[20:23]', 16)
            I('s_endpgm')
        self.tag_ready()
        I(f"""v_and_b32 v5, 3, v3           ; head = n&3
v_lshlrev_b32 v6, 8, v5
v_lshlrev_b32 v7, 4, v2
v_add_u32 v60, v6, v7
v_bfe_u32 v6, v3, 3, 1
v_lshlrev_b32 v6, 6, v6
v_add_u32 v60, v60, v6
v_add_u32 v60, {Q_OFF}, v60
v_lshlrev_b32 v61, 5, v5
v_add_u32 v61, {MX}, v61
s_lshl_b32 s6, s8, 2
v_add_u32 v59, s6, v61""")
        self.lds_wait(vC, 'v5', C_Q, 1, sleep=2)
        self.stamp(3)
        for hx in range(2):
            I(f'ds_read_b128 v[{48+4*hx}:{51+4*hx}], v60 offset:{hx*128}')
        I(f'ds_read_b32 v5, {vC} offset:{C_M}')
        I('s_waitcnt lgkmcnt(0)\nv_readfirstlane_b32 s51, v5')
        for o in range(8):
            I(f's_waitcnt vmcnt({14 - 2*o})')
            for hx in range(2):
                c = '0' if hx == 0 else f'v[{16+4*o}:{19+4*o}]'
                r = 64 + 8*o + 4*hx
                I(f'v_mfma_f32_16x16x32_bf16 v[{16+4*o}:{19+4*o}], v[{r}:{r+3}], v[{48+4*hx}:{51+4*hx}], {c}')
        for j in range(4):
            for r in range(4): I(f'v_permlane32_swap_b32 v{16+8*j+r}, v{20+8*j+r}')
            for r in range(4): I(f'v_add_f32_dpp v{16+4*j+r}, v{20+8*j+r}, v{16+8*j+r} row_ror:8 row_mask:0xf bank_mask:0xf')
        I('v_max3_f32 v5, v16, v17, v18')
        for e in range(19, 31, 2):
            I(f'v_max3_f32 v5, v5, v{e}, v{e+1}')
        I('v_max_f32 v5, v5, v31')
        for sw in ('v_permlane16_swap_b32', 'v_permlane32_swap_b32'):
            I(f"""v_mov_b32 v6, v5
{sw} v5, v6
v_max_f32 v5, v5, v6""")
        I("""s_mov_b64 exec, 15
ds_write_b32 v59, v5
s_mov_b64 exec, -1""")
        self.signal(vC, vOne, C_1)
        self.lds_wait(vC, 'v6', C_1, 8, sleep=0)
        I(f"""ds_read_b128 v[48:51], v61
ds_read_b128 v[52:55], v61 offset:16
s_mov_b32 s50, {fhex(cexp)}
s_waitcnt lgkmcnt(0)
v_max3_f32 v48, v48, v49, v50
v_max3_f32 v51, v51, v52, v53
v_max3_f32 v48, v48, v54, v55
v_max_f32 v48, v48, v51
v_mul_f32 v58, s50, v48""")
        for e in range(16):
            I(f'v_fma_f32 v{16+e}, v{16+e}, s50, -v58')
        for e in range(16):
            I(f'v_exp_f32 v{16+e}, v{16+e}')
        for q in range(8):
            I(f'v_cvt_pk_bf16_f32 v{48+q}, v{16+2*q}, v{17+2*q}')
        I(f"""s_lshl_b32 s6, s8, 9
s_add_u32 s6, s6, {P_OFF}
v_lshlrev_b32 v6, 6, v2
v_lshlrev_b32 v7, 4, v3
v_add_u32 v6, v6, v7
v_add_u32 v6, s6, v6
s_mov_b32 s40, 0x000f000f
s_mov_b32 s41, 0x000f000f
s_mov_b64 exec, s[40:41]
ds_write_b128 v6, v[48:51]
ds_write_b128 v6, v[52:55] offset:256
s_mov_b64 exec, -1""")
        for e in range(8): I(f'v_add_f32 v{16+e}, v{16+e}, v{24+e}')
        for e in range(4): I(f'v_add_f32 v{16+e}, v{16+e}, v{20+e}')
        I("""v_add_f32 v16, v16, v17
v_add_f32 v18, v18, v19
v_add_f32 v5, v16, v18""")
        for sw in ('v_permlane16_swap_b32', 'v_permlane32_swap_b32'):
            I(f"""v_mov_b32 v6, v5
{sw} v5, v6
v_add_f32 v5, v5, v6""")
        I("""s_mov_b64 exec, 15
ds_write_b32 v59, v5 offset:128
s_mov_b64 exec, -1""")
        self.signal(vC, vOne, C_2)
        self.lds_wait(vC, 'v6', C_2, 8, sleep=0)
        self.stamp(4)
        I(f"""s_lshl_b32 s12, s4, 5
s_add_u32 s12, s12, s5        ; slot
v_mov_b32 v47, s52""")
        Ls = self.lab('nostat')
        I(f"""s_cmp_lg_u32 s8, 0
s_cbranch_scc1 {Ls}
ds_read_b128 v[48:51], v61 offset:128
ds_read_b128 v[52:55], v61 offset:144
v_and_b32 v6, 3, v1
v_add_u32 v6, 0x07060500, v6
s_waitcnt lgkmcnt(0)
v_add_f32 v48, v48, v49
v_add_f32 v50, v50, v51
v_add_f32 v52, v52, v53
v_add_f32 v54, v54, v55
v_add_f32 v48, v48, v50
v_add_f32 v52, v52, v54
v_add_f32 v48, v48, v52
s_mov_b32 s40, 0xf0f0f0f0
s_mov_b32 s41, 0
v_cndmask_b32 v48, v58, v48, s[40:41]
v_perm_b32 v48, v48, v47, v6
s_lshl_b32 s6, s12, 7
s_add_u32 s6, s6, {WS_ST}
v_lshlrev_b32 v6, 2, v1
s_mov_b32 exec_hi, 0""")
        self.mode_store('buffer_store_dword v48, v6, s[20:23], s6 offen', 's51')
        I('s_mov_b32 exec_hi, -1')
        I(f'{Ls}:')
        I(f"""v_and_b32 v5, 3, v3
v_lshlrev_b32 v5, 4, v5
v_lshlrev_b32 v6, 6, v2
v_add_u32 v5, v5, v6
v_add_u32 v5, {P_OFF}, v5""")
        for st in range(16):
            if st == 8: I('s_waitcnt lgkmcnt(0)')
            I(f'ds_read_b128 v[{64+4*st}:{67+4*st}], v5 offset:{st*256}')
        I(f"""v_lshrrev_b32 v5, 2, v3       ; r
v_and_b32 v6, 3, v3           ; c4
v_lshlrev_b32 v7, 2, v2
v_add_u32 v7, v7, v5          ; 4s + r
v_and_b32 v48, 7, v7          ; (4(s&1) + r)
v_xor_b32 v48, s8, v48
v_lshlrev_b32 v48, 5, v48
v_lshlrev_b32 v7, 8, v7
v_add_u32 v7, v7, v48
v_lshlrev_b32 v6, 3, v6
v_add_u32 v56, v7, v6
v_add_u32 v57, 0x10000, v56
v_add_u32 v59, 0x20000, v56""")
        I(f"""s_lshr_b32 s13, s5, 2         ; w'
s_and_b32 s14, s5, 3          ; cg
s_and_b32 s15, s8, 1
s_lshl_b32 s6, s15, 4
v_add_u32 v5, s6, v2          ; b*16 + tq
v_lshlrev_b32 v12, 4, v5
v_add_u32 v12, {WL}, v12
s_lshl_b32 s6, s4, 5
v_add_u32 v61, s6, v5         ; slot' (i = 0)
v_lshlrev_b32 v61, 11, v61
s_lshl_b32 s6, s13, 4
v_add_u32 v6, s6, v3
v_lshlrev_b32 v6, 4, v6
v_add_u32 v61, v61, v6
v_add_u32 v61, {WS_T1}, v61
v_lshrrev_b32 v6, 3, v3
v_lshlrev_b32 v6, 6, v6
v_bfe_u32 v7, v3, 2, 1
v_lshlrev_b32 v7, 3, v7       ; half*8
v_add_u32 v6, v6, v7
v_and_b32 v7, 3, v3
v_lshlrev_b32 v7, 4, v7       ; sA*16
v_add_u32 v6, v6, v7
s_lshl_b32 s6, s15, 7
s_add_u32 s6, s6, {A1}
v_add_u32 v60, s6, v6
s_lshl_b32 s6, s12, 11
s_lshl_b32 s7, s8, 8
s_add_u32 s6, s6, s7
s_add_u32 s6, s6, {WS_T1}
v_lshlrev_b32 v58, 4, v3
v_add_u32 v58, s6, v58
v_and_b32 v6, 1, v3
v_lshlrev_b32 v44, 1, v6
v_add_u32 v50, 0x07060500, v44
v_add_u32 v51, 1, v50
v_mov_b32 v49, s52               ; T
v_lshlrev_b32 v7, 6, v6
v_lshlrev_b32 v6, 7, v6
v_lshlrev_b32 v48, 4, v2
v_add_u32 v6, v6, v48
v_add_u32 v62, {A1}, v6
v_add_u32 v7, v7, v48
v_add_u32 v48, {A2}, v7
s_lshl_b32 s6, s14, 3
s_add_u32 s6, s6, s8
s_lshl_b32 s6, s6, 6
s_lshl_b32 s7, s4, 3
s_add_u32 s7, s7, s13
s_add_u32 s6, s6, s7
s_lshl_b32 s6, s6, 7
s_add_u32 s6, s6, {WS_T3}
v_lshlrev_b32 v63, 3, v3
v_add_u32 v63, s6, v63
v_mov_b32 v13, {CNT}
s_and_b32 s13, s2, 3          ; cg3
s_lshr_b32 s14, s2, 2         ; o8
s_lshl_b32 s6, s13, 3
s_add_u32 s6, s6, s14
s_lshl_b32 s6, s6, 13
s_lshl_b32 s7, s8, 5
s_add_u32 s6, s6, s7
s_add_u32 s6, s6, {WS_T3}
v_lshrrev_b32 v14, 1, v1
v_lshlrev_b32 v14, 7, v14
v_and_b32 v6, 1, v1
v_lshlrev_b32 v7, 4, v6
v_add_u32 v14, v14, v7
v_add_u32 v14, s6, v14
s_lshl_b32 s6, s13, 8
s_lshl_b32 s7, s14, 5
s_add_u32 s6, s6, s7
s_lshl_b32 s7, s8, 3
s_add_u32 s6, s6, s7
v_bfe_u32 v15, v1, 1, 1
v_lshlrev_b32 v15, 10, v15
v_lshlrev_b32 v6, 2, v6
v_add_u32 v15, v15, v6
v_add_u32 v15, s6, v15
s_waitcnt lgkmcnt(0)""")
        Lsa = self.lab('sa')
        I(f"""s_mov_b32 s60, 0
s_cmp_lg_u32 s8, {p['sw']}
s_cbranch_scc1 {Lsa}""")
        self.lds_wait('v13', 'v5', C_H, 1, sleep=1)
        I(f"""v_mov_b32 v5, {GATE}
ds_read_b64 v[6:7], v5
s_mov_b32 s40, 0
s_mov_b32 s41, -1
v_lshrrev_b32 v5, 5, v1
v_lshlrev_b32 v5, 4, v5
v_add_u32 v5, v5, v3          ; b'*16 + t'
v_lshlrev_b32 v60, 4, v5
v_add_u32 v60, {WL}, v60
s_lshl_b32 s6, s4, 5
v_add_u32 v5, s6, v5          ; slot'
v_lshlrev_b32 v5, 7, v5
v_add_u32 v61, {WS_ST}, v5
s_waitcnt lgkmcnt(0)
v_cndmask_b32 v12, v6, v7, s[40:41]   ; g_b (b = lane>>5)
{Lsa}:""")
        self.stamp(5)
        self.lds_wait('v13', 'v5', C_A, 4, sleep=1)
        self.stamp(6)
        def vread(st, r):
            base = 'v56' if st < 8 else 'v57'
            o = (st & 7) * 8192
            I(f'ds_read_b64_tr_b16 v[{r}:{r+1}], {base} offset:{o}')
            I(f'ds_read_b64_tr_b16 v[{r+2}:{r+3}], {base} offset:{o+4096}')
        def vmfma(st, r):
            c = '0' if st == 0 else 'v[8:11]'
            I(f'v_mfma_f32_16x16x32_bf16 v[8:11], v[{64+4*st}:{67+4*st}], v[{r}:{r+3}], {c}')
        na = p['na']
        batches = []
        st = 0
        while st < na:
            b = list(range(st, min(st + 4, na))); batches.append(b); st += len(b)
        sets = (16, 32)
        for k, b in enumerate(batches):
            if k == 0:
                for j, st in enumerate(b): vread(st, sets[0] + 4*j)
            I('s_waitcnt lgkmcnt(0)')
            if k + 1 < len(batches):
                for j, st in enumerate(batches[k+1]): vread(st, sets[(k+1) & 1] + 4*j)
            for j, st in enumerate(b): vmfma(st, sets[k & 1] + 4*j)
            if k == 0:
                Lq = self.lab('nsl')
                I(f"s_cmp_lg_u32 s8, {p['sw']}\ns_cbranch_scc1 {Lq}")
                self.stats_loads()
                I(f'{Lq}:')
        I('s_barrier')
        self.stamp(7)
        rest = list(range(na, 16))
        for j, st in enumerate(rest): vread(st, 16 + 4*j)
        for j, st in enumerate(rest):
            I(f's_waitcnt lgkmcnt({2*(len(rest)-1-j)})')
            vmfma(st, 16 + 4*j)
        for e in range(4): I(f'v_perm_b32 v{8+e}, v{8+e}, v49, s{53+e}')
        I('s_mov_b64 exec, 0xffff')
        self.mode_store('buffer_store_dwordx4 v[8:11], v58, s[20:23], 0 offen', 's51')
        I('s_mov_b64 exec, -1')
        I('ds_read_b128 v[52:55], v48')
        self.stamp(8)
        Lns = self.lab('nsw'); Lw = self.lab('sw'); Lr = self.lab('swr')
        I(f"""s_cmp_lg_u32 s8, {p['sw']}
s_cbranch_scc1 {Lns}
s_waitcnt vmcnt(1)""")
        self.stats_check()
        I(f"""v_cmp_ne_u32 vcc, 0, v5
s_cbranch_vccz {Lw}
{Lr}:""")
        self.stats_loads()
        I('s_add_u32 s48, s48, 1\ns_waitcnt vmcnt(0)')
        self.stats_check()
        self.poll_tail(Lr, Lw, 'v5', p['sls'])
        I(f"""s_branch {Lr}
{Lw}:""")
        for h in range(4): I(f'v_mov_b32 v{72+h}, v{64+h}')
        for rr in (8, 4, 2, 1):
            for h in range(4): I(f'v_max_f32_dpp v{72+h}, v{72+h}, v{72+h} row_ror:{rr} row_mask:0xf bank_mask:0xf')
        for h in range(4): I(f'v_sub_f32 v{64+h}, v{64+h}, v{72+h}')
        for h in range(4): I(f'v_exp_f32 v{64+h}, v{64+h}')
        for h in range(4): I(f'v_mul_f32 v{68+h}, v{68+h}, v{64+h}')
        for rr in (8, 4, 2, 1):
            for h in range(4): I(f'v_add_f32_dpp v{68+h}, v{68+h}, v{68+h} row_ror:{rr} row_mask:0xf bank_mask:0xf')
        for h in range(4): I(f'v_rcp_f32 v{68+h}, v{68+h}')
        for h in range(4): I(f'v_mul_f32 v{64+h}, v{64+h}, v12')
        for h in range(4): I(f'v_mul_f32 v{64+h}, v{64+h}, v{68+h}')
        I('ds_write_b128 v60, v[64:67]\nv_mov_b32 v5, 1')
        self.signal('v13', 'v5', C_W)
        I(f'{Lns}:')
        Lng = self.lab('nog')
        I(f"""s_cmp_gt_u32 s8, 1
s_cbranch_scc1 {Lng}""")
        I(f's_mov_b32 s6, {4*2048}\ns_mov_b32 s7, {8*2048}\ns_mov_b32 s9, {12*2048}')
        def t2issue():
            for i, so in enumerate(('0', 's6', 's7', 's9')):
                I(f'buffer_load_dwordx4 v[{64+4*i}:{67+4*i}], v61, s[20:23], {so} offen{SC}')
        t2issue()
        self.lds_wait('v13', 'v5', C_W, 1, sleep=0)
        for i in range(4): I(f'ds_read_b128 v[{80+4*i}:{83+4*i}], v12 offset:{i*64}')
        L = self.lab('t2'); Dn = self.lab('t2d')
        I(f'{L}:')
        for i in range(4):
            I(f's_waitcnt vmcnt({3-i})')
            self.tag_acc(64 + 4*i, i == 0)
        I('s_add_u32 s48, s48, 1')
        self.poll_tail(L, Dn, 'v16', p['sl2'])
        t2issue()
        I(f"""s_branch {L}
{Dn}:""")
        self.stamp(9)
        I('s_waitcnt lgkmcnt(0)')
        for h in range(4): I(f'v_mul_f32 v{16+h}, v{64+h}, v{80+h}')
        for i in range(1, 4):
            for h in range(4): I(f'v_fmac_f32 v{16+h}, v{64+4*i+h}, v{80+4*i+h}')
        for sw in ('v_permlane16_swap_b32', 'v_permlane32_swap_b32'):
            for h in range(4): I(f'v_mov_b32 v{20+h}, v{16+h}')
            for h in range(4): I(f'{sw} v{16+h}, v{20+h}')
            for h in range(4): I(f'v_add_f32 v{16+h}, v{16+h}, v{20+h}')
        I(f"""v_cvt_pk_bf16_f32 v16, v16, v17
v_cvt_pk_bf16_f32 v17, v18, v19
s_mov_b64 exec, 0xffff
ds_write_b64 v60, v[16:17]
s_mov_b64 exec, -1
s_waitcnt lgkmcnt(0)
{Lng}:
s_barrier""")
        self.stamp(10)
        I("""ds_read_b64_tr_b16 v[16:17], v59 offset:16384
ds_read_b64_tr_b16 v[18:19], v59 offset:20480
ds_read_b128 v[32:35], v62
ds_read_b64_tr_b16 v[20:21], v59
ds_read_b64_tr_b16 v[22:23], v59 offset:4096
ds_read_b128 v[36:39], v62 offset:64
ds_read_b64_tr_b16 v[24:25], v59 offset:8192
ds_read_b64_tr_b16 v[26:27], v59 offset:12288
s_waitcnt lgkmcnt(6)
v_mfma_f32_16x16x32_bf16 v[8:11], v[52:55], v[16:19], 0
s_waitcnt lgkmcnt(3)
v_mfma_f32_16x16x32_bf16 v[8:11], v[32:35], v[20:23], v[8:11]
s_waitcnt lgkmcnt(0)
v_mfma_f32_16x16x32_bf16 v[8:11], v[36:39], v[24:27], v[8:11]""")
        I(f"""v_perm_b32 v8, v8, v49, v50
v_perm_b32 v9, v9, v49, v51
s_mov_b64 exec, 0xffff
buffer_store_dwordx2 v[8:9], v63, s[20:23], 0 offen{(SC, ' sc0 sc1')[p['t3stf']]}
s_mov_b64 exec, -1""")
        self.stamp(11)
        Lend = 'L_CW_end'
        I(f"""s_cmp_ge_u32 s2, 32
s_cbranch_scc1 {Lend}
s_cmp_gt_u32 s8, 3
s_cbranch_scc1 {Lend}
s_mov_b32 s7, 4096
s_mov_b32 s42, 0xcccccccc
s_mov_b32 s43, 0xcccccccc""")
        NS = p['t3sets']
        L = self.lab('t3'); Dn = self.lab('t3d')
        def issue(k):
            r = 64 + 8*k
            fl = (SC, ' sc0 sc1', ' sc1 nt', ' sc0 sc1 nt')[p['t3ld']]
            I(f'buffer_load_dwordx4 v[{r}:{r+3}], v14, s[20:23], 0 offen{fl}')
            I(f'buffer_load_dwordx4 v[{r+4}:{r+7}], v14, s[20:23], s7 offen{fl}')
        if p['t3delay']: I(f"s_sleep {p['t3delay']}")
        self.stamp(13)
        if p['stamps']: I('s_mov_b32 s59, s48')
        for k in range(NS):
            issue(k)
            if k + 1 < NS and p['t3st']: I(f"s_sleep {p['t3st']}")
        I(f'{L}:')
        hits = []
        for k in range(NS):
            r = 64 + 8*k
            I(f's_waitcnt vmcnt({2*(NS-1)})')
            self.tag_acc(r, True)
            self.tag_acc(r + 4, False)
            H = self.lab('t3h'); hits.append((H, r))
            I(f"""v_cmp_ne_u32 vcc, 0, v16
s_cbranch_vccz {H}""")
            issue(k)
        I(f"""s_add_u32 s48, s48, 1
s_cmp_le_u32 s48, {self.glim}
s_cbranch_scc1 {L}""")
        for j, (H, r) in enumerate(hits):
            I(f'{H}:')
            for e in range(4): I(f'v_add_f32 v{20+e}, v{r+e}, v{r+4+e}')
            if j + 1 < len(hits): I(f's_branch {Dn}')
        I(f'{Dn}:')
        if p['stamps']:
            I('s_sub_u32 s92, s48, s59\ns_add_u32 s92, s92, 1')
            self.stamp(15)
        for rr in (2, 4, 8):
            for e in range(4): I(f'v_add_f32_dpp v{20+e}, v{20+e}, v{20+e} row_ror:{rr} row_mask:0xf bank_mask:0xf')
        for sw in ('v_permlane16_swap_b32', 'v_permlane32_swap_b32'):
            for e in range(4): I(f'v_mov_b32 v{24+e}, v{20+e}')
            for e in range(4): I(f'{sw} v{20+e}, v{24+e}')
            for e in range(4): I(f'v_add_f32 v{20+e}, v{20+e}, v{24+e}')
        I(f"""v_cvt_pk_bf16_f32 v24, v20, v22
v_cvt_pk_bf16_f32 v25, v21, v23
v_cndmask_b32 v24, v24, v25, s[42:43]
s_mov_b64 exec, 15
buffer_store_dword v24, v15, s[24:27], 0 offen
s_mov_b64 exec, -1""")
        I(f"""s_cmp_lg_u32 s2, 0
s_cbranch_scc1 L_CW_noe
s_cmp_lg_u32 s8, 0
s_cbranch_scc1 L_CW_noe
v_mov_b32 v5, {WS_E}
s_mov_b64 exec, 1
buffer_store_dword v49, v5, s[20:23], 0 offen{SC}
s_mov_b64 exec, -1
L_CW_noe:""")
        self.stamp(12)
        I(f'{Lend}:')
        self.stamp_dump('s[20:23]', 16)
        I('s_endpgm')

    def build(self):
        I = self.I
        I('''s_cmp_ge_u32 s2, 256
s_cbranch_scc1 L_exit''')
        if self.p['stamps']:
            for i in range(16): I(f's_mov_b32 s{64+2*i}, 0')
            self.stamp(0)
        I(f'''v_lshrrev_b32 v1, 6, v0
s_and_b32 s4, s2, 7
s_lshr_b32 s5, s2, 3
s_mov_b32 s48, 0
v_readfirstlane_b32 s3, v1
s_cmp_ge_u32 s3, {W_L0}
s_cbranch_scc1 L_LD
s_cmp_ge_u32 s3, {W_C0}
s_cbranch_scc1 L_CW
s_cmp_eq_u32 s3, {W_J1}
s_cbranch_scc1 L_J1''')
        self.role_j0()
        self.role_j1()
        self.role_compute()
        self.role_loader()
        I('L_exit:\ns_endpgm\nL_codeend:')
        head = f'''; Fused decode step: GQA attention over the KV cache + SwiGLU FFN + sigmoid-gated mix.
; @launch grid=(256,1,1) block=(896,1,1) lds={LDS_BYTES}
.amdgcn_target "amdgcn-amd-amdhsa--gfx950"
.text
.globl {KNAME}
.p2align 8
.type {KNAME},@function
{KNAME}:
'''
        foot = f'''.section .rodata,"a"
.p2align 6
.amdhsa_kernel {KNAME}
  .amdhsa_next_free_vgpr 128
  .amdhsa_next_free_sgpr 102
  .amdhsa_accum_offset 128
  .amdhsa_group_segment_fixed_size 0
  .amdhsa_kernarg_size 104
  .amdhsa_user_sgpr_count 2
  .amdhsa_user_sgpr_kernarg_segment_ptr 1
  .amdhsa_system_sgpr_workgroup_id_x 1
.end_amdhsa_kernel
'''
        return head + self.a.text() + foot

def main():
    out = sys.argv[1]
    kw = {}
    for arg in sys.argv[2:]:
        k, v = arg.split('=')
        assert k in DEF or k in ('pfn',), k
        kw[k] = (v == 'True') if v in ('True', 'False') else int(v)
    open(out, 'w').write(G(**kw).build())

if __name__ == '__main__':
    main()
```

```python
import sys, math, struct
from emit import Asm

def fhex(x): return '0x%08x' % struct.unpack('<I', struct.pack('<f', x))[0]
KNAME = 'gated_mix__gqa_block_cached__swiglu_ffn__decode_kernel'

WS_Q  = 0x000000
WS_F  = 0x020000
WS_ID = 0x030000
COPYB = 0x040000
WS_ST = 0x080000
WS_E  = 0x088000
WS_T1 = 0x100000
WS_T3 = 0x180000
WS_DBG = 0x200000
WS_SIZE = 0x400000

V_OFF = 0
STG0 = 0
STG1 = 16384
WO_OFF = 131072
WD_OFF = 147456
P_OFF = 155648
Q_OFF = 159744
MISC = 160768
MX = MISC
LX = MISC + 128
A1 = MISC + 256
A2 = MISC + 512
GATE = MISC + 640
CNT = MISC + 704
WL = MISC + 1024
C_Q, C_H, C_K, C_1, C_2, C_A, C_M, C_W = 0, 4, 8, 12, 16, 20, 24, 28
LDS_BYTES = 163840

SPIN_LIMIT = 300000
SC = ' sc1'
W_J0, W_J1, W_C0, W_L0 = 0, 1, 2, 10

DEF = dict(nt_k=True, nt_v=True, nt_w=True, dk=2, dv=4, dv2=4, dvn=0, stamps=False, na=14, ksig=0, kthr=8,
           slq=2, slf=2, sls=2, sl2=0, sl3=0, pf=False, na_polls=10, force_remote=False, nopoll=False,
           t3sets=3, t3st=4, tlb=False, sw=2, t3delay=0, t3ld=1, t3stf=0, x_nob=False, qdelay=0,
           x_stream=False, rka=1, rkb=3, rkc=0, x_start=False, t2sets=2, t2st=3)

class G:
    def __init__(self, **kw):
        self.p = dict(DEF); self.p.update(kw)
        self.a = Asm()
        self.uid = 0
        self.glim = 0 if self.p['nopoll'] else SPIN_LIMIT
    def I(self, s): self.a.I(s)
    def lab(self, base):
        self.uid += 1
        return f'L_{base}_{self.uid}'
    def stamp(self, i):
        if self.p['stamps']:
            self.I(f's_memrealtime s[{64+2*i}:{65+2*i}]')
            self.I('s_waitcnt lgkmcnt(0)')
    def stamp_dump(self, srd, n=12):
        if not self.p['stamps']: return
        I = self.I
        I('s_mov_b64 exec, -1')
        I('s_lshl_b32 s6, s2, 4')
        I('s_add_u32 s6, s6, s3')
        I('s_lshl_b32 s6, s6, 6')
        I(f's_add_u32 s6, s6, {WS_DBG}')
        I('v_mov_b32 v1, s6')
        I('s_mov_b64 exec, 1')
        for j in range(0, n, 4):
            for t in range(4):
                I(f'v_mov_b32 v{4+t}, s{64+2*(j+t)}')
            I(f'buffer_store_dwordx4 v[4:7], v1, {srd}, 0 offen offset:{j*4}')
        I('s_mov_b64 exec, -1')
    def signal(self, vC, vOne, off):
        self.I(f'''s_mov_b64 exec, 1
ds_add_u32 {vC}, {vOne} offset:{off}
s_mov_b64 exec, -1''')
    def lds_wait(self, vC, vT, off, n, sleep=1):
        L = self.lab('lw'); D = self.lab('lwd')
        self.I(f'''{L}:
ds_read_b32 {vT}, {vC} offset:{off}
s_add_u32 s48, s48, 1
s_waitcnt lgkmcnt(0)
v_readfirstlane_b32 s49, {vT}
s_cmp_ge_u32 s49, {n}
s_cbranch_scc1 {D}
s_cmp_gt_u32 s48, {SPIN_LIMIT}
s_cbranch_scc1 {D}''')
        if sleep: self.I(f's_sleep {sleep}')
        self.I(f'''s_branch {L}
{D}:''')
    def tag_load(self, wsbase):
        self.I(f's_load_dword s52, s[{wsbase}:{wsbase+1}], {WS_E}')
        for i in range(4): self.I(f's_mov_b32 s{53+i}, 0x0706050{i}')
        self.I('s_mov_b32 s57, 0x0c0c0400\ns_mov_b32 s58, 0x04000c0c')
    def tag_ready(self):
        self.I('s_waitcnt lgkmcnt(0)\ns_add_u32 s52, s52, 1')
    def tag_acc(self, r, first, acc='v16', t1='v17', t2='v18', t3='v19'):
        self.I(f'v_perm_b32 {t2}, v{r+1}, v{r}, s57\nv_perm_b32 {t3}, v{r+3}, v{r+2}, s58\nv_or_b32 {t2}, {t2}, {t3}')
        if first: self.I(f'v_xor_b32 {acc}, s52, {t2}')
        else: self.I(f'v_xor_b32 {t1}, s52, {t2}\nv_or_b32 {acc}, {acc}, {t1}')
    def poll_tail(self, L, D, acc, sleep):
        self.I(f'''v_cmp_ne_u32 vcc, 0, {acc}
s_cbranch_vccz {D}
s_cmp_gt_u32 s48, {self.glim}
s_cbranch_scc1 {D}''')
        if sleep: self.I(f's_sleep {sleep}')
    def srd(self, base, karg_off, size):
        self.I(f's_load_dwordx2 s[{base}:{base+1}], s[0:1], {karg_off}')
        self.I(f's_mov_b32 s{base+2}, {size}')
        self.I(f's_mov_b32 s{base+3}, 0x20000')
    def stats_loads(self):
        self.I(f"""buffer_load_dwordx4 v[64:67], v61, s[20:23], 0 offen{SC}
buffer_load_dwordx4 v[68:71], v61, s[20:23], 0 offen offset:16{SC}""")
    def stats_check(self):
        self.tag_acc(64, True, 'v5', 'v6', 'v7', 'v4')
        self.tag_acc(68, False, 'v5', 'v6', 'v7', 'v4')
    def lane_setup(self):
        self.I('''v_and_b32 v1, 63, v0
v_lshrrev_b32 v2, 4, v1
v_and_b32 v3, 15, v1''')
    def mode_store(self, ins, smode):
        Lr = self.lab('ms'); Le = self.lab('mse')
        self.I(f'''s_cmp_eq_u32 {smode}, 0
s_cbranch_scc1 {Lr}
{ins}
s_branch {Le}
{Lr}:
{ins}{SC}
{Le}:''')

    def qtile_issue(self, srdW, srdX, sBase, sKs):
        I = self.I; pitch = 8192; stg = STG0
        ntf = ' nt' if self.p['nt_w'] else ''
        I(f'''v_lshrrev_b32 v4, 5, v1
v_lshlrev_b32 v4, 3, v4
v_bfe_u32 v5, v1, 3, 2
v_add_u32 v4, v4, v5
v_mul_u32_u24 v4, {pitch}, v4
v_and_b32 v5, 7, v1
v_bfe_u32 v6, v1, 4, 2
v_lshlrev_b32 v6, 1, v6
v_xor_b32 v5, v5, v6
v_lshlrev_b32 v5, 4, v5
v_add_u32 v4, v4, v5''')
        for i in range(16):
            rowi = 32*(i >> 2) + 16*(i & 1) + 4*((i >> 1) & 1)
            I(f's_mov_b32 m0, {stg + i*1024}')
            I(f's_add_u32 s7, {sBase}, {rowi*pitch}')
            I(f'buffer_load_dwordx4 v4, {srdW}, s7 offen{ntf} lds')
        I(f'''v_and_b32 v5, 1, v3
v_lshlrev_b32 v5, 10, v5
v_lshlrev_b32 v6, 4, v2
v_add_u32 v5, v5, v6
s_lshl_b32 s6, {sKs}, 8
v_add_u32 v5, s6, v5''')
        for kk in range(4):
            I(f'buffer_load_dwordx4 v[{8+4*kk}:{11+4*kk}], v5, {srdX}, 0 offen offset:{kk*64}')
        I(f'''v_lshrrev_b32 v6, 2, v3
v_and_b32 v7, 3, v3
v_lshlrev_b32 v28, 2, v2
v_add_u32 v28, v28, v6
v_lshlrev_b32 v28, 7, v28
v_lshlrev_b32 v7, 3, v7
v_add_u32 v28, v28, v7
v_add_u32 v28, {stg}, v28
v_lshlrev_b32 v29, 1, v2
v_lshrrev_b32 v6, 1, v6
v_add_u32 v29, v29, v6
v_and_b32 v29, 3, v29''')
        for nt_ in range(4):
            I(f'''v_xor_b32 v6, {nt_}, v29
v_lshlrev_b32 v6, 5, v6
v_add_u32 v{24+nt_}, v28, v6''')
    def qtile_compute(self):
        I = self.I
        def reads(kk, setb):
            for nt_ in range(4):
                for hf in range(2):
                    r = setb + 4*nt_ + 2*hf
                    I(f'ds_read_b64_tr_b16 v[{r}:{r+1}], v{24+nt_} offset:{kk*4096 + hf*2048}')
        def mf(kk, setb):
            for nt_ in range(4):
                c = '0' if kk == 0 else f'v[{64+4*nt_}:{67+4*nt_}]'
                I(f'v_mfma_f32_16x16x32_bf16 v[{64+4*nt_}:{67+4*nt_}], v[{8+4*kk}:{11+4*kk}], v[{setb+4*nt_}:{setb+4*nt_+3}], {c}')
        sets = (32, 48)
        reads(0, sets[0])
        for kk in range(4):
            I('s_waitcnt lgkmcnt(0)')
            if kk < 3: reads(kk+1, sets[(kk+1) & 1])
            mf(kk, sets[kk & 1])
        I('''s_mov_b32 s40, 0xffff0000
s_mov_b32 s41, 0
s_mov_b32 s42, 0
s_mov_b32 s43, 0x0000ffff
s_mov_b32 s44, 0
s_mov_b32 s45, 0xffff0000''')
        for b in range(2):
            I(f'''v_cndmask_b32 v{40+b}, v{64+b}, v{68+b}, s[40:41]
v_cndmask_b32 v{40+b}, v{40+b}, v{72+b}, s[42:43]
v_cndmask_b32 v{40+b}, v{40+b}, v{76+b}, s[44:45]''')

    def ftile_issue(self, srdW, srdX, sBase, sKs):
        I = self.I; pitch = 3584; stg = STG1
        ntf = ' nt' if self.p['nt_w'] else ''
        I(f'''v_lshrrev_b32 v4, 4, v1
v_lshlrev_b32 v4, 3, v4
v_bfe_u32 v5, v1, 2, 2
v_add_u32 v4, v4, v5
v_mul_u32_u24 v4, {pitch}, v4
v_and_b32 v5, 3, v1
v_bfe_u32 v6, v1, 4, 1
v_lshlrev_b32 v6, 1, v6
v_xor_b32 v5, v5, v6
v_lshlrev_b32 v5, 4, v5
v_add_u32 v4, v4, v5''')
        for i in range(16):
            rowi = 32*(i >> 1) + 4*(i & 1)
            I(f's_mov_b32 m0, {stg + i*1024}')
            I(f's_add_u32 s7, {sBase}, {rowi*pitch}')
            I(f'buffer_load_dwordx4 v4, {srdW}, s7 offen{ntf} lds')
        I(f'''v_and_b32 v5, 1, v3
v_lshlrev_b32 v5, 10, v5
v_lshlrev_b32 v6, 4, v2
v_add_u32 v5, v5, v6
s_lshl_b32 s6, {sKs}, 9
v_add_u32 v5, s6, v5''')
        for kk in range(8):
            I(f'buffer_load_dwordx4 v[{96+4*kk}:{99+4*kk}], v5, {srdX}, 0 offen offset:{kk*64}')
        I(f'''v_lshrrev_b32 v6, 2, v3
v_and_b32 v7, 3, v3
v_lshlrev_b32 v28, 2, v2
v_add_u32 v28, v28, v6
v_lshlrev_b32 v28, 6, v28
v_lshlrev_b32 v7, 3, v7
v_add_u32 v28, v28, v7
v_add_u32 v28, {stg}, v28
v_and_b32 v29, 1, v2
v_lshlrev_b32 v6, 5, v29
v_add_u32 v24, v28, v6
v_xor_b32 v6, 1, v29
v_lshlrev_b32 v6, 5, v6
v_add_u32 v25, v28, v6''')
    def ftile_compute(self):
        I = self.I
        def reads(k2, setb):
            for kq in range(2):
                kk = 2*k2 + kq
                for nt_ in range(2):
                    for hf in range(2):
                        r = setb + 8*kq + 4*nt_ + 2*hf
                        I(f'ds_read_b64_tr_b16 v[{r}:{r+1}], v{24+nt_} offset:{kk*2048 + hf*1024}')
        def mf(k2, setb):
            for kq in range(2):
                kk = 2*k2 + kq
                for nt_ in range(2):
                    c = '0' if kk == 0 else f'v[{64+4*nt_}:{67+4*nt_}]'
                    r = setb + 8*kq + 4*nt_
                    I(f'v_mfma_f32_16x16x32_bf16 v[{64+4*nt_}:{67+4*nt_}], v[{96+4*kk}:{99+4*kk}], v[{r}:{r+3}], {c}')
        sets = (32, 48)
        reads(0, sets[0])
        for k2 in range(4):
            I('s_waitcnt lgkmcnt(0)')
            if k2 < 3: reads(k2+1, sets[(k2+1) & 1])
            mf(k2, sets[k2 & 1])
        I('''s_mov_b32 s40, 0xffff0000
s_mov_b32 s41, 0
s_mov_b32 s42, 0
s_mov_b32 s43, 0x0000ffff
s_mov_b32 s44, 0
s_mov_b32 s45, 0xffff0000
v_cndmask_b32 v40, v64, v68, s[40:41]
v_cndmask_b32 v40, v40, v65, s[42:43]
v_cndmask_b32 v40, v40, v69, s[44:45]''')

    def role_j0(self):
        I = self.I; p = self.p
        I('L_J0:')
        self.srd(16, 24, 0x400000)
        self.srd(20, 0, 2048)
        self.srd(24, 96, WS_SIZE)
        I('s_barrier')
        if p['x_stream']: I('s_endpgm')
        self.lane_setup()
        I(f"""s_lshr_b32 s8, s5, 2          ; qcl
s_and_b32 s9, s5, 3           ; ks
s_mul_i32 s10, s9, 128*8192
s_lshl_b32 s6, s4, 10
s_add_u32 s10, s10, s6
s_lshl_b32 s6, s8, 7
s_add_u32 s10, s10, s6
s_getreg_b32 s12, hwreg(HW_REG_XCC_ID, 0, 4)
v_mov_b32 v90, {CNT}
v_mov_b32 v91, 1
s_waitcnt lgkmcnt(0)""")
        self.qtile_issue('s[16:19]', 's[20:23]', 's10', 's9')
        self.tag_load(24)
        I("""v_and_b32 v81, 3, v1
v_add_u32 v81, 0x07060500, v81
s_lshl_b32 s13, s12, 8
v_mov_b32 v82, s13""")
        self.stamp(1)
        I('s_waitcnt vmcnt(0)')
        self.tag_ready()
        I('v_mov_b32 v80, s52')
        self.stamp(2)
        self.qtile_compute()
        I(f"""v_perm_b32 v40, v40, v80, v81
v_perm_b32 v41, v41, v80, v81
v_perm_b32 v82, v82, v80, v81
s_lshl_b32 s6, s4, 3
s_add_u32 s6, s6, s9
s_lshl_b32 s6, s6, 11         ; (g*8 + ks)*2048
s_lshl_b32 s7, s8, 8
s_add_u32 s6, s6, s7
v_lshlrev_b32 v4, 2, v1
v_add_u32 v5, s6, v4
v_add_u32 v6, {4*2048}, v5
s_lshl_b32 s6, s4, 5
s_add_u32 s6, s6, s5
s_lshl_b32 s6, s6, 7
s_add_u32 s6, s6, {WS_ID}
v_add_u32 v7, s6, v4
s_mov_b32 s14, {COPYB}
buffer_store_dword v40, v5, s[24:27], 0 offen
buffer_store_dword v41, v6, s[24:27], 0 offen
s_mov_b32 exec_hi, 0
buffer_store_dword v82, v7, s[24:27], 0 offen
s_mov_b32 exec_hi, -1
""")
        if not p['x_nob']:
            I(f"""buffer_store_dword v40, v5, s[24:27], s14 offen{SC}
buffer_store_dword v41, v6, s[24:27], s14 offen{SC}
s_mov_b32 exec_hi, 0
buffer_store_dword v82, v7, s[24:27], s14 offen{SC}
s_mov_b32 exec_hi, -1""")
        if p['qdelay']: I(f"s_sleep {p['qdelay']}")
        self.stamp(3)
        I(f"""s_lshl_b32 s6, s4, 1
s_lshr_b32 s7, s5, 4          ; b
s_add_u32 s6, s6, s7
s_lshl_b32 s6, s6, 13
v_lshlrev_b32 v4, 4, v1
v_add_u32 v4, s6, v4
v_and_b32 v5, 31, v1
v_lshlrev_b32 v5, 7, v5
s_lshl_b32 s6, s4, 12
s_add_u32 s6, s6, {WS_ID}
v_add_u32 v5, s6, v5
s_mov_b32 s15, {COPYB if p['force_remote'] else 0}
s_mov_b32 s11, 0""")
        L = self.lab('qg'); D = self.lab('qgd'); Lk = self.lab('qgk')
        I(f'{L}:')
        for ks in range(4):
            I(f's_add_u32 s7, s15, {ks*2048}')
            for i in range(2):
                r = 8 + 8*ks + 4*i
                I(f'buffer_load_dwordx4 v[{r}:{r+3}], v4, s[24:27], s7 offen offset:{i*1024}{SC}')
        I(f'buffer_load_dwordx4 v[40:43], v5, s[24:27], s15 offen{SC}')
        I('s_add_u32 s48, s48, 1\ns_add_u32 s11, s11, 1\ns_waitcnt vmcnt(0)')
        for j in range(9):
            self.tag_acc(8 + 4*j, j == 0, 'v44', 'v45', 'v46', 'v47')
        self.poll_tail(L, D, 'v44', p['slq'])
        if not p['force_remote']:
            I(f"""s_cmp_lt_u32 s11, {p['na_polls']}
s_cbranch_scc1 {L}
s_xor_b32 s15, s15, {COPYB}""")
        I(f"""s_branch {L}
{D}:""")
        self.stamp(5)
        I(f"""v_bfe_u32 v40, v40, 8, 4
v_cmp_ne_u32 vcc, s12, v40
s_cmp_eq_u64 vcc, 0
s_cselect_b32 s6, {0 if p['force_remote'] else 1}, 0
v_mov_b32 v44, s6
s_mov_b64 exec, 1
ds_write_b32 v90, v44 offset:{C_M}
s_mov_b64 exec, -1""")
        for e in range(8):
            I(f'v_add_f32 v{8+e}, v{8+e}, v{16+e}')
            I(f'v_add_f32 v{24+e}, v{24+e}, v{32+e}')
        for e in range(8):
            I(f'v_add_f32 v{8+e}, v{8+e}, v{24+e}')
        I(f"""v_cvt_pk_bf16_f32 v40, v8, v9
v_cvt_pk_bf16_f32 v41, v10, v11
v_cvt_pk_bf16_f32 v42, v12, v13
v_cvt_pk_bf16_f32 v43, v14, v15
v_lshlrev_b32 v4, 3, v1
v_add_u32 v4, {Q_OFF}, v4
ds_write_b64 v4, v[40:41]
ds_write_b64 v4, v[42:43] offset:512""")
        self.signal('v90', 'v91', C_Q)
        I('s_waitcnt lgkmcnt(0)')
        self.stamp(6)
        self.stamp_dump('s[24:27]')
        I('s_endpgm')

    def role_j1(self):
        I = self.I; p = self.p
        I('L_J1:')
        I('s_load_dwordx4 s[8:11], s[0:1], 48')
        self.srd(20, 0, 2048)
        self.srd(24, 96, WS_SIZE)
        self.srd(28, 72, 1024)
        I('s_barrier')
        if p['x_stream']: I('s_endpgm')
        self.lane_setup()
        I(f"""s_mul_i32 s12, s5, 9363
s_lshr_b32 s12, s12, 16
s_mul_i32 s13, s12, 7
s_sub_u32 s13, s5, s13        ; cf
s_and_b32 s14, s12, 1         ; mat
s_lshr_b32 s15, s12, 1        ; ks
v_mov_b32 v90, {CNT}
v_mov_b32 v91, 1
s_waitcnt lgkmcnt(0)
s_cmp_eq_u32 s14, 0
s_cselect_b32 s16, s8, s10
s_cselect_b32 s17, s9, s11
s_mov_b32 s18, {512*1792*2}
s_mov_b32 s19, 0x20000
s_mul_i32 s8, s15, 256*3584
s_mul_i32 s6, s4, 448
s_add_u32 s8, s8, s6
s_lshl_b32 s6, s13, 6
s_add_u32 s8, s8, s6""")
        Lskip = self.lab('nof1'); Lj = self.lab('f1j')
        I(f"""s_cmp_ge_u32 s5, 28
s_cbranch_scc1 {Lskip}""")
        self.ftile_issue('s[16:19]', 's[20:23]', 's8', 's15')
        I(f'{Lskip}:')
        I("""v_lshlrev_b32 v80, 4, v1
buffer_load_dwordx4 v[84:87], v80, s[20:23], 0 offen
buffer_load_dwordx4 v[88:91], v80, s[20:23], 0 offen offset:1024
buffer_load_dwordx4 v[92:95], v80, s[28:31], 0 offen""")
        self.tag_load(24)
        I("""v_and_b32 v81, 3, v1
v_add_u32 v81, 0x07060500, v81""")
        self.stamp(1)
        I('s_waitcnt vmcnt(0)')
        self.tag_ready()
        I('v_mov_b32 v80, s52')
        self.stamp(2)
        I(f"""s_cmp_ge_u32 s5, 28
s_cbranch_scc1 {Lj}""")
        self.ftile_compute()
        I(f"""v_perm_b32 v40, v40, v80, v81
s_lshl_b32 s6, s4, 2
s_add_u32 s6, s6, s12
s_lshl_b32 s6, s4, 2
s_lshl_b32 s7, s14, 1
s_add_u32 s6, s6, s7
s_add_u32 s6, s6, s15
s_lshl_b32 s6, s6, 11         ; *[b 2][256] f32
s_lshl_b32 s7, s13, 7
s_add_u32 s6, s6, s7
s_add_u32 s6, s6, {WS_F}
v_lshrrev_b32 v4, 5, v1
v_lshlrev_b32 v4, 10, v4
v_and_b32 v5, 31, v1
v_lshlrev_b32 v5, 2, v5
v_add_u32 v4, v4, v5
v_add_u32 v4, s6, v4
s_mov_b32 s7, {COPYB}
buffer_store_dword v40, v4, s[24:27], 0 offen""")
        if not p['x_nob']: I(f'buffer_store_dword v40, v4, s[24:27], s7 offen{SC}')
        if p['qdelay']: I(f"s_sleep {p['qdelay']}")
        I(f'{Lj}:')
        self.stamp(3)
        I('v_mov_b32 v8, 0\nv_mov_b32 v9, 0')
        for e in range(4):
            I(f"""v_lshlrev_b32 v10, 16, v{92+e}
v_and_b32 v11, 0xffff0000, v{92+e}
v_lshlrev_b32 v12, 16, v{84+e}
v_and_b32 v13, 0xffff0000, v{84+e}
v_lshlrev_b32 v14, 16, v{88+e}
v_and_b32 v15, 0xffff0000, v{88+e}
v_fmac_f32 v8, v10, v12
v_fmac_f32 v9, v10, v14
v_fmac_f32 v8, v11, v13
v_fmac_f32 v9, v11, v15""")
        for rr in (8, 4, 2, 1):
            I(f'v_add_f32_dpp v8, v8, v8 row_ror:{rr} row_mask:0xf bank_mask:0xf')
            I(f'v_add_f32_dpp v9, v9, v9 row_ror:{rr} row_mask:0xf bank_mask:0xf')
        for sw in ('v_permlane16_swap_b32', 'v_permlane32_swap_b32'):
            I(f"""v_mov_b32 v10, v8
v_mov_b32 v11, v9
{sw} v8, v10
{sw} v9, v11
v_add_f32 v8, v8, v10
v_add_f32 v9, v9, v11""")
        I(f"""v_mul_f32 v8, {fhex(-math.log2(math.e))}, v8
v_mul_f32 v9, {fhex(-math.log2(math.e))}, v9
v_exp_f32 v8, v8
v_exp_f32 v9, v9
v_add_f32 v8, 1.0, v8
v_add_f32 v9, 1.0, v9
v_rcp_f32 v8, v8
v_rcp_f32 v9, v9
v_mov_b32 v10, {GATE}
s_mov_b64 exec, 1
ds_write_b64 v10, v[8:9]
s_mov_b64 exec, -1
s_mov_b32 s40, 0
s_mov_b32 s41, -1
v_cndmask_b32 v16, v8, v9, s[40:41]
v_sub_f32 v16, 1.0, v16""")
        I('v_mov_b32 v90, %d\nv_mov_b32 v91, 1' % CNT)
        self.signal('v90', 'v91', C_H)
        I(f"""s_lshl_b32 s6, s4, 13         ; g*[mat][ks][b][256]*4
s_lshr_b32 s7, s5, 2
s_mul_i32 s7, s7, 112
s_add_u32 s6, s6, s7
s_add_u32 s6, s6, {WS_F}
v_and_b32 v4, 31, v1
v_min_u32 v5, 27, v4
v_and_b32 v17, 3, v5
v_lshlrev_b32 v17, 3, v17
v_lshrrev_b32 v17, v17, v80
v_lshlrev_b32 v5, 2, v5
v_lshrrev_b32 v6, 5, v1
v_lshlrev_b32 v6, 10, v6
v_add_u32 v5, v5, v6
v_add_u32 v5, s6, v5
s_mov_b32 s15, {COPYB if p['force_remote'] else 0}
s_mov_b32 s11, 0""")
        L = self.lab('hg'); D = self.lab('hgd')
        I(f'{L}:')
        for m in range(4):
            I(f's_add_u32 s7, s15, {m*2048}')
            I(f'buffer_load_dword v{24+m}, v5, s[24:27], s7 offen{SC}')
        I('s_add_u32 s48, s48, 1\ns_add_u32 s11, s11, 1\ns_waitcnt vmcnt(0)')
        I('v_xor_b32 v18, v24, v17')
        for j in range(1, 4):
            I(f'v_xor_b32 v19, v{24+j}, v17\nv_or_b32 v18, v18, v19')
        I('v_and_b32 v18, 0xff, v18')
        self.poll_tail(L, D, 'v18', p['slf'])
        if not p['force_remote']:
            I(f"""s_cmp_lt_u32 s11, {p['na_polls']}
s_cbranch_scc1 {L}
s_xor_b32 s15, s15, {COPYB}""")
        I(f"""s_branch {L}
{D}:""")
        self.stamp(5)
        I(f"""v_add_f32 v24, v24, v25
v_add_f32 v28, v26, v27
v_mul_f32 v25, {fhex(-math.log2(math.e))}, v24
v_exp_f32 v25, v25
v_add_f32 v25, 1.0, v25
v_rcp_f32 v25, v25
v_mul_f32 v24, v24, v25
v_mul_f32 v24, v24, v28
v_mul_f32 v24, v24, v16
v_cmp_gt_u32 vcc, 28, v4
v_cndmask_b32 v24, 0, v24, vcc
v_cvt_pk_bf16_f32 v24, v24, v24
v_bfe_u32 v6, v4, 2, 2
v_lshlrev_b32 v6, 4, v6
v_lshrrev_b32 v7, 4, v4
v_lshlrev_b32 v7, 3, v7
v_add_u32 v6, v6, v7
v_and_b32 v7, 3, v4
v_lshlrev_b32 v7, 1, v7
v_add_u32 v6, v6, v7
v_lshrrev_b32 v7, 5, v1
v_lshlrev_b32 v7, 6, v7
v_add_u32 v6, v6, v7
v_add_u32 v6, {A2}, v6
ds_write_b16 v6, v24
s_waitcnt lgkmcnt(0)""")
        self.stamp(6)
        self.stamp_dump('s[24:27]')
        I('s_endpgm')

    def role_loader(self):
        I = self.I; p = self.p
        ntv = ' nt' if p['nt_v'] else ''
        ntw = ' nt' if p['nt_w'] else ''
        I('L_LD:')
        I(f"""s_sub_u32 s8, s3, {W_L0}           ; loader j
v_mov_b32 v90, {CNT}
v_mov_b32 v91, 1
s_cmp_lg_u32 s8, 0
s_cbranch_scc1 L_LD_noinit
v_mov_b32 v8, 0
v_mov_b32 v9, 0
v_mov_b32 v10, 0
v_mov_b32 v11, 0
ds_write_b128 v90, v[8:11]
ds_write_b128 v90, v[8:11] offset:16
s_waitcnt lgkmcnt(0)
L_LD_noinit:
s_barrier""")
        self.srd(16, 16, 0x2000000)
        self.srd(20, 32, 0x400000)
        self.srd(24, 64, 1792*512*2)
        self.srd(28, 96, WS_SIZE)
        self.lane_setup()
        if p['pf']:
            I(f"""s_cmp_lg_u32 s8, 3
s_cbranch_scc1 L_LD_nopf
s_getpc_b64 s[36:37]
L_PC:
s_add_u32 s36, s36, {KNAME}-L_PC
s_addc_u32 s37, s37, -1
v_lshlrev_b32 v4, 4, v1
s_mov_b32 s6, L_codeend-{KNAME}-16""")
            for j in range(p.get('pfn', 14)):
                I(f"""v_min_u32 v5, s6, v4
global_load_dwordx4 v[12:15], v5, s[36:37]
v_add_u32 v4, 1024, v4""")
            I('L_LD_nopf:')
        I('s_waitcnt lgkmcnt(0)')
        TLBMARK = True
        I(f"""s_and_b32 s6, s8, 1
s_lshl_b32 s6, s6, 2
v_add_u32 v5, s6, v2          ; (4*(j&1) + rho)
v_lshlrev_b32 v5, 1, v5
v_xor_b32 v5, v5, v3          ; chunk
v_lshlrev_b32 v5, 4, v5
v_lshlrev_b32 v6, 8, v2
v_add_u32 v10, v5, v6         ; V voffset
v_lshlrev_b32 v6, 17, v2
v_add_u32 v11, v5, v6
v_lshlrev_b32 v6, 10, v2
v_add_u32 v16, v5, v6
s_lshr_b32 s6, s5, 4          ; b
s_lshl_b32 s6, s6, 3
s_add_u32 s6, s6, s4          ; bh
s_lshl_b32 s10, s6, 21
s_and_b32 s6, s5, 15          ; t
s_lshl_b32 s6, s6, 17
s_add_u32 s10, s10, s6
s_and_b32 s6, s8, 1
s_lshl_b32 s6, s6, 10
s_add_u32 s10, s10, s6        ; V base + (j & 1) * 1024
s_lshr_b32 s11, s5, 2         ; w'
s_and_b32 s12, s5, 3          ; cg
s_lshl_b32 s13, s4, 9
s_lshl_b32 s6, s11, 4
s_add_u32 s13, s13, s6
s_add_u32 s13, s13, s8
s_lshl_b32 s13, s13, 10
s_lshl_b32 s6, s12, 8
s_add_u32 s13, s13, s6
s_lshl_b32 s14, s4, 3
s_add_u32 s14, s14, s11       ; rg
s_mul_i32 s14, s14, 28
s_lshl_b32 s6, s8, 2
s_add_u32 s15, s14, s6
s_add_u32 s6, s8, 4
s_min_u32 s6, s6, 6
s_lshl_b32 s6, s6, 2
s_add_u32 s14, s14, s6
s_lshl_b32 s15, s15, 10
s_lshl_b32 s14, s14, 10
s_lshl_b32 s6, s12, 8
s_add_u32 s15, s15, s6
s_add_u32 s14, s14, s6
s_lshl_b32 s9, s8, 10         ; j*1024""")
        if p['tlb']:
            Lt = self.lab('tlb')
            I(f"""s_cmp_lg_u32 s8, 2
s_cbranch_scc1 {Lt}
v_mov_b32 v20, 0
s_mov_b64 exec, 1
buffer_load_dword v21, v20, s[16:19], s10 offen
buffer_load_dword v22, v20, s[20:23], s13 offen
buffer_load_dword v23, v20, s[24:27], s15 offen
s_mov_b32 s6, {WS_T1}
buffer_load_dword v24, v20, s[28:31], s6 offen
s_mov_b32 s6, {WS_T3}
buffer_load_dword v25, v20, s[28:31], s6 offen
s_mov_b32 s6, {WS_ST}
buffer_load_dword v26, v20, s[28:31], s6 offen
s_mov_b64 exec, -1
{Lt}:""")
        self.stamp(1)
        self.lds_wait('v90', 'v7', C_K, p['kthr'], sleep=2)
        I('s_waitcnt vmcnt(0)')
        self.stamp(2)
        loads = []
        I(f"""s_mul_i32 s61, s5, {p['rkb']}
s_mul_i32 s6, s4, {p['rkc']}
s_add_u32 s61, s61, s6
s_lshr_b32 s6, s8, 1
s_add_u32 s61, s61, s6""")
        for q in range(32):
            cw = q >> 2
            loads.append([f's_add_u32 m0, s9, {V_OFF + q*4096}',
                          f's_add_u32 s6, s61, {cw*p["rka"] + 2*(q & 3)}',
                          f's_and_b32 s6, s6, 7',
                          f's_lshl_b32 s6, s6, 11',
                          f's_add_u32 s6, s6, s10',
                          f's_add_u32 s6, s6, {cw*16384}',
                          f'buffer_load_dwordx4 v10, s[16:19], s6 offen{ntv} lds'])
        for q in range(4):
            loads.append([f's_add_u32 m0, s9, {WO_OFF + q*4096}',
                          f's_add_u32 s6, s13, {q*4096}',
                          f'buffer_load_dwordx4 v11, s[20:23], s6 offen{ntw} lds'])
        loads.append([f's_add_u32 m0, s9, {WD_OFF}', 's_nop 0', f'buffer_load_dwordx4 v16, s[24:27], s15 offen{ntw} lds'])
        loads.append([f's_add_u32 m0, s9, {WD_OFF + 4096}', 's_nop 0', f'buffer_load_dwordx4 v16, s[24:27], s14 offen{ntw} lds'])
        n = len(loads)
        nA = 2 * p['na']
        marks = {nA - 1: 'A', 31: 'V'}
        def mark(m):
            if m == 'A': self.signal('v90', 'v91', C_A)
            elif not p['x_stream']: I('s_barrier')
            self.stamp(3 if m == 'A' else 4)
        def depth(i): return p['dv2'] if i >= n - p['dvn'] else p['dv']
        done = -1
        issued = 0
        pend = sorted(marks)
        while issued < n:
            D = depth(issued)
            need_done = issued - D
            if need_done > done:
                I(f's_waitcnt vmcnt({issued - 1 - need_done})')
                done = need_done
            for l in loads[issued]: I(l)
            issued += 1
            while pend and pend[0] <= done:
                mark(marks[pend.pop(0)])
        while done < n - 1:
            done += 1
            if pend and pend[0] == done or done == n - 1:
                I(f's_waitcnt vmcnt({n - 1 - done})')
            while pend and pend[0] <= done:
                mark(marks[pend.pop(0)])
        self.stamp(5)
        if not p['x_stream']: I('s_barrier')
        self.stamp_dump('s[28:31]')
        I('s_endpgm')

    def role_compute(self):
        I = self.I; p = self.p
        ntk = ' nt' if p['nt_k'] else ''
        cexp = math.log2(math.e) / math.sqrt(128.0)
        I('L_CW:')
        self.srd(16, 8, 0x2000000)
        self.srd(20, 96, WS_SIZE)
        self.srd(24, 80, 2048)
        if p['x_start']: I('s_memrealtime s[90:91]')
        I('s_barrier')
        if p['x_start']: I('s_memrealtime s[92:93]')
        self.lane_setup()
        I(f"""s_sub_u32 s8, s3, {W_C0}           ; cw
s_lshr_b32 s6, s5, 4          ; b
s_lshl_b32 s6, s6, 3
s_add_u32 s6, s6, s4
s_lshl_b32 s10, s6, 21
s_and_b32 s6, s5, 15
s_lshl_b32 s6, s6, 17
s_add_u32 s10, s10, s6
s_lshl_b32 s6, s8, 14
s_add_u32 s10, s10, s6
v_and_b32 v4, 7, v1
v_lshlrev_b32 v4, 8, v4
v_bfe_u32 v5, v1, 3, 1
v_lshlrev_b32 v5, 6, v5
v_add_u32 v4, v4, v5
v_lshlrev_b32 v5, 4, v2
v_add_u32 v4, v4, v5          ; K voffset
s_mul_i32 s61, s8, {p['rka']}
s_mul_i32 s6, s5, {p['rkb']}
s_add_u32 s61, s61, s6
s_mul_i32 s6, s4, {p['rkc']}
s_add_u32 s61, s61, s6
v_mov_b32 v62, {CNT}
v_mov_b32 v63, 1
s_waitcnt lgkmcnt(0)""")
        D = p['dk']
        def kload(i):
            o, hx = divmod(i, 2)
            if hx == 0:
                I(f's_add_u32 s11, s61, {o}\ns_and_b32 s11, s11, 7\ns_lshl_b32 s11, s11, 11\ns_add_u32 s11, s11, s10')
            I(f'buffer_load_dwordx4 v[{64+4*i}:{67+4*i}], v4, s[16:19], s11 offen offset:{hx*128}{ntk}')
        if p['x_start']: I('s_memrealtime s[94:95]')
        for i in range(D): kload(i)
        self.tag_load(20)
        self.stamp(1)
        vC, vOne = 'v62', 'v63'
        for i in range(D, 16):
            I(f's_waitcnt vmcnt({D-1})')
            kload(i)
            if i == 15 - p['ksig']:
                self.signal(vC, vOne, C_K)
        self.stamp(2)
        if p['x_stream']:
            I('s_waitcnt vmcnt(0)')
            self.stamp(3)
            self.stamp_dump('s[20:23]', 16)
            I('s_endpgm')
        self.tag_ready()
        I(f"""v_and_b32 v5, 3, v3           ; head = n&3
v_lshlrev_b32 v6, 8, v5
v_lshlrev_b32 v7, 4, v2
v_add_u32 v60, v6, v7
v_bfe_u32 v6, v3, 3, 1
v_lshlrev_b32 v6, 6, v6
v_add_u32 v60, v60, v6
v_add_u32 v60, {Q_OFF}, v60
v_lshlrev_b32 v61, 5, v5
v_add_u32 v61, {MX}, v61
s_lshl_b32 s6, s8, 2
v_add_u32 v59, s6, v61""")
        self.lds_wait(vC, 'v5', C_Q, 1, sleep=2)
        self.stamp(3)
        for hx in range(2):
            I(f'ds_read_b128 v[{48+4*hx}:{51+4*hx}], v60 offset:{hx*128}')
        I(f'ds_read_b32 v5, {vC} offset:{C_M}')
        I('s_waitcnt lgkmcnt(0)\nv_readfirstlane_b32 s51, v5')
        for o in range(8):
            I(f's_waitcnt vmcnt({14 - 2*o})')
            for hx in range(2):
                c = '0' if hx == 0 else f'v[{16+4*o}:{19+4*o}]'
                r = 64 + 8*o + 4*hx
                I(f'v_mfma_f32_16x16x32_bf16 v[{16+4*o}:{19+4*o}], v[{r}:{r+3}], v[{48+4*hx}:{51+4*hx}], {c}')
        for j in range(4):
            for r in range(4): I(f'v_permlane32_swap_b32 v{16+8*j+r}, v{20+8*j+r}')
            for r in range(4): I(f'v_add_f32_dpp v{16+4*j+r}, v{20+8*j+r}, v{16+8*j+r} row_ror:8 row_mask:0xf bank_mask:0xf')
        I('v_max3_f32 v5, v16, v17, v18')
        for e in range(19, 31, 2):
            I(f'v_max3_f32 v5, v5, v{e}, v{e+1}')
        I('v_max_f32 v5, v5, v31')
        for sw in ('v_permlane16_swap_b32', 'v_permlane32_swap_b32'):
            I(f"""v_mov_b32 v6, v5
{sw} v5, v6
v_max_f32 v5, v5, v6""")
        I("""s_mov_b64 exec, 15
ds_write_b32 v59, v5
s_mov_b64 exec, -1""")
        self.signal(vC, vOne, C_1)
        self.lds_wait(vC, 'v6', C_1, 8, sleep=0)
        I(f"""ds_read_b128 v[48:51], v61
ds_read_b128 v[52:55], v61 offset:16
s_mov_b32 s50, {fhex(cexp)}
s_waitcnt lgkmcnt(0)
v_max3_f32 v48, v48, v49, v50
v_max3_f32 v51, v51, v52, v53
v_max3_f32 v48, v48, v54, v55
v_max_f32 v48, v48, v51
v_mul_f32 v58, s50, v48""")
        for e in range(16):
            I(f'v_fma_f32 v{16+e}, v{16+e}, s50, -v58')
        for e in range(16):
            I(f'v_exp_f32 v{16+e}, v{16+e}')
        for q in range(8):
            I(f'v_cvt_pk_bf16_f32 v{48+q}, v{16+2*q}, v{17+2*q}')
        I(f"""s_lshl_b32 s6, s8, 9
s_add_u32 s6, s6, {P_OFF}
v_lshlrev_b32 v6, 6, v2
v_lshlrev_b32 v7, 4, v3
v_add_u32 v6, v6, v7
v_add_u32 v6, s6, v6
s_mov_b32 s40, 0x000f000f
s_mov_b32 s41, 0x000f000f
s_mov_b64 exec, s[40:41]
ds_write_b128 v6, v[48:51]
ds_write_b128 v6, v[52:55] offset:256
s_mov_b64 exec, -1""")
        for e in range(8): I(f'v_add_f32 v{16+e}, v{16+e}, v{24+e}')
        for e in range(4): I(f'v_add_f32 v{16+e}, v{16+e}, v{20+e}')
        I("""v_add_f32 v16, v16, v17
v_add_f32 v18, v18, v19
v_add_f32 v5, v16, v18""")
        for sw in ('v_permlane16_swap_b32', 'v_permlane32_swap_b32'):
            I(f"""v_mov_b32 v6, v5
{sw} v5, v6
v_add_f32 v5, v5, v6""")
        I("""s_mov_b64 exec, 15
ds_write_b32 v59, v5 offset:128
s_mov_b64 exec, -1""")
        self.signal(vC, vOne, C_2)
        self.lds_wait(vC, 'v6', C_2, 8, sleep=0)
        self.stamp(4)
        I(f"""s_lshl_b32 s12, s4, 5
s_add_u32 s12, s12, s5        ; slot
v_mov_b32 v47, s52""")
        Ls = self.lab('nostat')
        I(f"""s_cmp_lg_u32 s8, 0
s_cbranch_scc1 {Ls}
ds_read_b128 v[48:51], v61 offset:128
ds_read_b128 v[52:55], v61 offset:144
v_and_b32 v6, 3, v1
v_add_u32 v6, 0x07060500, v6
s_waitcnt lgkmcnt(0)
v_add_f32 v48, v48, v49
v_add_f32 v50, v50, v51
v_add_f32 v52, v52, v53
v_add_f32 v54, v54, v55
v_add_f32 v48, v48, v50
v_add_f32 v52, v52, v54
v_add_f32 v48, v48, v52
s_mov_b32 s40, 0xf0f0f0f0
s_mov_b32 s41, 0
v_cndmask_b32 v48, v58, v48, s[40:41]
v_perm_b32 v48, v48, v47, v6
s_lshl_b32 s6, s12, 7
s_add_u32 s6, s6, {WS_ST}
v_lshlrev_b32 v6, 2, v1
s_mov_b32 exec_hi, 0""")
        self.mode_store('buffer_store_dword v48, v6, s[20:23], s6 offen', 's51')
        I('s_mov_b32 exec_hi, -1')
        I(f'{Ls}:')
        I(f"""v_and_b32 v5, 3, v3
v_lshlrev_b32 v5, 4, v5
v_lshlrev_b32 v6, 6, v2
v_add_u32 v5, v5, v6
v_add_u32 v5, {P_OFF}, v5""")
        for st in range(16):
            if st == 8: I('s_waitcnt lgkmcnt(0)')
            I(f'ds_read_b128 v[{64+4*st}:{67+4*st}], v5 offset:{st*256}')
        I(f"""v_lshrrev_b32 v5, 2, v3       ; r
v_and_b32 v6, 3, v3           ; c4
v_lshlrev_b32 v7, 2, v2
v_add_u32 v7, v7, v5          ; 4s + r
v_and_b32 v48, 7, v7          ; (4(s&1) + r)
v_xor_b32 v48, s8, v48
v_lshlrev_b32 v48, 5, v48
v_lshlrev_b32 v7, 8, v7
v_add_u32 v7, v7, v48
v_lshlrev_b32 v6, 3, v6
v_add_u32 v56, v7, v6
v_add_u32 v57, 0x10000, v56
v_add_u32 v59, 0x20000, v56""")
        I(f"""s_lshr_b32 s13, s5, 2         ; w'
s_and_b32 s14, s5, 3          ; cg
s_and_b32 s15, s8, 1
s_lshl_b32 s6, s15, 4
v_add_u32 v5, s6, v2          ; b*16 + tq
v_lshlrev_b32 v12, 4, v5
v_add_u32 v12, {WL}, v12
s_lshl_b32 s6, s4, 5
v_add_u32 v61, s6, v5         ; slot' (i = 0)
v_lshlrev_b32 v61, 11, v61
s_lshl_b32 s6, s13, 4
v_add_u32 v6, s6, v3
v_lshlrev_b32 v6, 4, v6
v_add_u32 v61, v61, v6
v_add_u32 v61, {WS_T1}, v61
v_lshrrev_b32 v6, 3, v3
v_lshlrev_b32 v6, 6, v6
v_bfe_u32 v7, v3, 2, 1
v_lshlrev_b32 v7, 3, v7       ; half*8
v_add_u32 v6, v6, v7
v_and_b32 v7, 3, v3
v_lshlrev_b32 v7, 4, v7       ; sA*16
v_add_u32 v6, v6, v7
v_lshlrev_b32 v7, 1, v2
v_add_u32 v6, v6, v7          ; + hh*2
s_lshl_b32 s6, s15, 7
s_add_u32 s6, s6, {A1}
v_add_u32 v60, s6, v6
s_lshl_b32 s6, s12, 11
s_lshl_b32 s7, s8, 8
s_add_u32 s6, s6, s7
s_add_u32 s6, s6, {WS_T1}
v_lshlrev_b32 v58, 4, v3
v_add_u32 v58, s6, v58
v_and_b32 v6, 1, v3
v_lshlrev_b32 v44, 1, v6
v_add_u32 v50, 0x07060500, v44
v_add_u32 v51, 1, v50
v_mov_b32 v49, s52               ; T
v_lshlrev_b32 v7, 6, v6
v_lshlrev_b32 v6, 7, v6
v_lshlrev_b32 v48, 4, v2
v_add_u32 v6, v6, v48
v_add_u32 v62, {A1}, v6
v_add_u32 v7, v7, v48
v_add_u32 v48, {A2}, v7
s_lshl_b32 s6, s14, 3
s_add_u32 s6, s6, s8
s_lshl_b32 s6, s6, 6
s_lshl_b32 s7, s4, 3
s_add_u32 s7, s7, s13
s_add_u32 s6, s6, s7
s_lshl_b32 s6, s6, 7
s_add_u32 s6, s6, {WS_T3}
v_lshlrev_b32 v63, 3, v3
v_add_u32 v63, s6, v63
v_mov_b32 v13, {CNT}
s_and_b32 s13, s2, 3          ; cg3
s_lshr_b32 s14, s2, 2         ; o8
s_lshl_b32 s6, s13, 3
s_add_u32 s6, s6, s14
s_lshl_b32 s6, s6, 13
s_lshl_b32 s7, s8, 5
s_add_u32 s6, s6, s7
s_add_u32 s6, s6, {WS_T3}
v_lshrrev_b32 v14, 1, v1
v_lshlrev_b32 v14, 7, v14
v_and_b32 v6, 1, v1
v_lshlrev_b32 v7, 4, v6
v_add_u32 v14, v14, v7
v_add_u32 v14, s6, v14
s_lshl_b32 s6, s13, 8
s_lshl_b32 s7, s14, 5
s_add_u32 s6, s6, s7
s_lshl_b32 s7, s8, 3
s_add_u32 s6, s6, s7
v_and_b32 v15, 1, v2
v_lshlrev_b32 v15, 10, v15
v_lshlrev_b32 v6, 2, v6
v_add_u32 v15, v15, v6
v_lshrrev_b32 v6, 1, v2
v_lshlrev_b32 v6, 1, v6
v_add_u32 v15, v15, v6
v_add_u32 v15, s6, v15
s_waitcnt lgkmcnt(0)""")
        Lsa = self.lab('sa')
        I(f"""s_mov_b32 s60, 0
s_cmp_lg_u32 s8, {p['sw']}
s_cbranch_scc1 {Lsa}""")
        self.lds_wait('v13', 'v5', C_H, 1, sleep=1)
        I(f"""v_mov_b32 v5, {GATE}
ds_read_b64 v[6:7], v5
s_mov_b32 s40, 0
s_mov_b32 s41, -1
v_lshrrev_b32 v5, 5, v1
v_lshlrev_b32 v5, 4, v5
v_add_u32 v5, v5, v3          ; b'*16 + t'
v_lshlrev_b32 v60, 4, v5
v_add_u32 v60, {WL}, v60
s_lshl_b32 s6, s4, 5
v_add_u32 v5, s6, v5          ; slot'
v_lshlrev_b32 v5, 7, v5
v_add_u32 v61, {WS_ST}, v5
s_waitcnt lgkmcnt(0)
v_cndmask_b32 v12, v6, v7, s[40:41]   ; g_b (b = lane>>5)
{Lsa}:""")
        self.stamp(5)
        self.lds_wait('v13', 'v5', C_A, 4, sleep=1)
        self.stamp(6)
        def vread(st, r):
            base = 'v56' if st < 8 else 'v57'
            o = (st & 7) * 8192
            I(f'ds_read_b64_tr_b16 v[{r}:{r+1}], {base} offset:{o}')
            I(f'ds_read_b64_tr_b16 v[{r+2}:{r+3}], {base} offset:{o+4096}')
        def vmfma(st, r):
            c = '0' if st == 0 else 'v[8:11]'
            I(f'v_mfma_f32_16x16x32_bf16 v[8:11], v[{64+4*st}:{67+4*st}], v[{r}:{r+3}], {c}')
        na = p['na']
        batches = []
        st = 0
        while st < na:
            b = list(range(st, min(st + 4, na))); batches.append(b); st += len(b)
        sets = (16, 32)
        for k, b in enumerate(batches):
            if k == 0:
                for j, st in enumerate(b): vread(st, sets[0] + 4*j)
            I('s_waitcnt lgkmcnt(0)')
            if k + 1 < len(batches):
                for j, st in enumerate(batches[k+1]): vread(st, sets[(k+1) & 1] + 4*j)
            for j, st in enumerate(b): vmfma(st, sets[k & 1] + 4*j)
            if k == 0:
                Lq = self.lab('nsl')
                I(f"s_cmp_lg_u32 s8, {p['sw']}\ns_cbranch_scc1 {Lq}")
                self.stats_loads()
                I(f'{Lq}:')
        I('s_barrier')
        self.stamp(7)
        rest = list(range(na, 16))
        for j, st in enumerate(rest): vread(st, 16 + 4*j)
        for j, st in enumerate(rest):
            I(f's_waitcnt lgkmcnt({2*(len(rest)-1-j)})')
            vmfma(st, 16 + 4*j)
        for e in range(4): I(f'v_perm_b32 v{8+e}, v{8+e}, v49, s{53+e}')
        I('s_mov_b64 exec, 0xffff')
        self.mode_store('buffer_store_dwordx4 v[8:11], v58, s[20:23], 0 offen', 's51')
        I('s_mov_b64 exec, -1')
        I('ds_read_b128 v[52:55], v48')
        self.stamp(8)
        Lns = self.lab('nsw'); Lw = self.lab('sw'); Lr = self.lab('swr')
        I(f"""s_cmp_lg_u32 s8, {p['sw']}
s_cbranch_scc1 {Lns}
s_waitcnt vmcnt(1)""")
        self.stats_check()
        I(f"""v_cmp_ne_u32 vcc, 0, v5
s_cbranch_vccz {Lw}
{Lr}:""")
        self.stats_loads()
        I('s_add_u32 s48, s48, 1\ns_waitcnt vmcnt(0)')
        self.stats_check()
        self.poll_tail(Lr, Lw, 'v5', p['sls'])
        I(f"""s_branch {Lr}
{Lw}:""")
        for h in range(4): I(f'v_mov_b32 v{72+h}, v{64+h}')
        for rr in (8, 4, 2, 1):
            for h in range(4): I(f'v_max_f32_dpp v{72+h}, v{72+h}, v{72+h} row_ror:{rr} row_mask:0xf bank_mask:0xf')
        for h in range(4): I(f'v_sub_f32 v{64+h}, v{64+h}, v{72+h}')
        for h in range(4): I(f'v_exp_f32 v{64+h}, v{64+h}')
        for h in range(4): I(f'v_mul_f32 v{68+h}, v{68+h}, v{64+h}')
        for rr in (8, 4, 2, 1):
            for h in range(4): I(f'v_add_f32_dpp v{68+h}, v{68+h}, v{68+h} row_ror:{rr} row_mask:0xf bank_mask:0xf')
        for h in range(4): I(f'v_rcp_f32 v{68+h}, v{68+h}')
        for h in range(4): I(f'v_mul_f32 v{64+h}, v{64+h}, v12')
        for h in range(4): I(f'v_mul_f32 v{64+h}, v{64+h}, v{68+h}')
        I('ds_write_b128 v60, v[64:67]\nv_mov_b32 v5, 1')
        self.signal('v13', 'v5', C_W)
        I(f'{Lns}:')
        Lng = self.lab('nog')
        I(f"""s_cmp_gt_u32 s8, 1
s_cbranch_scc1 {Lng}""")
        I(f's_mov_b32 s6, {4*2048}\ns_mov_b32 s7, {8*2048}\ns_mov_b32 s9, {12*2048}')
        T2B = (64, 96, 112)
        NS2 = p['t2sets']
        def t2issue(k):
            for i, so in enumerate(('0', 's6', 's7', 's9')):
                r = T2B[k] + 4*i
                I(f'buffer_load_dwordx4 v[{r}:{r+3}], v61, s[20:23], {so} offen{SC}')
        t2issue(0)
        self.lds_wait('v13', 'v5', C_W, 1, sleep=0)
        for i in range(4): I(f'ds_read_b128 v[{80+4*i}:{83+4*i}], v12 offset:{i*64}')
        for k in range(1, NS2):
            if p['t2st']: I(f"s_sleep {p['t2st']}")
            t2issue(k)
        L = self.lab('t2'); Dn = self.lab('t2d')
        I(f'{L}:')
        hits = []
        for k in range(NS2):
            for i in range(4):
                I(f's_waitcnt vmcnt({4*(NS2-1) + 3-i})')
                self.tag_acc(T2B[k] + 4*i, i == 0)
            H = self.lab('t2h'); hits.append((H, T2B[k]))
            I(f"""v_cmp_ne_u32 vcc, 0, v16
s_cbranch_vccz {H}""")
            if p['sl2']: I(f"s_sleep {p['sl2']}")
            t2issue(k)
        I(f"""s_add_u32 s48, s48, 1
s_cmp_le_u32 s48, {self.glim}
s_cbranch_scc1 {L}""")
        for j, (H, r) in enumerate(hits):
            I(f'{H}:')
            I('s_waitcnt lgkmcnt(0)')
            for h in range(4): I(f'v_mul_f32 v{16+h}, v{r+h}, v{80+h}')
            for i in range(1, 4):
                for h in range(4): I(f'v_fmac_f32 v{16+h}, v{r+4*i+h}, v{80+4*i+h}')
            if j + 1 < len(hits): I(f's_branch {Dn}')
        I(f'{Dn}:')
        self.stamp(9)
        I("""v_permlane16_swap_b32 v16, v17
v_permlane16_swap_b32 v18, v19
v_add_f32 v16, v16, v17
v_add_f32 v18, v18, v19
v_permlane32_swap_b32 v16, v18
v_add_f32 v16, v16, v18
v_cvt_pk_bf16_f32 v16, v16, v16
ds_write_b16 v60, v16
s_waitcnt lgkmcnt(0)""")
        I(f"""{Lng}:
s_barrier""")
        self.stamp(10)
        I("""ds_read_b64_tr_b16 v[16:17], v59 offset:16384
ds_read_b64_tr_b16 v[18:19], v59 offset:20480
ds_read_b128 v[32:35], v62
ds_read_b64_tr_b16 v[20:21], v59
ds_read_b64_tr_b16 v[22:23], v59 offset:4096
ds_read_b128 v[36:39], v62 offset:64
ds_read_b64_tr_b16 v[24:25], v59 offset:8192
ds_read_b64_tr_b16 v[26:27], v59 offset:12288
s_waitcnt lgkmcnt(6)
v_mfma_f32_16x16x32_bf16 v[8:11], v[52:55], v[16:19], 0
s_waitcnt lgkmcnt(3)
v_mfma_f32_16x16x32_bf16 v[8:11], v[32:35], v[20:23], v[8:11]
s_waitcnt lgkmcnt(0)
v_mfma_f32_16x16x32_bf16 v[8:11], v[36:39], v[24:27], v[8:11]""")
        I(f"""v_perm_b32 v8, v8, v49, v50
v_perm_b32 v9, v9, v49, v51
s_mov_b64 exec, 0xffff
buffer_store_dwordx2 v[8:9], v63, s[20:23], 0 offen{(SC, ' sc0 sc1')[p['t3stf']]}
s_mov_b64 exec, -1""")
        self.stamp(11)
        Lend = 'L_CW_end'
        I(f"""s_cmp_ge_u32 s2, 32
s_cbranch_scc1 {Lend}
s_cmp_gt_u32 s8, 3
s_cbranch_scc1 {Lend}
s_mov_b32 s7, 4096""")
        NS = p['t3sets']
        L = self.lab('t3'); Dn = self.lab('t3d')
        def issue(k):
            r = 64 + 8*k
            fl = (SC, ' sc0 sc1', ' sc1 nt', ' sc0 sc1 nt')[p['t3ld']]
            I(f'buffer_load_dwordx4 v[{r}:{r+3}], v14, s[20:23], 0 offen{fl}')
            I(f'buffer_load_dwordx4 v[{r+4}:{r+7}], v14, s[20:23], s7 offen{fl}')
        if p['t3delay']: I(f"s_sleep {p['t3delay']}")
        self.stamp(13)
        if p['stamps']: I('s_mov_b32 s59, s48')
        for k in range(NS):
            issue(k)
            if k + 1 < NS and p['t3st']: I(f"s_sleep {p['t3st']}")
        I(f'{L}:')
        hits = []
        for k in range(NS):
            r = 64 + 8*k
            I(f's_waitcnt vmcnt({2*(NS-1)})')
            self.tag_acc(r, True)
            self.tag_acc(r + 4, False)
            H = self.lab('t3h'); hits.append((H, r))
            I(f"""v_cmp_ne_u32 vcc, 0, v16
s_cbranch_vccz {H}""")
            issue(k)
        I(f"""s_add_u32 s48, s48, 1
s_cmp_le_u32 s48, {self.glim}
s_cbranch_scc1 {L}""")
        for j, (H, r) in enumerate(hits):
            I(f'{H}:')
            for e in range(4): I(f'v_add_f32 v{20+e}, v{r+e}, v{r+4+e}')
            if j + 1 < len(hits): I(f's_branch {Dn}')
        I(f'{Dn}:')
        if p['stamps']:
            I('s_sub_u32 s92, s48, s59\ns_add_u32 s92, s92, 1')
            self.stamp(15)
        I("""v_permlane16_swap_b32 v20, v21
v_permlane16_swap_b32 v22, v23
v_add_f32 v20, v20, v21
v_add_f32 v22, v22, v23
v_permlane32_swap_b32 v20, v22
v_add_f32 v20, v20, v22""")
        for rr in (2, 4, 8):
            I(f'v_add_f32_dpp v20, v20, v20 row_ror:{rr} row_mask:0xf bank_mask:0xf')
        I(f"""v_cvt_pk_bf16_f32 v20, v20, v20
s_mov_b32 exec_lo, 0x00030003
s_mov_b32 exec_hi, 0x00030003
buffer_store_short v20, v15, s[24:27], 0 offen
s_mov_b64 exec, -1""")
        I(f"""s_cmp_lg_u32 s2, 0
s_cbranch_scc1 L_CW_noe
s_cmp_lg_u32 s8, 0
s_cbranch_scc1 L_CW_noe
v_mov_b32 v5, {WS_E}
s_mov_b64 exec, 1
buffer_store_dword v49, v5, s[20:23], 0 offen{SC}
s_mov_b64 exec, -1
L_CW_noe:""")
        self.stamp(12)
        I(f'{Lend}:')
        self.stamp_dump('s[20:23]', 16)
        I('s_endpgm')

    def build(self):
        I = self.I
        I('''s_cmp_ge_u32 s2, 256
s_cbranch_scc1 L_exit''')
        if self.p['stamps']:
            for i in range(16): I(f's_mov_b32 s{64+2*i}, 0')
            self.stamp(0)
        I(f'''v_lshrrev_b32 v1, 6, v0
s_and_b32 s4, s2, 7
s_lshr_b32 s5, s2, 3
s_mov_b32 s48, 0
v_readfirstlane_b32 s3, v1
s_cmp_ge_u32 s3, {W_L0}
s_cbranch_scc1 L_LD
s_cmp_ge_u32 s3, {W_C0}
s_cbranch_scc1 L_CW
s_cmp_eq_u32 s3, {W_J1}
s_cbranch_scc1 L_J1''')
        self.role_j0()
        self.role_j1()
        self.role_compute()
        self.role_loader()
        I('L_exit:\ns_endpgm\nL_codeend:')
        head = f'''; Fused decode step: GQA attention over the KV cache + SwiGLU FFN + sigmoid-gated mix.
; @launch grid=(256,1,1) block=(896,1,1) lds={LDS_BYTES}
.amdgcn_target "amdgcn-amd-amdhsa--gfx950"
.text
.globl {KNAME}
.p2align 8
.type {KNAME},@function
{KNAME}:
'''
        foot = f'''.section .rodata,"a"
.p2align 6
.amdhsa_kernel {KNAME}
  .amdhsa_next_free_vgpr 128
  .amdhsa_next_free_sgpr 102
  .amdhsa_accum_offset 128
  .amdhsa_group_segment_fixed_size 0
  .amdhsa_kernarg_size 104
  .amdhsa_user_sgpr_count 2
  .amdhsa_user_sgpr_kernarg_segment_ptr 1
  .amdhsa_system_sgpr_workgroup_id_x 1
.end_amdhsa_kernel
'''
        return head + self.a.text() + foot

def main():
    out = sys.argv[1]
    kw = {}
    for arg in sys.argv[2:]:
        k, v = arg.split('=')
        assert k in DEF or k in ('pfn',), k
        kw[k] = (v == 'True') if v in ('True', 'False') else int(v)
    open(out, 'w').write(G(**kw).build())

if __name__ == '__main__':
    main()
```

```python
import sys, math, struct
from emit import Asm

def fhex(x): return '0x%08x' % struct.unpack('<I', struct.pack('<f', x))[0]
KNAME = 'gated_mix__gqa_block_cached__swiglu_ffn__decode_kernel'

WS_Q  = 0x000000
WS_F  = 0x020000
WS_ID = 0x030000
COPYB = 0x040000
WS_ST = 0x080000
WS_E  = 0x088000
WS_T1 = 0x100000
WS_T3 = 0x180000
WS_DBG = 0x200000
WS_SIZE = 0x400000

V_OFF = 0
STG0 = 0
STG1 = 16384
WO_OFF = 131072
WD_OFF = 147456
P_OFF = 155648
Q_OFF = 159744
MISC = 160768
MX = MISC
LX = MISC + 128
A1 = MISC + 256
A2 = MISC + 512
GATE = MISC + 640
CNT = MISC + 704
WL = MISC + 1024
C_Q, C_H, C_K, C_1, C_2, C_A, C_M, C_W = 0, 4, 8, 12, 16, 20, 24, 28
LDS_BYTES = 163840

SPIN_LIMIT = 300000
SC = ' sc1'
W_J0, W_J1, W_C0, W_L0 = 0, 1, 2, 10

DEF = dict(nt_k=True, nt_v=True, nt_w=True, dk=4, dv=6, dv2=4, dvn=0, stamps=False, na=14, ksig=0, kthr=4,
           slq=2, slf=2, sls=2, sl2=0, sl3=0, pf=False, na_polls=10, force_remote=False, nopoll=False,
           t3sets=1, t3st=4, tlb=False, sw=2, t3delay=0, t3ld=0, t3stf=0, x_nob=False, qdelay=0,
           x_stream=False, rka=1, rkb=3, rkc=0, x_start=False, t2sets=1, t2st=3, wpos=32, wsplit=6)

class G:
    def __init__(self, **kw):
        self.p = dict(DEF); self.p.update(kw)
        self.a = Asm()
        self.uid = 0
        self.glim = 0 if self.p['nopoll'] else SPIN_LIMIT
    def I(self, s): self.a.I(s)
    def lab(self, base):
        self.uid += 1
        return f'L_{base}_{self.uid}'
    def stamp(self, i):
        if self.p['stamps']:
            self.I(f's_memrealtime s[{64+2*i}:{65+2*i}]')
            self.I('s_waitcnt lgkmcnt(0)')
    def stamp_dump(self, srd, n=12):
        if not self.p['stamps']: return
        I = self.I
        I('s_mov_b64 exec, -1')
        I('s_lshl_b32 s6, s2, 4')
        I('s_add_u32 s6, s6, s3')
        I('s_lshl_b32 s6, s6, 6')
        I(f's_add_u32 s6, s6, {WS_DBG}')
        I('v_mov_b32 v1, s6')
        I('s_mov_b64 exec, 1')
        for j in range(0, n, 4):
            for t in range(4):
                I(f'v_mov_b32 v{4+t}, s{64+2*(j+t)}')
            I(f'buffer_store_dwordx4 v[4:7], v1, {srd}, 0 offen offset:{j*4}')
        I('s_mov_b64 exec, -1')
    def signal(self, vC, vOne, off):
        self.I(f'''s_mov_b64 exec, 1
ds_add_u32 {vC}, {vOne} offset:{off}
s_mov_b64 exec, -1''')
    def lds_wait(self, vC, vT, off, n, sleep=1):
        L = self.lab('lw'); D = self.lab('lwd')
        self.I(f'''{L}:
ds_read_b32 {vT}, {vC} offset:{off}
s_add_u32 s48, s48, 1
s_waitcnt lgkmcnt(0)
v_readfirstlane_b32 s49, {vT}
s_cmp_ge_u32 s49, {n}
s_cbranch_scc1 {D}
s_cmp_gt_u32 s48, {SPIN_LIMIT}
s_cbranch_scc1 {D}''')
        if sleep: self.I(f's_sleep {sleep}')
        self.I(f'''s_branch {L}
{D}:''')
    def tag_load(self, wsbase):
        self.I(f's_load_dword s52, s[{wsbase}:{wsbase+1}], {WS_E}')
        for i in range(4): self.I(f's_mov_b32 s{53+i}, 0x0706050{i}')
        self.I('s_mov_b32 s57, 0x0c0c0400\ns_mov_b32 s58, 0x04000c0c')
    def tag_ready(self):
        self.I('s_waitcnt lgkmcnt(0)\ns_add_u32 s52, s52, 1')
    def tag_acc(self, r, first, acc='v16', t1='v17', t2='v18', t3='v19'):
        self.I(f'v_perm_b32 {t2}, v{r+1}, v{r}, s57\nv_perm_b32 {t3}, v{r+3}, v{r+2}, s58\nv_or_b32 {t2}, {t2}, {t3}')
        if first: self.I(f'v_xor_b32 {acc}, s52, {t2}')
        else: self.I(f'v_xor_b32 {t1}, s52, {t2}\nv_or_b32 {acc}, {acc}, {t1}')
    def poll_tail(self, L, D, acc, sleep):
        self.I(f'''v_cmp_ne_u32 vcc, 0, {acc}
s_cbranch_vccz {D}
s_cmp_gt_u32 s48, {self.glim}
s_cbranch_scc1 {D}''')
        if sleep: self.I(f's_sleep {sleep}')
    def srd(self, base, karg_off, size):
        self.I(f's_load_dwordx2 s[{base}:{base+1}], s[0:1], {karg_off}')
        self.I(f's_mov_b32 s{base+2}, {size}')
        self.I(f's_mov_b32 s{base+3}, 0x20000')
    def stats_loads(self):
        self.I(f"""buffer_load_dwordx4 v[64:67], v61, s[20:23], 0 offen{SC}
buffer_load_dwordx4 v[68:71], v61, s[20:23], 0 offen offset:16{SC}""")
    def stats_check(self):
        self.tag_acc(64, True, 'v5', 'v6', 'v7', 'v4')
        self.tag_acc(68, False, 'v5', 'v6', 'v7', 'v4')
    def lane_setup(self):
        self.I('''v_and_b32 v1, 63, v0
v_lshrrev_b32 v2, 4, v1
v_and_b32 v3, 15, v1''')
    def mode_store(self, ins, smode):
        Lr = self.lab('ms'); Le = self.lab('mse')
        self.I(f'''s_cmp_eq_u32 {smode}, 0
s_cbranch_scc1 {Lr}
{ins}
s_branch {Le}
{Lr}:
{ins}{SC}
{Le}:''')

    def qtile_issue(self, srdW, srdX, sBase, sKs):
        I = self.I; pitch = 8192; stg = STG0
        ntf = ' nt' if self.p['nt_w'] else ''
        I(f'''v_lshrrev_b32 v4, 5, v1
v_lshlrev_b32 v4, 3, v4
v_bfe_u32 v5, v1, 3, 2
v_add_u32 v4, v4, v5
v_mul_u32_u24 v4, {pitch}, v4
v_and_b32 v5, 7, v1
v_bfe_u32 v6, v1, 4, 2
v_lshlrev_b32 v6, 1, v6
v_xor_b32 v5, v5, v6
v_lshlrev_b32 v5, 4, v5
v_add_u32 v4, v4, v5''')
        for i in range(16):
            rowi = 32*(i >> 2) + 16*(i & 1) + 4*((i >> 1) & 1)
            I(f's_mov_b32 m0, {stg + i*1024}')
            I(f's_add_u32 s7, {sBase}, {rowi*pitch}')
            I(f'buffer_load_dwordx4 v4, {srdW}, s7 offen{ntf} lds')
        I(f'''v_and_b32 v5, 1, v3
v_lshlrev_b32 v5, 10, v5
v_lshlrev_b32 v6, 4, v2
v_add_u32 v5, v5, v6
s_lshl_b32 s6, {sKs}, 8
v_add_u32 v5, s6, v5''')
        for kk in range(4):
            I(f'buffer_load_dwordx4 v[{8+4*kk}:{11+4*kk}], v5, {srdX}, 0 offen offset:{kk*64}')
        I(f'''v_lshrrev_b32 v6, 2, v3
v_and_b32 v7, 3, v3
v_lshlrev_b32 v28, 2, v2
v_add_u32 v28, v28, v6
v_lshlrev_b32 v28, 7, v28
v_lshlrev_b32 v7, 3, v7
v_add_u32 v28, v28, v7
v_add_u32 v28, {stg}, v28
v_lshlrev_b32 v29, 1, v2
v_lshrrev_b32 v6, 1, v6
v_add_u32 v29, v29, v6
v_and_b32 v29, 3, v29''')
        for nt_ in range(4):
            I(f'''v_xor_b32 v6, {nt_}, v29
v_lshlrev_b32 v6, 5, v6
v_add_u32 v{24+nt_}, v28, v6''')
    def qtile_compute(self):
        I = self.I
        def reads(kk, setb):
            for nt_ in range(4):
                for hf in range(2):
                    r = setb + 4*nt_ + 2*hf
                    I(f'ds_read_b64_tr_b16 v[{r}:{r+1}], v{24+nt_} offset:{kk*4096 + hf*2048}')
        def mf(kk, setb):
            for nt_ in range(4):
                c = '0' if kk == 0 else f'v[{64+4*nt_}:{67+4*nt_}]'
                I(f'v_mfma_f32_16x16x32_bf16 v[{64+4*nt_}:{67+4*nt_}], v[{8+4*kk}:{11+4*kk}], v[{setb+4*nt_}:{setb+4*nt_+3}], {c}')
        sets = (32, 48)
        reads(0, sets[0])
        for kk in range(4):
            I('s_waitcnt lgkmcnt(0)')
            if kk < 3: reads(kk+1, sets[(kk+1) & 1])
            mf(kk, sets[kk & 1])
        I('''s_mov_b32 s40, 0xffff0000
s_mov_b32 s41, 0
s_mov_b32 s42, 0
s_mov_b32 s43, 0x0000ffff
s_mov_b32 s44, 0
s_mov_b32 s45, 0xffff0000''')
        for b in range(2):
            I(f'''v_cndmask_b32 v{40+b}, v{64+b}, v{68+b}, s[40:41]
v_cndmask_b32 v{40+b}, v{40+b}, v{72+b}, s[42:43]
v_cndmask_b32 v{40+b}, v{40+b}, v{76+b}, s[44:45]''')

    def ftile_issue(self, srdW, srdX, sBase, sKs):
        I = self.I; pitch = 3584; stg = STG1
        ntf = ' nt' if self.p['nt_w'] else ''
        I(f'''v_lshrrev_b32 v4, 4, v1
v_lshlrev_b32 v4, 3, v4
v_bfe_u32 v5, v1, 2, 2
v_add_u32 v4, v4, v5
v_mul_u32_u24 v4, {pitch}, v4
v_and_b32 v5, 3, v1
v_bfe_u32 v6, v1, 4, 1
v_lshlrev_b32 v6, 1, v6
v_xor_b32 v5, v5, v6
v_lshlrev_b32 v5, 4, v5
v_add_u32 v4, v4, v5''')
        for i in range(16):
            rowi = 32*(i >> 1) + 4*(i & 1)
            I(f's_mov_b32 m0, {stg + i*1024}')
            I(f's_add_u32 s7, {sBase}, {rowi*pitch}')
            I(f'buffer_load_dwordx4 v4, {srdW}, s7 offen{ntf} lds')
        I(f'''v_and_b32 v5, 1, v3
v_lshlrev_b32 v5, 10, v5
v_lshlrev_b32 v6, 4, v2
v_add_u32 v5, v5, v6
s_lshl_b32 s6, {sKs}, 9
v_add_u32 v5, s6, v5''')
        for kk in range(8):
            I(f'buffer_load_dwordx4 v[{96+4*kk}:{99+4*kk}], v5, {srdX}, 0 offen offset:{kk*64}')
        I(f'''v_lshrrev_b32 v6, 2, v3
v_and_b32 v7, 3, v3
v_lshlrev_b32 v28, 2, v2
v_add_u32 v28, v28, v6
v_lshlrev_b32 v28, 6, v28
v_lshlrev_b32 v7, 3, v7
v_add_u32 v28, v28, v7
v_add_u32 v28, {stg}, v28
v_and_b32 v29, 1, v2
v_lshlrev_b32 v6, 5, v29
v_add_u32 v24, v28, v6
v_xor_b32 v6, 1, v29
v_lshlrev_b32 v6, 5, v6
v_add_u32 v25, v28, v6''')
    def ftile_compute(self):
        I = self.I
        def reads(k2, setb):
            for kq in range(2):
                kk = 2*k2 + kq
                for nt_ in range(2):
                    for hf in range(2):
                        r = setb + 8*kq + 4*nt_ + 2*hf
                        I(f'ds_read_b64_tr_b16 v[{r}:{r+1}], v{24+nt_} offset:{kk*2048 + hf*1024}')
        def mf(k2, setb):
            for kq in range(2):
                kk = 2*k2 + kq
                for nt_ in range(2):
                    c = '0' if kk == 0 else f'v[{64+4*nt_}:{67+4*nt_}]'
                    r = setb + 8*kq + 4*nt_
                    I(f'v_mfma_f32_16x16x32_bf16 v[{64+4*nt_}:{67+4*nt_}], v[{96+4*kk}:{99+4*kk}], v[{r}:{r+3}], {c}')
        sets = (32, 48)
        reads(0, sets[0])
        for k2 in range(4):
            I('s_waitcnt lgkmcnt(0)')
            if k2 < 3: reads(k2+1, sets[(k2+1) & 1])
            mf(k2, sets[k2 & 1])
        I('''s_mov_b32 s40, 0xffff0000
s_mov_b32 s41, 0
s_mov_b32 s42, 0
s_mov_b32 s43, 0x0000ffff
s_mov_b32 s44, 0
s_mov_b32 s45, 0xffff0000
v_cndmask_b32 v40, v64, v68, s[40:41]
v_cndmask_b32 v40, v40, v65, s[42:43]
v_cndmask_b32 v40, v40, v69, s[44:45]''')

    def role_j0(self):
        I = self.I; p = self.p
        I('L_J0:')
        self.srd(16, 24, 0x400000)
        self.srd(20, 0, 2048)
        self.srd(24, 96, WS_SIZE)
        I('s_barrier')
        if p['x_stream']: I('s_endpgm')
        self.lane_setup()
        I(f"""s_lshr_b32 s8, s5, 2          ; qcl
s_and_b32 s9, s5, 3           ; ks
s_mul_i32 s10, s9, 128*8192
s_lshl_b32 s6, s4, 10
s_add_u32 s10, s10, s6
s_lshl_b32 s6, s8, 7
s_add_u32 s10, s10, s6
s_getreg_b32 s12, hwreg(HW_REG_XCC_ID, 0, 4)
v_mov_b32 v90, {CNT}
v_mov_b32 v91, 1
s_waitcnt lgkmcnt(0)""")
        self.qtile_issue('s[16:19]', 's[20:23]', 's10', 's9')
        self.tag_load(24)
        I("""v_and_b32 v81, 3, v1
v_add_u32 v81, 0x07060500, v81
s_lshl_b32 s13, s12, 8
v_mov_b32 v82, s13""")
        self.stamp(1)
        I('s_waitcnt vmcnt(0)')
        self.tag_ready()
        I('v_mov_b32 v80, s52')
        self.stamp(2)
        self.qtile_compute()
        I(f"""v_perm_b32 v40, v40, v80, v81
v_perm_b32 v41, v41, v80, v81
v_perm_b32 v82, v82, v80, v81
s_lshl_b32 s6, s4, 3
s_add_u32 s6, s6, s9
s_lshl_b32 s6, s6, 11         ; (g*8 + ks)*2048
s_lshl_b32 s7, s8, 8
s_add_u32 s6, s6, s7
v_lshlrev_b32 v4, 2, v1
v_add_u32 v5, s6, v4
v_add_u32 v6, {4*2048}, v5
s_lshl_b32 s6, s4, 5
s_add_u32 s6, s6, s5
s_lshl_b32 s6, s6, 7
s_add_u32 s6, s6, {WS_ID}
v_add_u32 v7, s6, v4
s_mov_b32 s14, {COPYB}
buffer_store_dword v40, v5, s[24:27], 0 offen
buffer_store_dword v41, v6, s[24:27], 0 offen
s_mov_b32 exec_hi, 0
buffer_store_dword v82, v7, s[24:27], 0 offen
s_mov_b32 exec_hi, -1
""")
        if not p['x_nob']:
            I(f"""buffer_store_dword v40, v5, s[24:27], s14 offen{SC}
buffer_store_dword v41, v6, s[24:27], s14 offen{SC}
s_mov_b32 exec_hi, 0
buffer_store_dword v82, v7, s[24:27], s14 offen{SC}
s_mov_b32 exec_hi, -1""")
        if p['qdelay']: I(f"s_sleep {p['qdelay']}")
        self.stamp(3)
        I(f"""s_lshl_b32 s6, s4, 1
s_lshr_b32 s7, s5, 4          ; b
s_add_u32 s6, s6, s7
s_lshl_b32 s6, s6, 13
v_lshlrev_b32 v4, 4, v1
v_add_u32 v4, s6, v4
v_and_b32 v5, 31, v1
v_lshlrev_b32 v5, 7, v5
s_lshl_b32 s6, s4, 12
s_add_u32 s6, s6, {WS_ID}
v_add_u32 v5, s6, v5
s_mov_b32 s15, {COPYB if p['force_remote'] else 0}
s_mov_b32 s11, 0""")
        L = self.lab('qg'); D = self.lab('qgd'); Lk = self.lab('qgk')
        I(f'{L}:')
        for ks in range(4):
            I(f's_add_u32 s7, s15, {ks*2048}')
            for i in range(2):
                r = 8 + 8*ks + 4*i
                I(f'buffer_load_dwordx4 v[{r}:{r+3}], v4, s[24:27], s7 offen offset:{i*1024}{SC}')
        I(f'buffer_load_dwordx4 v[40:43], v5, s[24:27], s15 offen{SC}')
        I('s_add_u32 s48, s48, 1\ns_add_u32 s11, s11, 1\ns_waitcnt vmcnt(0)')
        for j in range(9):
            self.tag_acc(8 + 4*j, j == 0, 'v44', 'v45', 'v46', 'v47')
        self.poll_tail(L, D, 'v44', p['slq'])
        if not p['force_remote']:
            I(f"""s_cmp_lt_u32 s11, {p['na_polls']}
s_cbranch_scc1 {L}
s_xor_b32 s15, s15, {COPYB}""")
        I(f"""s_branch {L}
{D}:""")
        self.stamp(5)
        I(f"""v_bfe_u32 v40, v40, 8, 4
v_cmp_ne_u32 vcc, s12, v40
s_cmp_eq_u64 vcc, 0
s_cselect_b32 s6, {0 if p['force_remote'] else 1}, 0
v_mov_b32 v44, s6
s_mov_b64 exec, 1
ds_write_b32 v90, v44 offset:{C_M}
s_mov_b64 exec, -1""")
        for e in range(8):
            I(f'v_add_f32 v{8+e}, v{8+e}, v{16+e}')
            I(f'v_add_f32 v{24+e}, v{24+e}, v{32+e}')
        for e in range(8):
            I(f'v_add_f32 v{8+e}, v{8+e}, v{24+e}')
        I(f"""v_cvt_pk_bf16_f32 v40, v8, v9
v_cvt_pk_bf16_f32 v41, v10, v11
v_cvt_pk_bf16_f32 v42, v12, v13
v_cvt_pk_bf16_f32 v43, v14, v15
v_lshlrev_b32 v4, 3, v1
v_add_u32 v4, {Q_OFF}, v4
ds_write_b64 v4, v[40:41]
ds_write_b64 v4, v[42:43] offset:512""")
        self.signal('v90', 'v91', C_Q)
        I('s_waitcnt lgkmcnt(0)')
        self.stamp(6)
        self.stamp_dump('s[24:27]')
        I('s_endpgm')

    def role_j1(self):
        I = self.I; p = self.p
        I('L_J1:')
        I('s_load_dwordx4 s[8:11], s[0:1], 48')
        self.srd(20, 0, 2048)
        self.srd(24, 96, WS_SIZE)
        self.srd(28, 72, 1024)
        I('s_barrier')
        if p['x_stream']: I('s_endpgm')
        self.lane_setup()
        I(f"""s_mul_i32 s12, s5, 9363
s_lshr_b32 s12, s12, 16
s_mul_i32 s13, s12, 7
s_sub_u32 s13, s5, s13        ; cf
s_and_b32 s14, s12, 1         ; mat
s_lshr_b32 s15, s12, 1        ; ks
v_mov_b32 v90, {CNT}
v_mov_b32 v91, 1
s_waitcnt lgkmcnt(0)
s_cmp_eq_u32 s14, 0
s_cselect_b32 s16, s8, s10
s_cselect_b32 s17, s9, s11
s_mov_b32 s18, {512*1792*2}
s_mov_b32 s19, 0x20000
s_mul_i32 s8, s15, 256*3584
s_mul_i32 s6, s4, 448
s_add_u32 s8, s8, s6
s_lshl_b32 s6, s13, 6
s_add_u32 s8, s8, s6""")
        Lskip = self.lab('nof1'); Lj = self.lab('f1j')
        I(f"""s_cmp_ge_u32 s5, 28
s_cbranch_scc1 {Lskip}""")
        self.ftile_issue('s[16:19]', 's[20:23]', 's8', 's15')
        I(f'{Lskip}:')
        I("""v_lshlrev_b32 v80, 4, v1
buffer_load_dwordx4 v[84:87], v80, s[20:23], 0 offen
buffer_load_dwordx4 v[88:91], v80, s[20:23], 0 offen offset:1024
buffer_load_dwordx4 v[92:95], v80, s[28:31], 0 offen""")
        self.tag_load(24)
        I("""v_and_b32 v81, 3, v1
v_add_u32 v81, 0x07060500, v81""")
        self.stamp(1)
        I('s_waitcnt vmcnt(0)')
        self.tag_ready()
        I('v_mov_b32 v80, s52')
        self.stamp(2)
        I(f"""s_cmp_ge_u32 s5, 28
s_cbranch_scc1 {Lj}""")
        self.ftile_compute()
        I(f"""v_perm_b32 v40, v40, v80, v81
s_lshl_b32 s6, s4, 2
s_add_u32 s6, s6, s12
s_lshl_b32 s6, s4, 2
s_lshl_b32 s7, s14, 1
s_add_u32 s6, s6, s7
s_add_u32 s6, s6, s15
s_lshl_b32 s6, s6, 11         ; *[b 2][256] f32
s_lshl_b32 s7, s13, 7
s_add_u32 s6, s6, s7
s_add_u32 s6, s6, {WS_F}
v_lshrrev_b32 v4, 5, v1
v_lshlrev_b32 v4, 10, v4
v_and_b32 v5, 31, v1
v_lshlrev_b32 v5, 2, v5
v_add_u32 v4, v4, v5
v_add_u32 v4, s6, v4
s_mov_b32 s7, {COPYB}
buffer_store_dword v40, v4, s[24:27], 0 offen""")
        if not p['x_nob']: I(f'buffer_store_dword v40, v4, s[24:27], s7 offen{SC}')
        if p['qdelay']: I(f"s_sleep {p['qdelay']}")
        I(f'{Lj}:')
        self.stamp(3)
        I('v_mov_b32 v8, 0\nv_mov_b32 v9, 0')
        for e in range(4):
            I(f"""v_lshlrev_b32 v10, 16, v{92+e}
v_and_b32 v11, 0xffff0000, v{92+e}
v_lshlrev_b32 v12, 16, v{84+e}
v_and_b32 v13, 0xffff0000, v{84+e}
v_lshlrev_b32 v14, 16, v{88+e}
v_and_b32 v15, 0xffff0000, v{88+e}
v_fmac_f32 v8, v10, v12
v_fmac_f32 v9, v10, v14
v_fmac_f32 v8, v11, v13
v_fmac_f32 v9, v11, v15""")
        for rr in (8, 4, 2, 1):
            I(f'v_add_f32_dpp v8, v8, v8 row_ror:{rr} row_mask:0xf bank_mask:0xf')
            I(f'v_add_f32_dpp v9, v9, v9 row_ror:{rr} row_mask:0xf bank_mask:0xf')
        for sw in ('v_permlane16_swap_b32', 'v_permlane32_swap_b32'):
            I(f"""v_mov_b32 v10, v8
v_mov_b32 v11, v9
{sw} v8, v10
{sw} v9, v11
v_add_f32 v8, v8, v10
v_add_f32 v9, v9, v11""")
        I(f"""v_mul_f32 v8, {fhex(-math.log2(math.e))}, v8
v_mul_f32 v9, {fhex(-math.log2(math.e))}, v9
v_exp_f32 v8, v8
v_exp_f32 v9, v9
v_add_f32 v8, 1.0, v8
v_add_f32 v9, 1.0, v9
v_rcp_f32 v8, v8
v_rcp_f32 v9, v9
v_mov_b32 v10, {GATE}
s_mov_b64 exec, 1
ds_write_b64 v10, v[8:9]
s_mov_b64 exec, -1
s_mov_b32 s40, 0
s_mov_b32 s41, -1
v_cndmask_b32 v16, v8, v9, s[40:41]
v_sub_f32 v16, 1.0, v16""")
        I('v_mov_b32 v90, %d\nv_mov_b32 v91, 1' % CNT)
        self.signal('v90', 'v91', C_H)
        I(f"""s_lshl_b32 s6, s4, 13         ; g*[mat][ks][b][256]*4
s_lshr_b32 s7, s5, 2
s_mul_i32 s7, s7, 112
s_add_u32 s6, s6, s7
s_add_u32 s6, s6, {WS_F}
v_and_b32 v4, 31, v1
v_min_u32 v5, 27, v4
v_and_b32 v17, 3, v5
v_lshlrev_b32 v17, 3, v17
v_lshrrev_b32 v17, v17, v80
v_lshlrev_b32 v5, 2, v5
v_lshrrev_b32 v6, 5, v1
v_lshlrev_b32 v6, 10, v6
v_add_u32 v5, v5, v6
v_add_u32 v5, s6, v5
s_mov_b32 s15, {COPYB if p['force_remote'] else 0}
s_mov_b32 s11, 0""")
        L = self.lab('hg'); D = self.lab('hgd')
        I(f'{L}:')
        for m in range(4):
            I(f's_add_u32 s7, s15, {m*2048}')
            I(f'buffer_load_dword v{24+m}, v5, s[24:27], s7 offen{SC}')
        I('s_add_u32 s48, s48, 1\ns_add_u32 s11, s11, 1\ns_waitcnt vmcnt(0)')
        I('v_xor_b32 v18, v24, v17')
        for j in range(1, 4):
            I(f'v_xor_b32 v19, v{24+j}, v17\nv_or_b32 v18, v18, v19')
        I('v_and_b32 v18, 0xff, v18')
        self.poll_tail(L, D, 'v18', p['slf'])
        if not p['force_remote']:
            I(f"""s_cmp_lt_u32 s11, {p['na_polls']}
s_cbranch_scc1 {L}
s_xor_b32 s15, s15, {COPYB}""")
        I(f"""s_branch {L}
{D}:""")
        self.stamp(5)
        I(f"""v_add_f32 v24, v24, v25
v_add_f32 v28, v26, v27
v_mul_f32 v25, {fhex(-math.log2(math.e))}, v24
v_exp_f32 v25, v25
v_add_f32 v25, 1.0, v25
v_rcp_f32 v25, v25
v_mul_f32 v24, v24, v25
v_mul_f32 v24, v24, v28
v_mul_f32 v24, v24, v16
v_cmp_gt_u32 vcc, 28, v4
v_cndmask_b32 v24, 0, v24, vcc
v_cvt_pk_bf16_f32 v24, v24, v24
v_bfe_u32 v6, v4, 2, 2
v_lshlrev_b32 v6, 4, v6
v_lshrrev_b32 v7, 4, v4
v_lshlrev_b32 v7, 3, v7
v_add_u32 v6, v6, v7
v_and_b32 v7, 3, v4
v_lshlrev_b32 v7, 1, v7
v_add_u32 v6, v6, v7
v_lshrrev_b32 v7, 5, v1
v_lshlrev_b32 v7, 6, v7
v_add_u32 v6, v6, v7
v_add_u32 v6, {A2}, v6
ds_write_b16 v6, v24
s_waitcnt lgkmcnt(0)""")
        self.stamp(6)
        self.stamp_dump('s[24:27]')
        I('s_endpgm')

    def role_loader(self):
        I = self.I; p = self.p
        ntv = ' nt' if p['nt_v'] else ''
        ntw = ' nt' if p['nt_w'] else ''
        I('L_LD:')
        I(f"""s_sub_u32 s8, s3, {W_L0}           ; loader j
v_mov_b32 v90, {CNT}
v_mov_b32 v91, 1
s_cmp_lg_u32 s8, 0
s_cbranch_scc1 L_LD_noinit
v_mov_b32 v8, 0
v_mov_b32 v9, 0
v_mov_b32 v10, 0
v_mov_b32 v11, 0
ds_write_b128 v90, v[8:11]
ds_write_b128 v90, v[8:11] offset:16
s_waitcnt lgkmcnt(0)
L_LD_noinit:
s_barrier""")
        self.srd(16, 16, 0x2000000)
        self.srd(20, 32, 0x400000)
        self.srd(24, 64, 1792*512*2)
        self.srd(28, 96, WS_SIZE)
        self.lane_setup()
        if p['pf']:
            I(f"""s_cmp_lg_u32 s8, 3
s_cbranch_scc1 L_LD_nopf
s_getpc_b64 s[36:37]
L_PC:
s_add_u32 s36, s36, {KNAME}-L_PC
s_addc_u32 s37, s37, -1
v_lshlrev_b32 v4, 4, v1
s_mov_b32 s6, L_codeend-{KNAME}-16""")
            for j in range(p.get('pfn', 14)):
                I(f"""v_min_u32 v5, s6, v4
global_load_dwordx4 v[12:15], v5, s[36:37]
v_add_u32 v4, 1024, v4""")
            I('L_LD_nopf:')
        I('s_waitcnt lgkmcnt(0)')
        TLBMARK = True
        I(f"""s_and_b32 s6, s8, 1
s_lshl_b32 s6, s6, 2
v_add_u32 v5, s6, v2          ; (4*(j&1) + rho)
v_lshlrev_b32 v5, 1, v5
v_xor_b32 v5, v5, v3          ; chunk
v_lshlrev_b32 v5, 4, v5
v_lshlrev_b32 v6, 8, v2
v_add_u32 v10, v5, v6         ; V voffset
v_lshlrev_b32 v6, 17, v2
v_add_u32 v11, v5, v6
v_lshlrev_b32 v6, 10, v2
v_add_u32 v16, v5, v6
s_lshr_b32 s6, s5, 4          ; b
s_lshl_b32 s6, s6, 3
s_add_u32 s6, s6, s4          ; bh
s_lshl_b32 s10, s6, 21
s_and_b32 s6, s5, 15          ; t
s_lshl_b32 s6, s6, 17
s_add_u32 s10, s10, s6
s_and_b32 s6, s8, 1
s_lshl_b32 s6, s6, 10
s_add_u32 s10, s10, s6        ; V base + (j & 1) * 1024
s_lshr_b32 s11, s5, 2         ; w'
s_and_b32 s12, s5, 3          ; cg
s_lshl_b32 s13, s4, 9
s_lshl_b32 s6, s11, 4
s_add_u32 s13, s13, s6
s_add_u32 s13, s13, s8
s_lshl_b32 s13, s13, 10
s_lshl_b32 s6, s12, 8
s_add_u32 s13, s13, s6
s_lshl_b32 s14, s4, 3
s_add_u32 s14, s14, s11       ; rg
s_mul_i32 s14, s14, 28
s_lshl_b32 s6, s8, 2
s_add_u32 s15, s14, s6
s_add_u32 s6, s8, 4
s_min_u32 s6, s6, 6
s_lshl_b32 s6, s6, 2
s_add_u32 s14, s14, s6
s_lshl_b32 s15, s15, 10
s_lshl_b32 s14, s14, 10
s_lshl_b32 s6, s12, 8
s_add_u32 s15, s15, s6
s_add_u32 s14, s14, s6
s_lshl_b32 s9, s8, 10         ; j*1024""")
        if p['tlb']:
            Lt = self.lab('tlb')
            I(f"""s_cmp_lg_u32 s8, 2
s_cbranch_scc1 {Lt}
v_mov_b32 v20, 0
s_mov_b64 exec, 1
buffer_load_dword v21, v20, s[16:19], s10 offen
buffer_load_dword v22, v20, s[20:23], s13 offen
buffer_load_dword v23, v20, s[24:27], s15 offen
s_mov_b32 s6, {WS_T1}
buffer_load_dword v24, v20, s[28:31], s6 offen
s_mov_b32 s6, {WS_T3}
buffer_load_dword v25, v20, s[28:31], s6 offen
s_mov_b32 s6, {WS_ST}
buffer_load_dword v26, v20, s[28:31], s6 offen
s_mov_b64 exec, -1
{Lt}:""")
        self.stamp(1)
        self.lds_wait('v90', 'v7', C_K, p['kthr'], sleep=2)
        I('s_waitcnt vmcnt(0)')
        self.stamp(2)
        loads = []
        I(f"""s_mul_i32 s61, s5, {p['rkb']}
s_mul_i32 s6, s4, {p['rkc']}
s_add_u32 s61, s61, s6
s_lshr_b32 s6, s8, 1
s_add_u32 s61, s61, s6""")
        for q in range(32):
            cw = q >> 2
            loads.append([f's_add_u32 m0, s9, {V_OFF + q*4096}',
                          f's_add_u32 s6, s61, {cw*p["rka"] + 2*(q & 3)}',
                          f's_and_b32 s6, s6, 7',
                          f's_lshl_b32 s6, s6, 11',
                          f's_add_u32 s6, s6, s10',
                          f's_add_u32 s6, s6, {cw*16384}',
                          f'buffer_load_dwordx4 v10, s[16:19], s6 offen{ntv} lds'])
        for q in range(4):
            loads.append([f's_add_u32 m0, s9, {WO_OFF + q*4096}',
                          f's_add_u32 s6, s13, {q*4096}',
                          f'buffer_load_dwordx4 v11, s[20:23], s6 offen{ntw} lds'])
        loads.append([f's_add_u32 m0, s9, {WD_OFF}', 's_nop 0', f'buffer_load_dwordx4 v16, s[24:27], s15 offen{ntw} lds'])
        loads.append([f's_add_u32 m0, s9, {WD_OFF + 4096}', 's_nop 0', f'buffer_load_dwordx4 v16, s[24:27], s14 offen{ntw} lds'])
        vl, wl = loads[:32], loads[32:]
        wp, ws_ = p['wpos'], p['wsplit']
        loads = vl[:wp] + wl[:ws_] + vl[wp:] + wl[ws_:]
        def vpos(q): return q if q < wp else q + ws_
        n = len(loads)
        nA = 2 * p['na']
        marks = {vpos(nA - 1): 'A', vpos(31): 'V'}
        def mark(m):
            if m == 'A': self.signal('v90', 'v91', C_A)
            elif not p['x_stream']: I('s_barrier')
            self.stamp(3 if m == 'A' else 4)
        def depth(i): return p['dv2'] if i >= n - p['dvn'] else p['dv']
        done = -1
        issued = 0
        pend = sorted(marks)
        while issued < n:
            D = depth(issued)
            need_done = issued - D
            if need_done > done:
                I(f's_waitcnt vmcnt({issued - 1 - need_done})')
                done = need_done
            for l in loads[issued]: I(l)
            issued += 1
            while pend and pend[0] <= done:
                mark(marks[pend.pop(0)])
        while done < n - 1:
            done += 1
            if pend and pend[0] == done or done == n - 1:
                I(f's_waitcnt vmcnt({n - 1 - done})')
            while pend and pend[0] <= done:
                mark(marks[pend.pop(0)])
        self.stamp(5)
        if not p['x_stream']: I('s_barrier')
        self.stamp_dump('s[28:31]')
        I('s_endpgm')

    def role_compute(self):
        I = self.I; p = self.p
        ntk = ' nt' if p['nt_k'] else ''
        cexp = math.log2(math.e) / math.sqrt(128.0)
        I('L_CW:')
        self.srd(16, 8, 0x2000000)
        self.srd(20, 96, WS_SIZE)
        self.srd(24, 80, 2048)
        if p['x_start']: I('s_memrealtime s[90:91]')
        I('s_barrier')
        if p['x_start']: I('s_memrealtime s[92:93]')
        self.lane_setup()
        I(f"""s_sub_u32 s8, s3, {W_C0}           ; cw
s_lshr_b32 s6, s5, 4          ; b
s_lshl_b32 s6, s6, 3
s_add_u32 s6, s6, s4
s_lshl_b32 s10, s6, 21
s_and_b32 s6, s5, 15
s_lshl_b32 s6, s6, 17
s_add_u32 s10, s10, s6
s_lshl_b32 s6, s8, 14
s_add_u32 s10, s10, s6
v_and_b32 v4, 7, v1
v_lshlrev_b32 v4, 8, v4
v_bfe_u32 v5, v1, 3, 1
v_lshlrev_b32 v5, 6, v5
v_add_u32 v4, v4, v5
v_lshlrev_b32 v5, 4, v2
v_add_u32 v4, v4, v5          ; K voffset
s_mul_i32 s61, s8, {p['rka']}
s_mul_i32 s6, s5, {p['rkb']}
s_add_u32 s61, s61, s6
s_mul_i32 s6, s4, {p['rkc']}
s_add_u32 s61, s61, s6
v_mov_b32 v62, {CNT}
v_mov_b32 v63, 1
s_waitcnt lgkmcnt(0)""")
        D = p['dk']
        def kload(i):
            o, hx = divmod(i, 2)
            if hx == 0:
                I(f's_add_u32 s11, s61, {o}\ns_and_b32 s11, s11, 7\ns_lshl_b32 s11, s11, 11\ns_add_u32 s11, s11, s10')
            I(f'buffer_load_dwordx4 v[{64+4*i}:{67+4*i}], v4, s[16:19], s11 offen offset:{hx*128}{ntk}')
        if p['x_start']: I('s_memrealtime s[94:95]')
        for i in range(D): kload(i)
        self.tag_load(20)
        self.stamp(1)
        vC, vOne = 'v62', 'v63'
        for i in range(D, 16):
            I(f's_waitcnt vmcnt({D-1})')
            kload(i)
            if i == 15 - p['ksig']:
                self.signal(vC, vOne, C_K)
        self.stamp(2)
        if p['x_stream']:
            I('s_waitcnt vmcnt(0)')
            self.stamp(3)
            self.stamp_dump('s[20:23]', 16)
            I('s_endpgm')
        self.tag_ready()
        I(f"""v_and_b32 v5, 3, v3           ; head = n&3
v_lshlrev_b32 v6, 8, v5
v_lshlrev_b32 v7, 4, v2
v_add_u32 v60, v6, v7
v_bfe_u32 v6, v3, 3, 1
v_lshlrev_b32 v6, 6, v6
v_add_u32 v60, v60, v6
v_add_u32 v60, {Q_OFF}, v60
v_lshlrev_b32 v61, 5, v5
v_add_u32 v61, {MX}, v61
s_lshl_b32 s6, s8, 2
v_add_u32 v59, s6, v61""")
        self.lds_wait(vC, 'v5', C_Q, 1, sleep=2)
        self.stamp(3)
        for hx in range(2):
            I(f'ds_read_b128 v[{48+4*hx}:{51+4*hx}], v60 offset:{hx*128}')
        I(f'ds_read_b32 v5, {vC} offset:{C_M}')
        I('s_waitcnt lgkmcnt(0)\nv_readfirstlane_b32 s51, v5')
        for o in range(8):
            I(f's_waitcnt vmcnt({14 - 2*o})')
            for hx in range(2):
                c = '0' if hx == 0 else f'v[{16+4*o}:{19+4*o}]'
                r = 64 + 8*o + 4*hx
                I(f'v_mfma_f32_16x16x32_bf16 v[{16+4*o}:{19+4*o}], v[{r}:{r+3}], v[{48+4*hx}:{51+4*hx}], {c}')
        for j in range(4):
            for r in range(4): I(f'v_permlane32_swap_b32 v{16+8*j+r}, v{20+8*j+r}')
            for r in range(4): I(f'v_add_f32_dpp v{16+4*j+r}, v{20+8*j+r}, v{16+8*j+r} row_ror:8 row_mask:0xf bank_mask:0xf')
        I('v_max3_f32 v5, v16, v17, v18')
        for e in range(19, 31, 2):
            I(f'v_max3_f32 v5, v5, v{e}, v{e+1}')
        I('v_max_f32 v5, v5, v31')
        for sw in ('v_permlane16_swap_b32', 'v_permlane32_swap_b32'):
            I(f"""v_mov_b32 v6, v5
{sw} v5, v6
v_max_f32 v5, v5, v6""")
        I("""s_mov_b64 exec, 15
ds_write_b32 v59, v5
s_mov_b64 exec, -1""")
        self.signal(vC, vOne, C_1)
        self.lds_wait(vC, 'v6', C_1, 8, sleep=0)
        I(f"""ds_read_b128 v[48:51], v61
ds_read_b128 v[52:55], v61 offset:16
s_mov_b32 s50, {fhex(cexp)}
s_waitcnt lgkmcnt(0)
v_max3_f32 v48, v48, v49, v50
v_max3_f32 v51, v51, v52, v53
v_max3_f32 v48, v48, v54, v55
v_max_f32 v48, v48, v51
v_mul_f32 v58, s50, v48
v_and_b32 v6, 3, v3
v_add_u32 v6, 0x07060500, v6
v_mov_b32 v7, s52
v_perm_b32 v58, v58, v7, v6""")
        for e in range(16):
            I(f'v_fma_f32 v{16+e}, v{16+e}, s50, -v58')
        for e in range(16):
            I(f'v_exp_f32 v{16+e}, v{16+e}')
        for q in range(8):
            I(f'v_cvt_pk_bf16_f32 v{48+q}, v{16+2*q}, v{17+2*q}')
        I(f"""s_lshl_b32 s6, s8, 9
s_add_u32 s6, s6, {P_OFF}
v_lshlrev_b32 v6, 6, v2
v_lshlrev_b32 v7, 4, v3
v_add_u32 v6, v6, v7
v_add_u32 v6, s6, v6
s_mov_b32 s40, 0x000f000f
s_mov_b32 s41, 0x000f000f
s_mov_b64 exec, s[40:41]
ds_write_b128 v6, v[48:51]
ds_write_b128 v6, v[52:55] offset:256
s_mov_b64 exec, -1""")
        for e in range(8): I(f'v_add_f32 v{16+e}, v{16+e}, v{24+e}')
        for e in range(4): I(f'v_add_f32 v{16+e}, v{16+e}, v{20+e}')
        I("""v_add_f32 v16, v16, v17
v_add_f32 v18, v18, v19
v_add_f32 v5, v16, v18""")
        for sw in ('v_permlane16_swap_b32', 'v_permlane32_swap_b32'):
            I(f"""v_mov_b32 v6, v5
{sw} v5, v6
v_add_f32 v5, v5, v6""")
        I("""s_mov_b64 exec, 15
ds_write_b32 v59, v5 offset:128
s_mov_b64 exec, -1""")
        self.signal(vC, vOne, C_2)
        self.lds_wait(vC, 'v6', C_2, 8, sleep=0)
        self.stamp(4)
        I(f"""s_lshl_b32 s12, s4, 5
s_add_u32 s12, s12, s5        ; slot
v_mov_b32 v47, s52""")
        Ls = self.lab('nostat')
        I(f"""s_cmp_lg_u32 s8, 0
s_cbranch_scc1 {Ls}
ds_read_b128 v[48:51], v61 offset:128
ds_read_b128 v[52:55], v61 offset:144
v_and_b32 v6, 3, v1
v_add_u32 v6, 0x07060500, v6
s_waitcnt lgkmcnt(0)
v_add_f32 v48, v48, v49
v_add_f32 v50, v50, v51
v_add_f32 v52, v52, v53
v_add_f32 v54, v54, v55
v_add_f32 v48, v48, v50
v_add_f32 v52, v52, v54
v_add_f32 v48, v48, v52
s_mov_b32 s40, 0xf0f0f0f0
s_mov_b32 s41, 0
v_cndmask_b32 v48, v58, v48, s[40:41]
v_perm_b32 v48, v48, v47, v6
s_lshl_b32 s6, s12, 7
s_add_u32 s6, s6, {WS_ST}
v_lshlrev_b32 v6, 2, v1
s_mov_b32 exec_hi, 0""")
        self.mode_store('buffer_store_dword v48, v6, s[20:23], s6 offen', 's51')
        I('s_mov_b32 exec_hi, -1')
        I(f'{Ls}:')
        I(f"""v_and_b32 v5, 3, v3
v_lshlrev_b32 v5, 4, v5
v_lshlrev_b32 v6, 6, v2
v_add_u32 v5, v5, v6
v_add_u32 v5, {P_OFF}, v5""")
        for st in range(16):
            if st == 8: I('s_waitcnt lgkmcnt(0)')
            I(f'ds_read_b128 v[{64+4*st}:{67+4*st}], v5 offset:{st*256}')
        I(f"""v_lshrrev_b32 v5, 2, v3       ; r
v_and_b32 v6, 3, v3           ; c4
v_lshlrev_b32 v7, 2, v2
v_add_u32 v7, v7, v5          ; 4s + r
v_and_b32 v48, 7, v7          ; (4(s&1) + r)
v_xor_b32 v48, s8, v48
v_lshlrev_b32 v48, 5, v48
v_lshlrev_b32 v7, 8, v7
v_add_u32 v7, v7, v48
v_lshlrev_b32 v6, 3, v6
v_add_u32 v56, v7, v6
v_add_u32 v57, 0x10000, v56
v_add_u32 v59, 0x20000, v56""")
        I(f"""s_lshr_b32 s13, s5, 2         ; w'
s_and_b32 s14, s5, 3          ; cg
s_and_b32 s15, s8, 1
s_lshl_b32 s6, s15, 4
v_add_u32 v5, s6, v2          ; b*16 + tq
v_lshlrev_b32 v12, 4, v5
v_add_u32 v12, {WL}, v12
s_lshl_b32 s6, s4, 5
v_add_u32 v61, s6, v5         ; slot' (i = 0)
v_lshlrev_b32 v61, 11, v61
s_lshl_b32 s6, s13, 4
v_add_u32 v6, s6, v3
v_lshlrev_b32 v6, 4, v6
v_add_u32 v61, v61, v6
v_add_u32 v61, {WS_T1}, v61
v_lshrrev_b32 v6, 3, v3
v_lshlrev_b32 v6, 6, v6
v_bfe_u32 v7, v3, 2, 1
v_lshlrev_b32 v7, 3, v7       ; half*8
v_add_u32 v6, v6, v7
v_and_b32 v7, 3, v3
v_lshlrev_b32 v7, 4, v7       ; sA*16
v_add_u32 v6, v6, v7
v_lshlrev_b32 v7, 1, v2
v_add_u32 v6, v6, v7          ; + hh*2
s_lshl_b32 s6, s15, 7
s_add_u32 s6, s6, {A1}
v_add_u32 v60, s6, v6
s_lshl_b32 s6, s12, 11
s_lshl_b32 s7, s8, 8
s_add_u32 s6, s6, s7
s_add_u32 s6, s6, {WS_T1}
v_lshlrev_b32 v58, 4, v3
v_add_u32 v58, s6, v58
v_and_b32 v6, 1, v3
v_lshlrev_b32 v44, 1, v6
v_add_u32 v50, 0x07060500, v44
v_add_u32 v51, 1, v50
v_mov_b32 v49, s52               ; T
v_lshlrev_b32 v7, 6, v6
v_lshlrev_b32 v6, 7, v6
v_lshlrev_b32 v48, 4, v2
v_add_u32 v6, v6, v48
v_add_u32 v62, {A1}, v6
v_add_u32 v7, v7, v48
v_add_u32 v48, {A2}, v7
s_lshl_b32 s6, s14, 3
s_add_u32 s6, s6, s8
s_lshl_b32 s6, s6, 6
s_lshl_b32 s7, s4, 3
s_add_u32 s7, s7, s13
s_add_u32 s6, s6, s7
s_lshl_b32 s6, s6, 7
s_add_u32 s6, s6, {WS_T3}
v_lshlrev_b32 v63, 3, v3
v_add_u32 v63, s6, v63
v_mov_b32 v13, {CNT}
s_and_b32 s13, s2, 3          ; cg3
s_lshr_b32 s14, s2, 2         ; o8
s_lshl_b32 s6, s13, 3
s_add_u32 s6, s6, s14
s_lshl_b32 s6, s6, 13
s_lshl_b32 s7, s8, 5
s_add_u32 s6, s6, s7
s_add_u32 s6, s6, {WS_T3}
v_lshrrev_b32 v14, 1, v1
v_lshlrev_b32 v14, 7, v14
v_and_b32 v6, 1, v1
v_lshlrev_b32 v7, 4, v6
v_add_u32 v14, v14, v7
v_add_u32 v14, s6, v14
s_lshl_b32 s6, s13, 8
s_lshl_b32 s7, s14, 5
s_add_u32 s6, s6, s7
s_lshl_b32 s7, s8, 3
s_add_u32 s6, s6, s7
v_and_b32 v15, 1, v2
v_lshlrev_b32 v15, 10, v15
v_lshlrev_b32 v6, 2, v6
v_add_u32 v15, v15, v6
v_lshrrev_b32 v6, 1, v2
v_lshlrev_b32 v6, 1, v6
v_add_u32 v15, v15, v6
v_add_u32 v15, s6, v15
s_waitcnt lgkmcnt(0)""")
        Lsa = self.lab('sa')
        I(f"""s_mov_b32 s60, 0
s_cmp_lg_u32 s8, {p['sw']}
s_cbranch_scc1 {Lsa}""")
        self.lds_wait('v13', 'v5', C_H, 1, sleep=1)
        I(f"""v_mov_b32 v5, {GATE}
ds_read_b64 v[6:7], v5
s_mov_b32 s40, 0
s_mov_b32 s41, -1
v_lshrrev_b32 v5, 5, v1
v_lshlrev_b32 v5, 4, v5
v_add_u32 v5, v5, v3          ; b'*16 + t'
v_lshlrev_b32 v60, 4, v5
v_add_u32 v60, {WL}, v60
s_lshl_b32 s6, s4, 5
v_add_u32 v5, s6, v5          ; slot'
v_lshlrev_b32 v5, 7, v5
v_add_u32 v61, {WS_ST}, v5
s_waitcnt lgkmcnt(0)
v_cndmask_b32 v12, v6, v7, s[40:41]   ; g_b (b = lane>>5)
{Lsa}:""")
        self.stamp(5)
        self.lds_wait('v13', 'v5', C_A, 4, sleep=1)
        self.stamp(6)
        def vread(st, r):
            base = 'v56' if st < 8 else 'v57'
            o = (st & 7) * 8192
            I(f'ds_read_b64_tr_b16 v[{r}:{r+1}], {base} offset:{o}')
            I(f'ds_read_b64_tr_b16 v[{r+2}:{r+3}], {base} offset:{o+4096}')
        def vmfma(st, r):
            c = '0' if st == 0 else 'v[8:11]'
            I(f'v_mfma_f32_16x16x32_bf16 v[8:11], v[{64+4*st}:{67+4*st}], v[{r}:{r+3}], {c}')
        na = p['na']
        batches = []
        st = 0
        while st < na:
            b = list(range(st, min(st + 4, na))); batches.append(b); st += len(b)
        sets = (16, 32)
        for k, b in enumerate(batches):
            if k == 0:
                for j, st in enumerate(b): vread(st, sets[0] + 4*j)
            I('s_waitcnt lgkmcnt(0)')
            if k + 1 < len(batches):
                for j, st in enumerate(batches[k+1]): vread(st, sets[(k+1) & 1] + 4*j)
            for j, st in enumerate(b): vmfma(st, sets[k & 1] + 4*j)
            if k == 0:
                Lq = self.lab('nsl')
                I(f"s_cmp_lg_u32 s8, {p['sw']}\ns_cbranch_scc1 {Lq}")
                self.stats_loads()
                I(f'{Lq}:')
        I('s_barrier')
        self.stamp(7)
        rest = list(range(na, 16))
        for j, st in enumerate(rest): vread(st, 16 + 4*j)
        for j, st in enumerate(rest):
            I(f's_waitcnt lgkmcnt({2*(len(rest)-1-j)})')
            vmfma(st, 16 + 4*j)
        for e in range(4): I(f'v_perm_b32 v{8+e}, v{8+e}, v49, s{53+e}')
        I('s_mov_b64 exec, 0xffff')
        self.mode_store('buffer_store_dwordx4 v[8:11], v58, s[20:23], 0 offen', 's51')
        I('s_mov_b64 exec, -1')
        I('ds_read_b128 v[52:55], v48')
        self.stamp(8)
        Lns = self.lab('nsw'); Lw = self.lab('sw'); Lr = self.lab('swr')
        I(f"""s_cmp_lg_u32 s8, {p['sw']}
s_cbranch_scc1 {Lns}
s_waitcnt vmcnt(1)""")
        self.stats_check()
        I(f"""v_cmp_ne_u32 vcc, 0, v5
s_cbranch_vccz {Lw}
{Lr}:""")
        self.stats_loads()
        I('s_add_u32 s48, s48, 1\ns_waitcnt vmcnt(0)')
        self.stats_check()
        self.poll_tail(Lr, Lw, 'v5', p['sls'])
        I(f"""s_branch {Lr}
{Lw}:""")
        for h in range(4): I(f'v_mov_b32 v{72+h}, v{64+h}')
        for rr in (8, 4, 2, 1):
            for h in range(4): I(f'v_max_f32_dpp v{72+h}, v{72+h}, v{72+h} row_ror:{rr} row_mask:0xf bank_mask:0xf')
        for h in range(4): I(f'v_sub_f32 v{64+h}, v{64+h}, v{72+h}')
        for h in range(4): I(f'v_exp_f32 v{64+h}, v{64+h}')
        for h in range(4): I(f'v_mul_f32 v{68+h}, v{68+h}, v{64+h}')
        for rr in (8, 4, 2, 1):
            for h in range(4): I(f'v_add_f32_dpp v{68+h}, v{68+h}, v{68+h} row_ror:{rr} row_mask:0xf bank_mask:0xf')
        for h in range(4): I(f'v_rcp_f32 v{68+h}, v{68+h}')
        for h in range(4): I(f'v_mul_f32 v{64+h}, v{64+h}, v12')
        for h in range(4): I(f'v_mul_f32 v{64+h}, v{64+h}, v{68+h}')
        I('ds_write_b128 v60, v[64:67]\nv_mov_b32 v5, 1')
        self.signal('v13', 'v5', C_W)
        I(f'{Lns}:')
        Lng = self.lab('nog')
        I(f"""s_cmp_gt_u32 s8, 1
s_cbranch_scc1 {Lng}""")
        I(f's_mov_b32 s6, {4*2048}\ns_mov_b32 s7, {8*2048}\ns_mov_b32 s9, {12*2048}')
        T2B = (64, 96, 112)
        NS2 = p['t2sets']
        def t2issue(k):
            for i, so in enumerate(('0', 's6', 's7', 's9')):
                r = T2B[k] + 4*i
                I(f'buffer_load_dwordx4 v[{r}:{r+3}], v61, s[20:23], {so} offen{SC}')
        t2issue(0)
        self.lds_wait('v13', 'v5', C_W, 1, sleep=0)
        for i in range(4): I(f'ds_read_b128 v[{80+4*i}:{83+4*i}], v12 offset:{i*64}')
        for k in range(1, NS2):
            if p['t2st']: I(f"s_sleep {p['t2st']}")
            t2issue(k)
        L = self.lab('t2'); Dn = self.lab('t2d')
        I(f'{L}:')
        hits = []
        for k in range(NS2):
            for i in range(4):
                I(f's_waitcnt vmcnt({4*(NS2-1) + 3-i})')
                self.tag_acc(T2B[k] + 4*i, i == 0)
            H = self.lab('t2h'); hits.append((H, T2B[k]))
            I(f"""v_cmp_ne_u32 vcc, 0, v16
s_cbranch_vccz {H}""")
            if p['sl2']: I(f"s_sleep {p['sl2']}")
            t2issue(k)
        I(f"""s_add_u32 s48, s48, 1
s_cmp_le_u32 s48, {self.glim}
s_cbranch_scc1 {L}""")
        for j, (H, r) in enumerate(hits):
            I(f'{H}:')
            I('s_waitcnt lgkmcnt(0)')
            for h in range(4): I(f'v_mul_f32 v{16+h}, v{r+h}, v{80+h}')
            for i in range(1, 4):
                for h in range(4): I(f'v_fmac_f32 v{16+h}, v{r+4*i+h}, v{80+4*i+h}')
            if j + 1 < len(hits): I(f's_branch {Dn}')
        I(f'{Dn}:')
        self.stamp(9)
        I("""v_permlane16_swap_b32 v16, v17
v_permlane16_swap_b32 v18, v19
v_add_f32 v16, v16, v17
v_add_f32 v18, v18, v19
v_permlane32_swap_b32 v16, v18
v_add_f32 v16, v16, v18
v_cvt_pk_bf16_f32 v16, v16, v16
ds_write_b16 v60, v16
s_waitcnt lgkmcnt(0)""")
        I(f"""{Lng}:
s_barrier""")
        self.stamp(10)
        I("""ds_read_b64_tr_b16 v[16:17], v59 offset:16384
ds_read_b64_tr_b16 v[18:19], v59 offset:20480
ds_read_b128 v[32:35], v62
ds_read_b64_tr_b16 v[20:21], v59
ds_read_b64_tr_b16 v[22:23], v59 offset:4096
ds_read_b128 v[36:39], v62 offset:64
ds_read_b64_tr_b16 v[24:25], v59 offset:8192
ds_read_b64_tr_b16 v[26:27], v59 offset:12288
s_waitcnt lgkmcnt(6)
v_mfma_f32_16x16x32_bf16 v[8:11], v[52:55], v[16:19], 0
s_waitcnt lgkmcnt(3)
v_mfma_f32_16x16x32_bf16 v[8:11], v[32:35], v[20:23], v[8:11]
s_waitcnt lgkmcnt(0)
v_mfma_f32_16x16x32_bf16 v[8:11], v[36:39], v[24:27], v[8:11]""")
        I(f"""v_perm_b32 v8, v8, v49, v50
v_perm_b32 v9, v9, v49, v51
s_mov_b64 exec, 0xffff
buffer_store_dwordx2 v[8:9], v63, s[20:23], 0 offen{(SC, ' sc0 sc1')[p['t3stf']]}
s_mov_b64 exec, -1""")
        self.stamp(11)
        Lend = 'L_CW_end'
        I(f"""s_cmp_ge_u32 s2, 32
s_cbranch_scc1 {Lend}
s_cmp_gt_u32 s8, 3
s_cbranch_scc1 {Lend}
s_mov_b32 s7, 4096""")
        NS = p['t3sets']
        L = self.lab('t3'); Dn = self.lab('t3d')
        def issue(k):
            r = 64 + 8*k
            fl = (SC, ' sc0 sc1', ' sc1 nt', ' sc0 sc1 nt')[p['t3ld']]
            I(f'buffer_load_dwordx4 v[{r}:{r+3}], v14, s[20:23], 0 offen{fl}')
            I(f'buffer_load_dwordx4 v[{r+4}:{r+7}], v14, s[20:23], s7 offen{fl}')
        if p['t3delay']: I(f"s_sleep {p['t3delay']}")
        self.stamp(13)
        if p['stamps']: I('s_mov_b32 s59, s48')
        for k in range(NS):
            issue(k)
            if k + 1 < NS and p['t3st']: I(f"s_sleep {p['t3st']}")
        I(f'{L}:')
        hits = []
        for k in range(NS):
            r = 64 + 8*k
            I(f's_waitcnt vmcnt({2*(NS-1)})')
            self.tag_acc(r, True)
            self.tag_acc(r + 4, False)
            H = self.lab('t3h'); hits.append((H, r))
            I(f"""v_cmp_ne_u32 vcc, 0, v16
s_cbranch_vccz {H}""")
            issue(k)
        I(f"""s_add_u32 s48, s48, 1
s_cmp_le_u32 s48, {self.glim}
s_cbranch_scc1 {L}""")
        for j, (H, r) in enumerate(hits):
            I(f'{H}:')
            for e in range(4): I(f'v_add_f32 v{20+e}, v{r+e}, v{r+4+e}')
            if j + 1 < len(hits): I(f's_branch {Dn}')
        I(f'{Dn}:')
        if p['stamps']:
            I('s_sub_u32 s92, s48, s59\ns_add_u32 s92, s92, 1')
            self.stamp(15)
        I("""v_permlane16_swap_b32 v20, v21
v_permlane16_swap_b32 v22, v23
v_add_f32 v20, v20, v21
v_add_f32 v22, v22, v23
v_permlane32_swap_b32 v20, v22
v_add_f32 v20, v20, v22""")
        for rr in (2, 4, 8):
            I(f'v_add_f32_dpp v20, v20, v20 row_ror:{rr} row_mask:0xf bank_mask:0xf')
        I(f"""v_cvt_pk_bf16_f32 v20, v20, v20
s_mov_b32 exec_lo, 0x00030003
s_mov_b32 exec_hi, 0x00030003
buffer_store_short v20, v15, s[24:27], 0 offen
s_mov_b64 exec, -1""")
        I(f"""s_cmp_lg_u32 s2, 0
s_cbranch_scc1 L_CW_noe
s_cmp_lg_u32 s8, 0
s_cbranch_scc1 L_CW_noe
v_mov_b32 v5, {WS_E}
s_mov_b64 exec, 1
buffer_store_dword v49, v5, s[20:23], 0 offen{SC}
s_mov_b64 exec, -1
L_CW_noe:""")
        self.stamp(12)
        I(f'{Lend}:')
        self.stamp_dump('s[20:23]', 16)
        I('s_endpgm')

    def build(self):
        I = self.I
        I('''s_cmp_ge_u32 s2, 256
s_cbranch_scc1 L_exit''')
        if self.p['stamps']:
            for i in range(16): I(f's_mov_b32 s{64+2*i}, 0')
            self.stamp(0)
        I(f'''v_lshrrev_b32 v1, 6, v0
s_and_b32 s4, s2, 7
s_lshr_b32 s5, s2, 3
s_mov_b32 s48, 0
v_readfirstlane_b32 s3, v1
s_cmp_ge_u32 s3, {W_L0}
s_cbranch_scc1 L_LD
s_cmp_ge_u32 s3, {W_C0}
s_cbranch_scc1 L_CW
s_cmp_eq_u32 s3, {W_J1}
s_cbranch_scc1 L_J1''')
        self.role_j0()
        self.role_j1()
        self.role_compute()
        self.role_loader()
        I('L_exit:\ns_endpgm\nL_codeend:')
        head = f'''; Fused decode step: GQA attention over the KV cache + SwiGLU FFN + sigmoid-gated mix.
; @launch grid=(256,1,1) block=(896,1,1) lds={LDS_BYTES}
.amdgcn_target "amdgcn-amd-amdhsa--gfx950"
.text
.globl {KNAME}
.p2align 8
.type {KNAME},@function
{KNAME}:
'''
        foot = f'''.section .rodata,"a"
.p2align 6
.amdhsa_kernel {KNAME}
  .amdhsa_next_free_vgpr 128
  .amdhsa_next_free_sgpr 102
  .amdhsa_accum_offset 128
  .amdhsa_group_segment_fixed_size 0
  .amdhsa_kernarg_size 104
  .amdhsa_user_sgpr_count 2
  .amdhsa_user_sgpr_kernarg_segment_ptr 1
  .amdhsa_system_sgpr_workgroup_id_x 1
.end_amdhsa_kernel
'''
        return head + self.a.text() + foot

def main():
    out = sys.argv[1]
    kw = {}
    for arg in sys.argv[2:]:
        k, v = arg.split('=')
        assert k in DEF or k in ('pfn',), k
        kw[k] = (v == 'True') if v in ('True', 'False') else int(v)
    open(out, 'w').write(G(**kw).build())

if __name__ == '__main__':
    main()
```

```python
import sys, math, struct
from emit import Asm

def fhex(x): return '0x%08x' % struct.unpack('<I', struct.pack('<f', x))[0]
KNAME = 'gated_mix__gqa_block_cached__swiglu_ffn__decode_kernel'

WS_Q  = 0x000000
WS_F  = 0x020000
WS_ID = 0x030000
COPYB = 0x040000
WS_ST = 0x080000
WS_E  = 0x088000
WS_T1 = 0x100000
WS_T3 = 0x180000
WS_DBG = 0x200000
WS_SIZE = 0x400000

V_OFF = 0
STG0 = 0
STG1 = 16384
WO_OFF = 131072
WD_OFF = 147456
P_OFF = 155648
Q_OFF = 159744
MISC = 160768
MX = MISC
LX = MISC + 128
A1 = MISC + 256
A2 = MISC + 512
GATE = MISC + 640
CNT = MISC + 704
WL = MISC + 1024
C_Q, C_H, C_K, C_1, C_2, C_A, C_M, C_W = 0, 4, 8, 12, 16, 20, 24, 28
LDS_BYTES = 163840

SPIN_LIMIT = 300000
SC = ' sc1'
W_J0, W_J1, W_C0, W_L0 = 0, 1, 2, 10

DEF = dict(nt_k=True, nt_v=True, nt_w=True, dk=4, dv=6, dv2=4, dvn=0, stamps=False, na=14, ksig=0, kthr=4,
           slq=2, slf=2, sls=2, sl2=0, sl3=0, pf=False, na_polls=10, force_remote=False, nopoll=False,
           t3sets=1, t3st=4, tlb=False, sw=2, t3delay=0, t3ld=0, t3stf=0, x_nob=False, qdelay=0,
           x_stream=False, rka=1, rkb=3, rkc=0, x_start=False, t2sets=1, t2st=3, wpos=32, wsplit=6, light=False, t3mask=True, t3wait=True, t2wait=False, t2mask=False, prio_ld=0, prio_j=0, sla=1, slk=2, rcb=0, rcc=0)

class G:
    def __init__(self, **kw):
        self.p = dict(DEF); self.p.update(kw)
        self.a = Asm()
        self.uid = 0
        self.glim = 0 if self.p['nopoll'] else SPIN_LIMIT
    def I(self, s): self.a.I(s)
    def lab(self, base):
        self.uid += 1
        return f'L_{base}_{self.uid}'
    def stamp(self, i):
        if self.p['stamps'] and (not self.p['light'] or i in (0, 12)):
            self.I(f's_memrealtime s[{64+2*i}:{65+2*i}]')
            self.I('s_waitcnt lgkmcnt(0)')
    def stamp_dump(self, srd, n=12):
        if not self.p['stamps']: return
        I = self.I
        I('s_mov_b64 exec, -1')
        I('s_lshl_b32 s6, s2, 4')
        I('s_add_u32 s6, s6, s3')
        I('s_lshl_b32 s6, s6, 6')
        I(f's_add_u32 s6, s6, {WS_DBG}')
        I('v_mov_b32 v1, s6')
        I('s_mov_b64 exec, 1')
        for j in range(0, n, 4):
            for t in range(4):
                I(f'v_mov_b32 v{4+t}, s{64+2*(j+t)}')
            I(f'buffer_store_dwordx4 v[4:7], v1, {srd}, 0 offen offset:{j*4}')
        I('s_mov_b64 exec, -1')
    def signal(self, vC, vOne, off):
        self.I(f'''s_mov_b64 exec, 1
ds_add_u32 {vC}, {vOne} offset:{off}
s_mov_b64 exec, -1''')
    def lds_wait(self, vC, vT, off, n, sleep=1):
        L = self.lab('lw'); D = self.lab('lwd')
        self.I(f'''{L}:
ds_read_b32 {vT}, {vC} offset:{off}
s_add_u32 s48, s48, 1
s_waitcnt lgkmcnt(0)
v_readfirstlane_b32 s49, {vT}
s_cmp_ge_u32 s49, {n}
s_cbranch_scc1 {D}
s_cmp_gt_u32 s48, {SPIN_LIMIT}
s_cbranch_scc1 {D}''')
        if sleep: self.I(f's_sleep {sleep}')
        self.I(f'''s_branch {L}
{D}:''')
    def tag_load(self, wsbase):
        self.I(f's_load_dword s52, s[{wsbase}:{wsbase+1}], {WS_E}')
        for i in range(4): self.I(f's_mov_b32 s{53+i}, 0x0706050{i}')
        self.I('s_mov_b32 s57, 0x0c0c0400\ns_mov_b32 s58, 0x04000c0c')
    def tag_ready(self):
        self.I('s_waitcnt lgkmcnt(0)\ns_add_u32 s52, s52, 1')
    def tag_acc(self, r, first, acc='v16', t1='v17', t2='v18', t3='v19'):
        self.I(f'v_perm_b32 {t2}, v{r+1}, v{r}, s57\nv_perm_b32 {t3}, v{r+3}, v{r+2}, s58\nv_or_b32 {t2}, {t2}, {t3}')
        if first: self.I(f'v_xor_b32 {acc}, s52, {t2}')
        else: self.I(f'v_xor_b32 {t1}, s52, {t2}\nv_or_b32 {acc}, {acc}, {t1}')
    def poll_tail(self, L, D, acc, sleep):
        self.I(f'''v_cmp_ne_u32 vcc, 0, {acc}
s_cbranch_vccz {D}
s_cmp_gt_u32 s48, {self.glim}
s_cbranch_scc1 {D}''')
        if sleep: self.I(f's_sleep {sleep}')
    def srd(self, base, karg_off, size):
        self.I(f's_load_dwordx2 s[{base}:{base+1}], s[0:1], {karg_off}')
        self.I(f's_mov_b32 s{base+2}, {size}')
        self.I(f's_mov_b32 s{base+3}, 0x20000')
    def stats_loads(self):
        self.I(f"""buffer_load_dwordx4 v[64:67], v61, s[20:23], 0 offen{SC}
buffer_load_dwordx4 v[68:71], v61, s[20:23], 0 offen offset:16{SC}""")
    def stats_check(self):
        self.tag_acc(64, True, 'v5', 'v6', 'v7', 'v4')
        self.tag_acc(68, False, 'v5', 'v6', 'v7', 'v4')
    def lane_setup(self):
        self.I('''v_and_b32 v1, 63, v0
v_lshrrev_b32 v2, 4, v1
v_and_b32 v3, 15, v1''')
    def mode_store(self, ins, smode):
        Lr = self.lab('ms'); Le = self.lab('mse')
        self.I(f'''s_cmp_eq_u32 {smode}, 0
s_cbranch_scc1 {Lr}
{ins}
s_branch {Le}
{Lr}:
{ins}{SC}
{Le}:''')

    def qtile_issue(self, srdW, srdX, sBase, sKs):
        I = self.I; pitch = 8192; stg = STG0
        ntf = ' nt' if self.p['nt_w'] else ''
        I(f'''v_lshrrev_b32 v4, 5, v1
v_lshlrev_b32 v4, 3, v4
v_bfe_u32 v5, v1, 3, 2
v_add_u32 v4, v4, v5
v_mul_u32_u24 v4, {pitch}, v4
v_and_b32 v5, 7, v1
v_bfe_u32 v6, v1, 4, 2
v_lshlrev_b32 v6, 1, v6
v_xor_b32 v5, v5, v6
v_lshlrev_b32 v5, 4, v5
v_add_u32 v4, v4, v5''')
        for i in range(16):
            rowi = 32*(i >> 2) + 16*(i & 1) + 4*((i >> 1) & 1)
            I(f's_mov_b32 m0, {stg + i*1024}')
            I(f's_add_u32 s7, {sBase}, {rowi*pitch}')
            I(f'buffer_load_dwordx4 v4, {srdW}, s7 offen{ntf} lds')
        I(f'''v_and_b32 v5, 1, v3
v_lshlrev_b32 v5, 10, v5
v_lshlrev_b32 v6, 4, v2
v_add_u32 v5, v5, v6
s_lshl_b32 s6, {sKs}, 8
v_add_u32 v5, s6, v5''')
        for kk in range(4):
            I(f'buffer_load_dwordx4 v[{8+4*kk}:{11+4*kk}], v5, {srdX}, 0 offen offset:{kk*64}')
        I(f'''v_lshrrev_b32 v6, 2, v3
v_and_b32 v7, 3, v3
v_lshlrev_b32 v28, 2, v2
v_add_u32 v28, v28, v6
v_lshlrev_b32 v28, 7, v28
v_lshlrev_b32 v7, 3, v7
v_add_u32 v28, v28, v7
v_add_u32 v28, {stg}, v28
v_lshlrev_b32 v29, 1, v2
v_lshrrev_b32 v6, 1, v6
v_add_u32 v29, v29, v6
v_and_b32 v29, 3, v29''')
        for nt_ in range(4):
            I(f'''v_xor_b32 v6, {nt_}, v29
v_lshlrev_b32 v6, 5, v6
v_add_u32 v{24+nt_}, v28, v6''')
    def qtile_compute(self):
        I = self.I
        def reads(kk, setb):
            for nt_ in range(4):
                for hf in range(2):
                    r = setb + 4*nt_ + 2*hf
                    I(f'ds_read_b64_tr_b16 v[{r}:{r+1}], v{24+nt_} offset:{kk*4096 + hf*2048}')
        def mf(kk, setb):
            for nt_ in range(4):
                c = '0' if kk == 0 else f'v[{64+4*nt_}:{67+4*nt_}]'
                I(f'v_mfma_f32_16x16x32_bf16 v[{64+4*nt_}:{67+4*nt_}], v[{8+4*kk}:{11+4*kk}], v[{setb+4*nt_}:{setb+4*nt_+3}], {c}')
        sets = (32, 48)
        reads(0, sets[0])
        for kk in range(4):
            I('s_waitcnt lgkmcnt(0)')
            if kk < 3: reads(kk+1, sets[(kk+1) & 1])
            mf(kk, sets[kk & 1])
        I('''s_mov_b32 s40, 0xffff0000
s_mov_b32 s41, 0
s_mov_b32 s42, 0
s_mov_b32 s43, 0x0000ffff
s_mov_b32 s44, 0
s_mov_b32 s45, 0xffff0000''')
        for b in range(2):
            I(f'''v_cndmask_b32 v{40+b}, v{64+b}, v{68+b}, s[40:41]
v_cndmask_b32 v{40+b}, v{40+b}, v{72+b}, s[42:43]
v_cndmask_b32 v{40+b}, v{40+b}, v{76+b}, s[44:45]''')

    def ftile_issue(self, srdW, srdX, sBase, sKs):
        I = self.I; pitch = 3584; stg = STG1
        ntf = ' nt' if self.p['nt_w'] else ''
        I(f'''v_lshrrev_b32 v4, 4, v1
v_lshlrev_b32 v4, 3, v4
v_bfe_u32 v5, v1, 2, 2
v_add_u32 v4, v4, v5
v_mul_u32_u24 v4, {pitch}, v4
v_and_b32 v5, 3, v1
v_bfe_u32 v6, v1, 4, 1
v_lshlrev_b32 v6, 1, v6
v_xor_b32 v5, v5, v6
v_lshlrev_b32 v5, 4, v5
v_add_u32 v4, v4, v5''')
        for i in range(16):
            rowi = 32*(i >> 1) + 4*(i & 1)
            I(f's_mov_b32 m0, {stg + i*1024}')
            I(f's_add_u32 s7, {sBase}, {rowi*pitch}')
            I(f'buffer_load_dwordx4 v4, {srdW}, s7 offen{ntf} lds')
        I(f'''v_and_b32 v5, 1, v3
v_lshlrev_b32 v5, 10, v5
v_lshlrev_b32 v6, 4, v2
v_add_u32 v5, v5, v6
s_lshl_b32 s6, {sKs}, 9
v_add_u32 v5, s6, v5''')
        for kk in range(8):
            I(f'buffer_load_dwordx4 v[{96+4*kk}:{99+4*kk}], v5, {srdX}, 0 offen offset:{kk*64}')
        I(f'''v_lshrrev_b32 v6, 2, v3
v_and_b32 v7, 3, v3
v_lshlrev_b32 v28, 2, v2
v_add_u32 v28, v28, v6
v_lshlrev_b32 v28, 6, v28
v_lshlrev_b32 v7, 3, v7
v_add_u32 v28, v28, v7
v_add_u32 v28, {stg}, v28
v_and_b32 v29, 1, v2
v_lshlrev_b32 v6, 5, v29
v_add_u32 v24, v28, v6
v_xor_b32 v6, 1, v29
v_lshlrev_b32 v6, 5, v6
v_add_u32 v25, v28, v6''')
    def ftile_compute(self):
        I = self.I
        def reads(k2, setb):
            for kq in range(2):
                kk = 2*k2 + kq
                for nt_ in range(2):
                    for hf in range(2):
                        r = setb + 8*kq + 4*nt_ + 2*hf
                        I(f'ds_read_b64_tr_b16 v[{r}:{r+1}], v{24+nt_} offset:{kk*2048 + hf*1024}')
        def mf(k2, setb):
            for kq in range(2):
                kk = 2*k2 + kq
                for nt_ in range(2):
                    c = '0' if kk == 0 else f'v[{64+4*nt_}:{67+4*nt_}]'
                    r = setb + 8*kq + 4*nt_
                    I(f'v_mfma_f32_16x16x32_bf16 v[{64+4*nt_}:{67+4*nt_}], v[{96+4*kk}:{99+4*kk}], v[{r}:{r+3}], {c}')
        sets = (32, 48)
        reads(0, sets[0])
        for k2 in range(4):
            I('s_waitcnt lgkmcnt(0)')
            if k2 < 3: reads(k2+1, sets[(k2+1) & 1])
            mf(k2, sets[k2 & 1])
        I('''s_mov_b32 s40, 0xffff0000
s_mov_b32 s41, 0
s_mov_b32 s42, 0
s_mov_b32 s43, 0x0000ffff
s_mov_b32 s44, 0
s_mov_b32 s45, 0xffff0000
v_cndmask_b32 v40, v64, v68, s[40:41]
v_cndmask_b32 v40, v40, v65, s[42:43]
v_cndmask_b32 v40, v40, v69, s[44:45]''')

    def role_j0(self):
        I = self.I; p = self.p
        I('L_J0:')
        if p['prio_j']: I(f"s_setprio {p['prio_j']}")
        self.srd(16, 24, 0x400000)
        self.srd(20, 0, 2048)
        self.srd(24, 96, WS_SIZE)
        I('s_barrier')
        if p['x_stream']: I('s_endpgm')
        self.lane_setup()
        I(f"""s_lshr_b32 s8, s5, 2          ; qcl
s_and_b32 s9, s5, 3           ; ks
s_mul_i32 s10, s9, 128*8192
s_lshl_b32 s6, s4, 10
s_add_u32 s10, s10, s6
s_lshl_b32 s6, s8, 7
s_add_u32 s10, s10, s6
s_getreg_b32 s12, hwreg(HW_REG_XCC_ID, 0, 4)
v_mov_b32 v90, {CNT}
v_mov_b32 v91, 1
s_waitcnt lgkmcnt(0)""")
        self.qtile_issue('s[16:19]', 's[20:23]', 's10', 's9')
        self.tag_load(24)
        I("""v_and_b32 v81, 3, v1
v_add_u32 v81, 0x07060500, v81
s_lshl_b32 s13, s12, 8
v_mov_b32 v82, s13""")
        self.stamp(1)
        I('s_waitcnt vmcnt(0)')
        self.tag_ready()
        I('v_mov_b32 v80, s52')
        self.stamp(2)
        self.qtile_compute()
        I(f"""v_perm_b32 v40, v40, v80, v81
v_perm_b32 v41, v41, v80, v81
v_perm_b32 v82, v82, v80, v81
s_lshl_b32 s6, s4, 3
s_add_u32 s6, s6, s9
s_lshl_b32 s6, s6, 11         ; (g*8 + ks)*2048
s_lshl_b32 s7, s8, 8
s_add_u32 s6, s6, s7
v_lshlrev_b32 v4, 2, v1
v_add_u32 v5, s6, v4
v_add_u32 v6, {4*2048}, v5
s_lshl_b32 s6, s4, 5
s_add_u32 s6, s6, s5
s_lshl_b32 s6, s6, 7
s_add_u32 s6, s6, {WS_ID}
v_add_u32 v7, s6, v4
s_mov_b32 s14, {COPYB}
buffer_store_dword v40, v5, s[24:27], 0 offen
buffer_store_dword v41, v6, s[24:27], 0 offen
s_mov_b32 exec_hi, 0
buffer_store_dword v82, v7, s[24:27], 0 offen
s_mov_b32 exec_hi, -1
""")
        if not p['x_nob']:
            I(f"""buffer_store_dword v40, v5, s[24:27], s14 offen{SC}
buffer_store_dword v41, v6, s[24:27], s14 offen{SC}
s_mov_b32 exec_hi, 0
buffer_store_dword v82, v7, s[24:27], s14 offen{SC}
s_mov_b32 exec_hi, -1""")
        if p['qdelay']: I(f"s_sleep {p['qdelay']}")
        self.stamp(3)
        I(f"""s_lshl_b32 s6, s4, 1
s_lshr_b32 s7, s5, 4          ; b
s_add_u32 s6, s6, s7
s_lshl_b32 s6, s6, 13
v_lshlrev_b32 v4, 4, v1
v_add_u32 v4, s6, v4
v_and_b32 v5, 31, v1
v_lshlrev_b32 v5, 7, v5
s_lshl_b32 s6, s4, 12
s_add_u32 s6, s6, {WS_ID}
v_add_u32 v5, s6, v5
s_mov_b32 s15, {COPYB if p['force_remote'] else 0}
s_mov_b32 s11, 0""")
        L = self.lab('qg'); D = self.lab('qgd'); Lk = self.lab('qgk')
        I(f'{L}:')
        for ks in range(4):
            I(f's_add_u32 s7, s15, {ks*2048}')
            for i in range(2):
                r = 8 + 8*ks + 4*i
                I(f'buffer_load_dwordx4 v[{r}:{r+3}], v4, s[24:27], s7 offen offset:{i*1024}{SC}')
        I(f'buffer_load_dwordx4 v[40:43], v5, s[24:27], s15 offen{SC}')
        I('s_add_u32 s48, s48, 1\ns_add_u32 s11, s11, 1\ns_waitcnt vmcnt(0)')
        for j in range(9):
            self.tag_acc(8 + 4*j, j == 0, 'v44', 'v45', 'v46', 'v47')
        self.poll_tail(L, D, 'v44', p['slq'])
        if not p['force_remote']:
            I(f"""s_cmp_lt_u32 s11, {p['na_polls']}
s_cbranch_scc1 {L}
s_xor_b32 s15, s15, {COPYB}""")
        I(f"""s_branch {L}
{D}:""")
        self.stamp(5)
        I(f"""v_bfe_u32 v40, v40, 8, 4
v_cmp_ne_u32 vcc, s12, v40
s_cmp_eq_u64 vcc, 0
s_cselect_b32 s6, {0 if p['force_remote'] else 1}, 0
v_mov_b32 v44, s6
s_mov_b64 exec, 1
ds_write_b32 v90, v44 offset:{C_M}
s_mov_b64 exec, -1""")
        for e in range(8):
            I(f'v_add_f32 v{8+e}, v{8+e}, v{16+e}')
            I(f'v_add_f32 v{24+e}, v{24+e}, v{32+e}')
        for e in range(8):
            I(f'v_add_f32 v{8+e}, v{8+e}, v{24+e}')
        I(f"""v_cvt_pk_bf16_f32 v40, v8, v9
v_cvt_pk_bf16_f32 v41, v10, v11
v_cvt_pk_bf16_f32 v42, v12, v13
v_cvt_pk_bf16_f32 v43, v14, v15
v_lshlrev_b32 v4, 3, v1
v_add_u32 v4, {Q_OFF}, v4
ds_write_b64 v4, v[40:41]
ds_write_b64 v4, v[42:43] offset:512""")
        self.signal('v90', 'v91', C_Q)
        I('s_waitcnt lgkmcnt(0)')
        self.stamp(6)
        self.stamp_dump('s[24:27]')
        I('s_endpgm')

    def role_j1(self):
        I = self.I; p = self.p
        I('L_J1:')
        I('s_load_dwordx4 s[8:11], s[0:1], 48')
        self.srd(20, 0, 2048)
        self.srd(24, 96, WS_SIZE)
        self.srd(28, 72, 1024)
        I('s_barrier')
        if p['x_stream']: I('s_endpgm')
        self.lane_setup()
        I(f"""s_mul_i32 s12, s5, 9363
s_lshr_b32 s12, s12, 16
s_mul_i32 s13, s12, 7
s_sub_u32 s13, s5, s13        ; cf
s_and_b32 s14, s12, 1         ; mat
s_lshr_b32 s15, s12, 1        ; ks
v_mov_b32 v90, {CNT}
v_mov_b32 v91, 1
s_waitcnt lgkmcnt(0)
s_cmp_eq_u32 s14, 0
s_cselect_b32 s16, s8, s10
s_cselect_b32 s17, s9, s11
s_mov_b32 s18, {512*1792*2}
s_mov_b32 s19, 0x20000
s_mul_i32 s8, s15, 256*3584
s_mul_i32 s6, s4, 448
s_add_u32 s8, s8, s6
s_lshl_b32 s6, s13, 6
s_add_u32 s8, s8, s6""")
        Lskip = self.lab('nof1'); Lj = self.lab('f1j')
        I(f"""s_cmp_ge_u32 s5, 28
s_cbranch_scc1 {Lskip}""")
        self.ftile_issue('s[16:19]', 's[20:23]', 's8', 's15')
        I(f'{Lskip}:')
        I("""v_lshlrev_b32 v80, 4, v1
buffer_load_dwordx4 v[84:87], v80, s[20:23], 0 offen
buffer_load_dwordx4 v[88:91], v80, s[20:23], 0 offen offset:1024
buffer_load_dwordx4 v[92:95], v80, s[28:31], 0 offen""")
        self.tag_load(24)
        I("""v_and_b32 v81, 3, v1
v_add_u32 v81, 0x07060500, v81""")
        self.stamp(1)
        I('s_waitcnt vmcnt(0)')
        self.tag_ready()
        I('v_mov_b32 v80, s52')
        self.stamp(2)
        I(f"""s_cmp_ge_u32 s5, 28
s_cbranch_scc1 {Lj}""")
        self.ftile_compute()
        I(f"""v_perm_b32 v40, v40, v80, v81
s_lshl_b32 s6, s4, 2
s_add_u32 s6, s6, s12
s_lshl_b32 s6, s4, 2
s_lshl_b32 s7, s14, 1
s_add_u32 s6, s6, s7
s_add_u32 s6, s6, s15
s_lshl_b32 s6, s6, 11         ; *[b 2][256] f32
s_lshl_b32 s7, s13, 7
s_add_u32 s6, s6, s7
s_add_u32 s6, s6, {WS_F}
v_lshrrev_b32 v4, 5, v1
v_lshlrev_b32 v4, 10, v4
v_and_b32 v5, 31, v1
v_lshlrev_b32 v5, 2, v5
v_add_u32 v4, v4, v5
v_add_u32 v4, s6, v4
s_mov_b32 s7, {COPYB}
buffer_store_dword v40, v4, s[24:27], 0 offen""")
        if not p['x_nob']: I(f'buffer_store_dword v40, v4, s[24:27], s7 offen{SC}')
        if p['qdelay']: I(f"s_sleep {p['qdelay']}")
        I(f'{Lj}:')
        self.stamp(3)
        I('v_mov_b32 v8, 0\nv_mov_b32 v9, 0')
        for e in range(4):
            I(f"""v_lshlrev_b32 v10, 16, v{92+e}
v_and_b32 v11, 0xffff0000, v{92+e}
v_lshlrev_b32 v12, 16, v{84+e}
v_and_b32 v13, 0xffff0000, v{84+e}
v_lshlrev_b32 v14, 16, v{88+e}
v_and_b32 v15, 0xffff0000, v{88+e}
v_fmac_f32 v8, v10, v12
v_fmac_f32 v9, v10, v14
v_fmac_f32 v8, v11, v13
v_fmac_f32 v9, v11, v15""")
        for rr in (8, 4, 2, 1):
            I(f'v_add_f32_dpp v8, v8, v8 row_ror:{rr} row_mask:0xf bank_mask:0xf')
            I(f'v_add_f32_dpp v9, v9, v9 row_ror:{rr} row_mask:0xf bank_mask:0xf')
        for sw in ('v_permlane16_swap_b32', 'v_permlane32_swap_b32'):
            I(f"""v_mov_b32 v10, v8
v_mov_b32 v11, v9
{sw} v8, v10
{sw} v9, v11
v_add_f32 v8, v8, v10
v_add_f32 v9, v9, v11""")
        I(f"""v_mul_f32 v8, {fhex(-math.log2(math.e))}, v8
v_mul_f32 v9, {fhex(-math.log2(math.e))}, v9
v_exp_f32 v8, v8
v_exp_f32 v9, v9
v_add_f32 v8, 1.0, v8
v_add_f32 v9, 1.0, v9
v_rcp_f32 v8, v8
v_rcp_f32 v9, v9
v_mov_b32 v10, {GATE}
s_mov_b64 exec, 1
ds_write_b64 v10, v[8:9]
s_mov_b64 exec, -1
s_mov_b32 s40, 0
s_mov_b32 s41, -1
v_cndmask_b32 v16, v8, v9, s[40:41]
v_sub_f32 v16, 1.0, v16""")
        I('v_mov_b32 v90, %d\nv_mov_b32 v91, 1' % CNT)
        self.signal('v90', 'v91', C_H)
        I(f"""s_lshl_b32 s6, s4, 13         ; g*[mat][ks][b][256]*4
s_lshr_b32 s7, s5, 2
s_mul_i32 s7, s7, 112
s_add_u32 s6, s6, s7
s_add_u32 s6, s6, {WS_F}
v_and_b32 v4, 31, v1
v_min_u32 v5, 27, v4
v_and_b32 v17, 3, v5
v_lshlrev_b32 v17, 3, v17
v_lshrrev_b32 v17, v17, v80
v_lshlrev_b32 v5, 2, v5
v_lshrrev_b32 v6, 5, v1
v_lshlrev_b32 v6, 10, v6
v_add_u32 v5, v5, v6
v_add_u32 v5, s6, v5
s_mov_b32 s15, {COPYB if p['force_remote'] else 0}
s_mov_b32 s11, 0""")
        L = self.lab('hg'); D = self.lab('hgd')
        I(f'{L}:')
        for m in range(4):
            I(f's_add_u32 s7, s15, {m*2048}')
            I(f'buffer_load_dword v{24+m}, v5, s[24:27], s7 offen{SC}')
        I('s_add_u32 s48, s48, 1\ns_add_u32 s11, s11, 1\ns_waitcnt vmcnt(0)')
        I('v_xor_b32 v18, v24, v17')
        for j in range(1, 4):
            I(f'v_xor_b32 v19, v{24+j}, v17\nv_or_b32 v18, v18, v19')
        I('v_and_b32 v18, 0xff, v18')
        self.poll_tail(L, D, 'v18', p['slf'])
        if not p['force_remote']:
            I(f"""s_cmp_lt_u32 s11, {p['na_polls']}
s_cbranch_scc1 {L}
s_xor_b32 s15, s15, {COPYB}""")
        I(f"""s_branch {L}
{D}:""")
        self.stamp(5)
        I(f"""v_add_f32 v24, v24, v25
v_add_f32 v28, v26, v27
v_mul_f32 v25, {fhex(-math.log2(math.e))}, v24
v_exp_f32 v25, v25
v_add_f32 v25, 1.0, v25
v_rcp_f32 v25, v25
v_mul_f32 v24, v24, v25
v_mul_f32 v24, v24, v28
v_mul_f32 v24, v24, v16
v_cmp_gt_u32 vcc, 28, v4
v_cndmask_b32 v24, 0, v24, vcc
v_cvt_pk_bf16_f32 v24, v24, v24
v_bfe_u32 v6, v4, 2, 2
v_lshlrev_b32 v6, 4, v6
v_lshrrev_b32 v7, 4, v4
v_lshlrev_b32 v7, 3, v7
v_add_u32 v6, v6, v7
v_and_b32 v7, 3, v4
v_lshlrev_b32 v7, 1, v7
v_add_u32 v6, v6, v7
v_lshrrev_b32 v7, 5, v1
v_lshlrev_b32 v7, 6, v7
v_add_u32 v6, v6, v7
v_add_u32 v6, {A2}, v6
ds_write_b16 v6, v24
s_waitcnt lgkmcnt(0)""")
        self.stamp(6)
        self.stamp_dump('s[24:27]')
        I('s_endpgm')

    def role_loader(self):
        I = self.I; p = self.p
        ntv = ' nt' if p['nt_v'] else ''
        ntw = ' nt' if p['nt_w'] else ''
        I('L_LD:')
        if p['prio_ld']: I(f"s_setprio {p['prio_ld']}")
        I(f"""s_sub_u32 s8, s3, {W_L0}           ; loader j
v_mov_b32 v90, {CNT}
v_mov_b32 v91, 1
s_cmp_lg_u32 s8, 0
s_cbranch_scc1 L_LD_noinit
v_mov_b32 v8, 0
v_mov_b32 v9, 0
v_mov_b32 v10, 0
v_mov_b32 v11, 0
ds_write_b128 v90, v[8:11]
ds_write_b128 v90, v[8:11] offset:16
s_waitcnt lgkmcnt(0)
L_LD_noinit:
s_barrier""")
        self.srd(16, 16, 0x2000000)
        self.srd(20, 32, 0x400000)
        self.srd(24, 64, 1792*512*2)
        self.srd(28, 96, WS_SIZE)
        self.lane_setup()
        if p['pf']:
            I(f"""s_cmp_lg_u32 s8, 3
s_cbranch_scc1 L_LD_nopf
s_getpc_b64 s[36:37]
L_PC:
s_add_u32 s36, s36, {KNAME}-L_PC
s_addc_u32 s37, s37, -1
v_lshlrev_b32 v4, 4, v1
s_mov_b32 s6, L_codeend-{KNAME}-16""")
            for j in range(p.get('pfn', 14)):
                I(f"""v_min_u32 v5, s6, v4
global_load_dwordx4 v[12:15], v5, s[36:37]
v_add_u32 v4, 1024, v4""")
            I('L_LD_nopf:')
        I('s_waitcnt lgkmcnt(0)')
        TLBMARK = True
        I(f"""s_and_b32 s6, s8, 1
s_lshl_b32 s6, s6, 2
v_add_u32 v5, s6, v2          ; (4*(j&1) + rho)
v_lshlrev_b32 v5, 1, v5
v_xor_b32 v5, v5, v3          ; chunk
v_lshlrev_b32 v5, 4, v5
v_lshlrev_b32 v6, 8, v2
v_add_u32 v10, v5, v6         ; V voffset
v_lshlrev_b32 v6, 17, v2
v_add_u32 v11, v5, v6
v_lshlrev_b32 v6, 10, v2
v_add_u32 v16, v5, v6
s_lshr_b32 s6, s5, 4          ; b
s_lshl_b32 s6, s6, 3
s_add_u32 s6, s6, s4          ; bh
s_lshl_b32 s10, s6, 21
s_and_b32 s6, s5, 15          ; t
s_lshl_b32 s6, s6, 17
s_add_u32 s10, s10, s6
s_and_b32 s6, s8, 1
s_lshl_b32 s6, s6, 10
s_add_u32 s10, s10, s6        ; V base + (j & 1) * 1024
s_lshr_b32 s11, s5, 2         ; w'
s_and_b32 s12, s5, 3          ; cg
s_lshl_b32 s13, s4, 9
s_lshl_b32 s6, s11, 4
s_add_u32 s13, s13, s6
s_add_u32 s13, s13, s8
s_lshl_b32 s13, s13, 10
s_lshl_b32 s6, s12, 8
s_add_u32 s13, s13, s6
s_lshl_b32 s14, s4, 3
s_add_u32 s14, s14, s11       ; rg
s_mul_i32 s14, s14, 28
s_lshl_b32 s6, s8, 2
s_add_u32 s15, s14, s6
s_add_u32 s6, s8, 4
s_min_u32 s6, s6, 6
s_lshl_b32 s6, s6, 2
s_add_u32 s14, s14, s6
s_lshl_b32 s15, s15, 10
s_lshl_b32 s14, s14, 10
s_lshl_b32 s6, s12, 8
s_add_u32 s15, s15, s6
s_add_u32 s14, s14, s6
s_lshl_b32 s9, s8, 10         ; j*1024""")
        if p['tlb']:
            Lt = self.lab('tlb')
            I(f"""s_cmp_lg_u32 s8, 2
s_cbranch_scc1 {Lt}
v_mov_b32 v20, 0
s_mov_b64 exec, 1
buffer_load_dword v21, v20, s[16:19], s10 offen
buffer_load_dword v22, v20, s[20:23], s13 offen
buffer_load_dword v23, v20, s[24:27], s15 offen
s_mov_b32 s6, {WS_T1}
buffer_load_dword v24, v20, s[28:31], s6 offen
s_mov_b32 s6, {WS_T3}
buffer_load_dword v25, v20, s[28:31], s6 offen
s_mov_b32 s6, {WS_ST}
buffer_load_dword v26, v20, s[28:31], s6 offen
s_mov_b64 exec, -1
{Lt}:""")
        self.stamp(1)
        self.lds_wait('v90', 'v7', C_K, p['kthr'], sleep=p['slk'])
        I('s_waitcnt vmcnt(0)')
        self.stamp(2)
        loads = []
        I(f"""s_mul_i32 s61, s5, {p['rkb']}
s_mul_i32 s6, s4, {p['rkc']}
s_add_u32 s61, s61, s6
s_lshr_b32 s6, s8, 1
s_add_u32 s61, s61, s6
s_mul_i32 s62, s5, {p['rcb']}
s_mul_i32 s6, s4, {p['rcc']}
s_add_u32 s62, s62, s6""")
        for q in range(32):
            cw = q >> 2
            loads.append([f's_add_u32 m0, s9, {V_OFF + q*4096}',
                          f's_add_u32 s6, s61, {cw*p["rka"] + 2*(q & 3)}',
                          f's_and_b32 s6, s6, 7',
                          f's_lshl_b32 s6, s6, 11',
                          f's_add_u32 s6, s6, s10',
                          f's_add_u32 s7, s62, {cw}',
                          f's_and_b32 s7, s7, 7',
                          f's_lshl_b32 s7, s7, 14',
                          f's_add_u32 s6, s6, s7',
                          f'buffer_load_dwordx4 v10, s[16:19], s6 offen{ntv} lds'])
        for q in range(4):
            loads.append([f's_add_u32 m0, s9, {WO_OFF + q*4096}',
                          f's_add_u32 s6, s13, {q*4096}',
                          f'buffer_load_dwordx4 v11, s[20:23], s6 offen{ntw} lds'])
        loads.append([f's_add_u32 m0, s9, {WD_OFF}', 's_nop 0', f'buffer_load_dwordx4 v16, s[24:27], s15 offen{ntw} lds'])
        loads.append([f's_add_u32 m0, s9, {WD_OFF + 4096}', 's_nop 0', f'buffer_load_dwordx4 v16, s[24:27], s14 offen{ntw} lds'])
        vl, wl = loads[:32], loads[32:]
        wp, ws_ = p['wpos'], p['wsplit']
        loads = vl[:wp] + wl[:ws_] + vl[wp:] + wl[ws_:]
        def vpos(q): return q if q < wp else q + ws_
        n = len(loads)
        nA = 2 * p['na']
        marks = {vpos(nA - 1): 'A', vpos(31): 'V'}
        def mark(m):
            if m == 'A': self.signal('v90', 'v91', C_A)
            elif not p['x_stream']: I('s_barrier')
            self.stamp(3 if m == 'A' else 4)
        def depth(i): return p['dv2'] if i >= n - p['dvn'] else p['dv']
        done = -1
        issued = 0
        pend = sorted(marks)
        while issued < n:
            D = depth(issued)
            need_done = issued - D
            if need_done > done:
                I(f's_waitcnt vmcnt({issued - 1 - need_done})')
                done = need_done
            for l in loads[issued]: I(l)
            issued += 1
            while pend and pend[0] <= done:
                mark(marks[pend.pop(0)])
        while done < n - 1:
            done += 1
            if pend and pend[0] == done or done == n - 1:
                I(f's_waitcnt vmcnt({n - 1 - done})')
            while pend and pend[0] <= done:
                mark(marks[pend.pop(0)])
        self.stamp(5)
        if not p['x_stream']: I('s_barrier')
        self.stamp_dump('s[28:31]')
        I('s_endpgm')

    def role_compute(self):
        I = self.I; p = self.p
        ntk = ' nt' if p['nt_k'] else ''
        cexp = math.log2(math.e) / math.sqrt(128.0)
        I('L_CW:')
        self.srd(16, 8, 0x2000000)
        self.srd(20, 96, WS_SIZE)
        self.srd(24, 80, 2048)
        if p['x_start']: I('s_memrealtime s[90:91]')
        I('s_barrier')
        if p['x_start']: I('s_memrealtime s[92:93]')
        self.lane_setup()
        I(f"""s_sub_u32 s8, s3, {W_C0}           ; cw
s_lshr_b32 s6, s5, 4          ; b
s_lshl_b32 s6, s6, 3
s_add_u32 s6, s6, s4
s_lshl_b32 s10, s6, 21
s_and_b32 s6, s5, 15
s_lshl_b32 s6, s6, 17
s_add_u32 s10, s10, s6
s_mul_i32 s6, s5, {p['rcb']}
s_mul_i32 s7, s4, {p['rcc']}
s_add_u32 s6, s6, s7
s_add_u32 s6, s6, s8
s_and_b32 s6, s6, 7
s_lshl_b32 s6, s6, 14
s_add_u32 s10, s10, s6
v_and_b32 v4, 7, v1
v_lshlrev_b32 v4, 8, v4
v_bfe_u32 v5, v1, 3, 1
v_lshlrev_b32 v5, 6, v5
v_add_u32 v4, v4, v5
v_lshlrev_b32 v5, 4, v2
v_add_u32 v4, v4, v5          ; K voffset
s_mul_i32 s61, s8, {p['rka']}
s_mul_i32 s6, s5, {p['rkb']}
s_add_u32 s61, s61, s6
s_mul_i32 s6, s4, {p['rkc']}
s_add_u32 s61, s61, s6
v_mov_b32 v62, {CNT}
v_mov_b32 v63, 1
s_waitcnt lgkmcnt(0)""")
        D = p['dk']
        def kload(i):
            o, hx = divmod(i, 2)
            if hx == 0:
                I(f's_add_u32 s11, s61, {o}\ns_and_b32 s11, s11, 7\ns_lshl_b32 s11, s11, 11\ns_add_u32 s11, s11, s10')
            I(f'buffer_load_dwordx4 v[{64+4*i}:{67+4*i}], v4, s[16:19], s11 offen offset:{hx*128}{ntk}')
        if p['x_start']: I('s_memrealtime s[94:95]')
        for i in range(D): kload(i)
        self.tag_load(20)
        self.stamp(1)
        vC, vOne = 'v62', 'v63'
        for i in range(D, 16):
            I(f's_waitcnt vmcnt({D-1})')
            kload(i)
            if i == 15 - p['ksig']:
                self.signal(vC, vOne, C_K)
        self.stamp(2)
        if p['x_stream']:
            I('s_waitcnt vmcnt(0)')
            self.stamp(3)
            self.stamp_dump('s[20:23]', 16)
            I('s_endpgm')
        self.tag_ready()
        I(f"""v_and_b32 v5, 3, v3           ; head = n&3
v_lshlrev_b32 v6, 8, v5
v_lshlrev_b32 v7, 4, v2
v_add_u32 v60, v6, v7
v_bfe_u32 v6, v3, 3, 1
v_lshlrev_b32 v6, 6, v6
v_add_u32 v60, v60, v6
v_add_u32 v60, {Q_OFF}, v60
v_lshlrev_b32 v61, 5, v5
v_add_u32 v61, {MX}, v61
s_lshl_b32 s6, s8, 2
v_add_u32 v59, s6, v61""")
        self.lds_wait(vC, 'v5', C_Q, 1, sleep=2)
        self.stamp(3)
        for hx in range(2):
            I(f'ds_read_b128 v[{48+4*hx}:{51+4*hx}], v60 offset:{hx*128}')
        I(f'ds_read_b32 v5, {vC} offset:{C_M}')
        I('s_waitcnt lgkmcnt(0)\nv_readfirstlane_b32 s51, v5')
        for o in range(8):
            I(f's_waitcnt vmcnt({14 - 2*o})')
            for hx in range(2):
                c = '0' if hx == 0 else f'v[{16+4*o}:{19+4*o}]'
                r = 64 + 8*o + 4*hx
                I(f'v_mfma_f32_16x16x32_bf16 v[{16+4*o}:{19+4*o}], v[{r}:{r+3}], v[{48+4*hx}:{51+4*hx}], {c}')
        for j in range(4):
            for r in range(4): I(f'v_permlane32_swap_b32 v{16+8*j+r}, v{20+8*j+r}')
            for r in range(4): I(f'v_add_f32_dpp v{16+4*j+r}, v{20+8*j+r}, v{16+8*j+r} row_ror:8 row_mask:0xf bank_mask:0xf')
        I('v_max3_f32 v5, v16, v17, v18')
        for e in range(19, 31, 2):
            I(f'v_max3_f32 v5, v5, v{e}, v{e+1}')
        I('v_max_f32 v5, v5, v31')
        for sw in ('v_permlane16_swap_b32', 'v_permlane32_swap_b32'):
            I(f"""v_mov_b32 v6, v5
{sw} v5, v6
v_max_f32 v5, v5, v6""")
        I("""s_mov_b64 exec, 15
ds_write_b32 v59, v5
s_mov_b64 exec, -1""")
        self.signal(vC, vOne, C_1)
        self.lds_wait(vC, 'v6', C_1, 8, sleep=0)
        I(f"""ds_read_b128 v[48:51], v61
ds_read_b128 v[52:55], v61 offset:16
s_mov_b32 s50, {fhex(cexp)}
s_waitcnt lgkmcnt(0)
v_max3_f32 v48, v48, v49, v50
v_max3_f32 v51, v51, v52, v53
v_max3_f32 v48, v48, v54, v55
v_max_f32 v48, v48, v51
v_mul_f32 v58, s50, v48
v_and_b32 v6, 3, v3
v_add_u32 v6, 0x07060500, v6
v_mov_b32 v7, s52
v_perm_b32 v58, v58, v7, v6""")
        for e in range(16):
            I(f'v_fma_f32 v{16+e}, v{16+e}, s50, -v58')
        for e in range(16):
            I(f'v_exp_f32 v{16+e}, v{16+e}')
        for q in range(8):
            I(f'v_cvt_pk_bf16_f32 v{48+q}, v{16+2*q}, v{17+2*q}')
        I(f"""s_lshl_b32 s6, s8, 9
s_add_u32 s6, s6, {P_OFF}
v_lshlrev_b32 v6, 6, v2
v_lshlrev_b32 v7, 4, v3
v_add_u32 v6, v6, v7
v_add_u32 v6, s6, v6
s_mov_b32 s40, 0x000f000f
s_mov_b32 s41, 0x000f000f
s_mov_b64 exec, s[40:41]
ds_write_b128 v6, v[48:51]
ds_write_b128 v6, v[52:55] offset:256
s_mov_b64 exec, -1""")
        for e in range(8): I(f'v_add_f32 v{16+e}, v{16+e}, v{24+e}')
        for e in range(4): I(f'v_add_f32 v{16+e}, v{16+e}, v{20+e}')
        I("""v_add_f32 v16, v16, v17
v_add_f32 v18, v18, v19
v_add_f32 v5, v16, v18""")
        for sw in ('v_permlane16_swap_b32', 'v_permlane32_swap_b32'):
            I(f"""v_mov_b32 v6, v5
{sw} v5, v6
v_add_f32 v5, v5, v6""")
        I("""s_mov_b64 exec, 15
ds_write_b32 v59, v5 offset:128
s_mov_b64 exec, -1""")
        self.signal(vC, vOne, C_2)
        self.lds_wait(vC, 'v6', C_2, 8, sleep=0)
        self.stamp(4)
        I(f"""s_lshl_b32 s12, s4, 5
s_add_u32 s12, s12, s5        ; slot
v_mov_b32 v47, s52""")
        Ls = self.lab('nostat')
        I(f"""s_cmp_lg_u32 s8, 0
s_cbranch_scc1 {Ls}
ds_read_b128 v[48:51], v61 offset:128
ds_read_b128 v[52:55], v61 offset:144
v_and_b32 v6, 3, v1
v_add_u32 v6, 0x07060500, v6
s_waitcnt lgkmcnt(0)
v_add_f32 v48, v48, v49
v_add_f32 v50, v50, v51
v_add_f32 v52, v52, v53
v_add_f32 v54, v54, v55
v_add_f32 v48, v48, v50
v_add_f32 v52, v52, v54
v_add_f32 v48, v48, v52
s_mov_b32 s40, 0xf0f0f0f0
s_mov_b32 s41, 0
v_cndmask_b32 v48, v58, v48, s[40:41]
v_perm_b32 v48, v48, v47, v6
s_lshl_b32 s6, s12, 7
s_add_u32 s6, s6, {WS_ST}
v_lshlrev_b32 v6, 2, v1
s_mov_b32 exec_hi, 0""")
        self.mode_store('buffer_store_dword v48, v6, s[20:23], s6 offen', 's51')
        I('s_mov_b32 exec_hi, -1')
        I(f'{Ls}:')
        I(f"""v_and_b32 v5, 3, v3
v_lshlrev_b32 v5, 4, v5
v_lshlrev_b32 v6, 6, v2
v_add_u32 v5, v5, v6
v_add_u32 v5, {P_OFF}, v5""")
        for st in range(16):
            if st == 8: I('s_waitcnt lgkmcnt(0)')
            I(f'ds_read_b128 v[{64+4*st}:{67+4*st}], v5 offset:{st*256}')
        I(f"""v_lshrrev_b32 v5, 2, v3       ; r
v_and_b32 v6, 3, v3           ; c4
v_lshlrev_b32 v7, 2, v2
v_add_u32 v7, v7, v5          ; 4s + r
v_and_b32 v48, 7, v7          ; (4(s&1) + r)
v_xor_b32 v48, s8, v48
v_lshlrev_b32 v48, 5, v48
v_lshlrev_b32 v7, 8, v7
v_add_u32 v7, v7, v48
v_lshlrev_b32 v6, 3, v6
v_add_u32 v56, v7, v6
v_add_u32 v57, 0x10000, v56
v_add_u32 v59, 0x20000, v56""")
        I(f"""s_lshr_b32 s13, s5, 2         ; w'
s_and_b32 s14, s5, 3          ; cg
s_and_b32 s15, s8, 1
s_lshl_b32 s6, s15, 4
v_add_u32 v5, s6, v2          ; b*16 + tq
v_lshlrev_b32 v12, 4, v5
v_add_u32 v12, {WL}, v12
s_lshl_b32 s6, s4, 5
v_add_u32 v61, s6, v5         ; slot' (i = 0)
v_lshlrev_b32 v61, 11, v61
s_lshl_b32 s6, s13, 4
v_add_u32 v6, s6, v3
v_lshlrev_b32 v6, 4, v6
v_add_u32 v61, v61, v6
v_add_u32 v61, {WS_T1}, v61
v_lshrrev_b32 v6, 3, v3
v_lshlrev_b32 v6, 6, v6
v_bfe_u32 v7, v3, 2, 1
v_lshlrev_b32 v7, 3, v7       ; half*8
v_add_u32 v6, v6, v7
v_and_b32 v7, 3, v3
v_lshlrev_b32 v7, 4, v7       ; sA*16
v_add_u32 v6, v6, v7
v_lshlrev_b32 v7, 1, v2
v_add_u32 v6, v6, v7          ; + hh*2
s_lshl_b32 s6, s15, 7
s_add_u32 s6, s6, {A1}
v_add_u32 v60, s6, v6
s_lshl_b32 s6, s12, 11
s_lshl_b32 s7, s8, 8
s_add_u32 s6, s6, s7
s_add_u32 s6, s6, {WS_T1}
v_lshlrev_b32 v58, 4, v3
v_add_u32 v58, s6, v58
v_and_b32 v6, 1, v3
v_lshlrev_b32 v44, 1, v6
v_add_u32 v50, 0x07060500, v44
v_add_u32 v51, 1, v50
v_mov_b32 v49, s52               ; T
v_lshlrev_b32 v7, 6, v6
v_lshlrev_b32 v6, 7, v6
v_lshlrev_b32 v48, 4, v2
v_add_u32 v6, v6, v48
v_add_u32 v62, {A1}, v6
v_add_u32 v7, v7, v48
v_add_u32 v48, {A2}, v7
s_lshl_b32 s6, s14, 3
s_add_u32 s6, s6, s8
s_lshl_b32 s6, s6, 6
s_lshl_b32 s7, s4, 3
s_add_u32 s7, s7, s13
s_add_u32 s6, s6, s7
s_lshl_b32 s6, s6, 7
s_add_u32 s6, s6, {WS_T3}
v_lshlrev_b32 v63, 3, v3
v_add_u32 v63, s6, v63
v_mov_b32 v13, {CNT}
s_and_b32 s13, s2, 3          ; cg3
s_lshr_b32 s14, s2, 2         ; o8
s_lshl_b32 s6, s13, 3
s_add_u32 s6, s6, s14
s_lshl_b32 s6, s6, 13
s_lshl_b32 s7, s8, 5
s_add_u32 s6, s6, s7
s_add_u32 s6, s6, {WS_T3}
v_lshrrev_b32 v14, 1, v1
v_lshlrev_b32 v14, 7, v14
v_and_b32 v6, 1, v1
v_lshlrev_b32 v7, 4, v6
v_add_u32 v14, v14, v7
v_add_u32 v14, s6, v14
s_lshl_b32 s6, s13, 8
s_lshl_b32 s7, s14, 5
s_add_u32 s6, s6, s7
s_lshl_b32 s7, s8, 3
s_add_u32 s6, s6, s7
v_and_b32 v15, 1, v2
v_lshlrev_b32 v15, 10, v15
v_lshlrev_b32 v6, 2, v6
v_add_u32 v15, v15, v6
v_lshrrev_b32 v6, 1, v2
v_lshlrev_b32 v6, 1, v6
v_add_u32 v15, v15, v6
v_add_u32 v15, s6, v15
s_waitcnt lgkmcnt(0)""")
        Lsa = self.lab('sa')
        I(f"""s_mov_b32 s60, 0
s_cmp_lg_u32 s8, {p['sw']}
s_cbranch_scc1 {Lsa}""")
        self.lds_wait('v13', 'v5', C_H, 1, sleep=1)
        I(f"""v_mov_b32 v5, {GATE}
ds_read_b64 v[6:7], v5
s_mov_b32 s40, 0
s_mov_b32 s41, -1
v_lshrrev_b32 v5, 5, v1
v_lshlrev_b32 v5, 4, v5
v_add_u32 v5, v5, v3          ; b'*16 + t'
v_lshlrev_b32 v60, 4, v5
v_add_u32 v60, {WL}, v60
s_lshl_b32 s6, s4, 5
v_add_u32 v5, s6, v5          ; slot'
v_lshlrev_b32 v5, 7, v5
v_add_u32 v61, {WS_ST}, v5
s_waitcnt lgkmcnt(0)
v_cndmask_b32 v12, v6, v7, s[40:41]   ; g_b (b = lane>>5)
{Lsa}:""")
        self.stamp(5)
        self.lds_wait('v13', 'v5', C_A, 4, sleep=p['sla'])
        self.stamp(6)
        def vread(st, r):
            base = 'v56' if st < 8 else 'v57'
            o = (st & 7) * 8192
            I(f'ds_read_b64_tr_b16 v[{r}:{r+1}], {base} offset:{o}')
            I(f'ds_read_b64_tr_b16 v[{r+2}:{r+3}], {base} offset:{o+4096}')
        def vmfma(st, r):
            c = '0' if st == 0 else 'v[8:11]'
            I(f'v_mfma_f32_16x16x32_bf16 v[8:11], v[{64+4*st}:{67+4*st}], v[{r}:{r+3}], {c}')
        na = p['na']
        batches = []
        st = 0
        while st < na:
            b = list(range(st, min(st + 4, na))); batches.append(b); st += len(b)
        sets = (16, 32)
        for k, b in enumerate(batches):
            if k == 0:
                for j, st in enumerate(b): vread(st, sets[0] + 4*j)
            I('s_waitcnt lgkmcnt(0)')
            if k + 1 < len(batches):
                for j, st in enumerate(batches[k+1]): vread(st, sets[(k+1) & 1] + 4*j)
            for j, st in enumerate(b): vmfma(st, sets[k & 1] + 4*j)
            if k == 0:
                Lq = self.lab('nsl')
                I(f"s_cmp_lg_u32 s8, {p['sw']}\ns_cbranch_scc1 {Lq}")
                self.stats_loads()
                I(f'{Lq}:')
        I('s_barrier')
        self.stamp(7)
        rest = list(range(na, 16))
        for j, st in enumerate(rest): vread(st, 16 + 4*j)
        for j, st in enumerate(rest):
            I(f's_waitcnt lgkmcnt({2*(len(rest)-1-j)})')
            vmfma(st, 16 + 4*j)
        for e in range(4): I(f'v_perm_b32 v{8+e}, v{8+e}, v49, s{53+e}')
        I('s_mov_b64 exec, 0xffff')
        self.mode_store('buffer_store_dwordx4 v[8:11], v58, s[20:23], 0 offen', 's51')
        I('s_mov_b64 exec, -1')
        I('ds_read_b128 v[52:55], v48')
        self.stamp(8)
        Lns = self.lab('nsw'); Lw = self.lab('sw'); Lr = self.lab('swr')
        I(f"""s_cmp_lg_u32 s8, {p['sw']}
s_cbranch_scc1 {Lns}
s_waitcnt vmcnt(1)""")
        self.stats_check()
        I(f"""v_cmp_ne_u32 vcc, 0, v5
s_cbranch_vccz {Lw}
{Lr}:""")
        self.stats_loads()
        I('s_add_u32 s48, s48, 1\ns_waitcnt vmcnt(0)')
        self.stats_check()
        self.poll_tail(Lr, Lw, 'v5', p['sls'])
        I(f"""s_branch {Lr}
{Lw}:""")
        for h in range(4): I(f'v_mov_b32 v{72+h}, v{64+h}')
        for rr in (8, 4, 2, 1):
            for h in range(4): I(f'v_max_f32_dpp v{72+h}, v{72+h}, v{72+h} row_ror:{rr} row_mask:0xf bank_mask:0xf')
        for h in range(4): I(f'v_sub_f32 v{64+h}, v{64+h}, v{72+h}')
        for h in range(4): I(f'v_exp_f32 v{64+h}, v{64+h}')
        for h in range(4): I(f'v_mul_f32 v{68+h}, v{68+h}, v{64+h}')
        for rr in (8, 4, 2, 1):
            for h in range(4): I(f'v_add_f32_dpp v{68+h}, v{68+h}, v{68+h} row_ror:{rr} row_mask:0xf bank_mask:0xf')
        for h in range(4): I(f'v_rcp_f32 v{68+h}, v{68+h}')
        for h in range(4): I(f'v_mul_f32 v{64+h}, v{64+h}, v12')
        for h in range(4): I(f'v_mul_f32 v{64+h}, v{64+h}, v{68+h}')
        I('ds_write_b128 v60, v[64:67]\nv_mov_b32 v5, 1')
        self.signal('v13', 'v5', C_W)
        I(f'{Lns}:')
        Lng = self.lab('nog')
        I(f"""s_cmp_gt_u32 s8, 1
s_cbranch_scc1 {Lng}""")
        I(f's_mov_b32 s6, {4*2048}\ns_mov_b32 s7, {8*2048}\ns_mov_b32 s9, {12*2048}')
        T2B = (64, 96, 112)
        NS2 = p['t2sets']
        def t2issue(k):
            for i, so in enumerate(('0', 's6', 's7', 's9')):
                r = T2B[k] + 4*i
                I(f'buffer_load_dwordx4 v[{r}:{r+3}], v61, s[20:23], {so} offen{SC}')
        if p['t2wait']: I('s_waitcnt vmcnt(0)')
        t2issue(0)
        self.lds_wait('v13', 'v5', C_W, 1, sleep=0)
        for i in range(4): I(f'ds_read_b128 v[{80+4*i}:{83+4*i}], v12 offset:{i*64}')
        for k in range(1, NS2):
            if p['t2st']: I(f"s_sleep {p['t2st']}")
            t2issue(k)
        L = self.lab('t2'); Dn = self.lab('t2d')
        I(f'{L}:')
        hits = []
        for k in range(NS2):
            for i in range(4):
                I(f's_waitcnt vmcnt({4*(NS2-1) + 3-i})')
                self.tag_acc(T2B[k] + 4*i, i == 0)
            H = self.lab('t2h'); hits.append((H, T2B[k]))
            I(f"""v_cmp_ne_u32 vcc, 0, v16
s_cbranch_vccz {H}""")
            if p['sl2']: I(f"s_sleep {p['sl2']}")
            t2issue(k)
        I(f"""s_add_u32 s48, s48, 1
s_cmp_le_u32 s48, {self.glim}
s_cbranch_scc1 {L}""")
        for j, (H, r) in enumerate(hits):
            I(f'{H}:')
            I('s_waitcnt lgkmcnt(0)')
            for h in range(4): I(f'v_mul_f32 v{16+h}, v{r+h}, v{80+h}')
            for i in range(1, 4):
                for h in range(4): I(f'v_fmac_f32 v{16+h}, v{r+4*i+h}, v{80+4*i+h}')
            if j + 1 < len(hits): I(f's_branch {Dn}')
        I(f'{Dn}:')
        self.stamp(9)
        I("""v_permlane16_swap_b32 v16, v17
v_permlane16_swap_b32 v18, v19
v_add_f32 v16, v16, v17
v_add_f32 v18, v18, v19
v_permlane32_swap_b32 v16, v18
v_add_f32 v16, v16, v18
v_cvt_pk_bf16_f32 v16, v16, v16
ds_write_b16 v60, v16
s_waitcnt lgkmcnt(0)""")
        I(f"""{Lng}:
s_barrier""")
        self.stamp(10)
        I("""ds_read_b64_tr_b16 v[16:17], v59 offset:16384
ds_read_b64_tr_b16 v[18:19], v59 offset:20480
ds_read_b128 v[32:35], v62
ds_read_b64_tr_b16 v[20:21], v59
ds_read_b64_tr_b16 v[22:23], v59 offset:4096
ds_read_b128 v[36:39], v62 offset:64
ds_read_b64_tr_b16 v[24:25], v59 offset:8192
ds_read_b64_tr_b16 v[26:27], v59 offset:12288
s_waitcnt lgkmcnt(6)
v_mfma_f32_16x16x32_bf16 v[8:11], v[52:55], v[16:19], 0
s_waitcnt lgkmcnt(3)
v_mfma_f32_16x16x32_bf16 v[8:11], v[32:35], v[20:23], v[8:11]
s_waitcnt lgkmcnt(0)
v_mfma_f32_16x16x32_bf16 v[8:11], v[36:39], v[24:27], v[8:11]""")
        I(f"""v_perm_b32 v8, v8, v49, v50
v_perm_b32 v9, v9, v49, v51
s_mov_b64 exec, 0xffff
buffer_store_dwordx2 v[8:9], v63, s[20:23], 0 offen{(SC, ' sc0 sc1')[p['t3stf']]}
s_mov_b64 exec, -1""")
        self.stamp(11)
        Lend = 'L_CW_end'
        I(f"""s_cmp_ge_u32 s2, 32
s_cbranch_scc1 {Lend}
s_cmp_gt_u32 s8, 3
s_cbranch_scc1 {Lend}
s_mov_b32 s7, 4096""")
        NS = p['t3sets']
        L = self.lab('t3'); Dn = self.lab('t3d')
        def issue(k):
            r = 64 + 8*k
            fl = (SC, ' sc0 sc1', ' sc1 nt', ' sc0 sc1 nt')[p['t3ld']]
            I(f'buffer_load_dwordx4 v[{r}:{r+3}], v14, s[20:23], 0 offen{fl}')
            I(f'buffer_load_dwordx4 v[{r+4}:{r+7}], v14, s[20:23], s7 offen{fl}')
        if p['t3wait']: I('s_waitcnt vmcnt(0)')
        if p['t3delay']: I(f"s_sleep {p['t3delay']}")
        self.stamp(13)
        if p['stamps'] and not p['light']: I('s_mov_b32 s59, s48')
        if p['t3mask']:
            fl = (SC, ' sc0 sc1', ' sc1 nt', ' sc0 sc1 nt')[p['t3ld']]
            issue(0)
            La = self.lab('t3a'); Lb = self.lab('t3b'); Lh = self.lab('t3m')
            I(f'{L}:\ns_waitcnt vmcnt(0)')
            self.tag_acc(64, True)
            I('v_cmp_ne_u32 s[40:41], 0, v16')
            self.tag_acc(68, True)
            I(f"""v_cmp_ne_u32 s[42:43], 0, v16
s_or_b64 s[44:45], s[40:41], s[42:43]
s_cbranch_scc0 {Lh}
s_add_u32 s48, s48, 1
s_cmp_gt_u32 s48, {self.glim}
s_cbranch_scc1 {Lh}""")
            if p['sl3']: I(f"s_sleep {p['sl3']}")
            I(f"""s_mov_b64 exec, s[40:41]
s_cbranch_execz {La}
buffer_load_dwordx4 v[64:67], v14, s[20:23], 0 offen{fl}
{La}:
s_mov_b64 exec, s[42:43]
s_cbranch_execz {Lb}
buffer_load_dwordx4 v[68:71], v14, s[20:23], s7 offen{fl}
{Lb}:
s_mov_b64 exec, -1
s_branch {L}
{Lh}:""")
            for e in range(4): I(f'v_add_f32 v{20+e}, v{64+e}, v{68+e}')
            NS = 0
        for k in range(NS):
            issue(k)
            if k + 1 < NS and p['t3st']: I(f"s_sleep {p['t3st']}")
        if NS: I(f'{L}:')
        hits = []
        for k in range(NS):
            r = 64 + 8*k
            I(f's_waitcnt vmcnt({2*(NS-1)})')
            self.tag_acc(r, True)
            self.tag_acc(r + 4, False)
            H = self.lab('t3h'); hits.append((H, r))
            I(f"""v_cmp_ne_u32 vcc, 0, v16
s_cbranch_vccz {H}""")
            issue(k)
        if NS: I(f"""s_add_u32 s48, s48, 1
s_cmp_le_u32 s48, {self.glim}
s_cbranch_scc1 {L}""")
        for j, (H, r) in enumerate(hits):
            I(f'{H}:')
            for e in range(4): I(f'v_add_f32 v{20+e}, v{r+e}, v{r+4+e}')
            if j + 1 < len(hits): I(f's_branch {Dn}')
        I(f'{Dn}:')
        if p['stamps'] and not p['light']:
            I('s_sub_u32 s92, s48, s59\ns_add_u32 s92, s92, 1')
            self.stamp(15)
        I("""v_permlane16_swap_b32 v20, v21
v_permlane16_swap_b32 v22, v23
v_add_f32 v20, v20, v21
v_add_f32 v22, v22, v23
v_permlane32_swap_b32 v20, v22
v_add_f32 v20, v20, v22""")
        for rr in (2, 4, 8):
            I(f'v_add_f32_dpp v20, v20, v20 row_ror:{rr} row_mask:0xf bank_mask:0xf')
        I(f"""v_cvt_pk_bf16_f32 v20, v20, v20
s_mov_b32 exec_lo, 0x00030003
s_mov_b32 exec_hi, 0x00030003
buffer_store_short v20, v15, s[24:27], 0 offen
s_mov_b64 exec, -1""")
        I(f"""s_cmp_lg_u32 s2, 0
s_cbranch_scc1 L_CW_noe
s_cmp_lg_u32 s8, 0
s_cbranch_scc1 L_CW_noe
v_mov_b32 v5, {WS_E}
s_mov_b64 exec, 1
buffer_store_dword v49, v5, s[20:23], 0 offen{SC}
s_mov_b64 exec, -1
L_CW_noe:""")
        self.stamp(12)
        I(f'{Lend}:')
        self.stamp_dump('s[20:23]', 16)
        I('s_endpgm')

    def build(self):
        I = self.I
        I('''s_cmp_ge_u32 s2, 256
s_cbranch_scc1 L_exit''')
        if self.p['stamps']:
            for i in range(16): I(f's_mov_b32 s{64+2*i}, 0')
            self.stamp(0)
        I(f'''v_lshrrev_b32 v1, 6, v0
s_and_b32 s4, s2, 7
s_lshr_b32 s5, s2, 3
s_mov_b32 s48, 0
v_readfirstlane_b32 s3, v1
s_cmp_ge_u32 s3, {W_L0}
s_cbranch_scc1 L_LD
s_cmp_ge_u32 s3, {W_C0}
s_cbranch_scc1 L_CW
s_cmp_eq_u32 s3, {W_J1}
s_cbranch_scc1 L_J1''')
        self.role_j0()
        self.role_j1()
        self.role_compute()
        self.role_loader()
        I('L_exit:\ns_endpgm\nL_codeend:')
        head = f'''; Fused decode step: GQA attention over the KV cache + SwiGLU FFN + sigmoid-gated mix.
; @launch grid=(256,1,1) block=(896,1,1) lds={LDS_BYTES}
.amdgcn_target "amdgcn-amd-amdhsa--gfx950"
.text
.globl {KNAME}
.p2align 8
.type {KNAME},@function
{KNAME}:
'''
        foot = f'''.section .rodata,"a"
.p2align 6
.amdhsa_kernel {KNAME}
  .amdhsa_next_free_vgpr 128
  .amdhsa_next_free_sgpr 102
  .amdhsa_accum_offset 128
  .amdhsa_group_segment_fixed_size 0
  .amdhsa_kernarg_size 104
  .amdhsa_user_sgpr_count 2
  .amdhsa_user_sgpr_kernarg_segment_ptr 1
  .amdhsa_system_sgpr_workgroup_id_x 1
.end_amdhsa_kernel
'''
        return head + self.a.text() + foot

def main():
    out = sys.argv[1]
    kw = {}
    for arg in sys.argv[2:]:
        k, v = arg.split('=')
        assert k in DEF or k in ('pfn',), k
        kw[k] = (v == 'True') if v in ('True', 'False') else int(v)
    open(out, 'w').write(G(**kw).build())

if __name__ == '__main__':
    main()
```

```python
import sys, math, struct
from emit import Asm

def fhex(x): return '0x%08x' % struct.unpack('<I', struct.pack('<f', x))[0]
KNAME = 'gated_mix__gqa_block_cached__swiglu_ffn__decode_kernel'

WS_Q  = 0x000000
WS_F  = 0x020000
WS_ID = 0x030000
COPYB = 0x040000
WS_ST = 0x080000
WS_E  = 0x088000
WS_T1 = 0x100000
WS_T3 = 0x180000
WS_DBG = 0x200000
WS_SIZE = 0x400000

V_OFF = 0
STG0 = 0
STG1 = 16384
WO_OFF = 131072
WD_OFF = 147456
P_OFF = 155648
Q_OFF = 159744
MISC = 160768
MX = MISC
LX = MISC + 128
A1 = MISC + 256
A2 = MISC + 512
GATE = MISC + 640
CNT = MISC + 704
WL = MISC + 1024
C_Q, C_H, C_K, C_1, C_2, C_A, C_M, C_W = 0, 4, 8, 12, 16, 20, 24, 28
LDS_BYTES = 163840

SPIN_LIMIT = 300000
SC = ' sc1'
W_J0, W_J1, W_C0, W_L0 = 0, 1, 2, 10

DEF = dict(nt_k=True, nt_v=True, nt_w=True, dk=4, dv=6, dv2=4, dvn=0, stamps=False, na=14, ksig=0, kthr=4,
           slq=2, slf=2, sls=2, sl2=0, sl3=0, pf=False, na_polls=10, force_remote=False, nopoll=False,
           t3sets=1, t3st=4, tlb=False, sw=2, t3delay=0, t3ld=0, t3stf=0, x_nob=False, qdelay=0,
           x_stream=False, rka=1, rkb=3, rkc=0, x_start=False, t2sets=1, t2st=3, wpos=32, wsplit=6, light=False, t3mask=True, t3wait=True, t2wait=False, t2mask=False, prio_ld=0, prio_j=0, sla=1, slk=2, rcb=1, rcc=0)

class G:
    def __init__(self, **kw):
        self.p = dict(DEF); self.p.update(kw)
        self.a = Asm()
        self.uid = 0
        self.glim = 0 if self.p['nopoll'] else SPIN_LIMIT
    def I(self, s): self.a.I(s)
    def lab(self, base):
        self.uid += 1
        return f'L_{base}_{self.uid}'
    def stamp(self, i):
        if self.p['stamps'] and (not self.p['light'] or i in (0, 12)):
            self.I(f's_memrealtime s[{64+2*i}:{65+2*i}]')
            self.I('s_waitcnt lgkmcnt(0)')
    def stamp_dump(self, srd, n=12):
        if not self.p['stamps']: return
        I = self.I
        I('s_mov_b64 exec, -1')
        I('s_lshl_b32 s6, s2, 4')
        I('s_add_u32 s6, s6, s3')
        I('s_lshl_b32 s6, s6, 6')
        I(f's_add_u32 s6, s6, {WS_DBG}')
        I('v_mov_b32 v1, s6')
        I('s_mov_b64 exec, 1')
        for j in range(0, n, 4):
            for t in range(4):
                I(f'v_mov_b32 v{4+t}, s{64+2*(j+t)}')
            I(f'buffer_store_dwordx4 v[4:7], v1, {srd}, 0 offen offset:{j*4}')
        I('s_mov_b64 exec, -1')
    def signal(self, vC, vOne, off):
        self.I(f'''s_mov_b64 exec, 1
ds_add_u32 {vC}, {vOne} offset:{off}
s_mov_b64 exec, -1''')
    def lds_wait(self, vC, vT, off, n, sleep=1):
        L = self.lab('lw'); D = self.lab('lwd')
        self.I(f'''{L}:
ds_read_b32 {vT}, {vC} offset:{off}
s_add_u32 s48, s48, 1
s_waitcnt lgkmcnt(0)
v_readfirstlane_b32 s49, {vT}
s_cmp_ge_u32 s49, {n}
s_cbranch_scc1 {D}
s_cmp_gt_u32 s48, {SPIN_LIMIT}
s_cbranch_scc1 {D}''')
        if sleep: self.I(f's_sleep {sleep}')
        self.I(f'''s_branch {L}
{D}:''')
    def tag_load(self, wsbase):
        self.I(f's_load_dword s52, s[{wsbase}:{wsbase+1}], {WS_E}')
        for i in range(4): self.I(f's_mov_b32 s{53+i}, 0x0706050{i}')
        self.I('s_mov_b32 s57, 0x0c0c0400\ns_mov_b32 s58, 0x04000c0c')
    def tag_ready(self):
        self.I('s_waitcnt lgkmcnt(0)\ns_add_u32 s52, s52, 1')
    def tag_acc(self, r, first, acc='v16', t1='v17', t2='v18', t3='v19'):
        self.I(f'v_perm_b32 {t2}, v{r+1}, v{r}, s57\nv_perm_b32 {t3}, v{r+3}, v{r+2}, s58\nv_or_b32 {t2}, {t2}, {t3}')
        if first: self.I(f'v_xor_b32 {acc}, s52, {t2}')
        else: self.I(f'v_xor_b32 {t1}, s52, {t2}\nv_or_b32 {acc}, {acc}, {t1}')
    def poll_tail(self, L, D, acc, sleep):
        self.I(f'''v_cmp_ne_u32 vcc, 0, {acc}
s_cbranch_vccz {D}
s_cmp_gt_u32 s48, {self.glim}
s_cbranch_scc1 {D}''')
        if sleep: self.I(f's_sleep {sleep}')
    def srd(self, base, karg_off, size):
        self.I(f's_load_dwordx2 s[{base}:{base+1}], s[0:1], {karg_off}')
        self.I(f's_mov_b32 s{base+2}, {size}')
        self.I(f's_mov_b32 s{base+3}, 0x20000')
    def stats_loads(self):
        self.I(f"""buffer_load_dwordx4 v[64:67], v61, s[20:23], 0 offen{SC}
buffer_load_dwordx4 v[68:71], v61, s[20:23], 0 offen offset:16{SC}""")
    def stats_check(self):
        self.tag_acc(64, True, 'v5', 'v6', 'v7', 'v4')
        self.tag_acc(68, False, 'v5', 'v6', 'v7', 'v4')
    def lane_setup(self):
        self.I('''v_and_b32 v1, 63, v0
v_lshrrev_b32 v2, 4, v1
v_and_b32 v3, 15, v1''')
    def mode_store(self, ins, smode):
        Lr = self.lab('ms'); Le = self.lab('mse')
        self.I(f'''s_cmp_eq_u32 {smode}, 0
s_cbranch_scc1 {Lr}
{ins}
s_branch {Le}
{Lr}:
{ins}{SC}
{Le}:''')

    def qtile_issue(self, srdW, srdX, sBase, sKs):
        I = self.I; pitch = 8192; stg = STG0
        ntf = ' nt' if self.p['nt_w'] else ''
        I(f'''v_lshrrev_b32 v4, 5, v1
v_lshlrev_b32 v4, 3, v4
v_bfe_u32 v5, v1, 3, 2
v_add_u32 v4, v4, v5
v_mul_u32_u24 v4, {pitch}, v4
v_and_b32 v5, 7, v1
v_bfe_u32 v6, v1, 4, 2
v_lshlrev_b32 v6, 1, v6
v_xor_b32 v5, v5, v6
v_lshlrev_b32 v5, 4, v5
v_add_u32 v4, v4, v5''')
        for i in range(16):
            rowi = 32*(i >> 2) + 16*(i & 1) + 4*((i >> 1) & 1)
            I(f's_mov_b32 m0, {stg + i*1024}')
            I(f's_add_u32 s7, {sBase}, {rowi*pitch}')
            I(f'buffer_load_dwordx4 v4, {srdW}, s7 offen{ntf} lds')
        I(f'''v_and_b32 v5, 1, v3
v_lshlrev_b32 v5, 10, v5
v_lshlrev_b32 v6, 4, v2
v_add_u32 v5, v5, v6
s_lshl_b32 s6, {sKs}, 8
v_add_u32 v5, s6, v5''')
        for kk in range(4):
            I(f'buffer_load_dwordx4 v[{8+4*kk}:{11+4*kk}], v5, {srdX}, 0 offen offset:{kk*64}')
        I(f'''v_lshrrev_b32 v6, 2, v3
v_and_b32 v7, 3, v3
v_lshlrev_b32 v28, 2, v2
v_add_u32 v28, v28, v6
v_lshlrev_b32 v28, 7, v28
v_lshlrev_b32 v7, 3, v7
v_add_u32 v28, v28, v7
v_add_u32 v28, {stg}, v28
v_lshlrev_b32 v29, 1, v2
v_lshrrev_b32 v6, 1, v6
v_add_u32 v29, v29, v6
v_and_b32 v29, 3, v29''')
        for nt_ in range(4):
            I(f'''v_xor_b32 v6, {nt_}, v29
v_lshlrev_b32 v6, 5, v6
v_add_u32 v{24+nt_}, v28, v6''')
    def qtile_compute(self):
        I = self.I
        def reads(kk, setb):
            for nt_ in range(4):
                for hf in range(2):
                    r = setb + 4*nt_ + 2*hf
                    I(f'ds_read_b64_tr_b16 v[{r}:{r+1}], v{24+nt_} offset:{kk*4096 + hf*2048}')
        def mf(kk, setb):
            for nt_ in range(4):
                c = '0' if kk == 0 else f'v[{64+4*nt_}:{67+4*nt_}]'
                I(f'v_mfma_f32_16x16x32_bf16 v[{64+4*nt_}:{67+4*nt_}], v[{8+4*kk}:{11+4*kk}], v[{setb+4*nt_}:{setb+4*nt_+3}], {c}')
        sets = (32, 48)
        reads(0, sets[0])
        for kk in range(4):
            I('s_waitcnt lgkmcnt(0)')
            if kk < 3: reads(kk+1, sets[(kk+1) & 1])
            mf(kk, sets[kk & 1])
        I('''s_mov_b32 s40, 0xffff0000
s_mov_b32 s41, 0
s_mov_b32 s42, 0
s_mov_b32 s43, 0x0000ffff
s_mov_b32 s44, 0
s_mov_b32 s45, 0xffff0000''')
        for b in range(2):
            I(f'''v_cndmask_b32 v{40+b}, v{64+b}, v{68+b}, s[40:41]
v_cndmask_b32 v{40+b}, v{40+b}, v{72+b}, s[42:43]
v_cndmask_b32 v{40+b}, v{40+b}, v{76+b}, s[44:45]''')

    def ftile_issue(self, srdW, srdX, sBase, sKs):
        I = self.I; pitch = 3584; stg = STG1
        ntf = ' nt' if self.p['nt_w'] else ''
        I(f'''v_lshrrev_b32 v4, 4, v1
v_lshlrev_b32 v4, 3, v4
v_bfe_u32 v5, v1, 2, 2
v_add_u32 v4, v4, v5
v_mul_u32_u24 v4, {pitch}, v4
v_and_b32 v5, 3, v1
v_bfe_u32 v6, v1, 4, 1
v_lshlrev_b32 v6, 1, v6
v_xor_b32 v5, v5, v6
v_lshlrev_b32 v5, 4, v5
v_add_u32 v4, v4, v5''')
        for i in range(16):
            rowi = 32*(i >> 1) + 4*(i & 1)
            I(f's_mov_b32 m0, {stg + i*1024}')
            I(f's_add_u32 s7, {sBase}, {rowi*pitch}')
            I(f'buffer_load_dwordx4 v4, {srdW}, s7 offen{ntf} lds')
        I(f'''v_and_b32 v5, 1, v3
v_lshlrev_b32 v5, 10, v5
v_lshlrev_b32 v6, 4, v2
v_add_u32 v5, v5, v6
s_lshl_b32 s6, {sKs}, 9
v_add_u32 v5, s6, v5''')
        for kk in range(8):
            I(f'buffer_load_dwordx4 v[{96+4*kk}:{99+4*kk}], v5, {srdX}, 0 offen offset:{kk*64}')
        I(f'''v_lshrrev_b32 v6, 2, v3
v_and_b32 v7, 3, v3
v_lshlrev_b32 v28, 2, v2
v_add_u32 v28, v28, v6
v_lshlrev_b32 v28, 6, v28
v_lshlrev_b32 v7, 3, v7
v_add_u32 v28, v28, v7
v_add_u32 v28, {stg}, v28
v_and_b32 v29, 1, v2
v_lshlrev_b32 v6, 5, v29
v_add_u32 v24, v28, v6
v_xor_b32 v6, 1, v29
v_lshlrev_b32 v6, 5, v6
v_add_u32 v25, v28, v6''')
    def ftile_compute(self):
        I = self.I
        def reads(k2, setb):
            for kq in range(2):
                kk = 2*k2 + kq
                for nt_ in range(2):
                    for hf in range(2):
                        r = setb + 8*kq + 4*nt_ + 2*hf
                        I(f'ds_read_b64_tr_b16 v[{r}:{r+1}], v{24+nt_} offset:{kk*2048 + hf*1024}')
        def mf(k2, setb):
            for kq in range(2):
                kk = 2*k2 + kq
                for nt_ in range(2):
                    c = '0' if kk == 0 else f'v[{64+4*nt_}:{67+4*nt_}]'
                    r = setb + 8*kq + 4*nt_
                    I(f'v_mfma_f32_16x16x32_bf16 v[{64+4*nt_}:{67+4*nt_}], v[{96+4*kk}:{99+4*kk}], v[{r}:{r+3}], {c}')
        sets = (32, 48)
        reads(0, sets[0])
        for k2 in range(4):
            I('s_waitcnt lgkmcnt(0)')
            if k2 < 3: reads(k2+1, sets[(k2+1) & 1])
            mf(k2, sets[k2 & 1])
        I('''s_mov_b32 s40, 0xffff0000
s_mov_b32 s41, 0
s_mov_b32 s42, 0
s_mov_b32 s43, 0x0000ffff
s_mov_b32 s44, 0
s_mov_b32 s45, 0xffff0000
v_cndmask_b32 v40, v64, v68, s[40:41]
v_cndmask_b32 v40, v40, v65, s[42:43]
v_cndmask_b32 v40, v40, v69, s[44:45]''')

    def role_j0(self):
        I = self.I; p = self.p
        I('L_J0:')
        if p['prio_j']: I(f"s_setprio {p['prio_j']}")
        self.srd(16, 24, 0x400000)
        self.srd(20, 0, 2048)
        self.srd(24, 96, WS_SIZE)
        I('s_barrier')
        if p['x_stream']: I('s_endpgm')
        self.lane_setup()
        I(f"""s_lshr_b32 s8, s5, 2          ; qcl
s_and_b32 s9, s5, 3           ; ks
s_mul_i32 s10, s9, 128*8192
s_lshl_b32 s6, s4, 10
s_add_u32 s10, s10, s6
s_lshl_b32 s6, s8, 7
s_add_u32 s10, s10, s6
s_getreg_b32 s12, hwreg(HW_REG_XCC_ID, 0, 4)
v_mov_b32 v90, {CNT}
v_mov_b32 v91, 1
s_waitcnt lgkmcnt(0)""")
        self.qtile_issue('s[16:19]', 's[20:23]', 's10', 's9')
        self.tag_load(24)
        I("""v_and_b32 v81, 3, v1
v_add_u32 v81, 0x07060500, v81
s_lshl_b32 s13, s12, 8
v_mov_b32 v82, s13""")
        self.stamp(1)
        I('s_waitcnt vmcnt(0)')
        self.tag_ready()
        I('v_mov_b32 v80, s52')
        self.stamp(2)
        self.qtile_compute()
        I(f"""v_perm_b32 v40, v40, v80, v81
v_perm_b32 v41, v41, v80, v81
v_perm_b32 v82, v82, v80, v81
s_lshl_b32 s6, s4, 3
s_add_u32 s6, s6, s9
s_lshl_b32 s6, s6, 11         ; (g*8 + ks)*2048
s_lshl_b32 s7, s8, 8
s_add_u32 s6, s6, s7
v_lshlrev_b32 v4, 2, v1
v_add_u32 v5, s6, v4
v_add_u32 v6, {4*2048}, v5
s_lshl_b32 s6, s4, 5
s_add_u32 s6, s6, s5
s_lshl_b32 s6, s6, 7
s_add_u32 s6, s6, {WS_ID}
v_add_u32 v7, s6, v4
s_mov_b32 s14, {COPYB}
buffer_store_dword v40, v5, s[24:27], 0 offen
buffer_store_dword v41, v6, s[24:27], 0 offen
s_mov_b32 exec_hi, 0
buffer_store_dword v82, v7, s[24:27], 0 offen
s_mov_b32 exec_hi, -1
""")
        if not p['x_nob']:
            I(f"""buffer_store_dword v40, v5, s[24:27], s14 offen{SC}
buffer_store_dword v41, v6, s[24:27], s14 offen{SC}
s_mov_b32 exec_hi, 0
buffer_store_dword v82, v7, s[24:27], s14 offen{SC}
s_mov_b32 exec_hi, -1""")
        if p['qdelay']: I(f"s_sleep {p['qdelay']}")
        self.stamp(3)
        I(f"""s_lshl_b32 s6, s4, 1
s_lshr_b32 s7, s5, 4          ; b
s_add_u32 s6, s6, s7
s_lshl_b32 s6, s6, 13
v_lshlrev_b32 v4, 4, v1
v_add_u32 v4, s6, v4
v_and_b32 v5, 31, v1
v_lshlrev_b32 v5, 7, v5
s_lshl_b32 s6, s4, 12
s_add_u32 s6, s6, {WS_ID}
v_add_u32 v5, s6, v5
s_mov_b32 s15, {COPYB if p['force_remote'] else 0}
s_mov_b32 s11, 0""")
        L = self.lab('qg'); D = self.lab('qgd'); Lk = self.lab('qgk')
        I(f'{L}:')
        for ks in range(4):
            I(f's_add_u32 s7, s15, {ks*2048}')
            for i in range(2):
                r = 8 + 8*ks + 4*i
                I(f'buffer_load_dwordx4 v[{r}:{r+3}], v4, s[24:27], s7 offen offset:{i*1024}{SC}')
        I(f'buffer_load_dwordx4 v[40:43], v5, s[24:27], s15 offen{SC}')
        I('s_add_u32 s48, s48, 1\ns_add_u32 s11, s11, 1\ns_waitcnt vmcnt(0)')
        for j in range(9):
            self.tag_acc(8 + 4*j, j == 0, 'v44', 'v45', 'v46', 'v47')
        self.poll_tail(L, D, 'v44', p['slq'])
        if not p['force_remote']:
            I(f"""s_cmp_lt_u32 s11, {p['na_polls']}
s_cbranch_scc1 {L}
s_xor_b32 s15, s15, {COPYB}""")
        I(f"""s_branch {L}
{D}:""")
        self.stamp(5)
        I(f"""v_bfe_u32 v40, v40, 8, 4
v_cmp_ne_u32 vcc, s12, v40
s_cmp_eq_u64 vcc, 0
s_cselect_b32 s6, {0 if p['force_remote'] else 1}, 0
v_mov_b32 v44, s6
s_mov_b64 exec, 1
ds_write_b32 v90, v44 offset:{C_M}
s_mov_b64 exec, -1""")
        for e in range(8):
            I(f'v_add_f32 v{8+e}, v{8+e}, v{16+e}')
            I(f'v_add_f32 v{24+e}, v{24+e}, v{32+e}')
        for e in range(8):
            I(f'v_add_f32 v{8+e}, v{8+e}, v{24+e}')
        I(f"""v_cvt_pk_bf16_f32 v40, v8, v9
v_cvt_pk_bf16_f32 v41, v10, v11
v_cvt_pk_bf16_f32 v42, v12, v13
v_cvt_pk_bf16_f32 v43, v14, v15
v_lshlrev_b32 v4, 3, v1
v_add_u32 v4, {Q_OFF}, v4
ds_write_b64 v4, v[40:41]
ds_write_b64 v4, v[42:43] offset:512""")
        self.signal('v90', 'v91', C_Q)
        I('s_waitcnt lgkmcnt(0)')
        self.stamp(6)
        self.stamp_dump('s[24:27]')
        I('s_endpgm')

    def role_j1(self):
        I = self.I; p = self.p
        I('L_J1:')
        I('s_load_dwordx4 s[8:11], s[0:1], 48')
        self.srd(20, 0, 2048)
        self.srd(24, 96, WS_SIZE)
        self.srd(28, 72, 1024)
        I('s_barrier')
        if p['x_stream']: I('s_endpgm')
        self.lane_setup()
        I(f"""s_mul_i32 s12, s5, 9363
s_lshr_b32 s12, s12, 16
s_mul_i32 s13, s12, 7
s_sub_u32 s13, s5, s13        ; cf
s_and_b32 s14, s12, 1         ; mat
s_lshr_b32 s15, s12, 1        ; ks
v_mov_b32 v90, {CNT}
v_mov_b32 v91, 1
s_waitcnt lgkmcnt(0)
s_cmp_eq_u32 s14, 0
s_cselect_b32 s16, s8, s10
s_cselect_b32 s17, s9, s11
s_mov_b32 s18, {512*1792*2}
s_mov_b32 s19, 0x20000
s_mul_i32 s8, s15, 256*3584
s_mul_i32 s6, s4, 448
s_add_u32 s8, s8, s6
s_lshl_b32 s6, s13, 6
s_add_u32 s8, s8, s6""")
        Lskip = self.lab('nof1'); Lj = self.lab('f1j')
        I(f"""s_cmp_ge_u32 s5, 28
s_cbranch_scc1 {Lskip}""")
        self.ftile_issue('s[16:19]', 's[20:23]', 's8', 's15')
        I(f'{Lskip}:')
        I("""v_lshlrev_b32 v80, 4, v1
buffer_load_dwordx4 v[84:87], v80, s[20:23], 0 offen
buffer_load_dwordx4 v[88:91], v80, s[20:23], 0 offen offset:1024
buffer_load_dwordx4 v[92:95], v80, s[28:31], 0 offen""")
        self.tag_load(24)
        I("""v_and_b32 v81, 3, v1
v_add_u32 v81, 0x07060500, v81""")
        self.stamp(1)
        I('s_waitcnt vmcnt(0)')
        self.tag_ready()
        I('v_mov_b32 v80, s52')
        self.stamp(2)
        I(f"""s_cmp_ge_u32 s5, 28
s_cbranch_scc1 {Lj}""")
        self.ftile_compute()
        I(f"""v_perm_b32 v40, v40, v80, v81
s_lshl_b32 s6, s4, 2
s_add_u32 s6, s6, s12
s_lshl_b32 s6, s4, 2
s_lshl_b32 s7, s14, 1
s_add_u32 s6, s6, s7
s_add_u32 s6, s6, s15
s_lshl_b32 s6, s6, 11         ; *[b 2][256] f32
s_lshl_b32 s7, s13, 7
s_add_u32 s6, s6, s7
s_add_u32 s6, s6, {WS_F}
v_lshrrev_b32 v4, 5, v1
v_lshlrev_b32 v4, 10, v4
v_and_b32 v5, 31, v1
v_lshlrev_b32 v5, 2, v5
v_add_u32 v4, v4, v5
v_add_u32 v4, s6, v4
s_mov_b32 s7, {COPYB}
buffer_store_dword v40, v4, s[24:27], 0 offen""")
        if not p['x_nob']: I(f'buffer_store_dword v40, v4, s[24:27], s7 offen{SC}')
        if p['qdelay']: I(f"s_sleep {p['qdelay']}")
        I(f'{Lj}:')
        self.stamp(3)
        I('v_mov_b32 v8, 0\nv_mov_b32 v9, 0')
        for e in range(4):
            I(f"""v_lshlrev_b32 v10, 16, v{92+e}
v_and_b32 v11, 0xffff0000, v{92+e}
v_lshlrev_b32 v12, 16, v{84+e}
v_and_b32 v13, 0xffff0000, v{84+e}
v_lshlrev_b32 v14, 16, v{88+e}
v_and_b32 v15, 0xffff0000, v{88+e}
v_fmac_f32 v8, v10, v12
v_fmac_f32 v9, v10, v14
v_fmac_f32 v8, v11, v13
v_fmac_f32 v9, v11, v15""")
        for rr in (8, 4, 2, 1):
            I(f'v_add_f32_dpp v8, v8, v8 row_ror:{rr} row_mask:0xf bank_mask:0xf')
            I(f'v_add_f32_dpp v9, v9, v9 row_ror:{rr} row_mask:0xf bank_mask:0xf')
        for sw in ('v_permlane16_swap_b32', 'v_permlane32_swap_b32'):
            I(f"""v_mov_b32 v10, v8
v_mov_b32 v11, v9
{sw} v8, v10
{sw} v9, v11
v_add_f32 v8, v8, v10
v_add_f32 v9, v9, v11""")
        I(f"""v_mul_f32 v8, {fhex(-math.log2(math.e))}, v8
v_mul_f32 v9, {fhex(-math.log2(math.e))}, v9
v_exp_f32 v8, v8
v_exp_f32 v9, v9
v_add_f32 v8, 1.0, v8
v_add_f32 v9, 1.0, v9
v_rcp_f32 v8, v8
v_rcp_f32 v9, v9
v_mov_b32 v10, {GATE}
s_mov_b64 exec, 1
ds_write_b64 v10, v[8:9]
s_mov_b64 exec, -1
s_mov_b32 s40, 0
s_mov_b32 s41, -1
v_cndmask_b32 v16, v8, v9, s[40:41]
v_sub_f32 v16, 1.0, v16""")
        I('v_mov_b32 v90, %d\nv_mov_b32 v91, 1' % CNT)
        self.signal('v90', 'v91', C_H)
        I(f"""s_lshl_b32 s6, s4, 13         ; g*[mat][ks][b][256]*4
s_lshr_b32 s7, s5, 2
s_mul_i32 s7, s7, 112
s_add_u32 s6, s6, s7
s_add_u32 s6, s6, {WS_F}
v_and_b32 v4, 31, v1
v_min_u32 v5, 27, v4
v_and_b32 v17, 3, v5
v_lshlrev_b32 v17, 3, v17
v_lshrrev_b32 v17, v17, v80
v_lshlrev_b32 v5, 2, v5
v_lshrrev_b32 v6, 5, v1
v_lshlrev_b32 v6, 10, v6
v_add_u32 v5, v5, v6
v_add_u32 v5, s6, v5
s_mov_b32 s15, {COPYB if p['force_remote'] else 0}
s_mov_b32 s11, 0""")
        L = self.lab('hg'); D = self.lab('hgd')
        I(f'{L}:')
        for m in range(4):
            I(f's_add_u32 s7, s15, {m*2048}')
            I(f'buffer_load_dword v{24+m}, v5, s[24:27], s7 offen{SC}')
        I('s_add_u32 s48, s48, 1\ns_add_u32 s11, s11, 1\ns_waitcnt vmcnt(0)')
        I('v_xor_b32 v18, v24, v17')
        for j in range(1, 4):
            I(f'v_xor_b32 v19, v{24+j}, v17\nv_or_b32 v18, v18, v19')
        I('v_and_b32 v18, 0xff, v18')
        self.poll_tail(L, D, 'v18', p['slf'])
        if not p['force_remote']:
            I(f"""s_cmp_lt_u32 s11, {p['na_polls']}
s_cbranch_scc1 {L}
s_xor_b32 s15, s15, {COPYB}""")
        I(f"""s_branch {L}
{D}:""")
        self.stamp(5)
        I(f"""v_add_f32 v24, v24, v25
v_add_f32 v28, v26, v27
v_mul_f32 v25, {fhex(-math.log2(math.e))}, v24
v_exp_f32 v25, v25
v_add_f32 v25, 1.0, v25
v_rcp_f32 v25, v25
v_mul_f32 v24, v24, v25
v_mul_f32 v24, v24, v28
v_mul_f32 v24, v24, v16
v_cmp_gt_u32 vcc, 28, v4
v_cndmask_b32 v24, 0, v24, vcc
v_cvt_pk_bf16_f32 v24, v24, v24
v_bfe_u32 v6, v4, 2, 2
v_lshlrev_b32 v6, 4, v6
v_lshrrev_b32 v7, 4, v4
v_lshlrev_b32 v7, 3, v7
v_add_u32 v6, v6, v7
v_and_b32 v7, 3, v4
v_lshlrev_b32 v7, 1, v7
v_add_u32 v6, v6, v7
v_lshrrev_b32 v7, 5, v1
v_lshlrev_b32 v7, 6, v7
v_add_u32 v6, v6, v7
v_add_u32 v6, {A2}, v6
ds_write_b16 v6, v24
s_waitcnt lgkmcnt(0)""")
        self.stamp(6)
        self.stamp_dump('s[24:27]')
        I('s_endpgm')

    def role_loader(self):
        I = self.I; p = self.p
        ntv = ' nt' if p['nt_v'] else ''
        ntw = ' nt' if p['nt_w'] else ''
        I('L_LD:')
        if p['prio_ld']: I(f"s_setprio {p['prio_ld']}")
        I(f"""s_sub_u32 s8, s3, {W_L0}           ; loader j
v_mov_b32 v90, {CNT}
v_mov_b32 v91, 1
s_cmp_lg_u32 s8, 0
s_cbranch_scc1 L_LD_noinit
v_mov_b32 v8, 0
v_mov_b32 v9, 0
v_mov_b32 v10, 0
v_mov_b32 v11, 0
ds_write_b128 v90, v[8:11]
ds_write_b128 v90, v[8:11] offset:16
s_waitcnt lgkmcnt(0)
L_LD_noinit:
s_barrier""")
        self.srd(16, 16, 0x2000000)
        self.srd(20, 32, 0x400000)
        self.srd(24, 64, 1792*512*2)
        self.srd(28, 96, WS_SIZE)
        self.lane_setup()
        if p['pf']:
            I(f"""s_cmp_lg_u32 s8, 3
s_cbranch_scc1 L_LD_nopf
s_getpc_b64 s[36:37]
L_PC:
s_add_u32 s36, s36, {KNAME}-L_PC
s_addc_u32 s37, s37, -1
v_lshlrev_b32 v4, 4, v1
s_mov_b32 s6, L_codeend-{KNAME}-16""")
            for j in range(p.get('pfn', 14)):
                I(f"""v_min_u32 v5, s6, v4
global_load_dwordx4 v[12:15], v5, s[36:37]
v_add_u32 v4, 1024, v4""")
            I('L_LD_nopf:')
        I('s_waitcnt lgkmcnt(0)')
        TLBMARK = True
        I(f"""s_and_b32 s6, s8, 1
s_lshl_b32 s6, s6, 2
v_add_u32 v5, s6, v2          ; (4*(j&1) + rho)
v_lshlrev_b32 v5, 1, v5
v_xor_b32 v5, v5, v3          ; chunk
v_lshlrev_b32 v5, 4, v5
v_lshlrev_b32 v6, 8, v2
v_add_u32 v10, v5, v6         ; V voffset
v_lshlrev_b32 v6, 17, v2
v_add_u32 v11, v5, v6
v_lshlrev_b32 v6, 10, v2
v_add_u32 v16, v5, v6
s_lshr_b32 s6, s5, 4          ; b
s_lshl_b32 s6, s6, 3
s_add_u32 s6, s6, s4          ; bh
s_lshl_b32 s10, s6, 21
s_and_b32 s6, s5, 15          ; t
s_lshl_b32 s6, s6, 17
s_add_u32 s10, s10, s6
s_and_b32 s6, s8, 1
s_lshl_b32 s6, s6, 10
s_add_u32 s10, s10, s6        ; V base + (j & 1) * 1024
s_lshr_b32 s11, s5, 2         ; w'
s_and_b32 s12, s5, 3          ; cg
s_lshl_b32 s13, s4, 9
s_lshl_b32 s6, s11, 4
s_add_u32 s13, s13, s6
s_add_u32 s13, s13, s8
s_lshl_b32 s13, s13, 10
s_lshl_b32 s6, s12, 8
s_add_u32 s13, s13, s6
s_lshl_b32 s14, s4, 3
s_add_u32 s14, s14, s11       ; rg
s_mul_i32 s14, s14, 28
s_lshl_b32 s6, s8, 2
s_add_u32 s15, s14, s6
s_add_u32 s6, s8, 4
s_min_u32 s6, s6, 6
s_lshl_b32 s6, s6, 2
s_add_u32 s14, s14, s6
s_lshl_b32 s15, s15, 10
s_lshl_b32 s14, s14, 10
s_lshl_b32 s6, s12, 8
s_add_u32 s15, s15, s6
s_add_u32 s14, s14, s6
s_lshl_b32 s9, s8, 10         ; j*1024""")
        if p['tlb']:
            Lt = self.lab('tlb')
            I(f"""s_cmp_lg_u32 s8, 2
s_cbranch_scc1 {Lt}
v_mov_b32 v20, 0
s_mov_b64 exec, 1
buffer_load_dword v21, v20, s[16:19], s10 offen
buffer_load_dword v22, v20, s[20:23], s13 offen
buffer_load_dword v23, v20, s[24:27], s15 offen
s_mov_b32 s6, {WS_T1}
buffer_load_dword v24, v20, s[28:31], s6 offen
s_mov_b32 s6, {WS_T3}
buffer_load_dword v25, v20, s[28:31], s6 offen
s_mov_b32 s6, {WS_ST}
buffer_load_dword v26, v20, s[28:31], s6 offen
s_mov_b64 exec, -1
{Lt}:""")
        self.stamp(1)
        self.lds_wait('v90', 'v7', C_K, p['kthr'], sleep=p['slk'])
        I('s_waitcnt vmcnt(0)')
        self.stamp(2)
        loads = []
        I(f"""s_mul_i32 s61, s5, {p['rkb']}
s_mul_i32 s6, s4, {p['rkc']}
s_add_u32 s61, s61, s6
s_lshr_b32 s6, s8, 1
s_add_u32 s61, s61, s6
s_mul_i32 s62, s5, {p['rcb']}
s_mul_i32 s6, s4, {p['rcc']}
s_add_u32 s62, s62, s6""")
        for q in range(32):
            cw = q >> 2
            loads.append([f's_add_u32 m0, s9, {V_OFF + q*4096}',
                          f's_add_u32 s6, s61, {cw*p["rka"] + 2*(q & 3)}',
                          f's_and_b32 s6, s6, 7',
                          f's_lshl_b32 s6, s6, 11',
                          f's_add_u32 s6, s6, s10',
                          f's_add_u32 s7, s62, {cw}',
                          f's_and_b32 s7, s7, 7',
                          f's_lshl_b32 s7, s7, 14',
                          f's_add_u32 s6, s6, s7',
                          f'buffer_load_dwordx4 v10, s[16:19], s6 offen{ntv} lds'])
        for q in range(4):
            loads.append([f's_add_u32 m0, s9, {WO_OFF + q*4096}',
                          f's_add_u32 s6, s13, {q*4096}',
                          f'buffer_load_dwordx4 v11, s[20:23], s6 offen{ntw} lds'])
        loads.append([f's_add_u32 m0, s9, {WD_OFF}', 's_nop 0', f'buffer_load_dwordx4 v16, s[24:27], s15 offen{ntw} lds'])
        loads.append([f's_add_u32 m0, s9, {WD_OFF + 4096}', 's_nop 0', f'buffer_load_dwordx4 v16, s[24:27], s14 offen{ntw} lds'])
        vl, wl = loads[:32], loads[32:]
        wp, ws_ = p['wpos'], p['wsplit']
        loads = vl[:wp] + wl[:ws_] + vl[wp:] + wl[ws_:]
        def vpos(q): return q if q < wp else q + ws_
        n = len(loads)
        nA = 2 * p['na']
        marks = {vpos(nA - 1): 'A', vpos(31): 'V'}
        def mark(m):
            if m == 'A': self.signal('v90', 'v91', C_A)
            elif not p['x_stream']: I('s_barrier')
            self.stamp(3 if m == 'A' else 4)
        def depth(i): return p['dv2'] if i >= n - p['dvn'] else p['dv']
        done = -1
        issued = 0
        pend = sorted(marks)
        while issued < n:
            D = depth(issued)
            need_done = issued - D
            if need_done > done:
                I(f's_waitcnt vmcnt({issued - 1 - need_done})')
                done = need_done
            for l in loads[issued]: I(l)
            issued += 1
            while pend and pend[0] <= done:
                mark(marks[pend.pop(0)])
        while done < n - 1:
            done += 1
            if pend and pend[0] == done or done == n - 1:
                I(f's_waitcnt vmcnt({n - 1 - done})')
            while pend and pend[0] <= done:
                mark(marks[pend.pop(0)])
        self.stamp(5)
        if not p['x_stream']: I('s_barrier')
        self.stamp_dump('s[28:31]')
        I('s_endpgm')

    def role_compute(self):
        I = self.I; p = self.p
        ntk = ' nt' if p['nt_k'] else ''
        cexp = math.log2(math.e) / math.sqrt(128.0)
        I('L_CW:')
        self.srd(16, 8, 0x2000000)
        self.srd(20, 96, WS_SIZE)
        self.srd(24, 80, 2048)
        if p['x_start']: I('s_memrealtime s[90:91]')
        I('s_barrier')
        if p['x_start']: I('s_memrealtime s[92:93]')
        self.lane_setup()
        I(f"""s_sub_u32 s8, s3, {W_C0}           ; cw
s_lshr_b32 s6, s5, 4          ; b
s_lshl_b32 s6, s6, 3
s_add_u32 s6, s6, s4
s_lshl_b32 s10, s6, 21
s_and_b32 s6, s5, 15
s_lshl_b32 s6, s6, 17
s_add_u32 s10, s10, s6
s_mul_i32 s6, s5, {p['rcb']}
s_mul_i32 s7, s4, {p['rcc']}
s_add_u32 s6, s6, s7
s_add_u32 s6, s6, s8
s_and_b32 s6, s6, 7
s_lshl_b32 s6, s6, 14
s_add_u32 s10, s10, s6
v_and_b32 v4, 7, v1
v_lshlrev_b32 v4, 8, v4
v_bfe_u32 v5, v1, 3, 1
v_lshlrev_b32 v5, 6, v5
v_add_u32 v4, v4, v5
v_lshlrev_b32 v5, 4, v2
v_add_u32 v4, v4, v5          ; K voffset
s_mul_i32 s61, s8, {p['rka']}
s_mul_i32 s6, s5, {p['rkb']}
s_add_u32 s61, s61, s6
s_mul_i32 s6, s4, {p['rkc']}
s_add_u32 s61, s61, s6
v_mov_b32 v62, {CNT}
v_mov_b32 v63, 1
s_waitcnt lgkmcnt(0)""")
        D = p['dk']
        def kload(i):
            o, hx = divmod(i, 2)
            if hx == 0:
                I(f's_add_u32 s11, s61, {o}\ns_and_b32 s11, s11, 7\ns_lshl_b32 s11, s11, 11\ns_add_u32 s11, s11, s10')
            I(f'buffer_load_dwordx4 v[{64+4*i}:{67+4*i}], v4, s[16:19], s11 offen offset:{hx*128}{ntk}')
        if p['x_start']: I('s_memrealtime s[94:95]')
        for i in range(D): kload(i)
        self.tag_load(20)
        self.stamp(1)
        vC, vOne = 'v62', 'v63'
        for i in range(D, 16):
            I(f's_waitcnt vmcnt({D-1})')
            kload(i)
            if i == 15 - p['ksig']:
                self.signal(vC, vOne, C_K)
        self.stamp(2)
        if p['x_stream']:
            I('s_waitcnt vmcnt(0)')
            self.stamp(3)
            self.stamp_dump('s[20:23]', 16)
            I('s_endpgm')
        self.tag_ready()
        I(f"""v_and_b32 v5, 3, v3           ; head = n&3
v_lshlrev_b32 v6, 8, v5
v_lshlrev_b32 v7, 4, v2
v_add_u32 v60, v6, v7
v_bfe_u32 v6, v3, 3, 1
v_lshlrev_b32 v6, 6, v6
v_add_u32 v60, v60, v6
v_add_u32 v60, {Q_OFF}, v60
v_lshlrev_b32 v61, 5, v5
v_add_u32 v61, {MX}, v61
s_lshl_b32 s6, s8, 2
v_add_u32 v59, s6, v61""")
        self.lds_wait(vC, 'v5', C_Q, 1, sleep=2)
        self.stamp(3)
        for hx in range(2):
            I(f'ds_read_b128 v[{48+4*hx}:{51+4*hx}], v60 offset:{hx*128}')
        I(f'ds_read_b32 v5, {vC} offset:{C_M}')
        I('s_waitcnt lgkmcnt(0)\nv_readfirstlane_b32 s51, v5')
        for o in range(8):
            I(f's_waitcnt vmcnt({14 - 2*o})')
            for hx in range(2):
                c = '0' if hx == 0 else f'v[{16+4*o}:{19+4*o}]'
                r = 64 + 8*o + 4*hx
                I(f'v_mfma_f32_16x16x32_bf16 v[{16+4*o}:{19+4*o}], v[{r}:{r+3}], v[{48+4*hx}:{51+4*hx}], {c}')
        for j in range(4):
            for r in range(4): I(f'v_permlane32_swap_b32 v{16+8*j+r}, v{20+8*j+r}')
            for r in range(4): I(f'v_add_f32_dpp v{16+4*j+r}, v{20+8*j+r}, v{16+8*j+r} row_ror:8 row_mask:0xf bank_mask:0xf')
        I('v_max3_f32 v5, v16, v17, v18')
        for e in range(19, 31, 2):
            I(f'v_max3_f32 v5, v5, v{e}, v{e+1}')
        I('v_max_f32 v5, v5, v31')
        for sw in ('v_permlane16_swap_b32', 'v_permlane32_swap_b32'):
            I(f"""v_mov_b32 v6, v5
{sw} v5, v6
v_max_f32 v5, v5, v6""")
        I("""s_mov_b64 exec, 15
ds_write_b32 v59, v5
s_mov_b64 exec, -1""")
        self.signal(vC, vOne, C_1)
        self.lds_wait(vC, 'v6', C_1, 8, sleep=0)
        I(f"""ds_read_b128 v[48:51], v61
ds_read_b128 v[52:55], v61 offset:16
s_mov_b32 s50, {fhex(cexp)}
s_waitcnt lgkmcnt(0)
v_max3_f32 v48, v48, v49, v50
v_max3_f32 v51, v51, v52, v53
v_max3_f32 v48, v48, v54, v55
v_max_f32 v48, v48, v51
v_mul_f32 v58, s50, v48
v_and_b32 v6, 3, v3
v_add_u32 v6, 0x07060500, v6
v_mov_b32 v7, s52
v_perm_b32 v58, v58, v7, v6""")
        for e in range(16):
            I(f'v_fma_f32 v{16+e}, v{16+e}, s50, -v58')
        for e in range(16):
            I(f'v_exp_f32 v{16+e}, v{16+e}')
        for q in range(8):
            I(f'v_cvt_pk_bf16_f32 v{48+q}, v{16+2*q}, v{17+2*q}')
        I(f"""s_lshl_b32 s6, s8, 9
s_add_u32 s6, s6, {P_OFF}
v_lshlrev_b32 v6, 6, v2
v_lshlrev_b32 v7, 4, v3
v_add_u32 v6, v6, v7
v_add_u32 v6, s6, v6
s_mov_b32 s40, 0x000f000f
s_mov_b32 s41, 0x000f000f
s_mov_b64 exec, s[40:41]
ds_write_b128 v6, v[48:51]
ds_write_b128 v6, v[52:55] offset:256
s_mov_b64 exec, -1""")
        for e in range(8): I(f'v_add_f32 v{16+e}, v{16+e}, v{24+e}')
        for e in range(4): I(f'v_add_f32 v{16+e}, v{16+e}, v{20+e}')
        I("""v_add_f32 v16, v16, v17
v_add_f32 v18, v18, v19
v_add_f32 v5, v16, v18""")
        for sw in ('v_permlane16_swap_b32', 'v_permlane32_swap_b32'):
            I(f"""v_mov_b32 v6, v5
{sw} v5, v6
v_add_f32 v5, v5, v6""")
        I("""s_mov_b64 exec, 15
ds_write_b32 v59, v5 offset:128
s_mov_b64 exec, -1""")
        self.signal(vC, vOne, C_2)
        self.lds_wait(vC, 'v6', C_2, 8, sleep=0)
        self.stamp(4)
        I(f"""s_lshl_b32 s12, s4, 5
s_add_u32 s12, s12, s5        ; slot
v_mov_b32 v47, s52""")
        Ls = self.lab('nostat')
        I(f"""s_cmp_lg_u32 s8, 0
s_cbranch_scc1 {Ls}
ds_read_b128 v[48:51], v61 offset:128
ds_read_b128 v[52:55], v61 offset:144
v_and_b32 v6, 3, v1
v_add_u32 v6, 0x07060500, v6
s_waitcnt lgkmcnt(0)
v_add_f32 v48, v48, v49
v_add_f32 v50, v50, v51
v_add_f32 v52, v52, v53
v_add_f32 v54, v54, v55
v_add_f32 v48, v48, v50
v_add_f32 v52, v52, v54
v_add_f32 v48, v48, v52
s_mov_b32 s40, 0xf0f0f0f0
s_mov_b32 s41, 0
v_cndmask_b32 v48, v58, v48, s[40:41]
v_perm_b32 v48, v48, v47, v6
s_lshl_b32 s6, s12, 7
s_add_u32 s6, s6, {WS_ST}
v_lshlrev_b32 v6, 2, v1
s_mov_b32 exec_hi, 0""")
        self.mode_store('buffer_store_dword v48, v6, s[20:23], s6 offen', 's51')
        I('s_mov_b32 exec_hi, -1')
        I(f'{Ls}:')
        I(f"""v_and_b32 v5, 3, v3
v_lshlrev_b32 v5, 4, v5
v_lshlrev_b32 v6, 6, v2
v_add_u32 v5, v5, v6
v_add_u32 v5, {P_OFF}, v5""")
        for st in range(16):
            if st == 8: I('s_waitcnt lgkmcnt(0)')
            I(f'ds_read_b128 v[{64+4*st}:{67+4*st}], v5 offset:{st*256}')
        I(f"""v_lshrrev_b32 v5, 2, v3       ; r
v_and_b32 v6, 3, v3           ; c4
v_lshlrev_b32 v7, 2, v2
v_add_u32 v7, v7, v5          ; 4s + r
v_and_b32 v48, 7, v7          ; (4(s&1) + r)
v_xor_b32 v48, s8, v48
v_lshlrev_b32 v48, 5, v48
v_lshlrev_b32 v7, 8, v7
v_add_u32 v7, v7, v48
v_lshlrev_b32 v6, 3, v6
v_add_u32 v56, v7, v6
v_add_u32 v57, 0x10000, v56
v_add_u32 v59, 0x20000, v56""")
        I(f"""s_lshr_b32 s13, s5, 2         ; w'
s_and_b32 s14, s5, 3          ; cg
s_and_b32 s15, s8, 1
s_lshl_b32 s6, s15, 4
v_add_u32 v5, s6, v2          ; b*16 + tq
v_lshlrev_b32 v12, 4, v5
v_add_u32 v12, {WL}, v12
s_lshl_b32 s6, s4, 5
v_add_u32 v61, s6, v5         ; slot' (i = 0)
v_lshlrev_b32 v61, 11, v61
s_lshl_b32 s6, s13, 4
v_add_u32 v6, s6, v3
v_lshlrev_b32 v6, 4, v6
v_add_u32 v61, v61, v6
v_add_u32 v61, {WS_T1}, v61
v_lshrrev_b32 v6, 3, v3
v_lshlrev_b32 v6, 6, v6
v_bfe_u32 v7, v3, 2, 1
v_lshlrev_b32 v7, 3, v7       ; half*8
v_add_u32 v6, v6, v7
v_and_b32 v7, 3, v3
v_lshlrev_b32 v7, 4, v7       ; sA*16
v_add_u32 v6, v6, v7
v_lshlrev_b32 v7, 1, v2
v_add_u32 v6, v6, v7          ; + hh*2
s_lshl_b32 s6, s15, 7
s_add_u32 s6, s6, {A1}
v_add_u32 v60, s6, v6
s_lshl_b32 s6, s12, 11
s_lshl_b32 s7, s8, 8
s_add_u32 s6, s6, s7
s_add_u32 s6, s6, {WS_T1}
v_lshlrev_b32 v58, 4, v3
v_add_u32 v58, s6, v58
v_and_b32 v6, 1, v3
v_lshlrev_b32 v44, 1, v6
v_add_u32 v50, 0x07060500, v44
v_add_u32 v51, 1, v50
v_mov_b32 v49, s52               ; T
v_lshlrev_b32 v7, 6, v6
v_lshlrev_b32 v6, 7, v6
v_lshlrev_b32 v48, 4, v2
v_add_u32 v6, v6, v48
v_add_u32 v62, {A1}, v6
v_add_u32 v7, v7, v48
v_add_u32 v48, {A2}, v7
s_lshl_b32 s6, s14, 3
s_add_u32 s6, s6, s8
s_lshl_b32 s6, s6, 6
s_lshl_b32 s7, s4, 3
s_add_u32 s7, s7, s13
s_add_u32 s6, s6, s7
s_lshl_b32 s6, s6, 7
s_add_u32 s6, s6, {WS_T3}
v_lshlrev_b32 v63, 3, v3
v_add_u32 v63, s6, v63
v_mov_b32 v13, {CNT}
s_and_b32 s13, s2, 3          ; cg3
s_lshr_b32 s14, s2, 2         ; o8
s_lshl_b32 s6, s13, 3
s_add_u32 s6, s6, s14
s_lshl_b32 s6, s6, 13
s_lshl_b32 s7, s8, 5
s_add_u32 s6, s6, s7
s_add_u32 s6, s6, {WS_T3}
v_lshrrev_b32 v14, 1, v1
v_lshlrev_b32 v14, 7, v14
v_and_b32 v6, 1, v1
v_lshlrev_b32 v7, 4, v6
v_add_u32 v14, v14, v7
v_add_u32 v14, s6, v14
s_lshl_b32 s6, s13, 8
s_lshl_b32 s7, s14, 5
s_add_u32 s6, s6, s7
s_lshl_b32 s7, s8, 3
s_add_u32 s6, s6, s7
v_and_b32 v15, 1, v2
v_lshlrev_b32 v15, 10, v15
v_lshlrev_b32 v6, 2, v6
v_add_u32 v15, v15, v6
v_lshrrev_b32 v6, 1, v2
v_lshlrev_b32 v6, 1, v6
v_add_u32 v15, v15, v6
v_add_u32 v15, s6, v15
s_waitcnt lgkmcnt(0)""")
        Lsa = self.lab('sa')
        I(f"""s_mov_b32 s60, 0
s_cmp_lg_u32 s8, {p['sw']}
s_cbranch_scc1 {Lsa}""")
        self.lds_wait('v13', 'v5', C_H, 1, sleep=1)
        I(f"""v_mov_b32 v5, {GATE}
ds_read_b64 v[6:7], v5
s_mov_b32 s40, 0
s_mov_b32 s41, -1
v_lshrrev_b32 v5, 5, v1
v_lshlrev_b32 v5, 4, v5
v_add_u32 v5, v5, v3          ; b'*16 + t'
v_lshlrev_b32 v60, 4, v5
v_add_u32 v60, {WL}, v60
s_lshl_b32 s6, s4, 5
v_add_u32 v5, s6, v5          ; slot'
v_lshlrev_b32 v5, 7, v5
v_add_u32 v61, {WS_ST}, v5
s_waitcnt lgkmcnt(0)
v_cndmask_b32 v12, v6, v7, s[40:41]   ; g_b (b = lane>>5)
{Lsa}:""")
        self.stamp(5)
        self.lds_wait('v13', 'v5', C_A, 4, sleep=p['sla'])
        self.stamp(6)
        def vread(st, r):
            base = 'v56' if st < 8 else 'v57'
            o = (st & 7) * 8192
            I(f'ds_read_b64_tr_b16 v[{r}:{r+1}], {base} offset:{o}')
            I(f'ds_read_b64_tr_b16 v[{r+2}:{r+3}], {base} offset:{o+4096}')
        def vmfma(st, r):
            c = '0' if st == 0 else 'v[8:11]'
            I(f'v_mfma_f32_16x16x32_bf16 v[8:11], v[{64+4*st}:{67+4*st}], v[{r}:{r+3}], {c}')
        na = p['na']
        batches = []
        st = 0
        while st < na:
            b = list(range(st, min(st + 4, na))); batches.append(b); st += len(b)
        sets = (16, 32)
        for k, b in enumerate(batches):
            if k == 0:
                for j, st in enumerate(b): vread(st, sets[0] + 4*j)
            I('s_waitcnt lgkmcnt(0)')
            if k + 1 < len(batches):
                for j, st in enumerate(batches[k+1]): vread(st, sets[(k+1) & 1] + 4*j)
            for j, st in enumerate(b): vmfma(st, sets[k & 1] + 4*j)
            if k == 0:
                Lq = self.lab('nsl')
                I(f"s_cmp_lg_u32 s8, {p['sw']}\ns_cbranch_scc1 {Lq}")
                self.stats_loads()
                I(f'{Lq}:')
        I('s_barrier')
        self.stamp(7)
        rest = list(range(na, 16))
        for j, st in enumerate(rest): vread(st, 16 + 4*j)
        for j, st in enumerate(rest):
            I(f's_waitcnt lgkmcnt({2*(len(rest)-1-j)})')
            vmfma(st, 16 + 4*j)
        for e in range(4): I(f'v_perm_b32 v{8+e}, v{8+e}, v49, s{53+e}')
        I('s_mov_b64 exec, 0xffff')
        self.mode_store('buffer_store_dwordx4 v[8:11], v58, s[20:23], 0 offen', 's51')
        I('s_mov_b64 exec, -1')
        I('ds_read_b128 v[52:55], v48')
        self.stamp(8)
        Lns = self.lab('nsw'); Lw = self.lab('sw'); Lr = self.lab('swr')
        I(f"""s_cmp_lg_u32 s8, {p['sw']}
s_cbranch_scc1 {Lns}
s_waitcnt vmcnt(1)""")
        self.stats_check()
        I(f"""v_cmp_ne_u32 vcc, 0, v5
s_cbranch_vccz {Lw}
{Lr}:""")
        self.stats_loads()
        I('s_add_u32 s48, s48, 1\ns_waitcnt vmcnt(0)')
        self.stats_check()
        self.poll_tail(Lr, Lw, 'v5', p['sls'])
        I(f"""s_branch {Lr}
{Lw}:""")
        for h in range(4): I(f'v_mov_b32 v{72+h}, v{64+h}')
        for rr in (8, 4, 2, 1):
            for h in range(4): I(f'v_max_f32_dpp v{72+h}, v{72+h}, v{72+h} row_ror:{rr} row_mask:0xf bank_mask:0xf')
        for h in range(4): I(f'v_sub_f32 v{64+h}, v{64+h}, v{72+h}')
        for h in range(4): I(f'v_exp_f32 v{64+h}, v{64+h}')
        for h in range(4): I(f'v_mul_f32 v{68+h}, v{68+h}, v{64+h}')
        for rr in (8, 4, 2, 1):
            for h in range(4): I(f'v_add_f32_dpp v{68+h}, v{68+h}, v{68+h} row_ror:{rr} row_mask:0xf bank_mask:0xf')
        for h in range(4): I(f'v_rcp_f32 v{68+h}, v{68+h}')
        for h in range(4): I(f'v_mul_f32 v{64+h}, v{64+h}, v12')
        for h in range(4): I(f'v_mul_f32 v{64+h}, v{64+h}, v{68+h}')
        I('ds_write_b128 v60, v[64:67]\nv_mov_b32 v5, 1')
        self.signal('v13', 'v5', C_W)
        I(f'{Lns}:')
        Lng = self.lab('nog')
        I(f"""s_cmp_gt_u32 s8, 1
s_cbranch_scc1 {Lng}""")
        I(f's_mov_b32 s6, {4*2048}\ns_mov_b32 s7, {8*2048}\ns_mov_b32 s9, {12*2048}')
        T2B = (64, 96, 112)
        NS2 = p['t2sets']
        def t2issue(k):
            for i, so in enumerate(('0', 's6', 's7', 's9')):
                r = T2B[k] + 4*i
                I(f'buffer_load_dwordx4 v[{r}:{r+3}], v61, s[20:23], {so} offen{SC}')
        if p['t2wait']: I('s_waitcnt vmcnt(0)')
        t2issue(0)
        self.lds_wait('v13', 'v5', C_W, 1, sleep=0)
        for i in range(4): I(f'ds_read_b128 v[{80+4*i}:{83+4*i}], v12 offset:{i*64}')
        for k in range(1, NS2):
            if p['t2st']: I(f"s_sleep {p['t2st']}")
            t2issue(k)
        L = self.lab('t2'); Dn = self.lab('t2d')
        if p['t2mask']:
            Lh = self.lab('t2m')
            I(f'{L}:\ns_waitcnt vmcnt(0)')
            for i in range(4):
                self.tag_acc(64 + 4*i, True)
                I(f'v_cmp_ne_u32 s[{40+2*i}:{41+2*i}], 0, v16')
            I(f"""s_or_b64 vcc, s[40:41], s[42:43]
s_or_b64 s[36:37], s[44:45], s[46:47]
s_or_b64 vcc, vcc, s[36:37]
s_cbranch_scc0 {Lh}
s_add_u32 s48, s48, 1
s_cmp_gt_u32 s48, {self.glim}
s_cbranch_scc1 {Lh}""")
            if p['sl2']: I(f"s_sleep {p['sl2']}")
            for i, so in enumerate(('0', 's6', 's7', 's9')):
                La = self.lab('t2s')
                I(f"""s_mov_b64 exec, s[{40+2*i}:{41+2*i}]
s_cbranch_execz {La}
buffer_load_dwordx4 v[{64+4*i}:{67+4*i}], v61, s[20:23], {so} offen{SC}
{La}:""")
            I(f's_mov_b64 exec, -1\ns_branch {L}\n{Lh}:\ns_waitcnt lgkmcnt(0)')
            for h in range(4): I(f'v_mul_f32 v{16+h}, v{64+h}, v{80+h}')
            for i in range(1, 4):
                for h in range(4): I(f'v_fmac_f32 v{16+h}, v{64+4*i+h}, v{80+4*i+h}')
            NS2 = 0
        if NS2: I(f'{L}:')
        hits = []
        for k in range(NS2):
            for i in range(4):
                I(f's_waitcnt vmcnt({4*(NS2-1) + 3-i})')
                self.tag_acc(T2B[k] + 4*i, i == 0)
            H = self.lab('t2h'); hits.append((H, T2B[k]))
            I(f"""v_cmp_ne_u32 vcc, 0, v16
s_cbranch_vccz {H}""")
            if p['sl2']: I(f"s_sleep {p['sl2']}")
            t2issue(k)
        if NS2: I(f"""s_add_u32 s48, s48, 1
s_cmp_le_u32 s48, {self.glim}
s_cbranch_scc1 {L}""")
        for j, (H, r) in enumerate(hits):
            I(f'{H}:')
            I('s_waitcnt lgkmcnt(0)')
            for h in range(4): I(f'v_mul_f32 v{16+h}, v{r+h}, v{80+h}')
            for i in range(1, 4):
                for h in range(4): I(f'v_fmac_f32 v{16+h}, v{r+4*i+h}, v{80+4*i+h}')
            if j + 1 < len(hits): I(f's_branch {Dn}')
        I(f'{Dn}:')
        self.stamp(9)
        I("""v_permlane16_swap_b32 v16, v17
v_permlane16_swap_b32 v18, v19
v_add_f32 v16, v16, v17
v_add_f32 v18, v18, v19
v_permlane32_swap_b32 v16, v18
v_add_f32 v16, v16, v18
v_cvt_pk_bf16_f32 v16, v16, v16
ds_write_b16 v60, v16
s_waitcnt lgkmcnt(0)""")
        I(f"""{Lng}:
s_barrier""")
        self.stamp(10)
        I("""ds_read_b64_tr_b16 v[16:17], v59 offset:16384
ds_read_b64_tr_b16 v[18:19], v59 offset:20480
ds_read_b128 v[32:35], v62
ds_read_b64_tr_b16 v[20:21], v59
ds_read_b64_tr_b16 v[22:23], v59 offset:4096
ds_read_b128 v[36:39], v62 offset:64
ds_read_b64_tr_b16 v[24:25], v59 offset:8192
ds_read_b64_tr_b16 v[26:27], v59 offset:12288
s_waitcnt lgkmcnt(6)
v_mfma_f32_16x16x32_bf16 v[8:11], v[52:55], v[16:19], 0
s_waitcnt lgkmcnt(3)
v_mfma_f32_16x16x32_bf16 v[8:11], v[32:35], v[20:23], v[8:11]
s_waitcnt lgkmcnt(0)
v_mfma_f32_16x16x32_bf16 v[8:11], v[36:39], v[24:27], v[8:11]""")
        I(f"""v_perm_b32 v8, v8, v49, v50
v_perm_b32 v9, v9, v49, v51
s_mov_b64 exec, 0xffff
buffer_store_dwordx2 v[8:9], v63, s[20:23], 0 offen{(SC, ' sc0 sc1')[p['t3stf']]}
s_mov_b64 exec, -1""")
        self.stamp(11)
        Lend = 'L_CW_end'
        I(f"""s_cmp_ge_u32 s2, 32
s_cbranch_scc1 {Lend}
s_cmp_gt_u32 s8, 3
s_cbranch_scc1 {Lend}
s_mov_b32 s7, 4096""")
        NS = p['t3sets']
        L = self.lab('t3'); Dn = self.lab('t3d')
        def issue(k):
            r = 64 + 8*k
            fl = (SC, ' sc0 sc1', ' sc1 nt', ' sc0 sc1 nt')[p['t3ld']]
            I(f'buffer_load_dwordx4 v[{r}:{r+3}], v14, s[20:23], 0 offen{fl}')
            I(f'buffer_load_dwordx4 v[{r+4}:{r+7}], v14, s[20:23], s7 offen{fl}')
        if p['t3wait']: I('s_waitcnt vmcnt(0)')
        if p['t3delay']: I(f"s_sleep {p['t3delay']}")
        self.stamp(13)
        if p['stamps'] and not p['light']: I('s_mov_b32 s59, s48')
        if p['t3mask']:
            fl = (SC, ' sc0 sc1', ' sc1 nt', ' sc0 sc1 nt')[p['t3ld']]
            issue(0)
            La = self.lab('t3a'); Lb = self.lab('t3b'); Lh = self.lab('t3m')
            I(f'{L}:\ns_waitcnt vmcnt(0)')
            self.tag_acc(64, True)
            I('v_cmp_ne_u32 s[40:41], 0, v16')
            self.tag_acc(68, True)
            I(f"""v_cmp_ne_u32 s[42:43], 0, v16
s_or_b64 s[44:45], s[40:41], s[42:43]
s_cbranch_scc0 {Lh}
s_add_u32 s48, s48, 1
s_cmp_gt_u32 s48, {self.glim}
s_cbranch_scc1 {Lh}""")
            if p['sl3']: I(f"s_sleep {p['sl3']}")
            I(f"""s_mov_b64 exec, s[40:41]
s_cbranch_execz {La}
buffer_load_dwordx4 v[64:67], v14, s[20:23], 0 offen{fl}
{La}:
s_mov_b64 exec, s[42:43]
s_cbranch_execz {Lb}
buffer_load_dwordx4 v[68:71], v14, s[20:23], s7 offen{fl}
{Lb}:
s_mov_b64 exec, -1
s_branch {L}
{Lh}:""")
            for e in range(4): I(f'v_add_f32 v{20+e}, v{64+e}, v{68+e}')
            NS = 0
        for k in range(NS):
            issue(k)
            if k + 1 < NS and p['t3st']: I(f"s_sleep {p['t3st']}")
        if NS: I(f'{L}:')
        hits = []
        for k in range(NS):
            r = 64 + 8*k
            I(f's_waitcnt vmcnt({2*(NS-1)})')
            self.tag_acc(r, True)
            self.tag_acc(r + 4, False)
            H = self.lab('t3h'); hits.append((H, r))
            I(f"""v_cmp_ne_u32 vcc, 0, v16
s_cbranch_vccz {H}""")
            issue(k)
        if NS: I(f"""s_add_u32 s48, s48, 1
s_cmp_le_u32 s48, {self.glim}
s_cbranch_scc1 {L}""")
        for j, (H, r) in enumerate(hits):
            I(f'{H}:')
            for e in range(4): I(f'v_add_f32 v{20+e}, v{r+e}, v{r+4+e}')
            if j + 1 < len(hits): I(f's_branch {Dn}')
        I(f'{Dn}:')
        if p['stamps'] and not p['light']:
            I('s_sub_u32 s92, s48, s59\ns_add_u32 s92, s92, 1')
            self.stamp(15)
        I("""v_permlane16_swap_b32 v20, v21
v_permlane16_swap_b32 v22, v23
v_add_f32 v20, v20, v21
v_add_f32 v22, v22, v23
v_permlane32_swap_b32 v20, v22
v_add_f32 v20, v20, v22""")
        for rr in (2, 4, 8):
            I(f'v_add_f32_dpp v20, v20, v20 row_ror:{rr} row_mask:0xf bank_mask:0xf')
        I(f"""v_cvt_pk_bf16_f32 v20, v20, v20
s_mov_b32 exec_lo, 0x00030003
s_mov_b32 exec_hi, 0x00030003
buffer_store_short v20, v15, s[24:27], 0 offen
s_mov_b64 exec, -1""")
        I(f"""s_cmp_lg_u32 s2, 0
s_cbranch_scc1 L_CW_noe
s_cmp_lg_u32 s8, 0
s_cbranch_scc1 L_CW_noe
v_mov_b32 v5, {WS_E}
s_mov_b64 exec, 1
buffer_store_dword v49, v5, s[20:23], 0 offen{SC}
s_mov_b64 exec, -1
L_CW_noe:""")
        self.stamp(12)
        I(f'{Lend}:')
        self.stamp_dump('s[20:23]', 16)
        I('s_endpgm')

    def build(self):
        I = self.I
        I('''s_cmp_ge_u32 s2, 256
s_cbranch_scc1 L_exit''')
        if self.p['stamps']:
            for i in range(16): I(f's_mov_b32 s{64+2*i}, 0')
            self.stamp(0)
        I(f'''v_lshrrev_b32 v1, 6, v0
s_and_b32 s4, s2, 7
s_lshr_b32 s5, s2, 3
s_mov_b32 s48, 0
v_readfirstlane_b32 s3, v1
s_cmp_ge_u32 s3, {W_L0}
s_cbranch_scc1 L_LD
s_cmp_ge_u32 s3, {W_C0}
s_cbranch_scc1 L_CW
s_cmp_eq_u32 s3, {W_J1}
s_cbranch_scc1 L_J1''')
        self.role_j0()
        self.role_j1()
        self.role_compute()
        self.role_loader()
        I('L_exit:\ns_endpgm\nL_codeend:')
        head = f'''; Fused decode step: GQA attention over the KV cache + SwiGLU FFN + sigmoid-gated mix.
; @launch grid=(256,1,1) block=(896,1,1) lds={LDS_BYTES}
.amdgcn_target "amdgcn-amd-amdhsa--gfx950"
.text
.globl {KNAME}
.p2align 8
.type {KNAME},@function
{KNAME}:
'''
        foot = f'''.section .rodata,"a"
.p2align 6
.amdhsa_kernel {KNAME}
  .amdhsa_next_free_vgpr 128
  .amdhsa_next_free_sgpr 102
  .amdhsa_accum_offset 128
  .amdhsa_group_segment_fixed_size 0
  .amdhsa_kernarg_size 104
  .amdhsa_user_sgpr_count 2
  .amdhsa_user_sgpr_kernarg_segment_ptr 1
  .amdhsa_system_sgpr_workgroup_id_x 1
.end_amdhsa_kernel
'''
        return head + self.a.text() + foot

def main():
    out = sys.argv[1]
    kw = {}
    for arg in sys.argv[2:]:
        k, v = arg.split('=')
        assert k in DEF or k in ('pfn',), k
        kw[k] = (v == 'True') if v in ('True', 'False') else int(v)
    open(out, 'w').write(G(**kw).build())

if __name__ == '__main__':
    main()
```

```python
import sys, math, struct
from emit import Asm

def fhex(x): return '0x%08x' % struct.unpack('<I', struct.pack('<f', x))[0]
KNAME = 'gated_mix__gqa_block_cached__swiglu_ffn__decode_kernel'

WS_Q  = 0x000000
WS_F  = 0x020000
WS_ID = 0x030000
COPYB = 0x040000
WS_ST = 0x080000
WS_E  = 0x088000
WS_T1 = 0x100000
WS_T3 = 0x180000
WS_DBG = 0x200000
WS_SIZE = 0x400000

V_OFF = 0
STG0 = 0
STG1 = 16384
WO_OFF = 131072
WD_OFF = 147456
P_OFF = 155648
Q_OFF = 159744
MISC = 160768
MX = MISC
LX = MISC + 128
A1 = MISC + 256
A2 = MISC + 512
GATE = MISC + 640
CNT = MISC + 704
WL = MISC + 1024
C_Q, C_H, C_K, C_1, C_2, C_A, C_M, C_W = 0, 4, 8, 12, 16, 20, 24, 28
LDS_BYTES = 163840

SPIN_LIMIT = 300000
SC = ' sc1'
W_J0, W_J1, W_C0, W_L0 = 0, 1, 2, 10

DEF = dict(nt_k=True, nt_v=True, nt_w=True, dk=4, dv=6, dv2=4, dvn=0, stamps=False, na=14, ksig=0, kthr=4,
           slq=2, slf=2, sls=2, sl2=0, sl3=0, pf=False, na_polls=10, force_remote=False, nopoll=False,
           t3sets=1, t3st=4, tlb=True, sw=2, t3delay=0, t3ld=0, t3stf=0, x_nob=False, qdelay=0,
           x_stream=False, rka=1, rkb=3, rkc=0, x_start=False, t2sets=1, t2st=3, wpos=32, wsplit=6, light=False, t3mask=True, t3wait=True, t2wait=False, t2mask=False, prio_ld=0, prio_j=0, sla=1, slk=2, rcb=1, rcc=0, owarm=0)

class G:
    def __init__(self, **kw):
        self.p = dict(DEF); self.p.update(kw)
        self.a = Asm()
        self.uid = 0
        self.glim = 0 if self.p['nopoll'] else SPIN_LIMIT
    def I(self, s): self.a.I(s)
    def lab(self, base):
        self.uid += 1
        return f'L_{base}_{self.uid}'
    def stamp(self, i):
        if self.p['stamps'] and (not self.p['light'] or i in (0, 12)):
            self.I(f's_memrealtime s[{64+2*i}:{65+2*i}]')
            self.I('s_waitcnt lgkmcnt(0)')
    def stamp_dump(self, srd, n=12):
        if not self.p['stamps']: return
        I = self.I
        I('s_mov_b64 exec, -1')
        I('s_lshl_b32 s6, s2, 4')
        I('s_add_u32 s6, s6, s3')
        I('s_lshl_b32 s6, s6, 6')
        I(f's_add_u32 s6, s6, {WS_DBG}')
        I('v_mov_b32 v1, s6')
        I('s_mov_b64 exec, 1')
        for j in range(0, n, 4):
            for t in range(4):
                I(f'v_mov_b32 v{4+t}, s{64+2*(j+t)}')
            I(f'buffer_store_dwordx4 v[4:7], v1, {srd}, 0 offen offset:{j*4}')
        I('s_mov_b64 exec, -1')
    def signal(self, vC, vOne, off):
        self.I(f'''s_mov_b64 exec, 1
ds_add_u32 {vC}, {vOne} offset:{off}
s_mov_b64 exec, -1''')
    def lds_wait(self, vC, vT, off, n, sleep=1):
        L = self.lab('lw'); D = self.lab('lwd')
        self.I(f'''{L}:
ds_read_b32 {vT}, {vC} offset:{off}
s_add_u32 s48, s48, 1
s_waitcnt lgkmcnt(0)
v_readfirstlane_b32 s49, {vT}
s_cmp_ge_u32 s49, {n}
s_cbranch_scc1 {D}
s_cmp_gt_u32 s48, {SPIN_LIMIT}
s_cbranch_scc1 {D}''')
        if sleep: self.I(f's_sleep {sleep}')
        self.I(f'''s_branch {L}
{D}:''')
    def tag_load(self, wsbase):
        self.I(f's_load_dword s52, s[{wsbase}:{wsbase+1}], {WS_E}')
        for i in range(4): self.I(f's_mov_b32 s{53+i}, 0x0706050{i}')
        self.I('s_mov_b32 s57, 0x0c0c0400\ns_mov_b32 s58, 0x04000c0c')
    def tag_ready(self):
        self.I('s_waitcnt lgkmcnt(0)\ns_add_u32 s52, s52, 1')
    def tag_acc(self, r, first, acc='v16', t1='v17', t2='v18', t3='v19'):
        self.I(f'v_perm_b32 {t2}, v{r+1}, v{r}, s57\nv_perm_b32 {t3}, v{r+3}, v{r+2}, s58\nv_or_b32 {t2}, {t2}, {t3}')
        if first: self.I(f'v_xor_b32 {acc}, s52, {t2}')
        else: self.I(f'v_xor_b32 {t1}, s52, {t2}\nv_or_b32 {acc}, {acc}, {t1}')
    def poll_tail(self, L, D, acc, sleep):
        self.I(f'''v_cmp_ne_u32 vcc, 0, {acc}
s_cbranch_vccz {D}
s_cmp_gt_u32 s48, {self.glim}
s_cbranch_scc1 {D}''')
        if sleep: self.I(f's_sleep {sleep}')
    def srd(self, base, karg_off, size):
        self.I(f's_load_dwordx2 s[{base}:{base+1}], s[0:1], {karg_off}')
        self.I(f's_mov_b32 s{base+2}, {size}')
        self.I(f's_mov_b32 s{base+3}, 0x20000')
    def stats_loads(self):
        self.I(f"""buffer_load_dwordx4 v[64:67], v61, s[20:23], 0 offen{SC}
buffer_load_dwordx4 v[68:71], v61, s[20:23], 0 offen offset:16{SC}""")
    def stats_check(self):
        self.tag_acc(64, True, 'v5', 'v6', 'v7', 'v4')
        self.tag_acc(68, False, 'v5', 'v6', 'v7', 'v4')
    def lane_setup(self):
        self.I('''v_and_b32 v1, 63, v0
v_lshrrev_b32 v2, 4, v1
v_and_b32 v3, 15, v1''')
    def mode_store(self, ins, smode):
        Lr = self.lab('ms'); Le = self.lab('mse')
        self.I(f'''s_cmp_eq_u32 {smode}, 0
s_cbranch_scc1 {Lr}
{ins}
s_branch {Le}
{Lr}:
{ins}{SC}
{Le}:''')

    def qtile_issue(self, srdW, srdX, sBase, sKs):
        I = self.I; pitch = 8192; stg = STG0
        ntf = ' nt' if self.p['nt_w'] else ''
        I(f'''v_lshrrev_b32 v4, 5, v1
v_lshlrev_b32 v4, 3, v4
v_bfe_u32 v5, v1, 3, 2
v_add_u32 v4, v4, v5
v_mul_u32_u24 v4, {pitch}, v4
v_and_b32 v5, 7, v1
v_bfe_u32 v6, v1, 4, 2
v_lshlrev_b32 v6, 1, v6
v_xor_b32 v5, v5, v6
v_lshlrev_b32 v5, 4, v5
v_add_u32 v4, v4, v5''')
        for i in range(16):
            rowi = 32*(i >> 2) + 16*(i & 1) + 4*((i >> 1) & 1)
            I(f's_mov_b32 m0, {stg + i*1024}')
            I(f's_add_u32 s7, {sBase}, {rowi*pitch}')
            I(f'buffer_load_dwordx4 v4, {srdW}, s7 offen{ntf} lds')
        I(f'''v_and_b32 v5, 1, v3
v_lshlrev_b32 v5, 10, v5
v_lshlrev_b32 v6, 4, v2
v_add_u32 v5, v5, v6
s_lshl_b32 s6, {sKs}, 8
v_add_u32 v5, s6, v5''')
        for kk in range(4):
            I(f'buffer_load_dwordx4 v[{8+4*kk}:{11+4*kk}], v5, {srdX}, 0 offen offset:{kk*64}')
        I(f'''v_lshrrev_b32 v6, 2, v3
v_and_b32 v7, 3, v3
v_lshlrev_b32 v28, 2, v2
v_add_u32 v28, v28, v6
v_lshlrev_b32 v28, 7, v28
v_lshlrev_b32 v7, 3, v7
v_add_u32 v28, v28, v7
v_add_u32 v28, {stg}, v28
v_lshlrev_b32 v29, 1, v2
v_lshrrev_b32 v6, 1, v6
v_add_u32 v29, v29, v6
v_and_b32 v29, 3, v29''')
        for nt_ in range(4):
            I(f'''v_xor_b32 v6, {nt_}, v29
v_lshlrev_b32 v6, 5, v6
v_add_u32 v{24+nt_}, v28, v6''')
    def qtile_compute(self):
        I = self.I
        def reads(kk, setb):
            for nt_ in range(4):
                for hf in range(2):
                    r = setb + 4*nt_ + 2*hf
                    I(f'ds_read_b64_tr_b16 v[{r}:{r+1}], v{24+nt_} offset:{kk*4096 + hf*2048}')
        def mf(kk, setb):
            for nt_ in range(4):
                c = '0' if kk == 0 else f'v[{64+4*nt_}:{67+4*nt_}]'
                I(f'v_mfma_f32_16x16x32_bf16 v[{64+4*nt_}:{67+4*nt_}], v[{8+4*kk}:{11+4*kk}], v[{setb+4*nt_}:{setb+4*nt_+3}], {c}')
        sets = (32, 48)
        reads(0, sets[0])
        for kk in range(4):
            I('s_waitcnt lgkmcnt(0)')
            if kk < 3: reads(kk+1, sets[(kk+1) & 1])
            mf(kk, sets[kk & 1])
        I('''s_mov_b32 s40, 0xffff0000
s_mov_b32 s41, 0
s_mov_b32 s42, 0
s_mov_b32 s43, 0x0000ffff
s_mov_b32 s44, 0
s_mov_b32 s45, 0xffff0000''')
        for b in range(2):
            I(f'''v_cndmask_b32 v{40+b}, v{64+b}, v{68+b}, s[40:41]
v_cndmask_b32 v{40+b}, v{40+b}, v{72+b}, s[42:43]
v_cndmask_b32 v{40+b}, v{40+b}, v{76+b}, s[44:45]''')

    def ftile_issue(self, srdW, srdX, sBase, sKs):
        I = self.I; pitch = 3584; stg = STG1
        ntf = ' nt' if self.p['nt_w'] else ''
        I(f'''v_lshrrev_b32 v4, 4, v1
v_lshlrev_b32 v4, 3, v4
v_bfe_u32 v5, v1, 2, 2
v_add_u32 v4, v4, v5
v_mul_u32_u24 v4, {pitch}, v4
v_and_b32 v5, 3, v1
v_bfe_u32 v6, v1, 4, 1
v_lshlrev_b32 v6, 1, v6
v_xor_b32 v5, v5, v6
v_lshlrev_b32 v5, 4, v5
v_add_u32 v4, v4, v5''')
        for i in range(16):
            rowi = 32*(i >> 1) + 4*(i & 1)
            I(f's_mov_b32 m0, {stg + i*1024}')
            I(f's_add_u32 s7, {sBase}, {rowi*pitch}')
            I(f'buffer_load_dwordx4 v4, {srdW}, s7 offen{ntf} lds')
        I(f'''v_and_b32 v5, 1, v3
v_lshlrev_b32 v5, 10, v5
v_lshlrev_b32 v6, 4, v2
v_add_u32 v5, v5, v6
s_lshl_b32 s6, {sKs}, 9
v_add_u32 v5, s6, v5''')
        for kk in range(8):
            I(f'buffer_load_dwordx4 v[{96+4*kk}:{99+4*kk}], v5, {srdX}, 0 offen offset:{kk*64}')
        I(f'''v_lshrrev_b32 v6, 2, v3
v_and_b32 v7, 3, v3
v_lshlrev_b32 v28, 2, v2
v_add_u32 v28, v28, v6
v_lshlrev_b32 v28, 6, v28
v_lshlrev_b32 v7, 3, v7
v_add_u32 v28, v28, v7
v_add_u32 v28, {stg}, v28
v_and_b32 v29, 1, v2
v_lshlrev_b32 v6, 5, v29
v_add_u32 v24, v28, v6
v_xor_b32 v6, 1, v29
v_lshlrev_b32 v6, 5, v6
v_add_u32 v25, v28, v6''')
    def ftile_compute(self):
        I = self.I
        def reads(k2, setb):
            for kq in range(2):
                kk = 2*k2 + kq
                for nt_ in range(2):
                    for hf in range(2):
                        r = setb + 8*kq + 4*nt_ + 2*hf
                        I(f'ds_read_b64_tr_b16 v[{r}:{r+1}], v{24+nt_} offset:{kk*2048 + hf*1024}')
        def mf(k2, setb):
            for kq in range(2):
                kk = 2*k2 + kq
                for nt_ in range(2):
                    c = '0' if kk == 0 else f'v[{64+4*nt_}:{67+4*nt_}]'
                    r = setb + 8*kq + 4*nt_
                    I(f'v_mfma_f32_16x16x32_bf16 v[{64+4*nt_}:{67+4*nt_}], v[{96+4*kk}:{99+4*kk}], v[{r}:{r+3}], {c}')
        sets = (32, 48)
        reads(0, sets[0])
        for k2 in range(4):
            I('s_waitcnt lgkmcnt(0)')
            if k2 < 3: reads(k2+1, sets[(k2+1) & 1])
            mf(k2, sets[k2 & 1])
        I('''s_mov_b32 s40, 0xffff0000
s_mov_b32 s41, 0
s_mov_b32 s42, 0
s_mov_b32 s43, 0x0000ffff
s_mov_b32 s44, 0
s_mov_b32 s45, 0xffff0000
v_cndmask_b32 v40, v64, v68, s[40:41]
v_cndmask_b32 v40, v40, v65, s[42:43]
v_cndmask_b32 v40, v40, v69, s[44:45]''')

    def role_j0(self):
        I = self.I; p = self.p
        I('L_J0:')
        if p['prio_j']: I(f"s_setprio {p['prio_j']}")
        self.srd(16, 24, 0x400000)
        self.srd(20, 0, 2048)
        self.srd(24, 96, WS_SIZE)
        I('s_barrier')
        if p['x_stream']: I('s_endpgm')
        self.lane_setup()
        I(f"""s_lshr_b32 s8, s5, 2          ; qcl
s_and_b32 s9, s5, 3           ; ks
s_mul_i32 s10, s9, 128*8192
s_lshl_b32 s6, s4, 10
s_add_u32 s10, s10, s6
s_lshl_b32 s6, s8, 7
s_add_u32 s10, s10, s6
s_getreg_b32 s12, hwreg(HW_REG_XCC_ID, 0, 4)
v_mov_b32 v90, {CNT}
v_mov_b32 v91, 1
s_waitcnt lgkmcnt(0)""")
        self.qtile_issue('s[16:19]', 's[20:23]', 's10', 's9')
        self.tag_load(24)
        I("""v_and_b32 v81, 3, v1
v_add_u32 v81, 0x07060500, v81
s_lshl_b32 s13, s12, 8
v_mov_b32 v82, s13""")
        self.stamp(1)
        I('s_waitcnt vmcnt(0)')
        self.tag_ready()
        I('v_mov_b32 v80, s52')
        self.stamp(2)
        self.qtile_compute()
        I(f"""v_perm_b32 v40, v40, v80, v81
v_perm_b32 v41, v41, v80, v81
v_perm_b32 v82, v82, v80, v81
s_lshl_b32 s6, s4, 3
s_add_u32 s6, s6, s9
s_lshl_b32 s6, s6, 11         ; (g*8 + ks)*2048
s_lshl_b32 s7, s8, 8
s_add_u32 s6, s6, s7
v_lshlrev_b32 v4, 2, v1
v_add_u32 v5, s6, v4
v_add_u32 v6, {4*2048}, v5
s_lshl_b32 s6, s4, 5
s_add_u32 s6, s6, s5
s_lshl_b32 s6, s6, 7
s_add_u32 s6, s6, {WS_ID}
v_add_u32 v7, s6, v4
s_mov_b32 s14, {COPYB}
buffer_store_dword v40, v5, s[24:27], 0 offen
buffer_store_dword v41, v6, s[24:27], 0 offen
s_mov_b32 exec_hi, 0
buffer_store_dword v82, v7, s[24:27], 0 offen
s_mov_b32 exec_hi, -1
""")
        if not p['x_nob']:
            I(f"""buffer_store_dword v40, v5, s[24:27], s14 offen{SC}
buffer_store_dword v41, v6, s[24:27], s14 offen{SC}
s_mov_b32 exec_hi, 0
buffer_store_dword v82, v7, s[24:27], s14 offen{SC}
s_mov_b32 exec_hi, -1""")
        if p['qdelay']: I(f"s_sleep {p['qdelay']}")
        self.stamp(3)
        I(f"""s_lshl_b32 s6, s4, 1
s_lshr_b32 s7, s5, 4          ; b
s_add_u32 s6, s6, s7
s_lshl_b32 s6, s6, 13
v_lshlrev_b32 v4, 4, v1
v_add_u32 v4, s6, v4
v_and_b32 v5, 31, v1
v_lshlrev_b32 v5, 7, v5
s_lshl_b32 s6, s4, 12
s_add_u32 s6, s6, {WS_ID}
v_add_u32 v5, s6, v5
s_mov_b32 s15, {COPYB if p['force_remote'] else 0}
s_mov_b32 s11, 0""")
        L = self.lab('qg'); D = self.lab('qgd'); Lk = self.lab('qgk')
        I(f'{L}:')
        for ks in range(4):
            I(f's_add_u32 s7, s15, {ks*2048}')
            for i in range(2):
                r = 8 + 8*ks + 4*i
                I(f'buffer_load_dwordx4 v[{r}:{r+3}], v4, s[24:27], s7 offen offset:{i*1024}{SC}')
        I(f'buffer_load_dwordx4 v[40:43], v5, s[24:27], s15 offen{SC}')
        I('s_add_u32 s48, s48, 1\ns_add_u32 s11, s11, 1\ns_waitcnt vmcnt(0)')
        for j in range(9):
            self.tag_acc(8 + 4*j, j == 0, 'v44', 'v45', 'v46', 'v47')
        self.poll_tail(L, D, 'v44', p['slq'])
        if not p['force_remote']:
            I(f"""s_cmp_lt_u32 s11, {p['na_polls']}
s_cbranch_scc1 {L}
s_xor_b32 s15, s15, {COPYB}""")
        I(f"""s_branch {L}
{D}:""")
        self.stamp(5)
        I(f"""v_bfe_u32 v40, v40, 8, 4
v_cmp_ne_u32 vcc, s12, v40
s_cmp_eq_u64 vcc, 0
s_cselect_b32 s6, {0 if p['force_remote'] else 1}, 0
v_mov_b32 v44, s6
s_mov_b64 exec, 1
ds_write_b32 v90, v44 offset:{C_M}
s_mov_b64 exec, -1""")
        for e in range(8):
            I(f'v_add_f32 v{8+e}, v{8+e}, v{16+e}')
            I(f'v_add_f32 v{24+e}, v{24+e}, v{32+e}')
        for e in range(8):
            I(f'v_add_f32 v{8+e}, v{8+e}, v{24+e}')
        I(f"""v_cvt_pk_bf16_f32 v40, v8, v9
v_cvt_pk_bf16_f32 v41, v10, v11
v_cvt_pk_bf16_f32 v42, v12, v13
v_cvt_pk_bf16_f32 v43, v14, v15
v_lshlrev_b32 v4, 3, v1
v_add_u32 v4, {Q_OFF}, v4
ds_write_b64 v4, v[40:41]
ds_write_b64 v4, v[42:43] offset:512""")
        self.signal('v90', 'v91', C_Q)
        I('s_waitcnt lgkmcnt(0)')
        self.stamp(6)
        self.stamp_dump('s[24:27]')
        I('s_endpgm')

    def role_j1(self):
        I = self.I; p = self.p
        I('L_J1:')
        I('s_load_dwordx4 s[8:11], s[0:1], 48')
        self.srd(20, 0, 2048)
        self.srd(24, 96, WS_SIZE)
        self.srd(28, 72, 1024)
        I('s_barrier')
        if p['x_stream']: I('s_endpgm')
        self.lane_setup()
        I(f"""s_mul_i32 s12, s5, 9363
s_lshr_b32 s12, s12, 16
s_mul_i32 s13, s12, 7
s_sub_u32 s13, s5, s13        ; cf
s_and_b32 s14, s12, 1         ; mat
s_lshr_b32 s15, s12, 1        ; ks
v_mov_b32 v90, {CNT}
v_mov_b32 v91, 1
s_waitcnt lgkmcnt(0)
s_cmp_eq_u32 s14, 0
s_cselect_b32 s16, s8, s10
s_cselect_b32 s17, s9, s11
s_mov_b32 s18, {512*1792*2}
s_mov_b32 s19, 0x20000
s_mul_i32 s8, s15, 256*3584
s_mul_i32 s6, s4, 448
s_add_u32 s8, s8, s6
s_lshl_b32 s6, s13, 6
s_add_u32 s8, s8, s6""")
        Lskip = self.lab('nof1'); Lj = self.lab('f1j')
        I(f"""s_cmp_ge_u32 s5, 28
s_cbranch_scc1 {Lskip}""")
        self.ftile_issue('s[16:19]', 's[20:23]', 's8', 's15')
        I(f'{Lskip}:')
        I("""v_lshlrev_b32 v80, 4, v1
buffer_load_dwordx4 v[84:87], v80, s[20:23], 0 offen
buffer_load_dwordx4 v[88:91], v80, s[20:23], 0 offen offset:1024
buffer_load_dwordx4 v[92:95], v80, s[28:31], 0 offen""")
        self.tag_load(24)
        I("""v_and_b32 v81, 3, v1
v_add_u32 v81, 0x07060500, v81""")
        self.stamp(1)
        I('s_waitcnt vmcnt(0)')
        self.tag_ready()
        I('v_mov_b32 v80, s52')
        self.stamp(2)
        I(f"""s_cmp_ge_u32 s5, 28
s_cbranch_scc1 {Lj}""")
        self.ftile_compute()
        I(f"""v_perm_b32 v40, v40, v80, v81
s_lshl_b32 s6, s4, 2
s_add_u32 s6, s6, s12
s_lshl_b32 s6, s4, 2
s_lshl_b32 s7, s14, 1
s_add_u32 s6, s6, s7
s_add_u32 s6, s6, s15
s_lshl_b32 s6, s6, 11         ; *[b 2][256] f32
s_lshl_b32 s7, s13, 7
s_add_u32 s6, s6, s7
s_add_u32 s6, s6, {WS_F}
v_lshrrev_b32 v4, 5, v1
v_lshlrev_b32 v4, 10, v4
v_and_b32 v5, 31, v1
v_lshlrev_b32 v5, 2, v5
v_add_u32 v4, v4, v5
v_add_u32 v4, s6, v4
s_mov_b32 s7, {COPYB}
buffer_store_dword v40, v4, s[24:27], 0 offen""")
        if not p['x_nob']: I(f'buffer_store_dword v40, v4, s[24:27], s7 offen{SC}')
        if p['qdelay']: I(f"s_sleep {p['qdelay']}")
        I(f'{Lj}:')
        self.stamp(3)
        I('v_mov_b32 v8, 0\nv_mov_b32 v9, 0')
        for e in range(4):
            I(f"""v_lshlrev_b32 v10, 16, v{92+e}
v_and_b32 v11, 0xffff0000, v{92+e}
v_lshlrev_b32 v12, 16, v{84+e}
v_and_b32 v13, 0xffff0000, v{84+e}
v_lshlrev_b32 v14, 16, v{88+e}
v_and_b32 v15, 0xffff0000, v{88+e}
v_fmac_f32 v8, v10, v12
v_fmac_f32 v9, v10, v14
v_fmac_f32 v8, v11, v13
v_fmac_f32 v9, v11, v15""")
        for rr in (8, 4, 2, 1):
            I(f'v_add_f32_dpp v8, v8, v8 row_ror:{rr} row_mask:0xf bank_mask:0xf')
            I(f'v_add_f32_dpp v9, v9, v9 row_ror:{rr} row_mask:0xf bank_mask:0xf')
        for sw in ('v_permlane16_swap_b32', 'v_permlane32_swap_b32'):
            I(f"""v_mov_b32 v10, v8
v_mov_b32 v11, v9
{sw} v8, v10
{sw} v9, v11
v_add_f32 v8, v8, v10
v_add_f32 v9, v9, v11""")
        I(f"""v_mul_f32 v8, {fhex(-math.log2(math.e))}, v8
v_mul_f32 v9, {fhex(-math.log2(math.e))}, v9
v_exp_f32 v8, v8
v_exp_f32 v9, v9
v_add_f32 v8, 1.0, v8
v_add_f32 v9, 1.0, v9
v_rcp_f32 v8, v8
v_rcp_f32 v9, v9
v_mov_b32 v10, {GATE}
s_mov_b64 exec, 1
ds_write_b64 v10, v[8:9]
s_mov_b64 exec, -1
s_mov_b32 s40, 0
s_mov_b32 s41, -1
v_cndmask_b32 v16, v8, v9, s[40:41]
v_sub_f32 v16, 1.0, v16""")
        I('v_mov_b32 v90, %d\nv_mov_b32 v91, 1' % CNT)
        self.signal('v90', 'v91', C_H)
        I(f"""s_lshl_b32 s6, s4, 13         ; g*[mat][ks][b][256]*4
s_lshr_b32 s7, s5, 2
s_mul_i32 s7, s7, 112
s_add_u32 s6, s6, s7
s_add_u32 s6, s6, {WS_F}
v_and_b32 v4, 31, v1
v_min_u32 v5, 27, v4
v_and_b32 v17, 3, v5
v_lshlrev_b32 v17, 3, v17
v_lshrrev_b32 v17, v17, v80
v_lshlrev_b32 v5, 2, v5
v_lshrrev_b32 v6, 5, v1
v_lshlrev_b32 v6, 10, v6
v_add_u32 v5, v5, v6
v_add_u32 v5, s6, v5
s_mov_b32 s15, {COPYB if p['force_remote'] else 0}
s_mov_b32 s11, 0""")
        L = self.lab('hg'); D = self.lab('hgd')
        I(f'{L}:')
        for m in range(4):
            I(f's_add_u32 s7, s15, {m*2048}')
            I(f'buffer_load_dword v{24+m}, v5, s[24:27], s7 offen{SC}')
        I('s_add_u32 s48, s48, 1\ns_add_u32 s11, s11, 1\ns_waitcnt vmcnt(0)')
        I('v_xor_b32 v18, v24, v17')
        for j in range(1, 4):
            I(f'v_xor_b32 v19, v{24+j}, v17\nv_or_b32 v18, v18, v19')
        I('v_and_b32 v18, 0xff, v18')
        self.poll_tail(L, D, 'v18', p['slf'])
        if not p['force_remote']:
            I(f"""s_cmp_lt_u32 s11, {p['na_polls']}
s_cbranch_scc1 {L}
s_xor_b32 s15, s15, {COPYB}""")
        I(f"""s_branch {L}
{D}:""")
        self.stamp(5)
        I(f"""v_add_f32 v24, v24, v25
v_add_f32 v28, v26, v27
v_mul_f32 v25, {fhex(-math.log2(math.e))}, v24
v_exp_f32 v25, v25
v_add_f32 v25, 1.0, v25
v_rcp_f32 v25, v25
v_mul_f32 v24, v24, v25
v_mul_f32 v24, v24, v28
v_mul_f32 v24, v24, v16
v_cmp_gt_u32 vcc, 28, v4
v_cndmask_b32 v24, 0, v24, vcc
v_cvt_pk_bf16_f32 v24, v24, v24
v_bfe_u32 v6, v4, 2, 2
v_lshlrev_b32 v6, 4, v6
v_lshrrev_b32 v7, 4, v4
v_lshlrev_b32 v7, 3, v7
v_add_u32 v6, v6, v7
v_and_b32 v7, 3, v4
v_lshlrev_b32 v7, 1, v7
v_add_u32 v6, v6, v7
v_lshrrev_b32 v7, 5, v1
v_lshlrev_b32 v7, 6, v7
v_add_u32 v6, v6, v7
v_add_u32 v6, {A2}, v6
ds_write_b16 v6, v24
s_waitcnt lgkmcnt(0)""")
        self.stamp(6)
        self.stamp_dump('s[24:27]')
        I('s_endpgm')

    def role_loader(self):
        I = self.I; p = self.p
        ntv = ' nt' if p['nt_v'] else ''
        ntw = ' nt' if p['nt_w'] else ''
        I('L_LD:')
        if p['prio_ld']: I(f"s_setprio {p['prio_ld']}")
        I(f"""s_sub_u32 s8, s3, {W_L0}           ; loader j
v_mov_b32 v90, {CNT}
v_mov_b32 v91, 1
s_cmp_lg_u32 s8, 0
s_cbranch_scc1 L_LD_noinit
v_mov_b32 v8, 0
v_mov_b32 v9, 0
v_mov_b32 v10, 0
v_mov_b32 v11, 0
ds_write_b128 v90, v[8:11]
ds_write_b128 v90, v[8:11] offset:16
s_waitcnt lgkmcnt(0)
L_LD_noinit:
s_barrier""")
        self.srd(16, 16, 0x2000000)
        self.srd(20, 32, 0x400000)
        self.srd(24, 64, 1792*512*2)
        self.srd(28, 96, WS_SIZE)
        self.lane_setup()
        if p['pf']:
            I(f"""s_cmp_lg_u32 s8, 3
s_cbranch_scc1 L_LD_nopf
s_getpc_b64 s[36:37]
L_PC:
s_add_u32 s36, s36, {KNAME}-L_PC
s_addc_u32 s37, s37, -1
v_lshlrev_b32 v4, 4, v1
s_mov_b32 s6, L_codeend-{KNAME}-16""")
            for j in range(p.get('pfn', 14)):
                I(f"""v_min_u32 v5, s6, v4
global_load_dwordx4 v[12:15], v5, s[36:37]
v_add_u32 v4, 1024, v4""")
            I('L_LD_nopf:')
        I('s_waitcnt lgkmcnt(0)')
        TLBMARK = True
        I(f"""s_and_b32 s6, s8, 1
s_lshl_b32 s6, s6, 2
v_add_u32 v5, s6, v2          ; (4*(j&1) + rho)
v_lshlrev_b32 v5, 1, v5
v_xor_b32 v5, v5, v3          ; chunk
v_lshlrev_b32 v5, 4, v5
v_lshlrev_b32 v6, 8, v2
v_add_u32 v10, v5, v6         ; V voffset
v_lshlrev_b32 v6, 17, v2
v_add_u32 v11, v5, v6
v_lshlrev_b32 v6, 10, v2
v_add_u32 v16, v5, v6
s_lshr_b32 s6, s5, 4          ; b
s_lshl_b32 s6, s6, 3
s_add_u32 s6, s6, s4          ; bh
s_lshl_b32 s10, s6, 21
s_and_b32 s6, s5, 15          ; t
s_lshl_b32 s6, s6, 17
s_add_u32 s10, s10, s6
s_and_b32 s6, s8, 1
s_lshl_b32 s6, s6, 10
s_add_u32 s10, s10, s6        ; V base + (j & 1) * 1024
s_lshr_b32 s11, s5, 2         ; w'
s_and_b32 s12, s5, 3          ; cg
s_lshl_b32 s13, s4, 9
s_lshl_b32 s6, s11, 4
s_add_u32 s13, s13, s6
s_add_u32 s13, s13, s8
s_lshl_b32 s13, s13, 10
s_lshl_b32 s6, s12, 8
s_add_u32 s13, s13, s6
s_lshl_b32 s14, s4, 3
s_add_u32 s14, s14, s11       ; rg
s_mul_i32 s14, s14, 28
s_lshl_b32 s6, s8, 2
s_add_u32 s15, s14, s6
s_add_u32 s6, s8, 4
s_min_u32 s6, s6, 6
s_lshl_b32 s6, s6, 2
s_add_u32 s14, s14, s6
s_lshl_b32 s15, s15, 10
s_lshl_b32 s14, s14, 10
s_lshl_b32 s6, s12, 8
s_add_u32 s15, s15, s6
s_add_u32 s14, s14, s6
s_lshl_b32 s9, s8, 10         ; j*1024""")
        if p['tlb']:
            Lt = self.lab('tlb')
            I(f"""s_cmp_lg_u32 s8, 2
s_cbranch_scc1 {Lt}
v_mov_b32 v20, 0
s_mov_b64 exec, 1
buffer_load_dword v21, v20, s[16:19], s10 offen
buffer_load_dword v22, v20, s[20:23], s13 offen
buffer_load_dword v23, v20, s[24:27], s15 offen
s_mov_b32 s6, {WS_T1}
buffer_load_dword v24, v20, s[28:31], s6 offen
s_mov_b32 s6, {WS_T3}
buffer_load_dword v25, v20, s[28:31], s6 offen
s_mov_b32 s6, {WS_ST}
buffer_load_dword v26, v20, s[28:31], s6 offen
s_mov_b64 exec, -1
{Lt}:""")
        self.stamp(1)
        self.lds_wait('v90', 'v7', C_K, p['kthr'], sleep=p['slk'])
        I('s_waitcnt vmcnt(0)')
        self.stamp(2)
        loads = []
        I(f"""s_mul_i32 s61, s5, {p['rkb']}
s_mul_i32 s6, s4, {p['rkc']}
s_add_u32 s61, s61, s6
s_lshr_b32 s6, s8, 1
s_add_u32 s61, s61, s6
s_mul_i32 s62, s5, {p['rcb']}
s_mul_i32 s6, s4, {p['rcc']}
s_add_u32 s62, s62, s6""")
        for q in range(32):
            cw = q >> 2
            loads.append([f's_add_u32 m0, s9, {V_OFF + q*4096}',
                          f's_add_u32 s6, s61, {cw*p["rka"] + 2*(q & 3)}',
                          f's_and_b32 s6, s6, 7',
                          f's_lshl_b32 s6, s6, 11',
                          f's_add_u32 s6, s6, s10',
                          f's_add_u32 s7, s62, {cw}',
                          f's_and_b32 s7, s7, 7',
                          f's_lshl_b32 s7, s7, 14',
                          f's_add_u32 s6, s6, s7',
                          f'buffer_load_dwordx4 v10, s[16:19], s6 offen{ntv} lds'])
        for q in range(4):
            loads.append([f's_add_u32 m0, s9, {WO_OFF + q*4096}',
                          f's_add_u32 s6, s13, {q*4096}',
                          f'buffer_load_dwordx4 v11, s[20:23], s6 offen{ntw} lds'])
        loads.append([f's_add_u32 m0, s9, {WD_OFF}', 's_nop 0', f'buffer_load_dwordx4 v16, s[24:27], s15 offen{ntw} lds'])
        loads.append([f's_add_u32 m0, s9, {WD_OFF + 4096}', 's_nop 0', f'buffer_load_dwordx4 v16, s[24:27], s14 offen{ntw} lds'])
        vl, wl = loads[:32], loads[32:]
        wp, ws_ = p['wpos'], p['wsplit']
        loads = vl[:wp] + wl[:ws_] + vl[wp:] + wl[ws_:]
        def vpos(q): return q if q < wp else q + ws_
        n = len(loads)
        nA = 2 * p['na']
        marks = {vpos(nA - 1): 'A', vpos(31): 'V'}
        def mark(m):
            if m == 'A': self.signal('v90', 'v91', C_A)
            elif not p['x_stream']: I('s_barrier')
            self.stamp(3 if m == 'A' else 4)
        def depth(i): return p['dv2'] if i >= n - p['dvn'] else p['dv']
        done = -1
        issued = 0
        pend = sorted(marks)
        while issued < n:
            D = depth(issued)
            need_done = issued - D
            if need_done > done:
                I(f's_waitcnt vmcnt({issued - 1 - need_done})')
                done = need_done
            for l in loads[issued]: I(l)
            issued += 1
            while pend and pend[0] <= done:
                mark(marks[pend.pop(0)])
        while done < n - 1:
            done += 1
            if pend and pend[0] == done or done == n - 1:
                I(f's_waitcnt vmcnt({n - 1 - done})')
            while pend and pend[0] <= done:
                mark(marks[pend.pop(0)])
        self.stamp(5)
        if not p['x_stream']: I('s_barrier')
        self.stamp_dump('s[28:31]')
        I('s_endpgm')

    def role_compute(self):
        I = self.I; p = self.p
        ntk = ' nt' if p['nt_k'] else ''
        cexp = math.log2(math.e) / math.sqrt(128.0)
        I('L_CW:')
        self.srd(16, 8, 0x2000000)
        self.srd(20, 96, WS_SIZE)
        self.srd(24, 80, 2048)
        if p['x_start']: I('s_memrealtime s[90:91]')
        I('s_barrier')
        if p['x_start']: I('s_memrealtime s[92:93]')
        self.lane_setup()
        I(f"""s_sub_u32 s8, s3, {W_C0}           ; cw
s_lshr_b32 s6, s5, 4          ; b
s_lshl_b32 s6, s6, 3
s_add_u32 s6, s6, s4
s_lshl_b32 s10, s6, 21
s_and_b32 s6, s5, 15
s_lshl_b32 s6, s6, 17
s_add_u32 s10, s10, s6
s_mul_i32 s6, s5, {p['rcb']}
s_mul_i32 s7, s4, {p['rcc']}
s_add_u32 s6, s6, s7
s_add_u32 s6, s6, s8
s_and_b32 s6, s6, 7
s_lshl_b32 s6, s6, 14
s_add_u32 s10, s10, s6
v_and_b32 v4, 7, v1
v_lshlrev_b32 v4, 8, v4
v_bfe_u32 v5, v1, 3, 1
v_lshlrev_b32 v5, 6, v5
v_add_u32 v4, v4, v5
v_lshlrev_b32 v5, 4, v2
v_add_u32 v4, v4, v5          ; K voffset
s_mul_i32 s61, s8, {p['rka']}
s_mul_i32 s6, s5, {p['rkb']}
s_add_u32 s61, s61, s6
s_mul_i32 s6, s4, {p['rkc']}
s_add_u32 s61, s61, s6
v_mov_b32 v62, {CNT}
v_mov_b32 v63, 1
s_waitcnt lgkmcnt(0)""")
        D = p['dk']
        def kload(i):
            o, hx = divmod(i, 2)
            if hx == 0:
                I(f's_add_u32 s11, s61, {o}\ns_and_b32 s11, s11, 7\ns_lshl_b32 s11, s11, 11\ns_add_u32 s11, s11, s10')
            I(f'buffer_load_dwordx4 v[{64+4*i}:{67+4*i}], v4, s[16:19], s11 offen offset:{hx*128}{ntk}')
        if p['x_start']: I('s_memrealtime s[94:95]')
        for i in range(D): kload(i)
        self.tag_load(20)
        self.stamp(1)
        vC, vOne = 'v62', 'v63'
        for i in range(D, 16):
            I(f's_waitcnt vmcnt({D-1})')
            kload(i)
            if i == 15 - p['ksig']:
                self.signal(vC, vOne, C_K)
        self.stamp(2)
        if p['x_stream']:
            I('s_waitcnt vmcnt(0)')
            self.stamp(3)
            self.stamp_dump('s[20:23]', 16)
            I('s_endpgm')
        self.tag_ready()
        I(f"""v_and_b32 v5, 3, v3           ; head = n&3
v_lshlrev_b32 v6, 8, v5
v_lshlrev_b32 v7, 4, v2
v_add_u32 v60, v6, v7
v_bfe_u32 v6, v3, 3, 1
v_lshlrev_b32 v6, 6, v6
v_add_u32 v60, v60, v6
v_add_u32 v60, {Q_OFF}, v60
v_lshlrev_b32 v61, 5, v5
v_add_u32 v61, {MX}, v61
s_lshl_b32 s6, s8, 2
v_add_u32 v59, s6, v61""")
        self.lds_wait(vC, 'v5', C_Q, 1, sleep=2)
        self.stamp(3)
        for hx in range(2):
            I(f'ds_read_b128 v[{48+4*hx}:{51+4*hx}], v60 offset:{hx*128}')
        I(f'ds_read_b32 v5, {vC} offset:{C_M}')
        I('s_waitcnt lgkmcnt(0)\nv_readfirstlane_b32 s51, v5')
        for o in range(8):
            I(f's_waitcnt vmcnt({14 - 2*o})')
            for hx in range(2):
                c = '0' if hx == 0 else f'v[{16+4*o}:{19+4*o}]'
                r = 64 + 8*o + 4*hx
                I(f'v_mfma_f32_16x16x32_bf16 v[{16+4*o}:{19+4*o}], v[{r}:{r+3}], v[{48+4*hx}:{51+4*hx}], {c}')
        for j in range(4):
            for r in range(4): I(f'v_permlane32_swap_b32 v{16+8*j+r}, v{20+8*j+r}')
            for r in range(4): I(f'v_add_f32_dpp v{16+4*j+r}, v{20+8*j+r}, v{16+8*j+r} row_ror:8 row_mask:0xf bank_mask:0xf')
        I('v_max3_f32 v5, v16, v17, v18')
        for e in range(19, 31, 2):
            I(f'v_max3_f32 v5, v5, v{e}, v{e+1}')
        I('v_max_f32 v5, v5, v31')
        for sw in ('v_permlane16_swap_b32', 'v_permlane32_swap_b32'):
            I(f"""v_mov_b32 v6, v5
{sw} v5, v6
v_max_f32 v5, v5, v6""")
        I("""s_mov_b64 exec, 15
ds_write_b32 v59, v5
s_mov_b64 exec, -1""")
        self.signal(vC, vOne, C_1)
        self.lds_wait(vC, 'v6', C_1, 8, sleep=0)
        I(f"""ds_read_b128 v[48:51], v61
ds_read_b128 v[52:55], v61 offset:16
s_mov_b32 s50, {fhex(cexp)}
s_waitcnt lgkmcnt(0)
v_max3_f32 v48, v48, v49, v50
v_max3_f32 v51, v51, v52, v53
v_max3_f32 v48, v48, v54, v55
v_max_f32 v48, v48, v51
v_mul_f32 v58, s50, v48
v_and_b32 v6, 3, v3
v_add_u32 v6, 0x07060500, v6
v_mov_b32 v7, s52
v_perm_b32 v58, v58, v7, v6""")
        for e in range(16):
            I(f'v_fma_f32 v{16+e}, v{16+e}, s50, -v58')
        for e in range(16):
            I(f'v_exp_f32 v{16+e}, v{16+e}')
        for q in range(8):
            I(f'v_cvt_pk_bf16_f32 v{48+q}, v{16+2*q}, v{17+2*q}')
        I(f"""s_lshl_b32 s6, s8, 9
s_add_u32 s6, s6, {P_OFF}
v_lshlrev_b32 v6, 6, v2
v_lshlrev_b32 v7, 4, v3
v_add_u32 v6, v6, v7
v_add_u32 v6, s6, v6
s_mov_b32 s40, 0x000f000f
s_mov_b32 s41, 0x000f000f
s_mov_b64 exec, s[40:41]
ds_write_b128 v6, v[48:51]
ds_write_b128 v6, v[52:55] offset:256
s_mov_b64 exec, -1""")
        for e in range(8): I(f'v_add_f32 v{16+e}, v{16+e}, v{24+e}')
        for e in range(4): I(f'v_add_f32 v{16+e}, v{16+e}, v{20+e}')
        I("""v_add_f32 v16, v16, v17
v_add_f32 v18, v18, v19
v_add_f32 v5, v16, v18""")
        for sw in ('v_permlane16_swap_b32', 'v_permlane32_swap_b32'):
            I(f"""v_mov_b32 v6, v5
{sw} v5, v6
v_add_f32 v5, v5, v6""")
        I("""s_mov_b64 exec, 15
ds_write_b32 v59, v5 offset:128
s_mov_b64 exec, -1""")
        self.signal(vC, vOne, C_2)
        self.lds_wait(vC, 'v6', C_2, 8, sleep=0)
        self.stamp(4)
        I(f"""s_lshl_b32 s12, s4, 5
s_add_u32 s12, s12, s5        ; slot
v_mov_b32 v47, s52""")
        Ls = self.lab('nostat')
        I(f"""s_cmp_lg_u32 s8, 0
s_cbranch_scc1 {Ls}
ds_read_b128 v[48:51], v61 offset:128
ds_read_b128 v[52:55], v61 offset:144
v_and_b32 v6, 3, v1
v_add_u32 v6, 0x07060500, v6
s_waitcnt lgkmcnt(0)
v_add_f32 v48, v48, v49
v_add_f32 v50, v50, v51
v_add_f32 v52, v52, v53
v_add_f32 v54, v54, v55
v_add_f32 v48, v48, v50
v_add_f32 v52, v52, v54
v_add_f32 v48, v48, v52
s_mov_b32 s40, 0xf0f0f0f0
s_mov_b32 s41, 0
v_cndmask_b32 v48, v58, v48, s[40:41]
v_perm_b32 v48, v48, v47, v6
s_lshl_b32 s6, s12, 7
s_add_u32 s6, s6, {WS_ST}
v_lshlrev_b32 v6, 2, v1
s_mov_b32 exec_hi, 0""")
        self.mode_store('buffer_store_dword v48, v6, s[20:23], s6 offen', 's51')
        I('s_mov_b32 exec_hi, -1')
        I(f'{Ls}:')
        I(f"""v_and_b32 v5, 3, v3
v_lshlrev_b32 v5, 4, v5
v_lshlrev_b32 v6, 6, v2
v_add_u32 v5, v5, v6
v_add_u32 v5, {P_OFF}, v5""")
        for st in range(16):
            if st == 8: I('s_waitcnt lgkmcnt(0)')
            I(f'ds_read_b128 v[{64+4*st}:{67+4*st}], v5 offset:{st*256}')
        I(f"""v_lshrrev_b32 v5, 2, v3       ; r
v_and_b32 v6, 3, v3           ; c4
v_lshlrev_b32 v7, 2, v2
v_add_u32 v7, v7, v5          ; 4s + r
v_and_b32 v48, 7, v7          ; (4(s&1) + r)
v_xor_b32 v48, s8, v48
v_lshlrev_b32 v48, 5, v48
v_lshlrev_b32 v7, 8, v7
v_add_u32 v7, v7, v48
v_lshlrev_b32 v6, 3, v6
v_add_u32 v56, v7, v6
v_add_u32 v57, 0x10000, v56
v_add_u32 v59, 0x20000, v56""")
        I(f"""s_lshr_b32 s13, s5, 2         ; w'
s_and_b32 s14, s5, 3          ; cg
s_and_b32 s15, s8, 1
s_lshl_b32 s6, s15, 4
v_add_u32 v5, s6, v2          ; b*16 + tq
v_lshlrev_b32 v12, 4, v5
v_add_u32 v12, {WL}, v12
s_lshl_b32 s6, s4, 5
v_add_u32 v61, s6, v5         ; slot' (i = 0)
v_lshlrev_b32 v61, 11, v61
s_lshl_b32 s6, s13, 4
v_add_u32 v6, s6, v3
v_lshlrev_b32 v6, 4, v6
v_add_u32 v61, v61, v6
v_add_u32 v61, {WS_T1}, v61
v_lshrrev_b32 v6, 3, v3
v_lshlrev_b32 v6, 6, v6
v_bfe_u32 v7, v3, 2, 1
v_lshlrev_b32 v7, 3, v7       ; half*8
v_add_u32 v6, v6, v7
v_and_b32 v7, 3, v3
v_lshlrev_b32 v7, 4, v7       ; sA*16
v_add_u32 v6, v6, v7
v_lshlrev_b32 v7, 1, v2
v_add_u32 v6, v6, v7          ; + hh*2
s_lshl_b32 s6, s15, 7
s_add_u32 s6, s6, {A1}
v_add_u32 v60, s6, v6
s_lshl_b32 s6, s12, 11
s_lshl_b32 s7, s8, 8
s_add_u32 s6, s6, s7
s_add_u32 s6, s6, {WS_T1}
v_lshlrev_b32 v58, 4, v3
v_add_u32 v58, s6, v58
v_and_b32 v6, 1, v3
v_lshlrev_b32 v44, 1, v6
v_add_u32 v50, 0x07060500, v44
v_add_u32 v51, 1, v50
v_mov_b32 v49, s52               ; T
v_lshlrev_b32 v7, 6, v6
v_lshlrev_b32 v6, 7, v6
v_lshlrev_b32 v48, 4, v2
v_add_u32 v6, v6, v48
v_add_u32 v62, {A1}, v6
v_add_u32 v7, v7, v48
v_add_u32 v48, {A2}, v7
s_lshl_b32 s6, s14, 3
s_add_u32 s6, s6, s8
s_lshl_b32 s6, s6, 6
s_lshl_b32 s7, s4, 3
s_add_u32 s7, s7, s13
s_add_u32 s6, s6, s7
s_lshl_b32 s6, s6, 7
s_add_u32 s6, s6, {WS_T3}
v_lshlrev_b32 v63, 3, v3
v_add_u32 v63, s6, v63
v_mov_b32 v13, {CNT}
s_and_b32 s13, s2, 3          ; cg3
s_lshr_b32 s14, s2, 2         ; o8
s_lshl_b32 s6, s13, 3
s_add_u32 s6, s6, s14
s_lshl_b32 s6, s6, 13
s_lshl_b32 s7, s8, 5
s_add_u32 s6, s6, s7
s_add_u32 s6, s6, {WS_T3}
v_lshrrev_b32 v14, 1, v1
v_lshlrev_b32 v14, 7, v14
v_and_b32 v6, 1, v1
v_lshlrev_b32 v7, 4, v6
v_add_u32 v14, v14, v7
v_add_u32 v14, s6, v14
s_lshl_b32 s6, s13, 8
s_lshl_b32 s7, s14, 5
s_add_u32 s6, s6, s7
s_lshl_b32 s7, s8, 3
s_add_u32 s6, s6, s7
v_and_b32 v15, 1, v2
v_lshlrev_b32 v15, 10, v15
v_lshlrev_b32 v6, 2, v6
v_add_u32 v15, v15, v6
v_lshrrev_b32 v6, 1, v2
v_lshlrev_b32 v6, 1, v6
v_add_u32 v15, v15, v6
v_add_u32 v15, s6, v15
s_waitcnt lgkmcnt(0)""")
        Lsa = self.lab('sa')
        I(f"""s_mov_b32 s60, 0
s_cmp_lg_u32 s8, {p['sw']}
s_cbranch_scc1 {Lsa}""")
        self.lds_wait('v13', 'v5', C_H, 1, sleep=1)
        I(f"""v_mov_b32 v5, {GATE}
ds_read_b64 v[6:7], v5
s_mov_b32 s40, 0
s_mov_b32 s41, -1
v_lshrrev_b32 v5, 5, v1
v_lshlrev_b32 v5, 4, v5
v_add_u32 v5, v5, v3          ; b'*16 + t'
v_lshlrev_b32 v60, 4, v5
v_add_u32 v60, {WL}, v60
s_lshl_b32 s6, s4, 5
v_add_u32 v5, s6, v5          ; slot'
v_lshlrev_b32 v5, 7, v5
v_add_u32 v61, {WS_ST}, v5
s_waitcnt lgkmcnt(0)
v_cndmask_b32 v12, v6, v7, s[40:41]   ; g_b (b = lane>>5)
{Lsa}:""")
        if p['owarm']:
            Lo = self.lab('ow')
            I(f"""s_cmp_ge_u32 s2, 32
s_cbranch_scc1 {Lo}
s_cmp_gt_u32 s8, 3
s_cbranch_scc1 {Lo}
s_mov_b32 exec_lo, 0x00030003
s_mov_b32 exec_hi, 0x00030003""")
            if p['owarm'] == 1: I('v_mov_b32 v5, 0\nbuffer_store_short v5, v15, s[24:27], 0 offen')
            else: I('buffer_load_ushort v5, v15, s[24:27], 0 offen')
            I(f's_mov_b64 exec, -1\ns_waitcnt vmcnt(0)\n{Lo}:')
        self.stamp(5)
        self.lds_wait('v13', 'v5', C_A, 4, sleep=p['sla'])
        self.stamp(6)
        def vread(st, r):
            base = 'v56' if st < 8 else 'v57'
            o = (st & 7) * 8192
            I(f'ds_read_b64_tr_b16 v[{r}:{r+1}], {base} offset:{o}')
            I(f'ds_read_b64_tr_b16 v[{r+2}:{r+3}], {base} offset:{o+4096}')
        def vmfma(st, r):
            c = '0' if st == 0 else 'v[8:11]'
            I(f'v_mfma_f32_16x16x32_bf16 v[8:11], v[{64+4*st}:{67+4*st}], v[{r}:{r+3}], {c}')
        na = p['na']
        batches = []
        st = 0
        while st < na:
            b = list(range(st, min(st + 4, na))); batches.append(b); st += len(b)
        sets = (16, 32)
        for k, b in enumerate(batches):
            if k == 0:
                for j, st in enumerate(b): vread(st, sets[0] + 4*j)
            I('s_waitcnt lgkmcnt(0)')
            if k + 1 < len(batches):
                for j, st in enumerate(batches[k+1]): vread(st, sets[(k+1) & 1] + 4*j)
            for j, st in enumerate(b): vmfma(st, sets[k & 1] + 4*j)
            if k == 0:
                Lq = self.lab('nsl')
                I(f"s_cmp_lg_u32 s8, {p['sw']}\ns_cbranch_scc1 {Lq}")
                self.stats_loads()
                I(f'{Lq}:')
        I('s_barrier')
        self.stamp(7)
        rest = list(range(na, 16))
        for j, st in enumerate(rest): vread(st, 16 + 4*j)
        for j, st in enumerate(rest):
            I(f's_waitcnt lgkmcnt({2*(len(rest)-1-j)})')
            vmfma(st, 16 + 4*j)
        for e in range(4): I(f'v_perm_b32 v{8+e}, v{8+e}, v49, s{53+e}')
        I('s_mov_b64 exec, 0xffff')
        self.mode_store('buffer_store_dwordx4 v[8:11], v58, s[20:23], 0 offen', 's51')
        I('s_mov_b64 exec, -1')
        I('ds_read_b128 v[52:55], v48')
        self.stamp(8)
        Lns = self.lab('nsw'); Lw = self.lab('sw'); Lr = self.lab('swr')
        I(f"""s_cmp_lg_u32 s8, {p['sw']}
s_cbranch_scc1 {Lns}
s_waitcnt vmcnt(1)""")
        self.stats_check()
        I(f"""v_cmp_ne_u32 vcc, 0, v5
s_cbranch_vccz {Lw}
{Lr}:""")
        self.stats_loads()
        I('s_add_u32 s48, s48, 1\ns_waitcnt vmcnt(0)')
        self.stats_check()
        self.poll_tail(Lr, Lw, 'v5', p['sls'])
        I(f"""s_branch {Lr}
{Lw}:""")
        for h in range(4): I(f'v_mov_b32 v{72+h}, v{64+h}')
        for rr in (8, 4, 2, 1):
            for h in range(4): I(f'v_max_f32_dpp v{72+h}, v{72+h}, v{72+h} row_ror:{rr} row_mask:0xf bank_mask:0xf')
        for h in range(4): I(f'v_sub_f32 v{64+h}, v{64+h}, v{72+h}')
        for h in range(4): I(f'v_exp_f32 v{64+h}, v{64+h}')
        for h in range(4): I(f'v_mul_f32 v{68+h}, v{68+h}, v{64+h}')
        for rr in (8, 4, 2, 1):
            for h in range(4): I(f'v_add_f32_dpp v{68+h}, v{68+h}, v{68+h} row_ror:{rr} row_mask:0xf bank_mask:0xf')
        for h in range(4): I(f'v_rcp_f32 v{68+h}, v{68+h}')
        for h in range(4): I(f'v_mul_f32 v{64+h}, v{64+h}, v12')
        for h in range(4): I(f'v_mul_f32 v{64+h}, v{64+h}, v{68+h}')
        I('ds_write_b128 v60, v[64:67]\nv_mov_b32 v5, 1')
        self.signal('v13', 'v5', C_W)
        I(f'{Lns}:')
        Lng = self.lab('nog')
        I(f"""s_cmp_gt_u32 s8, 1
s_cbranch_scc1 {Lng}""")
        I(f's_mov_b32 s6, {4*2048}\ns_mov_b32 s7, {8*2048}\ns_mov_b32 s9, {12*2048}')
        T2B = (64, 96, 112)
        NS2 = p['t2sets']
        def t2issue(k):
            for i, so in enumerate(('0', 's6', 's7', 's9')):
                r = T2B[k] + 4*i
                I(f'buffer_load_dwordx4 v[{r}:{r+3}], v61, s[20:23], {so} offen{SC}')
        if p['t2wait']: I('s_waitcnt vmcnt(0)')
        t2issue(0)
        self.lds_wait('v13', 'v5', C_W, 1, sleep=0)
        for i in range(4): I(f'ds_read_b128 v[{80+4*i}:{83+4*i}], v12 offset:{i*64}')
        for k in range(1, NS2):
            if p['t2st']: I(f"s_sleep {p['t2st']}")
            t2issue(k)
        L = self.lab('t2'); Dn = self.lab('t2d')
        if p['t2mask']:
            Lh = self.lab('t2m')
            I(f'{L}:\ns_waitcnt vmcnt(0)')
            for i in range(4):
                self.tag_acc(64 + 4*i, True)
                I(f'v_cmp_ne_u32 s[{40+2*i}:{41+2*i}], 0, v16')
            I(f"""s_or_b64 vcc, s[40:41], s[42:43]
s_or_b64 s[36:37], s[44:45], s[46:47]
s_or_b64 vcc, vcc, s[36:37]
s_cbranch_scc0 {Lh}
s_add_u32 s48, s48, 1
s_cmp_gt_u32 s48, {self.glim}
s_cbranch_scc1 {Lh}""")
            if p['sl2']: I(f"s_sleep {p['sl2']}")
            for i, so in enumerate(('0', 's6', 's7', 's9')):
                La = self.lab('t2s')
                I(f"""s_mov_b64 exec, s[{40+2*i}:{41+2*i}]
s_cbranch_execz {La}
buffer_load_dwordx4 v[{64+4*i}:{67+4*i}], v61, s[20:23], {so} offen{SC}
{La}:""")
            I(f's_mov_b64 exec, -1\ns_branch {L}\n{Lh}:\ns_waitcnt lgkmcnt(0)')
            for h in range(4): I(f'v_mul_f32 v{16+h}, v{64+h}, v{80+h}')
            for i in range(1, 4):
                for h in range(4): I(f'v_fmac_f32 v{16+h}, v{64+4*i+h}, v{80+4*i+h}')
            NS2 = 0
        if NS2: I(f'{L}:')
        hits = []
        for k in range(NS2):
            for i in range(4):
                I(f's_waitcnt vmcnt({4*(NS2-1) + 3-i})')
                self.tag_acc(T2B[k] + 4*i, i == 0)
            H = self.lab('t2h'); hits.append((H, T2B[k]))
            I(f"""v_cmp_ne_u32 vcc, 0, v16
s_cbranch_vccz {H}""")
            if p['sl2']: I(f"s_sleep {p['sl2']}")
            t2issue(k)
        if NS2: I(f"""s_add_u32 s48, s48, 1
s_cmp_le_u32 s48, {self.glim}
s_cbranch_scc1 {L}""")
        for j, (H, r) in enumerate(hits):
            I(f'{H}:')
            I('s_waitcnt lgkmcnt(0)')
            for h in range(4): I(f'v_mul_f32 v{16+h}, v{r+h}, v{80+h}')
            for i in range(1, 4):
                for h in range(4): I(f'v_fmac_f32 v{16+h}, v{r+4*i+h}, v{80+4*i+h}')
            if j + 1 < len(hits): I(f's_branch {Dn}')
        I(f'{Dn}:')
        self.stamp(9)
        I("""v_permlane16_swap_b32 v16, v17
v_permlane16_swap_b32 v18, v19
v_add_f32 v16, v16, v17
v_add_f32 v18, v18, v19
v_permlane32_swap_b32 v16, v18
v_add_f32 v16, v16, v18
v_cvt_pk_bf16_f32 v16, v16, v16
ds_write_b16 v60, v16
s_waitcnt lgkmcnt(0)""")
        I(f"""{Lng}:
s_barrier""")
        self.stamp(10)
        I("""ds_read_b64_tr_b16 v[16:17], v59 offset:16384
ds_read_b64_tr_b16 v[18:19], v59 offset:20480
ds_read_b128 v[32:35], v62
ds_read_b64_tr_b16 v[20:21], v59
ds_read_b64_tr_b16 v[22:23], v59 offset:4096
ds_read_b128 v[36:39], v62 offset:64
ds_read_b64_tr_b16 v[24:25], v59 offset:8192
ds_read_b64_tr_b16 v[26:27], v59 offset:12288
s_waitcnt lgkmcnt(6)
v_mfma_f32_16x16x32_bf16 v[8:11], v[52:55], v[16:19], 0
s_waitcnt lgkmcnt(3)
v_mfma_f32_16x16x32_bf16 v[8:11], v[32:35], v[20:23], v[8:11]
s_waitcnt lgkmcnt(0)
v_mfma_f32_16x16x32_bf16 v[8:11], v[36:39], v[24:27], v[8:11]""")
        I(f"""v_perm_b32 v8, v8, v49, v50
v_perm_b32 v9, v9, v49, v51
s_mov_b64 exec, 0xffff
buffer_store_dwordx2 v[8:9], v63, s[20:23], 0 offen{(SC, ' sc0 sc1')[p['t3stf']]}
s_mov_b64 exec, -1""")
        self.stamp(11)
        Lend = 'L_CW_end'
        I(f"""s_cmp_ge_u32 s2, 32
s_cbranch_scc1 {Lend}
s_cmp_gt_u32 s8, 3
s_cbranch_scc1 {Lend}
s_mov_b32 s7, 4096""")
        NS = p['t3sets']
        L = self.lab('t3'); Dn = self.lab('t3d')
        def issue(k):
            r = 64 + 8*k
            fl = (SC, ' sc0 sc1', ' sc1 nt', ' sc0 sc1 nt')[p['t3ld']]
            I(f'buffer_load_dwordx4 v[{r}:{r+3}], v14, s[20:23], 0 offen{fl}')
            I(f'buffer_load_dwordx4 v[{r+4}:{r+7}], v14, s[20:23], s7 offen{fl}')
        if p['t3wait']: I('s_waitcnt vmcnt(0)')
        if p['t3delay']: I(f"s_sleep {p['t3delay']}")
        self.stamp(13)
        if p['stamps'] and not p['light']: I('s_mov_b32 s59, s48')
        if p['t3mask']:
            fl = (SC, ' sc0 sc1', ' sc1 nt', ' sc0 sc1 nt')[p['t3ld']]
            issue(0)
            La = self.lab('t3a'); Lb = self.lab('t3b'); Lh = self.lab('t3m')
            I(f'{L}:\ns_waitcnt vmcnt(0)')
            self.tag_acc(64, True)
            I('v_cmp_ne_u32 s[40:41], 0, v16')
            self.tag_acc(68, True)
            I(f"""v_cmp_ne_u32 s[42:43], 0, v16
s_or_b64 s[44:45], s[40:41], s[42:43]
s_cbranch_scc0 {Lh}
s_add_u32 s48, s48, 1
s_cmp_gt_u32 s48, {self.glim}
s_cbranch_scc1 {Lh}""")
            if p['sl3']: I(f"s_sleep {p['sl3']}")
            I(f"""s_mov_b64 exec, s[40:41]
s_cbranch_execz {La}
buffer_load_dwordx4 v[64:67], v14, s[20:23], 0 offen{fl}
{La}:
s_mov_b64 exec, s[42:43]
s_cbranch_execz {Lb}
buffer_load_dwordx4 v[68:71], v14, s[20:23], s7 offen{fl}
{Lb}:
s_mov_b64 exec, -1
s_branch {L}
{Lh}:""")
            for e in range(4): I(f'v_add_f32 v{20+e}, v{64+e}, v{68+e}')
            NS = 0
        for k in range(NS):
            issue(k)
            if k + 1 < NS and p['t3st']: I(f"s_sleep {p['t3st']}")
        if NS: I(f'{L}:')
        hits = []
        for k in range(NS):
            r = 64 + 8*k
            I(f's_waitcnt vmcnt({2*(NS-1)})')
            self.tag_acc(r, True)
            self.tag_acc(r + 4, False)
            H = self.lab('t3h'); hits.append((H, r))
            I(f"""v_cmp_ne_u32 vcc, 0, v16
s_cbranch_vccz {H}""")
            issue(k)
        if NS: I(f"""s_add_u32 s48, s48, 1
s_cmp_le_u32 s48, {self.glim}
s_cbranch_scc1 {L}""")
        for j, (H, r) in enumerate(hits):
            I(f'{H}:')
            for e in range(4): I(f'v_add_f32 v{20+e}, v{r+e}, v{r+4+e}')
            if j + 1 < len(hits): I(f's_branch {Dn}')
        I(f'{Dn}:')
        if p['stamps'] and not p['light']:
            I('s_sub_u32 s92, s48, s59\ns_add_u32 s92, s92, 1')
            self.stamp(15)
        I("""v_permlane16_swap_b32 v20, v21
v_permlane16_swap_b32 v22, v23
v_add_f32 v20, v20, v21
v_add_f32 v22, v22, v23
v_permlane32_swap_b32 v20, v22
v_add_f32 v20, v20, v22""")
        for rr in (2, 4, 8):
            I(f'v_add_f32_dpp v20, v20, v20 row_ror:{rr} row_mask:0xf bank_mask:0xf')
        I(f"""v_cvt_pk_bf16_f32 v20, v20, v20
s_mov_b32 exec_lo, 0x00030003
s_mov_b32 exec_hi, 0x00030003
buffer_store_short v20, v15, s[24:27], 0 offen
s_mov_b64 exec, -1""")
        I(f"""s_cmp_lg_u32 s2, 0
s_cbranch_scc1 L_CW_noe
s_cmp_lg_u32 s8, 0
s_cbranch_scc1 L_CW_noe
v_mov_b32 v5, {WS_E}
s_mov_b64 exec, 1
buffer_store_dword v49, v5, s[20:23], 0 offen{SC}
s_mov_b64 exec, -1
L_CW_noe:""")
        self.stamp(12)
        I(f'{Lend}:')
        self.stamp_dump('s[20:23]', 16)
        I('s_endpgm')

    def build(self):
        I = self.I
        I('''s_cmp_ge_u32 s2, 256
s_cbranch_scc1 L_exit''')
        if self.p['stamps']:
            for i in range(16): I(f's_mov_b32 s{64+2*i}, 0')
            self.stamp(0)
        I(f'''v_lshrrev_b32 v1, 6, v0
s_and_b32 s4, s2, 7
s_lshr_b32 s5, s2, 3
s_mov_b32 s48, 0
v_readfirstlane_b32 s3, v1
s_cmp_ge_u32 s3, {W_L0}
s_cbranch_scc1 L_LD
s_cmp_ge_u32 s3, {W_C0}
s_cbranch_scc1 L_CW
s_cmp_eq_u32 s3, {W_J1}
s_cbranch_scc1 L_J1''')
        self.role_j0()
        self.role_j1()
        self.role_compute()
        self.role_loader()
        I('L_exit:\ns_endpgm\nL_codeend:')
        head = f'''; Fused decode step: GQA attention over the KV cache + SwiGLU FFN + sigmoid-gated mix.
; @launch grid=(256,1,1) block=(896,1,1) lds={LDS_BYTES}
.amdgcn_target "amdgcn-amd-amdhsa--gfx950"
.text
.globl {KNAME}
.p2align 8
.type {KNAME},@function
{KNAME}:
'''
        foot = f'''.section .rodata,"a"
.p2align 6
.amdhsa_kernel {KNAME}
  .amdhsa_next_free_vgpr 128
  .amdhsa_next_free_sgpr 102
  .amdhsa_accum_offset 128
  .amdhsa_group_segment_fixed_size 0
  .amdhsa_kernarg_size 104
  .amdhsa_user_sgpr_count 2
  .amdhsa_user_sgpr_kernarg_segment_ptr 1
  .amdhsa_system_sgpr_workgroup_id_x 1
.end_amdhsa_kernel
'''
        return head + self.a.text() + foot

def main():
    out = sys.argv[1]
    kw = {}
    for arg in sys.argv[2:]:
        k, v = arg.split('=')
        assert k in DEF or k in ('pfn',), k
        kw[k] = (v == 'True') if v in ('True', 'False') else int(v)
    open(out, 'w').write(G(**kw).build())

if __name__ == '__main__':
    main()
```

```python
import sys, math, struct
from emit import Asm

def fhex(x): return '0x%08x' % struct.unpack('<I', struct.pack('<f', x))[0]
KNAME = 'gated_mix__gqa_block_cached__swiglu_ffn__decode_kernel'

WS_Q  = 0x000000
WS_F  = 0x020000
WS_ID = 0x030000
COPYB = 0x040000
WS_ST = 0x080000
WS_E  = 0x088000
WS_T1 = 0x100000
WS_T3 = 0x180000
WS_DBG = 0x200000
WS_SIZE = 0x400000

V_OFF = 0
STG0 = 0
STG1 = 16384
WO_OFF = 131072
WD_OFF = 147456
P_OFF = 155648
Q_OFF = 159744
MISC = 160768
MX = MISC
LX = MISC + 128
A1 = MISC + 256
A2 = MISC + 512
GATE = MISC + 640
CNT = MISC + 704
WL = MISC + 1024
C_Q, C_H, C_K, C_1, C_2, C_A, C_M, C_W, C_T = 0, 4, 8, 12, 16, 20, 24, 28, 32
LDS_BYTES = 163840

SPIN_LIMIT = 300000
SC = ' sc1'
W_J0, W_J1, W_C0, W_L0 = 0, 1, 2, 10

DEF = dict(nt_k=True, nt_v=True, nt_w=True, dk=4, dv=6, dv2=4, dvn=0, stamps=False, na=14, ksig=0, kthr=4,
           slq=2, slf=2, sls=2, sl2=0, sl3=0, pf=False, na_polls=10, force_remote=False, nopoll=False,
           t3sets=1, t3st=4, tlb=True, sw=2, t3delay=0, t3ld=0, t3stf=0, x_nob=False, qdelay=0,
           x_stream=False, rka=1, rkb=3, rkc=0, x_start=False, t2sets=1, t2st=3, wpos=32, wsplit=6, light=False, t3mask=True, t3wait=True, t2wait=False, t2mask=False, prio_ld=0, prio_j=0, sla=1, slk=2, rcb=1, rcc=0, owarm=0)

class G:
    def __init__(self, **kw):
        self.p = dict(DEF); self.p.update(kw)
        self.a = Asm()
        self.uid = 0
        self.glim = 0 if self.p['nopoll'] else SPIN_LIMIT
    def I(self, s): self.a.I(s)
    def lab(self, base):
        self.uid += 1
        return f'L_{base}_{self.uid}'
    def stamp(self, i):
        if self.p['stamps'] and (not self.p['light'] or i in (0, 12)):
            self.I(f's_memrealtime s[{64+2*i}:{65+2*i}]')
            self.I('s_waitcnt lgkmcnt(0)')
    def stamp_dump(self, srd, n=12):
        if not self.p['stamps']: return
        I = self.I
        I('s_mov_b64 exec, -1')
        I('s_lshl_b32 s6, s2, 4')
        I('s_add_u32 s6, s6, s3')
        I('s_lshl_b32 s6, s6, 6')
        I(f's_add_u32 s6, s6, {WS_DBG}')
        I('v_mov_b32 v1, s6')
        I('s_mov_b64 exec, 1')
        for j in range(0, n, 4):
            for t in range(4):
                I(f'v_mov_b32 v{4+t}, s{64+2*(j+t)}')
            I(f'buffer_store_dwordx4 v[4:7], v1, {srd}, 0 offen offset:{j*4}')
        I('s_mov_b64 exec, -1')
    def signal(self, vC, vOne, off):
        self.I(f'''s_mov_b64 exec, 1
ds_add_u32 {vC}, {vOne} offset:{off}
s_mov_b64 exec, -1''')
    def lds_wait(self, vC, vT, off, n, sleep=1):
        L = self.lab('lw'); D = self.lab('lwd')
        self.I(f'''{L}:
ds_read_b32 {vT}, {vC} offset:{off}
s_add_u32 s48, s48, 1
s_waitcnt lgkmcnt(0)
v_readfirstlane_b32 s49, {vT}
s_cmp_ge_u32 s49, {n}
s_cbranch_scc1 {D}
s_cmp_gt_u32 s48, {SPIN_LIMIT}
s_cbranch_scc1 {D}''')
        if sleep: self.I(f's_sleep {sleep}')
        self.I(f'''s_branch {L}
{D}:''')
    def tag_load(self, wsbase):
        self.I(f's_load_dword s52, s[{wsbase}:{wsbase+1}], {WS_E}')
        for i in range(4): self.I(f's_mov_b32 s{53+i}, 0x0706050{i}')
        self.I('s_mov_b32 s57, 0x0c0c0400\ns_mov_b32 s58, 0x04000c0c\ns_mov_b32 s63, 0xffffff00')
    def untag(self, regs):
        for r in regs: self.I(f'v_and_b32 v{r}, s63, v{r}')
    def tag_ready(self):
        self.I('s_waitcnt lgkmcnt(0)\ns_add_u32 s52, s52, 1')
    def tag_acc(self, r, first, acc='v16', t1='v17', t2='v18', t3='v19'):
        self.I(f'v_perm_b32 {t2}, v{r+1}, v{r}, s57\nv_perm_b32 {t3}, v{r+3}, v{r+2}, s58\nv_or_b32 {t2}, {t2}, {t3}')
        if first: self.I(f'v_xor_b32 {acc}, s52, {t2}')
        else: self.I(f'v_xor_b32 {t1}, s52, {t2}\nv_or_b32 {acc}, {acc}, {t1}')
    def poll_tail(self, L, D, acc, sleep):
        self.I(f'''v_cmp_ne_u32 vcc, 0, {acc}
s_cbranch_vccz {D}
s_cmp_gt_u32 s48, {self.glim}
s_cbranch_scc1 {D}''')
        if sleep: self.I(f's_sleep {sleep}')
    def srd(self, base, karg_off, size):
        self.I(f's_load_dwordx2 s[{base}:{base+1}], s[0:1], {karg_off}')
        self.I(f's_mov_b32 s{base+2}, {size}')
        self.I(f's_mov_b32 s{base+3}, 0x20000')
    def stats_loads(self):
        self.I(f"""buffer_load_dwordx4 v[64:67], v61, s[20:23], 0 offen{SC}
buffer_load_dwordx4 v[68:71], v61, s[20:23], 0 offen offset:16{SC}""")
    def stats_check(self):
        self.tag_acc(64, True, 'v5', 'v6', 'v7', 'v4')
        self.tag_acc(68, False, 'v5', 'v6', 'v7', 'v4')
    def lane_setup(self):
        self.I('''v_and_b32 v1, 63, v0
v_lshrrev_b32 v2, 4, v1
v_and_b32 v3, 15, v1''')
    def mode_store(self, ins, smode):
        Lr = self.lab('ms'); Le = self.lab('mse')
        self.I(f'''s_cmp_eq_u32 {smode}, 0
s_cbranch_scc1 {Lr}
{ins}
s_branch {Le}
{Lr}:
{ins}{SC}
{Le}:''')

    def qtile_issue(self, srdW, srdX, sBase, sKs):
        I = self.I; pitch = 8192; stg = STG0
        ntf = ' nt' if self.p['nt_w'] else ''
        I(f'''v_lshrrev_b32 v4, 5, v1
v_lshlrev_b32 v4, 3, v4
v_bfe_u32 v5, v1, 3, 2
v_add_u32 v4, v4, v5
v_mul_u32_u24 v4, {pitch}, v4
v_and_b32 v5, 7, v1
v_bfe_u32 v6, v1, 4, 2
v_lshlrev_b32 v6, 1, v6
v_xor_b32 v5, v5, v6
v_lshlrev_b32 v5, 4, v5
v_add_u32 v4, v4, v5''')
        for i in range(16):
            rowi = 32*(i >> 2) + 16*(i & 1) + 4*((i >> 1) & 1)
            I(f's_mov_b32 m0, {stg + i*1024}')
            I(f's_add_u32 s7, {sBase}, {rowi*pitch}')
            I(f'buffer_load_dwordx4 v4, {srdW}, s7 offen{ntf} lds')
        I(f'''v_and_b32 v5, 1, v3
v_lshlrev_b32 v5, 10, v5
v_lshlrev_b32 v6, 4, v2
v_add_u32 v5, v5, v6
s_lshl_b32 s6, {sKs}, 8
v_add_u32 v5, s6, v5''')
        for kk in range(4):
            I(f'buffer_load_dwordx4 v[{8+4*kk}:{11+4*kk}], v5, {srdX}, 0 offen offset:{kk*64}')
        I(f'''v_lshrrev_b32 v6, 2, v3
v_and_b32 v7, 3, v3
v_lshlrev_b32 v28, 2, v2
v_add_u32 v28, v28, v6
v_lshlrev_b32 v28, 7, v28
v_lshlrev_b32 v7, 3, v7
v_add_u32 v28, v28, v7
v_add_u32 v28, {stg}, v28
v_lshlrev_b32 v29, 1, v2
v_lshrrev_b32 v6, 1, v6
v_add_u32 v29, v29, v6
v_and_b32 v29, 3, v29''')
        for nt_ in range(4):
            I(f'''v_xor_b32 v6, {nt_}, v29
v_lshlrev_b32 v6, 5, v6
v_add_u32 v{24+nt_}, v28, v6''')
    def qtile_compute(self):
        I = self.I
        def reads(kk, setb):
            for nt_ in range(4):
                for hf in range(2):
                    r = setb + 4*nt_ + 2*hf
                    I(f'ds_read_b64_tr_b16 v[{r}:{r+1}], v{24+nt_} offset:{kk*4096 + hf*2048}')
        def mf(kk, setb):
            for nt_ in range(4):
                c = '0' if kk == 0 else f'v[{64+4*nt_}:{67+4*nt_}]'
                I(f'v_mfma_f32_16x16x32_bf16 v[{64+4*nt_}:{67+4*nt_}], v[{8+4*kk}:{11+4*kk}], v[{setb+4*nt_}:{setb+4*nt_+3}], {c}')
        sets = (32, 48)
        reads(0, sets[0])
        for kk in range(4):
            I('s_waitcnt lgkmcnt(0)')
            if kk < 3: reads(kk+1, sets[(kk+1) & 1])
            mf(kk, sets[kk & 1])
        I('''s_mov_b32 s40, 0xffff0000
s_mov_b32 s41, 0
s_mov_b32 s42, 0
s_mov_b32 s43, 0x0000ffff
s_mov_b32 s44, 0
s_mov_b32 s45, 0xffff0000''')
        for b in range(2):
            I(f'''v_cndmask_b32 v{40+b}, v{64+b}, v{68+b}, s[40:41]
v_cndmask_b32 v{40+b}, v{40+b}, v{72+b}, s[42:43]
v_cndmask_b32 v{40+b}, v{40+b}, v{76+b}, s[44:45]''')

    def ftile_issue(self, srdW, srdX, sBase, sKs):
        I = self.I; pitch = 3584; stg = STG1
        ntf = ' nt' if self.p['nt_w'] else ''
        I(f'''v_lshrrev_b32 v4, 4, v1
v_lshlrev_b32 v4, 3, v4
v_bfe_u32 v5, v1, 2, 2
v_add_u32 v4, v4, v5
v_mul_u32_u24 v4, {pitch}, v4
v_and_b32 v5, 3, v1
v_bfe_u32 v6, v1, 4, 1
v_lshlrev_b32 v6, 1, v6
v_xor_b32 v5, v5, v6
v_lshlrev_b32 v5, 4, v5
v_add_u32 v4, v4, v5''')
        for i in range(16):
            rowi = 32*(i >> 1) + 4*(i & 1)
            I(f's_mov_b32 m0, {stg + i*1024}')
            I(f's_add_u32 s7, {sBase}, {rowi*pitch}')
            I(f'buffer_load_dwordx4 v4, {srdW}, s7 offen{ntf} lds')
        I(f'''v_and_b32 v5, 1, v3
v_lshlrev_b32 v5, 10, v5
v_lshlrev_b32 v6, 4, v2
v_add_u32 v5, v5, v6
s_lshl_b32 s6, {sKs}, 9
v_add_u32 v5, s6, v5''')
        for kk in range(8):
            I(f'buffer_load_dwordx4 v[{96+4*kk}:{99+4*kk}], v5, {srdX}, 0 offen offset:{kk*64}')
        I(f'''v_lshrrev_b32 v6, 2, v3
v_and_b32 v7, 3, v3
v_lshlrev_b32 v28, 2, v2
v_add_u32 v28, v28, v6
v_lshlrev_b32 v28, 6, v28
v_lshlrev_b32 v7, 3, v7
v_add_u32 v28, v28, v7
v_add_u32 v28, {stg}, v28
v_and_b32 v29, 1, v2
v_lshlrev_b32 v6, 5, v29
v_add_u32 v24, v28, v6
v_xor_b32 v6, 1, v29
v_lshlrev_b32 v6, 5, v6
v_add_u32 v25, v28, v6''')
    def ftile_compute(self):
        I = self.I
        def reads(k2, setb):
            for kq in range(2):
                kk = 2*k2 + kq
                for nt_ in range(2):
                    for hf in range(2):
                        r = setb + 8*kq + 4*nt_ + 2*hf
                        I(f'ds_read_b64_tr_b16 v[{r}:{r+1}], v{24+nt_} offset:{kk*2048 + hf*1024}')
        def mf(k2, setb):
            for kq in range(2):
                kk = 2*k2 + kq
                for nt_ in range(2):
                    c = '0' if kk == 0 else f'v[{64+4*nt_}:{67+4*nt_}]'
                    r = setb + 8*kq + 4*nt_
                    I(f'v_mfma_f32_16x16x32_bf16 v[{64+4*nt_}:{67+4*nt_}], v[{96+4*kk}:{99+4*kk}], v[{r}:{r+3}], {c}')
        sets = (32, 48)
        reads(0, sets[0])
        for k2 in range(4):
            I('s_waitcnt lgkmcnt(0)')
            if k2 < 3: reads(k2+1, sets[(k2+1) & 1])
            mf(k2, sets[k2 & 1])
        I('''s_mov_b32 s40, 0xffff0000
s_mov_b32 s41, 0
s_mov_b32 s42, 0
s_mov_b32 s43, 0x0000ffff
s_mov_b32 s44, 0
s_mov_b32 s45, 0xffff0000
v_cndmask_b32 v40, v64, v68, s[40:41]
v_cndmask_b32 v40, v40, v65, s[42:43]
v_cndmask_b32 v40, v40, v69, s[44:45]''')

    def role_j0(self):
        I = self.I; p = self.p
        I('L_J0:')
        if p['prio_j']: I(f"s_setprio {p['prio_j']}")
        self.srd(16, 24, 0x400000)
        self.srd(20, 0, 2048)
        self.srd(24, 96, WS_SIZE)
        I('s_barrier')
        if p['x_stream']: I('s_endpgm')
        self.lane_setup()
        I(f"""s_lshr_b32 s8, s5, 2          ; qcl
s_and_b32 s9, s5, 3           ; ks
s_mul_i32 s10, s9, 128*8192
s_lshl_b32 s6, s4, 10
s_add_u32 s10, s10, s6
s_lshl_b32 s6, s8, 7
s_add_u32 s10, s10, s6
s_getreg_b32 s12, hwreg(HW_REG_XCC_ID, 0, 4)
v_mov_b32 v90, {CNT}
v_mov_b32 v91, 1
s_waitcnt lgkmcnt(0)""")
        self.qtile_issue('s[16:19]', 's[20:23]', 's10', 's9')
        self.tag_load(24)
        I("""v_and_b32 v81, 3, v1
v_add_u32 v81, 0x07060500, v81
s_lshl_b32 s13, s12, 8
v_mov_b32 v82, s13""")
        self.stamp(1)
        I('s_waitcnt vmcnt(0)')
        self.tag_ready()
        I('v_mov_b32 v80, s52')
        self.stamp(2)
        self.qtile_compute()
        self.signal('v90', 'v91', C_T)
        I(f"""v_perm_b32 v40, v40, v80, v81
v_perm_b32 v41, v41, v80, v81
v_perm_b32 v82, v82, v80, v81
s_lshl_b32 s6, s4, 3
s_add_u32 s6, s6, s9
s_lshl_b32 s6, s6, 11         ; (g*8 + ks)*2048
s_lshl_b32 s7, s8, 8
s_add_u32 s6, s6, s7
v_lshlrev_b32 v4, 2, v1
v_add_u32 v5, s6, v4
v_add_u32 v6, {4*2048}, v5
s_lshl_b32 s6, s4, 5
s_add_u32 s6, s6, s5
s_lshl_b32 s6, s6, 7
s_add_u32 s6, s6, {WS_ID}
v_add_u32 v7, s6, v4
s_mov_b32 s14, {COPYB}
buffer_store_dword v40, v5, s[24:27], 0 offen
buffer_store_dword v41, v6, s[24:27], 0 offen
s_mov_b32 exec_hi, 0
buffer_store_dword v82, v7, s[24:27], 0 offen
s_mov_b32 exec_hi, -1
""")
        if not p['x_nob']:
            I(f"""buffer_store_dword v40, v5, s[24:27], s14 offen{SC}
buffer_store_dword v41, v6, s[24:27], s14 offen{SC}
s_mov_b32 exec_hi, 0
buffer_store_dword v82, v7, s[24:27], s14 offen{SC}
s_mov_b32 exec_hi, -1""")
        if p['qdelay']: I(f"s_sleep {p['qdelay']}")
        self.stamp(3)
        I(f"""s_lshl_b32 s6, s4, 1
s_lshr_b32 s7, s5, 4          ; b
s_add_u32 s6, s6, s7
s_lshl_b32 s6, s6, 13
v_lshlrev_b32 v4, 4, v1
v_add_u32 v4, s6, v4
v_and_b32 v5, 31, v1
v_lshlrev_b32 v5, 7, v5
s_lshl_b32 s6, s4, 12
s_add_u32 s6, s6, {WS_ID}
v_add_u32 v5, s6, v5
s_mov_b32 s15, {COPYB if p['force_remote'] else 0}
s_mov_b32 s11, 0""")
        L = self.lab('qg'); D = self.lab('qgd'); Lk = self.lab('qgk')
        I(f'{L}:')
        for ks in range(4):
            I(f's_add_u32 s7, s15, {ks*2048}')
            for i in range(2):
                r = 8 + 8*ks + 4*i
                I(f'buffer_load_dwordx4 v[{r}:{r+3}], v4, s[24:27], s7 offen offset:{i*1024}{SC}')
        I(f'buffer_load_dwordx4 v[40:43], v5, s[24:27], s15 offen{SC}')
        I('s_add_u32 s48, s48, 1\ns_add_u32 s11, s11, 1\ns_waitcnt vmcnt(0)')
        for j in range(9):
            self.tag_acc(8 + 4*j, j == 0, 'v44', 'v45', 'v46', 'v47')
        self.poll_tail(L, D, 'v44', p['slq'])
        if not p['force_remote']:
            I(f"""s_cmp_lt_u32 s11, {p['na_polls']}
s_cbranch_scc1 {L}
s_xor_b32 s15, s15, {COPYB}""")
        I(f"""s_branch {L}
{D}:""")
        self.stamp(5)
        I(f"""v_bfe_u32 v40, v40, 8, 4
v_cmp_ne_u32 vcc, s12, v40
s_cmp_eq_u64 vcc, 0
s_cselect_b32 s6, {0 if p['force_remote'] else 1}, 0
v_mov_b32 v44, s6
s_mov_b64 exec, 1
ds_write_b32 v90, v44 offset:{C_M}
s_mov_b64 exec, -1""")
        self.untag(range(8, 40))
        for e in range(8):
            I(f'v_add_f32 v{8+e}, v{8+e}, v{16+e}')
            I(f'v_add_f32 v{24+e}, v{24+e}, v{32+e}')
        for e in range(8):
            I(f'v_add_f32 v{8+e}, v{8+e}, v{24+e}')
        I(f"""v_cvt_pk_bf16_f32 v40, v8, v9
v_cvt_pk_bf16_f32 v41, v10, v11
v_cvt_pk_bf16_f32 v42, v12, v13
v_cvt_pk_bf16_f32 v43, v14, v15
v_lshlrev_b32 v4, 3, v1
v_add_u32 v4, {Q_OFF}, v4
ds_write_b64 v4, v[40:41]
ds_write_b64 v4, v[42:43] offset:512""")
        self.signal('v90', 'v91', C_Q)
        I('s_waitcnt lgkmcnt(0)')
        self.stamp(6)
        self.stamp_dump('s[24:27]')
        I('s_endpgm')

    def role_j1(self):
        I = self.I; p = self.p
        I('L_J1:')
        I('s_load_dwordx4 s[8:11], s[0:1], 48')
        self.srd(20, 0, 2048)
        self.srd(24, 96, WS_SIZE)
        self.srd(28, 72, 1024)
        I('s_barrier')
        if p['x_stream']: I('s_endpgm')
        self.lane_setup()
        I(f"""s_mul_i32 s12, s5, 9363
s_lshr_b32 s12, s12, 16
s_mul_i32 s13, s12, 7
s_sub_u32 s13, s5, s13        ; cf
s_and_b32 s14, s12, 1         ; mat
s_lshr_b32 s15, s12, 1        ; ks
v_mov_b32 v90, {CNT}
v_mov_b32 v91, 1
s_waitcnt lgkmcnt(0)
s_cmp_eq_u32 s14, 0
s_cselect_b32 s16, s8, s10
s_cselect_b32 s17, s9, s11
s_mov_b32 s18, {512*1792*2}
s_mov_b32 s19, 0x20000
s_mul_i32 s8, s15, 256*3584
s_mul_i32 s6, s4, 448
s_add_u32 s8, s8, s6
s_lshl_b32 s6, s13, 6
s_add_u32 s8, s8, s6""")
        Lskip = self.lab('nof1'); Lj = self.lab('f1j')
        I(f"""s_cmp_ge_u32 s5, 28
s_cbranch_scc1 {Lskip}""")
        self.ftile_issue('s[16:19]', 's[20:23]', 's8', 's15')
        I(f'{Lskip}:')
        I("""v_lshlrev_b32 v80, 4, v1
buffer_load_dwordx4 v[84:87], v80, s[20:23], 0 offen
buffer_load_dwordx4 v[88:91], v80, s[20:23], 0 offen offset:1024
buffer_load_dwordx4 v[92:95], v80, s[28:31], 0 offen""")
        self.tag_load(24)
        I("""v_and_b32 v81, 3, v1
v_add_u32 v81, 0x07060500, v81""")
        self.stamp(1)
        I('s_waitcnt vmcnt(0)')
        self.tag_ready()
        I('v_mov_b32 v80, s52')
        self.stamp(2)
        I(f"""s_cmp_ge_u32 s5, 28
s_cbranch_scc1 {Lj}""")
        self.ftile_compute()
        I(f"""v_perm_b32 v40, v40, v80, v81
s_lshl_b32 s6, s4, 2
s_add_u32 s6, s6, s12
s_lshl_b32 s6, s4, 2
s_lshl_b32 s7, s14, 1
s_add_u32 s6, s6, s7
s_add_u32 s6, s6, s15
s_lshl_b32 s6, s6, 11         ; *[b 2][256] f32
s_lshl_b32 s7, s13, 7
s_add_u32 s6, s6, s7
s_add_u32 s6, s6, {WS_F}
v_lshrrev_b32 v4, 5, v1
v_lshlrev_b32 v4, 10, v4
v_and_b32 v5, 31, v1
v_lshlrev_b32 v5, 2, v5
v_add_u32 v4, v4, v5
v_add_u32 v4, s6, v4
s_mov_b32 s7, {COPYB}
buffer_store_dword v40, v4, s[24:27], 0 offen""")
        if not p['x_nob']: I(f'buffer_store_dword v40, v4, s[24:27], s7 offen{SC}')
        if p['qdelay']: I(f"s_sleep {p['qdelay']}")
        I(f'{Lj}:')
        I(f'v_mov_b32 v82, {CNT}\nv_mov_b32 v83, 1')
        self.signal('v82', 'v83', C_T)
        self.stamp(3)
        I('v_mov_b32 v8, 0\nv_mov_b32 v9, 0')
        for e in range(4):
            I(f"""v_lshlrev_b32 v10, 16, v{92+e}
v_and_b32 v11, 0xffff0000, v{92+e}
v_lshlrev_b32 v12, 16, v{84+e}
v_and_b32 v13, 0xffff0000, v{84+e}
v_lshlrev_b32 v14, 16, v{88+e}
v_and_b32 v15, 0xffff0000, v{88+e}
v_fmac_f32 v8, v10, v12
v_fmac_f32 v9, v10, v14
v_fmac_f32 v8, v11, v13
v_fmac_f32 v9, v11, v15""")
        for rr in (8, 4, 2, 1):
            I(f'v_add_f32_dpp v8, v8, v8 row_ror:{rr} row_mask:0xf bank_mask:0xf')
            I(f'v_add_f32_dpp v9, v9, v9 row_ror:{rr} row_mask:0xf bank_mask:0xf')
        for sw in ('v_permlane16_swap_b32', 'v_permlane32_swap_b32'):
            I(f"""v_mov_b32 v10, v8
v_mov_b32 v11, v9
{sw} v8, v10
{sw} v9, v11
v_add_f32 v8, v8, v10
v_add_f32 v9, v9, v11""")
        I(f"""v_mul_f32 v8, {fhex(-math.log2(math.e))}, v8
v_mul_f32 v9, {fhex(-math.log2(math.e))}, v9
v_exp_f32 v8, v8
v_exp_f32 v9, v9
v_add_f32 v8, 1.0, v8
v_add_f32 v9, 1.0, v9
v_rcp_f32 v8, v8
v_rcp_f32 v9, v9
v_mov_b32 v10, {GATE}
s_mov_b64 exec, 1
ds_write_b64 v10, v[8:9]
s_mov_b64 exec, -1
s_mov_b32 s40, 0
s_mov_b32 s41, -1
v_cndmask_b32 v16, v8, v9, s[40:41]
v_sub_f32 v16, 1.0, v16""")
        I('v_mov_b32 v90, %d\nv_mov_b32 v91, 1' % CNT)
        self.signal('v90', 'v91', C_H)
        I(f"""s_lshl_b32 s6, s4, 13         ; g*[mat][ks][b][256]*4
s_lshr_b32 s7, s5, 2
s_mul_i32 s7, s7, 112
s_add_u32 s6, s6, s7
s_add_u32 s6, s6, {WS_F}
v_and_b32 v4, 31, v1
v_min_u32 v5, 27, v4
v_and_b32 v17, 3, v5
v_lshlrev_b32 v17, 3, v17
v_lshrrev_b32 v17, v17, v80
v_lshlrev_b32 v5, 2, v5
v_lshrrev_b32 v6, 5, v1
v_lshlrev_b32 v6, 10, v6
v_add_u32 v5, v5, v6
v_add_u32 v5, s6, v5
s_mov_b32 s15, {COPYB if p['force_remote'] else 0}
s_mov_b32 s11, 0""")
        L = self.lab('hg'); D = self.lab('hgd')
        I(f'{L}:')
        for m in range(4):
            I(f's_add_u32 s7, s15, {m*2048}')
            I(f'buffer_load_dword v{24+m}, v5, s[24:27], s7 offen{SC}')
        I('s_add_u32 s48, s48, 1\ns_add_u32 s11, s11, 1\ns_waitcnt vmcnt(0)')
        I('v_xor_b32 v18, v24, v17')
        for j in range(1, 4):
            I(f'v_xor_b32 v19, v{24+j}, v17\nv_or_b32 v18, v18, v19')
        I('v_and_b32 v18, 0xff, v18')
        self.poll_tail(L, D, 'v18', p['slf'])
        if not p['force_remote']:
            I(f"""s_cmp_lt_u32 s11, {p['na_polls']}
s_cbranch_scc1 {L}
s_xor_b32 s15, s15, {COPYB}""")
        I(f"""s_branch {L}
{D}:""")
        self.stamp(5)
        self.untag(range(24, 28))
        I(f"""v_add_f32 v24, v24, v25
v_add_f32 v28, v26, v27
v_mul_f32 v25, {fhex(-math.log2(math.e))}, v24
v_exp_f32 v25, v25
v_add_f32 v25, 1.0, v25
v_rcp_f32 v25, v25
v_mul_f32 v24, v24, v25
v_mul_f32 v24, v24, v28
v_mul_f32 v24, v24, v16
v_cmp_gt_u32 vcc, 28, v4
v_cndmask_b32 v24, 0, v24, vcc
v_cvt_pk_bf16_f32 v24, v24, v24
v_bfe_u32 v6, v4, 2, 2
v_lshlrev_b32 v6, 4, v6
v_lshrrev_b32 v7, 4, v4
v_lshlrev_b32 v7, 3, v7
v_add_u32 v6, v6, v7
v_and_b32 v7, 3, v4
v_lshlrev_b32 v7, 1, v7
v_add_u32 v6, v6, v7
v_lshrrev_b32 v7, 5, v1
v_lshlrev_b32 v7, 6, v7
v_add_u32 v6, v6, v7
v_add_u32 v6, {A2}, v6
ds_write_b16 v6, v24
s_waitcnt lgkmcnt(0)""")
        self.stamp(6)
        self.stamp_dump('s[24:27]')
        I('s_endpgm')

    def role_loader(self):
        I = self.I; p = self.p
        ntv = ' nt' if p['nt_v'] else ''
        ntw = ' nt' if p['nt_w'] else ''
        I('L_LD:')
        if p['prio_ld']: I(f"s_setprio {p['prio_ld']}")
        I(f"""s_sub_u32 s8, s3, {W_L0}           ; loader j
v_mov_b32 v90, {CNT}
v_mov_b32 v91, 1
s_cmp_lg_u32 s8, 0
s_cbranch_scc1 L_LD_noinit
v_mov_b32 v8, 0
v_mov_b32 v9, 0
v_mov_b32 v10, 0
v_mov_b32 v11, 0
ds_write_b128 v90, v[8:11]
ds_write_b128 v90, v[8:11] offset:16
ds_write_b128 v90, v[8:11] offset:32
s_waitcnt lgkmcnt(0)
L_LD_noinit:
s_barrier""")
        self.srd(16, 16, 0x2000000)
        self.srd(20, 32, 0x400000)
        self.srd(24, 64, 1792*512*2)
        self.srd(28, 96, WS_SIZE)
        self.lane_setup()
        if p['pf']:
            I(f"""s_cmp_lg_u32 s8, 3
s_cbranch_scc1 L_LD_nopf
s_getpc_b64 s[36:37]
L_PC:
s_add_u32 s36, s36, {KNAME}-L_PC
s_addc_u32 s37, s37, -1
v_lshlrev_b32 v4, 4, v1
s_mov_b32 s6, L_codeend-{KNAME}-16""")
            for j in range(p.get('pfn', 14)):
                I(f"""v_min_u32 v5, s6, v4
global_load_dwordx4 v[12:15], v5, s[36:37]
v_add_u32 v4, 1024, v4""")
            I('L_LD_nopf:')
        I('s_waitcnt lgkmcnt(0)')
        TLBMARK = True
        I(f"""s_and_b32 s6, s8, 1
s_lshl_b32 s6, s6, 2
v_add_u32 v5, s6, v2          ; (4*(j&1) + rho)
v_lshlrev_b32 v5, 1, v5
v_xor_b32 v5, v5, v3          ; chunk
v_lshlrev_b32 v5, 4, v5
v_lshlrev_b32 v6, 8, v2
v_add_u32 v10, v5, v6         ; V voffset
v_lshlrev_b32 v6, 17, v2
v_add_u32 v11, v5, v6
v_lshlrev_b32 v6, 10, v2
v_add_u32 v16, v5, v6
s_lshr_b32 s6, s5, 4          ; b
s_lshl_b32 s6, s6, 3
s_add_u32 s6, s6, s4          ; bh
s_lshl_b32 s10, s6, 21
s_and_b32 s6, s5, 15          ; t
s_lshl_b32 s6, s6, 17
s_add_u32 s10, s10, s6
s_and_b32 s6, s8, 1
s_lshl_b32 s6, s6, 10
s_add_u32 s10, s10, s6        ; V base + (j & 1) * 1024
s_lshr_b32 s11, s5, 2         ; w'
s_and_b32 s12, s5, 3          ; cg
s_lshl_b32 s13, s4, 9
s_lshl_b32 s6, s11, 4
s_add_u32 s13, s13, s6
s_add_u32 s13, s13, s8
s_lshl_b32 s13, s13, 10
s_lshl_b32 s6, s12, 8
s_add_u32 s13, s13, s6
s_lshl_b32 s14, s4, 3
s_add_u32 s14, s14, s11       ; rg
s_mul_i32 s14, s14, 28
s_lshl_b32 s6, s8, 2
s_add_u32 s15, s14, s6
s_add_u32 s6, s8, 4
s_min_u32 s6, s6, 6
s_lshl_b32 s6, s6, 2
s_add_u32 s14, s14, s6
s_lshl_b32 s15, s15, 10
s_lshl_b32 s14, s14, 10
s_lshl_b32 s6, s12, 8
s_add_u32 s15, s15, s6
s_add_u32 s14, s14, s6
s_lshl_b32 s9, s8, 10         ; j*1024""")
        if p['tlb']:
            Lt = self.lab('tlb')
            I(f"""s_cmp_lg_u32 s8, 2
s_cbranch_scc1 {Lt}
v_mov_b32 v20, 0
s_mov_b64 exec, 1
buffer_load_dword v21, v20, s[16:19], s10 offen
buffer_load_dword v22, v20, s[20:23], s13 offen
buffer_load_dword v23, v20, s[24:27], s15 offen
s_mov_b32 s6, {WS_T1}
buffer_load_dword v24, v20, s[28:31], s6 offen
s_mov_b32 s6, {WS_T3}
buffer_load_dword v25, v20, s[28:31], s6 offen
s_mov_b32 s6, {WS_ST}
buffer_load_dword v26, v20, s[28:31], s6 offen
s_mov_b64 exec, -1
{Lt}:""")
        self.stamp(1)
        self.lds_wait('v90', 'v7', C_K, p['kthr'], sleep=p['slk'])
        self.lds_wait('v90', 'v7', C_T, 2, sleep=p['slk'])
        I('s_waitcnt vmcnt(0)')
        self.stamp(2)
        loads = []
        I(f"""s_mul_i32 s61, s5, {p['rkb']}
s_mul_i32 s6, s4, {p['rkc']}
s_add_u32 s61, s61, s6
s_lshr_b32 s6, s8, 1
s_add_u32 s61, s61, s6
s_mul_i32 s62, s5, {p['rcb']}
s_mul_i32 s6, s4, {p['rcc']}
s_add_u32 s62, s62, s6""")
        for q in range(32):
            cw = q >> 2
            loads.append([f's_add_u32 m0, s9, {V_OFF + q*4096}',
                          f's_add_u32 s6, s61, {cw*p["rka"] + 2*(q & 3)}',
                          f's_and_b32 s6, s6, 7',
                          f's_lshl_b32 s6, s6, 11',
                          f's_add_u32 s6, s6, s10',
                          f's_add_u32 s7, s62, {cw}',
                          f's_and_b32 s7, s7, 7',
                          f's_lshl_b32 s7, s7, 14',
                          f's_add_u32 s6, s6, s7',
                          f'buffer_load_dwordx4 v10, s[16:19], s6 offen{ntv} lds'])
        for q in range(4):
            loads.append([f's_add_u32 m0, s9, {WO_OFF + q*4096}',
                          f's_add_u32 s6, s13, {q*4096}',
                          f'buffer_load_dwordx4 v11, s[20:23], s6 offen{ntw} lds'])
        loads.append([f's_add_u32 m0, s9, {WD_OFF}', 's_nop 0', f'buffer_load_dwordx4 v16, s[24:27], s15 offen{ntw} lds'])
        loads.append([f's_add_u32 m0, s9, {WD_OFF + 4096}', 's_nop 0', f'buffer_load_dwordx4 v16, s[24:27], s14 offen{ntw} lds'])
        vl, wl = loads[:32], loads[32:]
        wp, ws_ = p['wpos'], p['wsplit']
        loads = vl[:wp] + wl[:ws_] + vl[wp:] + wl[ws_:]
        def vpos(q): return q if q < wp else q + ws_
        n = len(loads)
        nA = 2 * p['na']
        marks = {vpos(nA - 1): 'A', vpos(31): 'V'}
        def mark(m):
            if m == 'A': self.signal('v90', 'v91', C_A)
            elif not p['x_stream']: I('s_barrier')
            self.stamp(3 if m == 'A' else 4)
        def depth(i): return p['dv2'] if i >= n - p['dvn'] else p['dv']
        done = -1
        issued = 0
        pend = sorted(marks)
        while issued < n:
            D = depth(issued)
            need_done = issued - D
            if need_done > done:
                I(f's_waitcnt vmcnt({issued - 1 - need_done})')
                done = need_done
            for l in loads[issued]: I(l)
            issued += 1
            while pend and pend[0] <= done:
                mark(marks[pend.pop(0)])
        while done < n - 1:
            done += 1
            if pend and pend[0] == done or done == n - 1:
                I(f's_waitcnt vmcnt({n - 1 - done})')
            while pend and pend[0] <= done:
                mark(marks[pend.pop(0)])
        self.stamp(5)
        if not p['x_stream']: I('s_barrier')
        self.stamp_dump('s[28:31]')
        I('s_endpgm')

    def role_compute(self):
        I = self.I; p = self.p
        ntk = ' nt' if p['nt_k'] else ''
        cexp = math.log2(math.e) / math.sqrt(128.0)
        I('L_CW:')
        self.srd(16, 8, 0x2000000)
        self.srd(20, 96, WS_SIZE)
        self.srd(24, 80, 2048)
        if p['x_start']: I('s_memrealtime s[90:91]')
        I('s_barrier')
        if p['x_start']: I('s_memrealtime s[92:93]')
        self.lane_setup()
        I(f"""s_sub_u32 s8, s3, {W_C0}           ; cw
s_lshr_b32 s6, s5, 4          ; b
s_lshl_b32 s6, s6, 3
s_add_u32 s6, s6, s4
s_lshl_b32 s10, s6, 21
s_and_b32 s6, s5, 15
s_lshl_b32 s6, s6, 17
s_add_u32 s10, s10, s6
s_mul_i32 s6, s5, {p['rcb']}
s_mul_i32 s7, s4, {p['rcc']}
s_add_u32 s6, s6, s7
s_add_u32 s6, s6, s8
s_and_b32 s6, s6, 7
s_lshl_b32 s6, s6, 14
s_add_u32 s10, s10, s6
v_and_b32 v4, 7, v1
v_lshlrev_b32 v4, 8, v4
v_bfe_u32 v5, v1, 3, 1
v_lshlrev_b32 v5, 6, v5
v_add_u32 v4, v4, v5
v_lshlrev_b32 v5, 4, v2
v_add_u32 v4, v4, v5          ; K voffset
s_mul_i32 s61, s8, {p['rka']}
s_mul_i32 s6, s5, {p['rkb']}
s_add_u32 s61, s61, s6
s_mul_i32 s6, s4, {p['rkc']}
s_add_u32 s61, s61, s6
v_mov_b32 v62, {CNT}
v_mov_b32 v63, 1
s_waitcnt lgkmcnt(0)""")
        D = p['dk']
        def kload(i):
            o, hx = divmod(i, 2)
            if hx == 0:
                I(f's_add_u32 s11, s61, {o}\ns_and_b32 s11, s11, 7\ns_lshl_b32 s11, s11, 11\ns_add_u32 s11, s11, s10')
            I(f'buffer_load_dwordx4 v[{64+4*i}:{67+4*i}], v4, s[16:19], s11 offen offset:{hx*128}{ntk}')
        if p['x_start']: I('s_memrealtime s[94:95]')
        for i in range(D): kload(i)
        self.tag_load(20)
        self.stamp(1)
        vC, vOne = 'v62', 'v63'
        for i in range(D, 16):
            I(f's_waitcnt vmcnt({D-1})')
            kload(i)
            if i == 15 - p['ksig']:
                self.signal(vC, vOne, C_K)
        self.stamp(2)
        if p['x_stream']:
            I('s_waitcnt vmcnt(0)')
            self.stamp(3)
            self.stamp_dump('s[20:23]', 16)
            I('s_endpgm')
        self.tag_ready()
        I(f"""v_and_b32 v5, 3, v3           ; head = n&3
v_lshlrev_b32 v6, 8, v5
v_lshlrev_b32 v7, 4, v2
v_add_u32 v60, v6, v7
v_bfe_u32 v6, v3, 3, 1
v_lshlrev_b32 v6, 6, v6
v_add_u32 v60, v60, v6
v_add_u32 v60, {Q_OFF}, v60
v_lshlrev_b32 v61, 5, v5
v_add_u32 v61, {MX}, v61
s_lshl_b32 s6, s8, 2
v_add_u32 v59, s6, v61""")
        self.lds_wait(vC, 'v5', C_Q, 1, sleep=2)
        self.stamp(3)
        for hx in range(2):
            I(f'ds_read_b128 v[{48+4*hx}:{51+4*hx}], v60 offset:{hx*128}')
        I(f'ds_read_b32 v5, {vC} offset:{C_M}')
        I('s_waitcnt lgkmcnt(0)\nv_readfirstlane_b32 s51, v5')
        for o in range(8):
            I(f's_waitcnt vmcnt({14 - 2*o})')
            for hx in range(2):
                c = '0' if hx == 0 else f'v[{16+4*o}:{19+4*o}]'
                r = 64 + 8*o + 4*hx
                I(f'v_mfma_f32_16x16x32_bf16 v[{16+4*o}:{19+4*o}], v[{r}:{r+3}], v[{48+4*hx}:{51+4*hx}], {c}')
        for j in range(4):
            for r in range(4): I(f'v_permlane32_swap_b32 v{16+8*j+r}, v{20+8*j+r}')
            for r in range(4): I(f'v_add_f32_dpp v{16+4*j+r}, v{20+8*j+r}, v{16+8*j+r} row_ror:8 row_mask:0xf bank_mask:0xf')
        I('v_max3_f32 v5, v16, v17, v18')
        for e in range(19, 31, 2):
            I(f'v_max3_f32 v5, v5, v{e}, v{e+1}')
        I('v_max_f32 v5, v5, v31')
        for sw in ('v_permlane16_swap_b32', 'v_permlane32_swap_b32'):
            I(f"""v_mov_b32 v6, v5
{sw} v5, v6
v_max_f32 v5, v5, v6""")
        I("""s_mov_b64 exec, 15
ds_write_b32 v59, v5
s_mov_b64 exec, -1""")
        self.signal(vC, vOne, C_1)
        self.lds_wait(vC, 'v6', C_1, 8, sleep=0)
        I(f"""ds_read_b128 v[48:51], v61
ds_read_b128 v[52:55], v61 offset:16
s_mov_b32 s50, {fhex(cexp)}
s_waitcnt lgkmcnt(0)
v_max3_f32 v48, v48, v49, v50
v_max3_f32 v51, v51, v52, v53
v_max3_f32 v48, v48, v54, v55
v_max_f32 v48, v48, v51
v_mul_f32 v58, s50, v48
v_and_b32 v58, s63, v58""")
        for e in range(16):
            I(f'v_fma_f32 v{16+e}, v{16+e}, s50, -v58')
        for e in range(16):
            I(f'v_exp_f32 v{16+e}, v{16+e}')
        for q in range(8):
            I(f'v_cvt_pk_bf16_f32 v{48+q}, v{16+2*q}, v{17+2*q}')
        I(f"""s_lshl_b32 s6, s8, 9
s_add_u32 s6, s6, {P_OFF}
v_lshlrev_b32 v6, 6, v2
v_lshlrev_b32 v7, 4, v3
v_add_u32 v6, v6, v7
v_add_u32 v6, s6, v6
s_mov_b32 s40, 0x000f000f
s_mov_b32 s41, 0x000f000f
s_mov_b64 exec, s[40:41]
ds_write_b128 v6, v[48:51]
ds_write_b128 v6, v[52:55] offset:256
s_mov_b64 exec, -1""")
        for e in range(8): I(f'v_add_f32 v{16+e}, v{16+e}, v{24+e}')
        for e in range(4): I(f'v_add_f32 v{16+e}, v{16+e}, v{20+e}')
        I("""v_add_f32 v16, v16, v17
v_add_f32 v18, v18, v19
v_add_f32 v5, v16, v18""")
        for sw in ('v_permlane16_swap_b32', 'v_permlane32_swap_b32'):
            I(f"""v_mov_b32 v6, v5
{sw} v5, v6
v_add_f32 v5, v5, v6""")
        I("""s_mov_b64 exec, 15
ds_write_b32 v59, v5 offset:128
s_mov_b64 exec, -1""")
        self.signal(vC, vOne, C_2)
        self.lds_wait(vC, 'v6', C_2, 8, sleep=0)
        self.stamp(4)
        I(f"""s_lshl_b32 s12, s4, 5
s_add_u32 s12, s12, s5        ; slot
v_mov_b32 v47, s52""")
        Ls = self.lab('nostat')
        I(f"""s_cmp_lg_u32 s8, 0
s_cbranch_scc1 {Ls}
ds_read_b128 v[48:51], v61 offset:128
ds_read_b128 v[52:55], v61 offset:144
v_and_b32 v6, 3, v1
v_add_u32 v6, 0x07060500, v6
s_waitcnt lgkmcnt(0)
v_add_f32 v48, v48, v49
v_add_f32 v50, v50, v51
v_add_f32 v52, v52, v53
v_add_f32 v54, v54, v55
v_add_f32 v48, v48, v50
v_add_f32 v52, v52, v54
v_add_f32 v48, v48, v52
s_mov_b32 s40, 0xf0f0f0f0
s_mov_b32 s41, 0
v_cndmask_b32 v48, v58, v48, s[40:41]
v_perm_b32 v48, v48, v47, v6
s_lshl_b32 s6, s12, 7
s_add_u32 s6, s6, {WS_ST}
v_lshlrev_b32 v6, 2, v1
s_mov_b32 exec_hi, 0""")
        self.mode_store('buffer_store_dword v48, v6, s[20:23], s6 offen', 's51')
        I('s_mov_b32 exec_hi, -1')
        I(f'{Ls}:')
        I(f"""v_and_b32 v5, 3, v3
v_lshlrev_b32 v5, 4, v5
v_lshlrev_b32 v6, 6, v2
v_add_u32 v5, v5, v6
v_add_u32 v5, {P_OFF}, v5""")
        for st in range(16):
            if st == 8: I('s_waitcnt lgkmcnt(0)')
            I(f'ds_read_b128 v[{64+4*st}:{67+4*st}], v5 offset:{st*256}')
        I(f"""v_lshrrev_b32 v5, 2, v3       ; r
v_and_b32 v6, 3, v3           ; c4
v_lshlrev_b32 v7, 2, v2
v_add_u32 v7, v7, v5          ; 4s + r
v_and_b32 v48, 7, v7          ; (4(s&1) + r)
v_xor_b32 v48, s8, v48
v_lshlrev_b32 v48, 5, v48
v_lshlrev_b32 v7, 8, v7
v_add_u32 v7, v7, v48
v_lshlrev_b32 v6, 3, v6
v_add_u32 v56, v7, v6
v_add_u32 v57, 0x10000, v56
v_add_u32 v59, 0x20000, v56""")
        I(f"""s_lshr_b32 s13, s5, 2         ; w'
s_and_b32 s14, s5, 3          ; cg
s_and_b32 s15, s8, 1
s_lshl_b32 s6, s15, 4
v_add_u32 v5, s6, v2          ; b*16 + tq
v_lshlrev_b32 v12, 4, v5
v_add_u32 v12, {WL}, v12
s_lshl_b32 s6, s4, 5
v_add_u32 v61, s6, v5         ; slot' (i = 0)
v_lshlrev_b32 v61, 11, v61
s_lshl_b32 s6, s13, 4
v_add_u32 v6, s6, v3
v_lshlrev_b32 v6, 4, v6
v_add_u32 v61, v61, v6
v_add_u32 v61, {WS_T1}, v61
v_lshrrev_b32 v6, 3, v3
v_lshlrev_b32 v6, 6, v6
v_bfe_u32 v7, v3, 2, 1
v_lshlrev_b32 v7, 3, v7       ; half*8
v_add_u32 v6, v6, v7
v_and_b32 v7, 3, v3
v_lshlrev_b32 v7, 4, v7       ; sA*16
v_add_u32 v6, v6, v7
v_lshlrev_b32 v7, 1, v2
v_add_u32 v6, v6, v7          ; + hh*2
s_lshl_b32 s6, s15, 7
s_add_u32 s6, s6, {A1}
v_add_u32 v60, s6, v6
s_lshl_b32 s6, s12, 11
s_lshl_b32 s7, s8, 8
s_add_u32 s6, s6, s7
s_add_u32 s6, s6, {WS_T1}
v_lshlrev_b32 v58, 4, v3
v_add_u32 v58, s6, v58
v_and_b32 v6, 1, v3
v_lshlrev_b32 v44, 1, v6
v_add_u32 v50, 0x07060500, v44
v_add_u32 v51, 1, v50
v_mov_b32 v49, s52               ; T
v_lshlrev_b32 v7, 6, v6
v_lshlrev_b32 v6, 7, v6
v_lshlrev_b32 v48, 4, v2
v_add_u32 v6, v6, v48
v_add_u32 v62, {A1}, v6
v_add_u32 v7, v7, v48
v_add_u32 v48, {A2}, v7
s_lshl_b32 s6, s14, 3
s_add_u32 s6, s6, s8
s_lshl_b32 s6, s6, 6
s_lshl_b32 s7, s4, 3
s_add_u32 s7, s7, s13
s_add_u32 s6, s6, s7
s_lshl_b32 s6, s6, 7
s_add_u32 s6, s6, {WS_T3}
v_lshlrev_b32 v63, 3, v3
v_add_u32 v63, s6, v63
v_mov_b32 v13, {CNT}
s_and_b32 s13, s2, 3          ; cg3
s_lshr_b32 s14, s2, 2         ; o8
s_lshl_b32 s6, s13, 3
s_add_u32 s6, s6, s14
s_lshl_b32 s6, s6, 13
s_lshl_b32 s7, s8, 5
s_add_u32 s6, s6, s7
s_add_u32 s6, s6, {WS_T3}
v_lshrrev_b32 v14, 1, v1
v_lshlrev_b32 v14, 7, v14
v_and_b32 v6, 1, v1
v_lshlrev_b32 v7, 4, v6
v_add_u32 v14, v14, v7
v_add_u32 v14, s6, v14
s_lshl_b32 s6, s13, 8
s_lshl_b32 s7, s14, 5
s_add_u32 s6, s6, s7
s_lshl_b32 s7, s8, 3
s_add_u32 s6, s6, s7
v_and_b32 v15, 1, v2
v_lshlrev_b32 v15, 10, v15
v_lshlrev_b32 v6, 2, v6
v_add_u32 v15, v15, v6
v_lshrrev_b32 v6, 1, v2
v_lshlrev_b32 v6, 1, v6
v_add_u32 v15, v15, v6
v_add_u32 v15, s6, v15
s_waitcnt lgkmcnt(0)""")
        Lsa = self.lab('sa')
        I(f"""s_mov_b32 s60, 0
s_cmp_lg_u32 s8, {p['sw']}
s_cbranch_scc1 {Lsa}""")
        self.lds_wait('v13', 'v5', C_H, 1, sleep=1)
        I(f"""v_mov_b32 v5, {GATE}
ds_read_b64 v[6:7], v5
s_mov_b32 s40, 0
s_mov_b32 s41, -1
v_lshrrev_b32 v5, 5, v1
v_lshlrev_b32 v5, 4, v5
v_add_u32 v5, v5, v3          ; b'*16 + t'
v_lshlrev_b32 v60, 4, v5
v_add_u32 v60, {WL}, v60
s_lshl_b32 s6, s4, 5
v_add_u32 v5, s6, v5          ; slot'
v_lshlrev_b32 v5, 7, v5
v_add_u32 v61, {WS_ST}, v5
s_waitcnt lgkmcnt(0)
v_cndmask_b32 v12, v6, v7, s[40:41]   ; g_b (b = lane>>5)
{Lsa}:""")
        if p['owarm']:
            Lo = self.lab('ow')
            I(f"""s_cmp_ge_u32 s2, 32
s_cbranch_scc1 {Lo}
s_cmp_gt_u32 s8, 3
s_cbranch_scc1 {Lo}
s_mov_b32 exec_lo, 0x00030003
s_mov_b32 exec_hi, 0x00030003""")
            if p['owarm'] == 1: I('v_mov_b32 v5, 0\nbuffer_store_short v5, v15, s[24:27], 0 offen')
            else: I('buffer_load_ushort v5, v15, s[24:27], 0 offen')
            I(f's_mov_b64 exec, -1\ns_waitcnt vmcnt(0)\n{Lo}:')
        self.stamp(5)
        self.lds_wait('v13', 'v5', C_A, 4, sleep=p['sla'])
        self.stamp(6)
        def vread(st, r):
            base = 'v56' if st < 8 else 'v57'
            o = (st & 7) * 8192
            I(f'ds_read_b64_tr_b16 v[{r}:{r+1}], {base} offset:{o}')
            I(f'ds_read_b64_tr_b16 v[{r+2}:{r+3}], {base} offset:{o+4096}')
        def vmfma(st, r):
            c = '0' if st == 0 else 'v[8:11]'
            I(f'v_mfma_f32_16x16x32_bf16 v[8:11], v[{64+4*st}:{67+4*st}], v[{r}:{r+3}], {c}')
        na = p['na']
        batches = []
        st = 0
        while st < na:
            b = list(range(st, min(st + 4, na))); batches.append(b); st += len(b)
        sets = (16, 32)
        for k, b in enumerate(batches):
            if k == 0:
                for j, st in enumerate(b): vread(st, sets[0] + 4*j)
            I('s_waitcnt lgkmcnt(0)')
            if k + 1 < len(batches):
                for j, st in enumerate(batches[k+1]): vread(st, sets[(k+1) & 1] + 4*j)
            for j, st in enumerate(b): vmfma(st, sets[k & 1] + 4*j)
            if k == 0:
                Lq = self.lab('nsl')
                I(f"s_cmp_lg_u32 s8, {p['sw']}\ns_cbranch_scc1 {Lq}")
                self.stats_loads()
                I(f'{Lq}:')
        I('s_barrier')
        self.stamp(7)
        rest = list(range(na, 16))
        for j, st in enumerate(rest): vread(st, 16 + 4*j)
        for j, st in enumerate(rest):
            I(f's_waitcnt lgkmcnt({2*(len(rest)-1-j)})')
            vmfma(st, 16 + 4*j)
        for e in range(4): I(f'v_perm_b32 v{8+e}, v{8+e}, v49, s{53+e}')
        I('s_mov_b64 exec, 0xffff')
        self.mode_store('buffer_store_dwordx4 v[8:11], v58, s[20:23], 0 offen', 's51')
        I('s_mov_b64 exec, -1')
        I('ds_read_b128 v[52:55], v48')
        self.stamp(8)
        Lns = self.lab('nsw'); Lw = self.lab('sw'); Lr = self.lab('swr')
        I(f"""s_cmp_lg_u32 s8, {p['sw']}
s_cbranch_scc1 {Lns}
s_waitcnt vmcnt(1)""")
        self.stats_check()
        I(f"""v_cmp_ne_u32 vcc, 0, v5
s_cbranch_vccz {Lw}
{Lr}:""")
        self.stats_loads()
        I('s_add_u32 s48, s48, 1\ns_waitcnt vmcnt(0)')
        self.stats_check()
        self.poll_tail(Lr, Lw, 'v5', p['sls'])
        I(f"""s_branch {Lr}
{Lw}:""")
        self.untag(range(64, 72))
        for h in range(4): I(f'v_mov_b32 v{72+h}, v{64+h}')
        for rr in (8, 4, 2, 1):
            for h in range(4): I(f'v_max_f32_dpp v{72+h}, v{72+h}, v{72+h} row_ror:{rr} row_mask:0xf bank_mask:0xf')
        for h in range(4): I(f'v_sub_f32 v{64+h}, v{64+h}, v{72+h}')
        for h in range(4): I(f'v_exp_f32 v{64+h}, v{64+h}')
        for h in range(4): I(f'v_mul_f32 v{68+h}, v{68+h}, v{64+h}')
        for rr in (8, 4, 2, 1):
            for h in range(4): I(f'v_add_f32_dpp v{68+h}, v{68+h}, v{68+h} row_ror:{rr} row_mask:0xf bank_mask:0xf')
        for h in range(4): I(f'v_rcp_f32 v{68+h}, v{68+h}')
        for h in range(4): I(f'v_mul_f32 v{64+h}, v{64+h}, v12')
        for h in range(4): I(f'v_mul_f32 v{64+h}, v{64+h}, v{68+h}')
        I('ds_write_b128 v60, v[64:67]\nv_mov_b32 v5, 1')
        self.signal('v13', 'v5', C_W)
        I(f'{Lns}:')
        Lng = self.lab('nog')
        I(f"""s_cmp_gt_u32 s8, 1
s_cbranch_scc1 {Lng}""")
        I(f's_mov_b32 s6, {4*2048}\ns_mov_b32 s7, {8*2048}\ns_mov_b32 s9, {12*2048}')
        T2B = (64, 96, 112)
        NS2 = p['t2sets']
        def t2issue(k):
            for i, so in enumerate(('0', 's6', 's7', 's9')):
                r = T2B[k] + 4*i
                I(f'buffer_load_dwordx4 v[{r}:{r+3}], v61, s[20:23], {so} offen{SC}')
        if p['t2wait']: I('s_waitcnt vmcnt(0)')
        t2issue(0)
        self.lds_wait('v13', 'v5', C_W, 1, sleep=0)
        for i in range(4): I(f'ds_read_b128 v[{80+4*i}:{83+4*i}], v12 offset:{i*64}')
        for k in range(1, NS2):
            if p['t2st']: I(f"s_sleep {p['t2st']}")
            t2issue(k)
        L = self.lab('t2'); Dn = self.lab('t2d')
        if p['t2mask']:
            Lh = self.lab('t2m')
            I(f'{L}:\ns_waitcnt vmcnt(0)')
            for i in range(4):
                self.tag_acc(64 + 4*i, True)
                I(f'v_cmp_ne_u32 s[{40+2*i}:{41+2*i}], 0, v16')
            I(f"""s_or_b64 vcc, s[40:41], s[42:43]
s_or_b64 s[36:37], s[44:45], s[46:47]
s_or_b64 vcc, vcc, s[36:37]
s_cbranch_scc0 {Lh}
s_add_u32 s48, s48, 1
s_cmp_gt_u32 s48, {self.glim}
s_cbranch_scc1 {Lh}""")
            if p['sl2']: I(f"s_sleep {p['sl2']}")
            for i, so in enumerate(('0', 's6', 's7', 's9')):
                La = self.lab('t2s')
                I(f"""s_mov_b64 exec, s[{40+2*i}:{41+2*i}]
s_cbranch_execz {La}
buffer_load_dwordx4 v[{64+4*i}:{67+4*i}], v61, s[20:23], {so} offen{SC}
{La}:""")
            I(f's_mov_b64 exec, -1\ns_branch {L}\n{Lh}:\ns_waitcnt lgkmcnt(0)')
            self.untag(range(64, 80))
            for h in range(4): I(f'v_mul_f32 v{16+h}, v{64+h}, v{80+h}')
            for i in range(1, 4):
                for h in range(4): I(f'v_fmac_f32 v{16+h}, v{64+4*i+h}, v{80+4*i+h}')
            NS2 = 0
        if NS2: I(f'{L}:')
        hits = []
        for k in range(NS2):
            for i in range(4):
                I(f's_waitcnt vmcnt({4*(NS2-1) + 3-i})')
                self.tag_acc(T2B[k] + 4*i, i == 0)
            H = self.lab('t2h'); hits.append((H, T2B[k]))
            I(f"""v_cmp_ne_u32 vcc, 0, v16
s_cbranch_vccz {H}""")
            if p['sl2']: I(f"s_sleep {p['sl2']}")
            t2issue(k)
        if NS2: I(f"""s_add_u32 s48, s48, 1
s_cmp_le_u32 s48, {self.glim}
s_cbranch_scc1 {L}""")
        for j, (H, r) in enumerate(hits):
            I(f'{H}:')
            self.untag(range(r, r + 16))
            I('s_waitcnt lgkmcnt(0)')
            for h in range(4): I(f'v_mul_f32 v{16+h}, v{r+h}, v{80+h}')
            for i in range(1, 4):
                for h in range(4): I(f'v_fmac_f32 v{16+h}, v{r+4*i+h}, v{80+4*i+h}')
            if j + 1 < len(hits): I(f's_branch {Dn}')
        I(f'{Dn}:')
        self.stamp(9)
        I("""v_permlane16_swap_b32 v16, v17
v_permlane16_swap_b32 v18, v19
v_add_f32 v16, v16, v17
v_add_f32 v18, v18, v19
v_permlane32_swap_b32 v16, v18
v_add_f32 v16, v16, v18
v_cvt_pk_bf16_f32 v16, v16, v16
ds_write_b16 v60, v16
s_waitcnt lgkmcnt(0)""")
        I(f"""{Lng}:
s_barrier""")
        self.stamp(10)
        I("""ds_read_b64_tr_b16 v[16:17], v59 offset:16384
ds_read_b64_tr_b16 v[18:19], v59 offset:20480
ds_read_b128 v[32:35], v62
ds_read_b64_tr_b16 v[20:21], v59
ds_read_b64_tr_b16 v[22:23], v59 offset:4096
ds_read_b128 v[36:39], v62 offset:64
ds_read_b64_tr_b16 v[24:25], v59 offset:8192
ds_read_b64_tr_b16 v[26:27], v59 offset:12288
s_waitcnt lgkmcnt(6)
v_mfma_f32_16x16x32_bf16 v[8:11], v[52:55], v[16:19], 0
s_waitcnt lgkmcnt(3)
v_mfma_f32_16x16x32_bf16 v[8:11], v[32:35], v[20:23], v[8:11]
s_waitcnt lgkmcnt(0)
v_mfma_f32_16x16x32_bf16 v[8:11], v[36:39], v[24:27], v[8:11]""")
        I(f"""v_perm_b32 v8, v8, v49, v50
v_perm_b32 v9, v9, v49, v51
s_mov_b64 exec, 0xffff
buffer_store_dwordx2 v[8:9], v63, s[20:23], 0 offen{(SC, ' sc0 sc1')[p['t3stf']]}
s_mov_b64 exec, -1""")
        self.stamp(11)
        Lend = 'L_CW_end'
        I(f"""s_cmp_ge_u32 s2, 32
s_cbranch_scc1 {Lend}
s_cmp_gt_u32 s8, 3
s_cbranch_scc1 {Lend}
s_mov_b32 s7, 4096""")
        NS = p['t3sets']
        L = self.lab('t3'); Dn = self.lab('t3d')
        def issue(k):
            r = 64 + 8*k
            fl = (SC, ' sc0 sc1', ' sc1 nt', ' sc0 sc1 nt')[p['t3ld']]
            I(f'buffer_load_dwordx4 v[{r}:{r+3}], v14, s[20:23], 0 offen{fl}')
            I(f'buffer_load_dwordx4 v[{r+4}:{r+7}], v14, s[20:23], s7 offen{fl}')
        if p['t3wait']: I('s_waitcnt vmcnt(0)')
        if p['t3delay']: I(f"s_sleep {p['t3delay']}")
        self.stamp(13)
        if p['stamps'] and not p['light']: I('s_mov_b32 s59, s48')
        if p['t3mask']:
            fl = (SC, ' sc0 sc1', ' sc1 nt', ' sc0 sc1 nt')[p['t3ld']]
            issue(0)
            La = self.lab('t3a'); Lb = self.lab('t3b'); Lh = self.lab('t3m')
            I(f'{L}:\ns_waitcnt vmcnt(0)')
            self.tag_acc(64, True)
            I('v_cmp_ne_u32 s[40:41], 0, v16')
            self.tag_acc(68, True)
            I(f"""v_cmp_ne_u32 s[42:43], 0, v16
s_or_b64 s[44:45], s[40:41], s[42:43]
s_cbranch_scc0 {Lh}
s_add_u32 s48, s48, 1
s_cmp_gt_u32 s48, {self.glim}
s_cbranch_scc1 {Lh}""")
            if p['sl3']: I(f"s_sleep {p['sl3']}")
            I(f"""s_mov_b64 exec, s[40:41]
s_cbranch_execz {La}
buffer_load_dwordx4 v[64:67], v14, s[20:23], 0 offen{fl}
{La}:
s_mov_b64 exec, s[42:43]
s_cbranch_execz {Lb}
buffer_load_dwordx4 v[68:71], v14, s[20:23], s7 offen{fl}
{Lb}:
s_mov_b64 exec, -1
s_branch {L}
{Lh}:""")
            self.untag(range(64, 72))
            for e in range(4): I(f'v_add_f32 v{20+e}, v{64+e}, v{68+e}')
            NS = 0
        for k in range(NS):
            issue(k)
            if k + 1 < NS and p['t3st']: I(f"s_sleep {p['t3st']}")
        if NS: I(f'{L}:')
        hits = []
        for k in range(NS):
            r = 64 + 8*k
            I(f's_waitcnt vmcnt({2*(NS-1)})')
            self.tag_acc(r, True)
            self.tag_acc(r + 4, False)
            H = self.lab('t3h'); hits.append((H, r))
            I(f"""v_cmp_ne_u32 vcc, 0, v16
s_cbranch_vccz {H}""")
            issue(k)
        if NS: I(f"""s_add_u32 s48, s48, 1
s_cmp_le_u32 s48, {self.glim}
s_cbranch_scc1 {L}""")
        for j, (H, r) in enumerate(hits):
            I(f'{H}:')
            self.untag(range(r, r + 8))
            for e in range(4): I(f'v_add_f32 v{20+e}, v{r+e}, v{r+4+e}')
            if j + 1 < len(hits): I(f's_branch {Dn}')
        I(f'{Dn}:')
        if p['stamps'] and not p['light']:
            I('s_sub_u32 s92, s48, s59\ns_add_u32 s92, s92, 1')
            self.stamp(15)
        I("""v_permlane16_swap_b32 v20, v21
v_permlane16_swap_b32 v22, v23
v_add_f32 v20, v20, v21
v_add_f32 v22, v22, v23
v_permlane32_swap_b32 v20, v22
v_add_f32 v20, v20, v22""")
        for rr in (2, 4, 8):
            I(f'v_add_f32_dpp v20, v20, v20 row_ror:{rr} row_mask:0xf bank_mask:0xf')
        I(f"""v_cvt_pk_bf16_f32 v20, v20, v20
s_mov_b32 exec_lo, 0x00030003
s_mov_b32 exec_hi, 0x00030003
buffer_store_short v20, v15, s[24:27], 0 offen
s_mov_b64 exec, -1""")
        I(f"""s_cmp_lg_u32 s2, 0
s_cbranch_scc1 L_CW_noe
s_cmp_lg_u32 s8, 0
s_cbranch_scc1 L_CW_noe
v_mov_b32 v5, {WS_E}
s_mov_b64 exec, 1
buffer_store_dword v49, v5, s[20:23], 0 offen{SC}
s_mov_b64 exec, -1
L_CW_noe:""")
        self.stamp(12)
        I(f'{Lend}:')
        self.stamp_dump('s[20:23]', 16)
        I('s_endpgm')

    def build(self):
        I = self.I
        I('''s_cmp_ge_u32 s2, 256
s_cbranch_scc1 L_exit''')
        if self.p['stamps']:
            for i in range(16): I(f's_mov_b32 s{64+2*i}, 0')
            self.stamp(0)
        I(f'''v_lshrrev_b32 v1, 6, v0
s_and_b32 s4, s2, 7
s_lshr_b32 s5, s2, 3
s_mov_b32 s48, 0
v_readfirstlane_b32 s3, v1
s_cmp_ge_u32 s3, {W_L0}
s_cbranch_scc1 L_LD
s_cmp_ge_u32 s3, {W_C0}
s_cbranch_scc1 L_CW
s_cmp_eq_u32 s3, {W_J1}
s_cbranch_scc1 L_J1''')
        self.role_j0()
        self.role_j1()
        self.role_compute()
        self.role_loader()
        I('L_exit:\ns_endpgm\nL_codeend:')
        head = f'''; Fused decode step: GQA attention over the KV cache + SwiGLU FFN + sigmoid-gated mix (gfx950).
;
;
; @launch grid=(256,1,1) block=(896,1,1) lds={LDS_BYTES}
.amdgcn_target "amdgcn-amd-amdhsa--gfx950"
.text
.globl {KNAME}
.p2align 8
.type {KNAME},@function
{KNAME}:
'''
        foot = f'''.section .rodata,"a"
.p2align 6
.amdhsa_kernel {KNAME}
  .amdhsa_next_free_vgpr 128
  .amdhsa_next_free_sgpr 102
  .amdhsa_accum_offset 128
  .amdhsa_group_segment_fixed_size 0
  .amdhsa_kernarg_size 104
  .amdhsa_user_sgpr_count 2
  .amdhsa_user_sgpr_kernarg_segment_ptr 1
  .amdhsa_system_sgpr_workgroup_id_x 1
.end_amdhsa_kernel
'''
        return head + self.a.text() + foot

def main():
    out = sys.argv[1]
    kw = {}
    for arg in sys.argv[2:]:
        k, v = arg.split('=')
        assert k in DEF or k in ('pfn',), k
        kw[k] = (v == 'True') if v in ('True', 'False') else int(v)
    open(out, 'w').write(G(**kw).build())

if __name__ == '__main__':
    main()
```

```python
import sys, math, struct
from emit import Asm

def fhex(x): return '0x%08x' % struct.unpack('<I', struct.pack('<f', x))[0]
KNAME = 'gated_mix__gqa_block_cached__swiglu_ffn__decode_kernel'

WS_Q  = 0x000000
WS_F  = 0x020000
WS_ID = 0x030000
COPYB = 0x040000
WS_ST = 0x080000
WS_E  = 0x088000
WS_T1 = 0x100000
WS_T3 = 0x180000
WS_DBG = 0x200000
WS_SIZE = 0x400000

V_OFF = 0
STG0 = 0
STG1 = 16384
WO_OFF = 131072
WD_OFF = 147456
P_OFF = 155648
Q_OFF = 159744
MISC = 160768
MX = MISC
LX = MISC + 128
A1 = MISC + 256
A2 = MISC + 512
GATE = MISC + 640
CNT = MISC + 704
WL = MISC + 1024
C_Q, C_H, C_K, C_1, C_2, C_A, C_M, C_W, C_T = 0, 4, 8, 12, 16, 20, 24, 28, 32
LDS_BYTES = 163840

SPIN_LIMIT = 300000
SC = ' sc1'
W_J0, W_J1, W_C0, W_L0 = 0, 1, 2, 10

DEF = dict(nt_k=True, nt_v=True, nt_w=True, dk=4, dv=6, dv2=4, dvn=0, stamps=False, na=14, ksig=0, kthr=4,
           slq=2, slf=2, sls=2, sl2=0, sl3=0, pf=False, na_polls=10, force_remote=False, nopoll=False,
           t3sets=1, t3st=4, tlb=True, sw=2, t3delay=0, t3ld=0, t3stf=0, x_nob=False, qdelay=0,
           x_stream=False, rka=1, rkb=3, rkc=0, x_start=False, t2sets=1, t2st=3, wpos=32, wsplit=6, light=False, t3mask=True, t3wait=True, t2wait=False, t2mask=False, prio_ld=0, prio_j=0, sla=1, slk=2, rcb=1, rcc=0, owarm=0, pre1=False, pre3=False, x_dirty=0)

class G:
    def __init__(self, **kw):
        self.p = dict(DEF); self.p.update(kw)
        self.a = Asm()
        self.uid = 0
        self.glim = 0 if self.p['nopoll'] else SPIN_LIMIT
    def I(self, s): self.a.I(s)
    def lab(self, base):
        self.uid += 1
        return f'L_{base}_{self.uid}'
    def stamp(self, i):
        if self.p['stamps'] and (not self.p['light'] or i in (0, 12)):
            self.I(f's_memrealtime s[{64+2*i}:{65+2*i}]')
            self.I('s_waitcnt lgkmcnt(0)')
    def stamp_dump(self, srd, n=12):
        if not self.p['stamps']: return
        I = self.I
        I('s_mov_b64 exec, -1')
        I('s_lshl_b32 s6, s2, 4')
        I('s_add_u32 s6, s6, s3')
        I('s_lshl_b32 s6, s6, 6')
        I(f's_add_u32 s6, s6, {WS_DBG}')
        I('v_mov_b32 v1, s6')
        I('s_mov_b64 exec, 1')
        for j in range(0, n, 4):
            for t in range(4):
                I(f'v_mov_b32 v{4+t}, s{64+2*(j+t)}')
            I(f'buffer_store_dwordx4 v[4:7], v1, {srd}, 0 offen offset:{j*4}')
        I('s_mov_b64 exec, -1')
    def signal(self, vC, vOne, off):
        self.I(f'''s_mov_b64 exec, 1
ds_add_u32 {vC}, {vOne} offset:{off}
s_mov_b64 exec, -1''')
    def lds_wait(self, vC, vT, off, n, sleep=1):
        L = self.lab('lw'); D = self.lab('lwd')
        self.I(f'''{L}:
ds_read_b32 {vT}, {vC} offset:{off}
s_add_u32 s48, s48, 1
s_waitcnt lgkmcnt(0)
v_readfirstlane_b32 s49, {vT}
s_cmp_ge_u32 s49, {n}
s_cbranch_scc1 {D}
s_cmp_gt_u32 s48, {SPIN_LIMIT}
s_cbranch_scc1 {D}''')
        if sleep: self.I(f's_sleep {sleep}')
        self.I(f'''s_branch {L}
{D}:''')
    def tag_load(self, wsbase):
        self.I(f's_load_dword s52, s[{wsbase}:{wsbase+1}], {WS_E}')
        for i in range(4): self.I(f's_mov_b32 s{53+i}, 0x0706050{i}')
        self.I('s_mov_b32 s57, 0x0c0c0400\ns_mov_b32 s58, 0x04000c0c\ns_mov_b32 s63, 0xffffff00')
    def untag(self, regs):
        for r in regs: self.I(f'v_and_b32 v{r}, s63, v{r}')
    def tag_ready(self):
        self.I('s_waitcnt lgkmcnt(0)\ns_add_u32 s52, s52, 1')
    def tag_acc(self, r, first, acc='v16', t1='v17', t2='v18', t3='v19'):
        self.I(f'v_perm_b32 {t2}, v{r+1}, v{r}, s57\nv_perm_b32 {t3}, v{r+3}, v{r+2}, s58\nv_or_b32 {t2}, {t2}, {t3}')
        if first: self.I(f'v_xor_b32 {acc}, s52, {t2}')
        else: self.I(f'v_xor_b32 {t1}, s52, {t2}\nv_or_b32 {acc}, {acc}, {t1}')
    def poll_tail(self, L, D, acc, sleep):
        self.I(f'''v_cmp_ne_u32 vcc, 0, {acc}
s_cbranch_vccz {D}
s_cmp_gt_u32 s48, {self.glim}
s_cbranch_scc1 {D}''')
        if sleep: self.I(f's_sleep {sleep}')
    def srd(self, base, karg_off, size):
        self.I(f's_load_dwordx2 s[{base}:{base+1}], s[0:1], {karg_off}')
        self.I(f's_mov_b32 s{base+2}, {size}')
        self.I(f's_mov_b32 s{base+3}, 0x20000')
    def stats_loads(self):
        self.I(f"""buffer_load_dwordx4 v[64:67], v61, s[20:23], 0 offen{SC}
buffer_load_dwordx4 v[68:71], v61, s[20:23], 0 offen offset:16{SC}""")
    def stats_check(self):
        self.tag_acc(64, True, 'v5', 'v6', 'v7', 'v4')
        self.tag_acc(68, False, 'v5', 'v6', 'v7', 'v4')
    def lane_setup(self):
        self.I('''v_and_b32 v1, 63, v0
v_lshrrev_b32 v2, 4, v1
v_and_b32 v3, 15, v1''')
    def mode_store(self, ins, smode):
        Lr = self.lab('ms'); Le = self.lab('mse')
        self.I(f'''s_cmp_eq_u32 {smode}, 0
s_cbranch_scc1 {Lr}
{ins}
s_branch {Le}
{Lr}:
{ins}{SC}
{Le}:''')

    def qtile_issue(self, srdW, srdX, sBase, sKs):
        I = self.I; pitch = 8192; stg = STG0
        ntf = ' nt' if self.p['nt_w'] else ''
        I(f'''v_lshrrev_b32 v4, 5, v1
v_lshlrev_b32 v4, 3, v4
v_bfe_u32 v5, v1, 3, 2
v_add_u32 v4, v4, v5
v_mul_u32_u24 v4, {pitch}, v4
v_and_b32 v5, 7, v1
v_bfe_u32 v6, v1, 4, 2
v_lshlrev_b32 v6, 1, v6
v_xor_b32 v5, v5, v6
v_lshlrev_b32 v5, 4, v5
v_add_u32 v4, v4, v5''')
        for i in range(16):
            rowi = 32*(i >> 2) + 16*(i & 1) + 4*((i >> 1) & 1)
            I(f's_mov_b32 m0, {stg + i*1024}')
            I(f's_add_u32 s7, {sBase}, {rowi*pitch}')
            I(f'buffer_load_dwordx4 v4, {srdW}, s7 offen{ntf} lds')
        I(f'''v_and_b32 v5, 1, v3
v_lshlrev_b32 v5, 10, v5
v_lshlrev_b32 v6, 4, v2
v_add_u32 v5, v5, v6
s_lshl_b32 s6, {sKs}, 8
v_add_u32 v5, s6, v5''')
        for kk in range(4):
            I(f'buffer_load_dwordx4 v[{8+4*kk}:{11+4*kk}], v5, {srdX}, 0 offen offset:{kk*64}')
        I(f'''v_lshrrev_b32 v6, 2, v3
v_and_b32 v7, 3, v3
v_lshlrev_b32 v28, 2, v2
v_add_u32 v28, v28, v6
v_lshlrev_b32 v28, 7, v28
v_lshlrev_b32 v7, 3, v7
v_add_u32 v28, v28, v7
v_add_u32 v28, {stg}, v28
v_lshlrev_b32 v29, 1, v2
v_lshrrev_b32 v6, 1, v6
v_add_u32 v29, v29, v6
v_and_b32 v29, 3, v29''')
        for nt_ in range(4):
            I(f'''v_xor_b32 v6, {nt_}, v29
v_lshlrev_b32 v6, 5, v6
v_add_u32 v{24+nt_}, v28, v6''')
    def qtile_compute(self):
        I = self.I
        def reads(kk, setb):
            for nt_ in range(4):
                for hf in range(2):
                    r = setb + 4*nt_ + 2*hf
                    I(f'ds_read_b64_tr_b16 v[{r}:{r+1}], v{24+nt_} offset:{kk*4096 + hf*2048}')
        def mf(kk, setb):
            for nt_ in range(4):
                c = '0' if kk == 0 else f'v[{64+4*nt_}:{67+4*nt_}]'
                I(f'v_mfma_f32_16x16x32_bf16 v[{64+4*nt_}:{67+4*nt_}], v[{8+4*kk}:{11+4*kk}], v[{setb+4*nt_}:{setb+4*nt_+3}], {c}')
        sets = (32, 48)
        reads(0, sets[0])
        for kk in range(4):
            I('s_waitcnt lgkmcnt(0)')
            if kk < 3: reads(kk+1, sets[(kk+1) & 1])
            mf(kk, sets[kk & 1])
        I('''s_mov_b32 s40, 0xffff0000
s_mov_b32 s41, 0
s_mov_b32 s42, 0
s_mov_b32 s43, 0x0000ffff
s_mov_b32 s44, 0
s_mov_b32 s45, 0xffff0000''')
        for b in range(2):
            I(f'''v_cndmask_b32 v{40+b}, v{64+b}, v{68+b}, s[40:41]
v_cndmask_b32 v{40+b}, v{40+b}, v{72+b}, s[42:43]
v_cndmask_b32 v{40+b}, v{40+b}, v{76+b}, s[44:45]''')

    def ftile_issue(self, srdW, srdX, sBase, sKs):
        I = self.I; pitch = 3584; stg = STG1
        ntf = ' nt' if self.p['nt_w'] else ''
        I(f'''v_lshrrev_b32 v4, 4, v1
v_lshlrev_b32 v4, 3, v4
v_bfe_u32 v5, v1, 2, 2
v_add_u32 v4, v4, v5
v_mul_u32_u24 v4, {pitch}, v4
v_and_b32 v5, 3, v1
v_bfe_u32 v6, v1, 4, 1
v_lshlrev_b32 v6, 1, v6
v_xor_b32 v5, v5, v6
v_lshlrev_b32 v5, 4, v5
v_add_u32 v4, v4, v5''')
        for i in range(16):
            rowi = 32*(i >> 1) + 4*(i & 1)
            I(f's_mov_b32 m0, {stg + i*1024}')
            I(f's_add_u32 s7, {sBase}, {rowi*pitch}')
            I(f'buffer_load_dwordx4 v4, {srdW}, s7 offen{ntf} lds')
        I(f'''v_and_b32 v5, 1, v3
v_lshlrev_b32 v5, 10, v5
v_lshlrev_b32 v6, 4, v2
v_add_u32 v5, v5, v6
s_lshl_b32 s6, {sKs}, 9
v_add_u32 v5, s6, v5''')
        for kk in range(8):
            I(f'buffer_load_dwordx4 v[{96+4*kk}:{99+4*kk}], v5, {srdX}, 0 offen offset:{kk*64}')
        I(f'''v_lshrrev_b32 v6, 2, v3
v_and_b32 v7, 3, v3
v_lshlrev_b32 v28, 2, v2
v_add_u32 v28, v28, v6
v_lshlrev_b32 v28, 6, v28
v_lshlrev_b32 v7, 3, v7
v_add_u32 v28, v28, v7
v_add_u32 v28, {stg}, v28
v_and_b32 v29, 1, v2
v_lshlrev_b32 v6, 5, v29
v_add_u32 v24, v28, v6
v_xor_b32 v6, 1, v29
v_lshlrev_b32 v6, 5, v6
v_add_u32 v25, v28, v6''')
    def ftile_compute(self):
        I = self.I
        def reads(k2, setb):
            for kq in range(2):
                kk = 2*k2 + kq
                for nt_ in range(2):
                    for hf in range(2):
                        r = setb + 8*kq + 4*nt_ + 2*hf
                        I(f'ds_read_b64_tr_b16 v[{r}:{r+1}], v{24+nt_} offset:{kk*2048 + hf*1024}')
        def mf(k2, setb):
            for kq in range(2):
                kk = 2*k2 + kq
                for nt_ in range(2):
                    c = '0' if kk == 0 else f'v[{64+4*nt_}:{67+4*nt_}]'
                    r = setb + 8*kq + 4*nt_
                    I(f'v_mfma_f32_16x16x32_bf16 v[{64+4*nt_}:{67+4*nt_}], v[{96+4*kk}:{99+4*kk}], v[{r}:{r+3}], {c}')
        sets = (32, 48)
        reads(0, sets[0])
        for k2 in range(4):
            I('s_waitcnt lgkmcnt(0)')
            if k2 < 3: reads(k2+1, sets[(k2+1) & 1])
            mf(k2, sets[k2 & 1])
        I('''s_mov_b32 s40, 0xffff0000
s_mov_b32 s41, 0
s_mov_b32 s42, 0
s_mov_b32 s43, 0x0000ffff
s_mov_b32 s44, 0
s_mov_b32 s45, 0xffff0000
v_cndmask_b32 v40, v64, v68, s[40:41]
v_cndmask_b32 v40, v40, v65, s[42:43]
v_cndmask_b32 v40, v40, v69, s[44:45]''')

    def role_j0(self):
        I = self.I; p = self.p
        I('L_J0:')
        if p['prio_j']: I(f"s_setprio {p['prio_j']}")
        self.srd(16, 24, 0x400000)
        self.srd(20, 0, 2048)
        self.srd(24, 96, WS_SIZE)
        I('s_barrier')
        if p['x_stream']: I('s_endpgm')
        self.lane_setup()
        I(f"""s_lshr_b32 s8, s5, 2          ; qcl
s_and_b32 s9, s5, 3           ; ks
s_mul_i32 s10, s9, 128*8192
s_lshl_b32 s6, s4, 10
s_add_u32 s10, s10, s6
s_lshl_b32 s6, s8, 7
s_add_u32 s10, s10, s6
s_getreg_b32 s12, hwreg(HW_REG_XCC_ID, 0, 4)
v_mov_b32 v90, {CNT}
v_mov_b32 v91, 1
s_waitcnt lgkmcnt(0)""")
        self.qtile_issue('s[16:19]', 's[20:23]', 's10', 's9')
        self.tag_load(24)
        I("""v_and_b32 v81, 3, v1
v_add_u32 v81, 0x07060500, v81
s_lshl_b32 s13, s12, 8
v_mov_b32 v82, s13""")
        if p['pre3']:
            self.tag_ready()
            I(f"""s_not_b32 s6, s52
v_mov_b32 v83, s6
s_lshl_b32 s6, s4, 3
s_add_u32 s6, s6, s9
s_lshl_b32 s6, s6, 11
s_lshl_b32 s7, s8, 8
s_add_u32 s6, s6, s7
v_lshlrev_b32 v84, 2, v1
v_add_u32 v85, s6, v84
v_add_u32 v86, {4*2048}, v85
s_lshl_b32 s6, s4, 5
s_add_u32 s6, s6, s5
s_lshl_b32 s6, s6, 7
s_add_u32 s6, s6, {WS_ID}
v_add_u32 v87, s6, v84
buffer_store_dword v83, v85, s[24:27], 0 offen
buffer_store_dword v83, v86, s[24:27], 0 offen
s_mov_b32 exec_hi, 0
buffer_store_dword v83, v87, s[24:27], 0 offen
s_mov_b32 exec_hi, -1""")
        self.stamp(1)
        I('s_waitcnt vmcnt(0)')
        if not p['pre3']: self.tag_ready()
        I('v_mov_b32 v80, s52')
        self.stamp(2)
        self.qtile_compute()
        self.signal('v90', 'v91', C_T)
        I(f"""v_perm_b32 v40, v40, v80, v81
v_perm_b32 v41, v41, v80, v81
v_perm_b32 v82, v82, v80, v81
s_lshl_b32 s6, s4, 3
s_add_u32 s6, s6, s9
s_lshl_b32 s6, s6, 11         ; (g*8 + ks)*2048
s_lshl_b32 s7, s8, 8
s_add_u32 s6, s6, s7
v_lshlrev_b32 v4, 2, v1
v_add_u32 v5, s6, v4
v_add_u32 v6, {4*2048}, v5
s_lshl_b32 s6, s4, 5
s_add_u32 s6, s6, s5
s_lshl_b32 s6, s6, 7
s_add_u32 s6, s6, {WS_ID}
v_add_u32 v7, s6, v4
s_mov_b32 s14, {COPYB}
buffer_store_dword v40, v5, s[24:27], 0 offen
buffer_store_dword v41, v6, s[24:27], 0 offen
s_mov_b32 exec_hi, 0
buffer_store_dword v82, v7, s[24:27], 0 offen
s_mov_b32 exec_hi, -1
""")
        if not p['x_nob']:
            I(f"""buffer_store_dword v40, v5, s[24:27], s14 offen{SC}
buffer_store_dword v41, v6, s[24:27], s14 offen{SC}
s_mov_b32 exec_hi, 0
buffer_store_dword v82, v7, s[24:27], s14 offen{SC}
s_mov_b32 exec_hi, -1""")
        if p['qdelay']: I(f"s_sleep {p['qdelay']}")
        self.stamp(3)
        I(f"""s_lshl_b32 s6, s4, 1
s_lshr_b32 s7, s5, 4          ; b
s_add_u32 s6, s6, s7
s_lshl_b32 s6, s6, 13
v_lshlrev_b32 v4, 4, v1
v_add_u32 v4, s6, v4
v_and_b32 v5, 31, v1
v_lshlrev_b32 v5, 7, v5
s_lshl_b32 s6, s4, 12
s_add_u32 s6, s6, {WS_ID}
v_add_u32 v5, s6, v5
s_mov_b32 s15, {COPYB if p['force_remote'] else 0}
s_mov_b32 s11, 0""")
        L = self.lab('qg'); D = self.lab('qgd'); Lk = self.lab('qgk')
        I(f'{L}:')
        for ks in range(4):
            I(f's_add_u32 s7, s15, {ks*2048}')
            for i in range(2):
                r = 8 + 8*ks + 4*i
                I(f'buffer_load_dwordx4 v[{r}:{r+3}], v4, s[24:27], s7 offen offset:{i*1024}{SC}')
        I(f'buffer_load_dwordx4 v[40:43], v5, s[24:27], s15 offen{SC}')
        I('s_add_u32 s48, s48, 1\ns_add_u32 s11, s11, 1\ns_waitcnt vmcnt(0)')
        for j in range(9):
            self.tag_acc(8 + 4*j, j == 0, 'v44', 'v45', 'v46', 'v47')
        self.poll_tail(L, D, 'v44', p['slq'])
        if not p['force_remote']:
            I(f"""s_cmp_lt_u32 s11, {p['na_polls']}
s_cbranch_scc1 {L}
s_xor_b32 s15, s15, {COPYB}""")
        I(f"""s_branch {L}
{D}:""")
        self.stamp(5)
        I(f"""v_bfe_u32 v40, v40, 8, 4
v_cmp_ne_u32 vcc, s12, v40
s_cmp_eq_u64 vcc, 0
s_cselect_b32 s6, {0 if p['force_remote'] else 1}, 0
v_mov_b32 v44, s6
s_mov_b64 exec, 1
ds_write_b32 v90, v44 offset:{C_M}
s_mov_b64 exec, -1""")
        self.untag(range(8, 40))
        for e in range(8):
            I(f'v_add_f32 v{8+e}, v{8+e}, v{16+e}')
            I(f'v_add_f32 v{24+e}, v{24+e}, v{32+e}')
        for e in range(8):
            I(f'v_add_f32 v{8+e}, v{8+e}, v{24+e}')
        I(f"""v_cvt_pk_bf16_f32 v40, v8, v9
v_cvt_pk_bf16_f32 v41, v10, v11
v_cvt_pk_bf16_f32 v42, v12, v13
v_cvt_pk_bf16_f32 v43, v14, v15
v_lshlrev_b32 v4, 3, v1
v_add_u32 v4, {Q_OFF}, v4
ds_write_b64 v4, v[40:41]
ds_write_b64 v4, v[42:43] offset:512""")
        self.signal('v90', 'v91', C_Q)
        I('s_waitcnt lgkmcnt(0)')
        self.stamp(6)
        self.stamp_dump('s[24:27]')
        I('s_endpgm')

    def role_j1(self):
        I = self.I; p = self.p
        I('L_J1:')
        I('s_load_dwordx4 s[8:11], s[0:1], 48')
        self.srd(20, 0, 2048)
        self.srd(24, 96, WS_SIZE)
        self.srd(28, 72, 1024)
        I('s_barrier')
        if p['x_stream']: I('s_endpgm')
        self.lane_setup()
        I(f"""s_mul_i32 s12, s5, 9363
s_lshr_b32 s12, s12, 16
s_mul_i32 s13, s12, 7
s_sub_u32 s13, s5, s13        ; cf
s_and_b32 s14, s12, 1         ; mat
s_lshr_b32 s15, s12, 1        ; ks
v_mov_b32 v90, {CNT}
v_mov_b32 v91, 1
s_waitcnt lgkmcnt(0)
s_cmp_eq_u32 s14, 0
s_cselect_b32 s16, s8, s10
s_cselect_b32 s17, s9, s11
s_mov_b32 s18, {512*1792*2}
s_mov_b32 s19, 0x20000
s_mul_i32 s8, s15, 256*3584
s_mul_i32 s6, s4, 448
s_add_u32 s8, s8, s6
s_lshl_b32 s6, s13, 6
s_add_u32 s8, s8, s6""")
        Lskip = self.lab('nof1'); Lj = self.lab('f1j')
        I(f"""s_cmp_ge_u32 s5, 28
s_cbranch_scc1 {Lskip}""")
        self.ftile_issue('s[16:19]', 's[20:23]', 's8', 's15')
        I(f'{Lskip}:')
        I("""v_lshlrev_b32 v80, 4, v1
buffer_load_dwordx4 v[84:87], v80, s[20:23], 0 offen
buffer_load_dwordx4 v[88:91], v80, s[20:23], 0 offen offset:1024
buffer_load_dwordx4 v[92:95], v80, s[28:31], 0 offen""")
        self.tag_load(24)
        I("""v_and_b32 v81, 3, v1
v_add_u32 v81, 0x07060500, v81""")
        if p['pre3']:
            self.tag_ready()
            Lf = self.lab('pf1')
            I(f"""s_cmp_ge_u32 s5, 28
s_cbranch_scc1 {Lf}
s_not_b32 s6, s52
v_mov_b32 v83, s6
s_lshl_b32 s6, s4, 2
s_lshl_b32 s7, s14, 1
s_add_u32 s6, s6, s7
s_add_u32 s6, s6, s15
s_lshl_b32 s6, s6, 11
s_lshl_b32 s7, s13, 7
s_add_u32 s6, s6, s7
s_add_u32 s6, s6, {WS_F}
v_lshrrev_b32 v82, 5, v1
v_lshlrev_b32 v82, 10, v82
v_and_b32 v79, 31, v1
v_lshlrev_b32 v79, 2, v79
v_add_u32 v82, v82, v79
v_add_u32 v82, s6, v82
buffer_store_dword v83, v82, s[24:27], 0 offen
{Lf}:""")
        self.stamp(1)
        I('s_waitcnt vmcnt(0)')
        if not p['pre3']: self.tag_ready()
        I('v_mov_b32 v80, s52')
        self.stamp(2)
        I(f"""s_cmp_ge_u32 s5, 28
s_cbranch_scc1 {Lj}""")
        self.ftile_compute()
        I(f"""v_perm_b32 v40, v40, v80, v81
s_lshl_b32 s6, s4, 2
s_add_u32 s6, s6, s12
s_lshl_b32 s6, s4, 2
s_lshl_b32 s7, s14, 1
s_add_u32 s6, s6, s7
s_add_u32 s6, s6, s15
s_lshl_b32 s6, s6, 11         ; *[b 2][256] f32
s_lshl_b32 s7, s13, 7
s_add_u32 s6, s6, s7
s_add_u32 s6, s6, {WS_F}
v_lshrrev_b32 v4, 5, v1
v_lshlrev_b32 v4, 10, v4
v_and_b32 v5, 31, v1
v_lshlrev_b32 v5, 2, v5
v_add_u32 v4, v4, v5
v_add_u32 v4, s6, v4
s_mov_b32 s7, {COPYB}
buffer_store_dword v40, v4, s[24:27], 0 offen""")
        if not p['x_nob']: I(f'buffer_store_dword v40, v4, s[24:27], s7 offen{SC}')
        if p['qdelay']: I(f"s_sleep {p['qdelay']}")
        I(f'{Lj}:')
        I(f'v_mov_b32 v82, {CNT}\nv_mov_b32 v83, 1')
        self.signal('v82', 'v83', C_T)
        self.stamp(3)
        I('v_mov_b32 v8, 0\nv_mov_b32 v9, 0')
        for e in range(4):
            I(f"""v_lshlrev_b32 v10, 16, v{92+e}
v_and_b32 v11, 0xffff0000, v{92+e}
v_lshlrev_b32 v12, 16, v{84+e}
v_and_b32 v13, 0xffff0000, v{84+e}
v_lshlrev_b32 v14, 16, v{88+e}
v_and_b32 v15, 0xffff0000, v{88+e}
v_fmac_f32 v8, v10, v12
v_fmac_f32 v9, v10, v14
v_fmac_f32 v8, v11, v13
v_fmac_f32 v9, v11, v15""")
        for rr in (8, 4, 2, 1):
            I(f'v_add_f32_dpp v8, v8, v8 row_ror:{rr} row_mask:0xf bank_mask:0xf')
            I(f'v_add_f32_dpp v9, v9, v9 row_ror:{rr} row_mask:0xf bank_mask:0xf')
        for sw in ('v_permlane16_swap_b32', 'v_permlane32_swap_b32'):
            I(f"""v_mov_b32 v10, v8
v_mov_b32 v11, v9
{sw} v8, v10
{sw} v9, v11
v_add_f32 v8, v8, v10
v_add_f32 v9, v9, v11""")
        I(f"""v_mul_f32 v8, {fhex(-math.log2(math.e))}, v8
v_mul_f32 v9, {fhex(-math.log2(math.e))}, v9
v_exp_f32 v8, v8
v_exp_f32 v9, v9
v_add_f32 v8, 1.0, v8
v_add_f32 v9, 1.0, v9
v_rcp_f32 v8, v8
v_rcp_f32 v9, v9
v_mov_b32 v10, {GATE}
s_mov_b64 exec, 1
ds_write_b64 v10, v[8:9]
s_mov_b64 exec, -1
s_mov_b32 s40, 0
s_mov_b32 s41, -1
v_cndmask_b32 v16, v8, v9, s[40:41]
v_sub_f32 v16, 1.0, v16""")
        I('v_mov_b32 v90, %d\nv_mov_b32 v91, 1' % CNT)
        self.signal('v90', 'v91', C_H)
        I(f"""s_lshl_b32 s6, s4, 13         ; g*[mat][ks][b][256]*4
s_lshr_b32 s7, s5, 2
s_mul_i32 s7, s7, 112
s_add_u32 s6, s6, s7
s_add_u32 s6, s6, {WS_F}
v_and_b32 v4, 31, v1
v_min_u32 v5, 27, v4
v_and_b32 v17, 3, v5
v_lshlrev_b32 v17, 3, v17
v_lshrrev_b32 v17, v17, v80
v_lshlrev_b32 v5, 2, v5
v_lshrrev_b32 v6, 5, v1
v_lshlrev_b32 v6, 10, v6
v_add_u32 v5, v5, v6
v_add_u32 v5, s6, v5
s_mov_b32 s15, {COPYB if p['force_remote'] else 0}
s_mov_b32 s11, 0""")
        L = self.lab('hg'); D = self.lab('hgd')
        I(f'{L}:')
        for m in range(4):
            I(f's_add_u32 s7, s15, {m*2048}')
            I(f'buffer_load_dword v{24+m}, v5, s[24:27], s7 offen{SC}')
        I('s_add_u32 s48, s48, 1\ns_add_u32 s11, s11, 1\ns_waitcnt vmcnt(0)')
        I('v_xor_b32 v18, v24, v17')
        for j in range(1, 4):
            I(f'v_xor_b32 v19, v{24+j}, v17\nv_or_b32 v18, v18, v19')
        I('v_and_b32 v18, 0xff, v18')
        self.poll_tail(L, D, 'v18', p['slf'])
        if not p['force_remote']:
            I(f"""s_cmp_lt_u32 s11, {p['na_polls']}
s_cbranch_scc1 {L}
s_xor_b32 s15, s15, {COPYB}""")
        I(f"""s_branch {L}
{D}:""")
        self.stamp(5)
        self.untag(range(24, 28))
        I(f"""v_add_f32 v24, v24, v25
v_add_f32 v28, v26, v27
v_mul_f32 v25, {fhex(-math.log2(math.e))}, v24
v_exp_f32 v25, v25
v_add_f32 v25, 1.0, v25
v_rcp_f32 v25, v25
v_mul_f32 v24, v24, v25
v_mul_f32 v24, v24, v28
v_mul_f32 v24, v24, v16
v_cmp_gt_u32 vcc, 28, v4
v_cndmask_b32 v24, 0, v24, vcc
v_cvt_pk_bf16_f32 v24, v24, v24
v_bfe_u32 v6, v4, 2, 2
v_lshlrev_b32 v6, 4, v6
v_lshrrev_b32 v7, 4, v4
v_lshlrev_b32 v7, 3, v7
v_add_u32 v6, v6, v7
v_and_b32 v7, 3, v4
v_lshlrev_b32 v7, 1, v7
v_add_u32 v6, v6, v7
v_lshrrev_b32 v7, 5, v1
v_lshlrev_b32 v7, 6, v7
v_add_u32 v6, v6, v7
v_add_u32 v6, {A2}, v6
ds_write_b16 v6, v24
s_waitcnt lgkmcnt(0)""")
        self.stamp(6)
        self.stamp_dump('s[24:27]')
        I('s_endpgm')

    def role_loader(self):
        I = self.I; p = self.p
        ntv = ' nt' if p['nt_v'] else ''
        ntw = ' nt' if p['nt_w'] else ''
        I('L_LD:')
        if p['prio_ld']: I(f"s_setprio {p['prio_ld']}")
        I(f"""s_sub_u32 s8, s3, {W_L0}           ; loader j
v_mov_b32 v90, {CNT}
v_mov_b32 v91, 1
s_cmp_lg_u32 s8, 0
s_cbranch_scc1 L_LD_noinit
v_mov_b32 v8, 0
v_mov_b32 v9, 0
v_mov_b32 v10, 0
v_mov_b32 v11, 0
ds_write_b128 v90, v[8:11]
ds_write_b128 v90, v[8:11] offset:16
ds_write_b128 v90, v[8:11] offset:32
s_waitcnt lgkmcnt(0)
L_LD_noinit:
s_barrier""")
        self.srd(16, 16, 0x2000000)
        self.srd(20, 32, 0x400000)
        self.srd(24, 64, 1792*512*2)
        self.srd(28, 96, WS_SIZE)
        self.lane_setup()
        if p['pf']:
            I(f"""s_cmp_lg_u32 s8, 3
s_cbranch_scc1 L_LD_nopf
s_getpc_b64 s[36:37]
L_PC:
s_add_u32 s36, s36, {KNAME}-L_PC
s_addc_u32 s37, s37, -1
v_lshlrev_b32 v4, 4, v1
s_mov_b32 s6, L_codeend-{KNAME}-16""")
            for j in range(p.get('pfn', 14)):
                I(f"""v_min_u32 v5, s6, v4
global_load_dwordx4 v[12:15], v5, s[36:37]
v_add_u32 v4, 1024, v4""")
            I('L_LD_nopf:')
        I('s_waitcnt lgkmcnt(0)')
        TLBMARK = True
        I(f"""s_and_b32 s6, s8, 1
s_lshl_b32 s6, s6, 2
v_add_u32 v5, s6, v2          ; (4*(j&1) + rho)
v_lshlrev_b32 v5, 1, v5
v_xor_b32 v5, v5, v3          ; chunk
v_lshlrev_b32 v5, 4, v5
v_lshlrev_b32 v6, 8, v2
v_add_u32 v10, v5, v6         ; V voffset
v_lshlrev_b32 v6, 17, v2
v_add_u32 v11, v5, v6
v_lshlrev_b32 v6, 10, v2
v_add_u32 v16, v5, v6
s_lshr_b32 s6, s5, 4          ; b
s_lshl_b32 s6, s6, 3
s_add_u32 s6, s6, s4          ; bh
s_lshl_b32 s10, s6, 21
s_and_b32 s6, s5, 15          ; t
s_lshl_b32 s6, s6, 17
s_add_u32 s10, s10, s6
s_and_b32 s6, s8, 1
s_lshl_b32 s6, s6, 10
s_add_u32 s10, s10, s6        ; V base + (j & 1) * 1024
s_lshr_b32 s11, s5, 2         ; w'
s_and_b32 s12, s5, 3          ; cg
s_lshl_b32 s13, s4, 9
s_lshl_b32 s6, s11, 4
s_add_u32 s13, s13, s6
s_add_u32 s13, s13, s8
s_lshl_b32 s13, s13, 10
s_lshl_b32 s6, s12, 8
s_add_u32 s13, s13, s6
s_lshl_b32 s14, s4, 3
s_add_u32 s14, s14, s11       ; rg
s_mul_i32 s14, s14, 28
s_lshl_b32 s6, s8, 2
s_add_u32 s15, s14, s6
s_add_u32 s6, s8, 4
s_min_u32 s6, s6, 6
s_lshl_b32 s6, s6, 2
s_add_u32 s14, s14, s6
s_lshl_b32 s15, s15, 10
s_lshl_b32 s14, s14, 10
s_lshl_b32 s6, s12, 8
s_add_u32 s15, s15, s6
s_add_u32 s14, s14, s6
s_lshl_b32 s9, s8, 10         ; j*1024""")
        if p['tlb']:
            Lt = self.lab('tlb')
            I(f"""s_cmp_lg_u32 s8, 2
s_cbranch_scc1 {Lt}
v_mov_b32 v20, 0
s_mov_b64 exec, 1
buffer_load_dword v21, v20, s[16:19], s10 offen
buffer_load_dword v22, v20, s[20:23], s13 offen
buffer_load_dword v23, v20, s[24:27], s15 offen
s_mov_b32 s6, {WS_T1}
buffer_load_dword v24, v20, s[28:31], s6 offen
s_mov_b32 s6, {WS_T3}
buffer_load_dword v25, v20, s[28:31], s6 offen
s_mov_b32 s6, {WS_ST}
buffer_load_dword v26, v20, s[28:31], s6 offen
s_mov_b64 exec, -1
{Lt}:""")
        self.stamp(1)
        self.lds_wait('v90', 'v7', C_K, p['kthr'], sleep=p['slk'])
        self.lds_wait('v90', 'v7', C_T, 2, sleep=p['slk'])
        I('s_waitcnt vmcnt(0)')
        self.stamp(2)
        loads = []
        I(f"""s_mul_i32 s61, s5, {p['rkb']}
s_mul_i32 s6, s4, {p['rkc']}
s_add_u32 s61, s61, s6
s_lshr_b32 s6, s8, 1
s_add_u32 s61, s61, s6
s_mul_i32 s62, s5, {p['rcb']}
s_mul_i32 s6, s4, {p['rcc']}
s_add_u32 s62, s62, s6""")
        for q in range(32):
            cw = q >> 2
            loads.append([f's_add_u32 m0, s9, {V_OFF + q*4096}',
                          f's_add_u32 s6, s61, {cw*p["rka"] + 2*(q & 3)}',
                          f's_and_b32 s6, s6, 7',
                          f's_lshl_b32 s6, s6, 11',
                          f's_add_u32 s6, s6, s10',
                          f's_add_u32 s7, s62, {cw}',
                          f's_and_b32 s7, s7, 7',
                          f's_lshl_b32 s7, s7, 14',
                          f's_add_u32 s6, s6, s7',
                          f'buffer_load_dwordx4 v10, s[16:19], s6 offen{ntv} lds'])
        for q in range(4):
            loads.append([f's_add_u32 m0, s9, {WO_OFF + q*4096}',
                          f's_add_u32 s6, s13, {q*4096}',
                          f'buffer_load_dwordx4 v11, s[20:23], s6 offen{ntw} lds'])
        loads.append([f's_add_u32 m0, s9, {WD_OFF}', 's_nop 0', f'buffer_load_dwordx4 v16, s[24:27], s15 offen{ntw} lds'])
        loads.append([f's_add_u32 m0, s9, {WD_OFF + 4096}', 's_nop 0', f'buffer_load_dwordx4 v16, s[24:27], s14 offen{ntw} lds'])
        vl, wl = loads[:32], loads[32:]
        wp, ws_ = p['wpos'], p['wsplit']
        loads = vl[:wp] + wl[:ws_] + vl[wp:] + wl[ws_:]
        def vpos(q): return q if q < wp else q + ws_
        n = len(loads)
        nA = 2 * p['na']
        marks = {vpos(nA - 1): 'A', vpos(31): 'V'}
        def mark(m):
            if m == 'A': self.signal('v90', 'v91', C_A)
            elif not p['x_stream']: I('s_barrier')
            self.stamp(3 if m == 'A' else 4)
        def depth(i): return p['dv2'] if i >= n - p['dvn'] else p['dv']
        done = -1
        issued = 0
        pend = sorted(marks)
        while issued < n:
            D = depth(issued)
            need_done = issued - D
            if need_done > done:
                I(f's_waitcnt vmcnt({issued - 1 - need_done})')
                done = need_done
            for l in loads[issued]: I(l)
            issued += 1
            while pend and pend[0] <= done:
                mark(marks[pend.pop(0)])
        while done < n - 1:
            done += 1
            if pend and pend[0] == done or done == n - 1:
                I(f's_waitcnt vmcnt({n - 1 - done})')
            while pend and pend[0] <= done:
                mark(marks[pend.pop(0)])
        self.stamp(5)
        if not p['x_stream']: I('s_barrier')
        if p['x_dirty']:
            I(f"""s_lshl_b32 s6, s2, 2
s_add_u32 s6, s6, s8
s_mul_i32 s6, s6, {p['x_dirty']*1024}
s_add_u32 s6, s6, 0x400000
s_mov_b32 s30, 0x10000000
v_lshlrev_b32 v4, 4, v1""")
            for j in range(p['x_dirty']):
                I(f's_add_u32 s7, s6, {j*1024}\nbuffer_store_dwordx4 v[8:11], v4, s[28:31], s7 offen')
        self.stamp_dump('s[28:31]')
        I('s_endpgm')

    def role_compute(self):
        I = self.I; p = self.p
        ntk = ' nt' if p['nt_k'] else ''
        cexp = math.log2(math.e) / math.sqrt(128.0)
        I('L_CW:')
        self.srd(16, 8, 0x2000000)
        self.srd(20, 96, WS_SIZE)
        self.srd(24, 80, 2048)
        if p['x_start']: I('s_memrealtime s[90:91]')
        I('s_barrier')
        if p['x_start']: I('s_memrealtime s[92:93]')
        self.lane_setup()
        I(f"""s_sub_u32 s8, s3, {W_C0}           ; cw
s_lshr_b32 s6, s5, 4          ; b
s_lshl_b32 s6, s6, 3
s_add_u32 s6, s6, s4
s_lshl_b32 s10, s6, 21
s_and_b32 s6, s5, 15
s_lshl_b32 s6, s6, 17
s_add_u32 s10, s10, s6
s_mul_i32 s6, s5, {p['rcb']}
s_mul_i32 s7, s4, {p['rcc']}
s_add_u32 s6, s6, s7
s_add_u32 s6, s6, s8
s_and_b32 s6, s6, 7
s_lshl_b32 s6, s6, 14
s_add_u32 s10, s10, s6
v_and_b32 v4, 7, v1
v_lshlrev_b32 v4, 8, v4
v_bfe_u32 v5, v1, 3, 1
v_lshlrev_b32 v5, 6, v5
v_add_u32 v4, v4, v5
v_lshlrev_b32 v5, 4, v2
v_add_u32 v4, v4, v5          ; K voffset
s_mul_i32 s61, s8, {p['rka']}
s_mul_i32 s6, s5, {p['rkb']}
s_add_u32 s61, s61, s6
s_mul_i32 s6, s4, {p['rkc']}
s_add_u32 s61, s61, s6
v_mov_b32 v62, {CNT}
v_mov_b32 v63, 1
s_waitcnt lgkmcnt(0)""")
        D = p['dk']
        def kload(i):
            o, hx = divmod(i, 2)
            if hx == 0:
                I(f's_add_u32 s11, s61, {o}\ns_and_b32 s11, s11, 7\ns_lshl_b32 s11, s11, 11\ns_add_u32 s11, s11, s10')
            I(f'buffer_load_dwordx4 v[{64+4*i}:{67+4*i}], v4, s[16:19], s11 offen offset:{hx*128}{ntk}')
        if p['x_start']: I('s_memrealtime s[94:95]')
        for i in range(D): kload(i)
        self.tag_load(20)
        self.stamp(1)
        vC, vOne = 'v62', 'v63'
        for i in range(D, 16):
            I(f's_waitcnt vmcnt({D-1})')
            kload(i)
            if i == 15 - p['ksig']:
                self.signal(vC, vOne, C_K)
        self.stamp(2)
        if p['x_stream']:
            I('s_waitcnt vmcnt(0)')
            self.stamp(3)
            self.stamp_dump('s[20:23]', 16)
            I('s_endpgm')
        self.tag_ready()
        I(f"""v_and_b32 v5, 3, v3           ; head = n&3
v_lshlrev_b32 v6, 8, v5
v_lshlrev_b32 v7, 4, v2
v_add_u32 v60, v6, v7
v_bfe_u32 v6, v3, 3, 1
v_lshlrev_b32 v6, 6, v6
v_add_u32 v60, v60, v6
v_add_u32 v60, {Q_OFF}, v60
v_lshlrev_b32 v61, 5, v5
v_add_u32 v61, {MX}, v61
s_lshl_b32 s6, s8, 2
v_add_u32 v59, s6, v61""")
        self.lds_wait(vC, 'v5', C_Q, 1, sleep=2)
        self.stamp(3)
        for hx in range(2):
            I(f'ds_read_b128 v[{48+4*hx}:{51+4*hx}], v60 offset:{hx*128}')
        I(f'ds_read_b32 v5, {vC} offset:{C_M}')
        I('s_waitcnt lgkmcnt(0)\nv_readfirstlane_b32 s51, v5')
        for o in range(8):
            I(f's_waitcnt vmcnt({14 - 2*o})')
            for hx in range(2):
                c = '0' if hx == 0 else f'v[{16+4*o}:{19+4*o}]'
                r = 64 + 8*o + 4*hx
                I(f'v_mfma_f32_16x16x32_bf16 v[{16+4*o}:{19+4*o}], v[{r}:{r+3}], v[{48+4*hx}:{51+4*hx}], {c}')
        for j in range(4):
            for r in range(4): I(f'v_permlane32_swap_b32 v{16+8*j+r}, v{20+8*j+r}')
            for r in range(4): I(f'v_add_f32_dpp v{16+4*j+r}, v{20+8*j+r}, v{16+8*j+r} row_ror:8 row_mask:0xf bank_mask:0xf')
        I('v_max3_f32 v5, v16, v17, v18')
        for e in range(19, 31, 2):
            I(f'v_max3_f32 v5, v5, v{e}, v{e+1}')
        I('v_max_f32 v5, v5, v31')
        for sw in ('v_permlane16_swap_b32', 'v_permlane32_swap_b32'):
            I(f"""v_mov_b32 v6, v5
{sw} v5, v6
v_max_f32 v5, v5, v6""")
        I("""s_mov_b64 exec, 15
ds_write_b32 v59, v5
s_mov_b64 exec, -1""")
        self.signal(vC, vOne, C_1)
        self.lds_wait(vC, 'v6', C_1, 8, sleep=0)
        I(f"""ds_read_b128 v[48:51], v61
ds_read_b128 v[52:55], v61 offset:16
s_mov_b32 s50, {fhex(cexp)}
s_waitcnt lgkmcnt(0)
v_max3_f32 v48, v48, v49, v50
v_max3_f32 v51, v51, v52, v53
v_max3_f32 v48, v48, v54, v55
v_max_f32 v48, v48, v51
v_mul_f32 v58, s50, v48
v_and_b32 v58, s63, v58""")
        for e in range(16):
            I(f'v_fma_f32 v{16+e}, v{16+e}, s50, -v58')
        for e in range(16):
            I(f'v_exp_f32 v{16+e}, v{16+e}')
        for q in range(8):
            I(f'v_cvt_pk_bf16_f32 v{48+q}, v{16+2*q}, v{17+2*q}')
        I(f"""s_lshl_b32 s6, s8, 9
s_add_u32 s6, s6, {P_OFF}
v_lshlrev_b32 v6, 6, v2
v_lshlrev_b32 v7, 4, v3
v_add_u32 v6, v6, v7
v_add_u32 v6, s6, v6
s_mov_b32 s40, 0x000f000f
s_mov_b32 s41, 0x000f000f
s_mov_b64 exec, s[40:41]
ds_write_b128 v6, v[48:51]
ds_write_b128 v6, v[52:55] offset:256
s_mov_b64 exec, -1""")
        for e in range(8): I(f'v_add_f32 v{16+e}, v{16+e}, v{24+e}')
        for e in range(4): I(f'v_add_f32 v{16+e}, v{16+e}, v{20+e}')
        I("""v_add_f32 v16, v16, v17
v_add_f32 v18, v18, v19
v_add_f32 v5, v16, v18""")
        for sw in ('v_permlane16_swap_b32', 'v_permlane32_swap_b32'):
            I(f"""v_mov_b32 v6, v5
{sw} v5, v6
v_add_f32 v5, v5, v6""")
        I("""s_mov_b64 exec, 15
ds_write_b32 v59, v5 offset:128
s_mov_b64 exec, -1""")
        self.signal(vC, vOne, C_2)
        self.lds_wait(vC, 'v6', C_2, 8, sleep=0)
        self.stamp(4)
        I(f"""s_lshl_b32 s12, s4, 5
s_add_u32 s12, s12, s5        ; slot
v_mov_b32 v47, s52""")
        Ls = self.lab('nostat')
        I(f"""s_cmp_lg_u32 s8, 0
s_cbranch_scc1 {Ls}
ds_read_b128 v[48:51], v61 offset:128
ds_read_b128 v[52:55], v61 offset:144
v_and_b32 v6, 3, v1
v_add_u32 v6, 0x07060500, v6
s_waitcnt lgkmcnt(0)
v_add_f32 v48, v48, v49
v_add_f32 v50, v50, v51
v_add_f32 v52, v52, v53
v_add_f32 v54, v54, v55
v_add_f32 v48, v48, v50
v_add_f32 v52, v52, v54
v_add_f32 v48, v48, v52
s_mov_b32 s40, 0xf0f0f0f0
s_mov_b32 s41, 0
v_cndmask_b32 v48, v58, v48, s[40:41]
v_perm_b32 v48, v48, v47, v6
s_lshl_b32 s6, s12, 7
s_add_u32 s6, s6, {WS_ST}
v_lshlrev_b32 v6, 2, v1
s_mov_b32 exec_hi, 0""")
        self.mode_store('buffer_store_dword v48, v6, s[20:23], s6 offen', 's51')
        I('s_mov_b32 exec_hi, -1')
        I(f'{Ls}:')
        I(f"""v_and_b32 v5, 3, v3
v_lshlrev_b32 v5, 4, v5
v_lshlrev_b32 v6, 6, v2
v_add_u32 v5, v5, v6
v_add_u32 v5, {P_OFF}, v5""")
        for st in range(16):
            if st == 8: I('s_waitcnt lgkmcnt(0)')
            I(f'ds_read_b128 v[{64+4*st}:{67+4*st}], v5 offset:{st*256}')
        I(f"""v_lshrrev_b32 v5, 2, v3       ; r
v_and_b32 v6, 3, v3           ; c4
v_lshlrev_b32 v7, 2, v2
v_add_u32 v7, v7, v5          ; 4s + r
v_and_b32 v48, 7, v7          ; (4(s&1) + r)
v_xor_b32 v48, s8, v48
v_lshlrev_b32 v48, 5, v48
v_lshlrev_b32 v7, 8, v7
v_add_u32 v7, v7, v48
v_lshlrev_b32 v6, 3, v6
v_add_u32 v56, v7, v6
v_add_u32 v57, 0x10000, v56
v_add_u32 v59, 0x20000, v56""")
        I(f"""s_lshr_b32 s13, s5, 2         ; w'
s_and_b32 s14, s5, 3          ; cg
s_and_b32 s15, s8, 1
s_lshl_b32 s6, s15, 4
v_add_u32 v5, s6, v2          ; b*16 + tq
v_lshlrev_b32 v12, 4, v5
v_add_u32 v12, {WL}, v12
s_lshl_b32 s6, s4, 5
v_add_u32 v61, s6, v5         ; slot' (i = 0)
v_lshlrev_b32 v61, 11, v61
s_lshl_b32 s6, s13, 4
v_add_u32 v6, s6, v3
v_lshlrev_b32 v6, 4, v6
v_add_u32 v61, v61, v6
v_add_u32 v61, {WS_T1}, v61
v_lshrrev_b32 v6, 3, v3
v_lshlrev_b32 v6, 6, v6
v_bfe_u32 v7, v3, 2, 1
v_lshlrev_b32 v7, 3, v7       ; half*8
v_add_u32 v6, v6, v7
v_and_b32 v7, 3, v3
v_lshlrev_b32 v7, 4, v7       ; sA*16
v_add_u32 v6, v6, v7
v_lshlrev_b32 v7, 1, v2
v_add_u32 v6, v6, v7          ; + hh*2
s_lshl_b32 s6, s15, 7
s_add_u32 s6, s6, {A1}
v_add_u32 v60, s6, v6
s_lshl_b32 s6, s12, 11
s_lshl_b32 s7, s8, 8
s_add_u32 s6, s6, s7
s_add_u32 s6, s6, {WS_T1}
v_lshlrev_b32 v58, 4, v3
v_add_u32 v58, s6, v58
v_and_b32 v6, 1, v3
v_lshlrev_b32 v44, 1, v6
v_add_u32 v50, 0x07060500, v44
v_add_u32 v51, 1, v50
v_mov_b32 v49, s52               ; T
v_lshlrev_b32 v7, 6, v6
v_lshlrev_b32 v6, 7, v6
v_lshlrev_b32 v48, 4, v2
v_add_u32 v6, v6, v48
v_add_u32 v62, {A1}, v6
v_add_u32 v7, v7, v48
v_add_u32 v48, {A2}, v7
s_lshl_b32 s6, s14, 3
s_add_u32 s6, s6, s8
s_lshl_b32 s6, s6, 6
s_lshl_b32 s7, s4, 3
s_add_u32 s7, s7, s13
s_add_u32 s6, s6, s7
s_lshl_b32 s6, s6, 7
s_add_u32 s6, s6, {WS_T3}
v_lshlrev_b32 v63, 3, v3
v_add_u32 v63, s6, v63
v_mov_b32 v13, {CNT}
s_and_b32 s13, s2, 3          ; cg3
s_lshr_b32 s14, s2, 2         ; o8
s_lshl_b32 s6, s13, 3
s_add_u32 s6, s6, s14
s_lshl_b32 s6, s6, 13
s_lshl_b32 s7, s8, 5
s_add_u32 s6, s6, s7
s_add_u32 s6, s6, {WS_T3}
v_lshrrev_b32 v14, 1, v1
v_lshlrev_b32 v14, 7, v14
v_and_b32 v6, 1, v1
v_lshlrev_b32 v7, 4, v6
v_add_u32 v14, v14, v7
v_add_u32 v14, s6, v14
s_lshl_b32 s6, s13, 8
s_lshl_b32 s7, s14, 5
s_add_u32 s6, s6, s7
s_lshl_b32 s7, s8, 3
s_add_u32 s6, s6, s7
v_and_b32 v15, 1, v2
v_lshlrev_b32 v15, 10, v15
v_lshlrev_b32 v6, 2, v6
v_add_u32 v15, v15, v6
v_lshrrev_b32 v6, 1, v2
v_lshlrev_b32 v6, 1, v6
v_add_u32 v15, v15, v6
v_add_u32 v15, s6, v15
s_waitcnt lgkmcnt(0)""")
        Lsa = self.lab('sa')
        I(f"""s_mov_b32 s60, 0
s_cmp_lg_u32 s8, {p['sw']}
s_cbranch_scc1 {Lsa}""")
        self.lds_wait('v13', 'v5', C_H, 1, sleep=1)
        I(f"""v_mov_b32 v5, {GATE}
ds_read_b64 v[6:7], v5
s_mov_b32 s40, 0
s_mov_b32 s41, -1
v_lshrrev_b32 v5, 5, v1
v_lshlrev_b32 v5, 4, v5
v_add_u32 v5, v5, v3          ; b'*16 + t'
v_lshlrev_b32 v60, 4, v5
v_add_u32 v60, {WL}, v60
s_lshl_b32 s6, s4, 5
v_add_u32 v5, s6, v5          ; slot'
v_lshlrev_b32 v5, 7, v5
v_add_u32 v61, {WS_ST}, v5
s_waitcnt lgkmcnt(0)
v_cndmask_b32 v12, v6, v7, s[40:41]   ; g_b (b = lane>>5)
{Lsa}:""")
        if p['pre1']:
            Lp = self.lab('p1')
            I(f"""s_cmp_eq_u32 s51, 0
s_cbranch_scc1 {Lp}
v_not_b32 v16, v49
v_not_b32 v17, v49
v_not_b32 v18, v49
v_not_b32 v19, v49
s_mov_b64 exec, 0xffff
buffer_store_dwordx4 v[16:19], v58, s[20:23], 0 offen
s_mov_b64 exec, -1
{Lp}:""")
        if p['owarm']:
            Lo = self.lab('ow')
            I(f"""s_cmp_ge_u32 s2, 32
s_cbranch_scc1 {Lo}
s_cmp_gt_u32 s8, 3
s_cbranch_scc1 {Lo}
s_mov_b32 exec_lo, 0x00030003
s_mov_b32 exec_hi, 0x00030003""")
            if p['owarm'] == 1: I('v_mov_b32 v5, 0\nbuffer_store_short v5, v15, s[24:27], 0 offen')
            else: I('buffer_load_ushort v5, v15, s[24:27], 0 offen')
            I(f's_mov_b64 exec, -1\ns_waitcnt vmcnt(0)\n{Lo}:')
        self.stamp(5)
        self.lds_wait('v13', 'v5', C_A, 4, sleep=p['sla'])
        self.stamp(6)
        def vread(st, r):
            base = 'v56' if st < 8 else 'v57'
            o = (st & 7) * 8192
            I(f'ds_read_b64_tr_b16 v[{r}:{r+1}], {base} offset:{o}')
            I(f'ds_read_b64_tr_b16 v[{r+2}:{r+3}], {base} offset:{o+4096}')
        def vmfma(st, r):
            c = '0' if st == 0 else 'v[8:11]'
            I(f'v_mfma_f32_16x16x32_bf16 v[8:11], v[{64+4*st}:{67+4*st}], v[{r}:{r+3}], {c}')
        na = p['na']
        batches = []
        st = 0
        while st < na:
            b = list(range(st, min(st + 4, na))); batches.append(b); st += len(b)
        sets = (16, 32)
        for k, b in enumerate(batches):
            if k == 0:
                for j, st in enumerate(b): vread(st, sets[0] + 4*j)
            I('s_waitcnt lgkmcnt(0)')
            if k + 1 < len(batches):
                for j, st in enumerate(batches[k+1]): vread(st, sets[(k+1) & 1] + 4*j)
            for j, st in enumerate(b): vmfma(st, sets[k & 1] + 4*j)
            if k == 0:
                Lq = self.lab('nsl')
                I(f"s_cmp_lg_u32 s8, {p['sw']}\ns_cbranch_scc1 {Lq}")
                self.stats_loads()
                I(f'{Lq}:')
        I('s_barrier')
        self.stamp(7)
        rest = list(range(na, 16))
        for j, st in enumerate(rest): vread(st, 16 + 4*j)
        for j, st in enumerate(rest):
            I(f's_waitcnt lgkmcnt({2*(len(rest)-1-j)})')
            vmfma(st, 16 + 4*j)
        for e in range(4): I(f'v_perm_b32 v{8+e}, v{8+e}, v49, s{53+e}')
        I('s_mov_b64 exec, 0xffff')
        self.mode_store('buffer_store_dwordx4 v[8:11], v58, s[20:23], 0 offen', 's51')
        I('s_mov_b64 exec, -1')
        I('ds_read_b128 v[52:55], v48')
        self.stamp(8)
        Lns = self.lab('nsw'); Lw = self.lab('sw'); Lr = self.lab('swr')
        I(f"""s_cmp_lg_u32 s8, {p['sw']}
s_cbranch_scc1 {Lns}
s_waitcnt vmcnt(1)""")
        self.stats_check()
        I(f"""v_cmp_ne_u32 vcc, 0, v5
s_cbranch_vccz {Lw}
{Lr}:""")
        self.stats_loads()
        I('s_add_u32 s48, s48, 1\ns_waitcnt vmcnt(0)')
        self.stats_check()
        self.poll_tail(Lr, Lw, 'v5', p['sls'])
        I(f"""s_branch {Lr}
{Lw}:""")
        self.untag(range(64, 72))
        for h in range(4): I(f'v_mov_b32 v{72+h}, v{64+h}')
        for rr in (8, 4, 2, 1):
            for h in range(4): I(f'v_max_f32_dpp v{72+h}, v{72+h}, v{72+h} row_ror:{rr} row_mask:0xf bank_mask:0xf')
        for h in range(4): I(f'v_sub_f32 v{64+h}, v{64+h}, v{72+h}')
        for h in range(4): I(f'v_exp_f32 v{64+h}, v{64+h}')
        for h in range(4): I(f'v_mul_f32 v{68+h}, v{68+h}, v{64+h}')
        for rr in (8, 4, 2, 1):
            for h in range(4): I(f'v_add_f32_dpp v{68+h}, v{68+h}, v{68+h} row_ror:{rr} row_mask:0xf bank_mask:0xf')
        for h in range(4): I(f'v_rcp_f32 v{68+h}, v{68+h}')
        for h in range(4): I(f'v_mul_f32 v{64+h}, v{64+h}, v12')
        for h in range(4): I(f'v_mul_f32 v{64+h}, v{64+h}, v{68+h}')
        I('ds_write_b128 v60, v[64:67]\nv_mov_b32 v5, 1')
        self.signal('v13', 'v5', C_W)
        I(f'{Lns}:')
        Lng = self.lab('nog')
        I(f"""s_cmp_gt_u32 s8, 1
s_cbranch_scc1 {Lng}""")
        I(f's_mov_b32 s6, {4*2048}\ns_mov_b32 s7, {8*2048}\ns_mov_b32 s9, {12*2048}')
        T2B = (64, 96, 112)
        NS2 = p['t2sets']
        def t2issue(k):
            for i, so in enumerate(('0', 's6', 's7', 's9')):
                r = T2B[k] + 4*i
                I(f'buffer_load_dwordx4 v[{r}:{r+3}], v61, s[20:23], {so} offen{SC}')
        if p['t2wait']: I('s_waitcnt vmcnt(0)')
        t2issue(0)
        self.lds_wait('v13', 'v5', C_W, 1, sleep=0)
        for i in range(4): I(f'ds_read_b128 v[{80+4*i}:{83+4*i}], v12 offset:{i*64}')
        for k in range(1, NS2):
            if p['t2st']: I(f"s_sleep {p['t2st']}")
            t2issue(k)
        L = self.lab('t2'); Dn = self.lab('t2d')
        if p['t2mask']:
            Lh = self.lab('t2m')
            I(f'{L}:\ns_waitcnt vmcnt(0)')
            for i in range(4):
                self.tag_acc(64 + 4*i, True)
                I(f'v_cmp_ne_u32 s[{40+2*i}:{41+2*i}], 0, v16')
            I(f"""s_or_b64 vcc, s[40:41], s[42:43]
s_or_b64 s[36:37], s[44:45], s[46:47]
s_or_b64 vcc, vcc, s[36:37]
s_cbranch_scc0 {Lh}
s_add_u32 s48, s48, 1
s_cmp_gt_u32 s48, {self.glim}
s_cbranch_scc1 {Lh}""")
            if p['sl2']: I(f"s_sleep {p['sl2']}")
            for i, so in enumerate(('0', 's6', 's7', 's9')):
                La = self.lab('t2s')
                I(f"""s_mov_b64 exec, s[{40+2*i}:{41+2*i}]
s_cbranch_execz {La}
buffer_load_dwordx4 v[{64+4*i}:{67+4*i}], v61, s[20:23], {so} offen{SC}
{La}:""")
            I(f's_mov_b64 exec, -1\ns_branch {L}\n{Lh}:\ns_waitcnt lgkmcnt(0)')
            self.untag(range(64, 80))
            for h in range(4): I(f'v_mul_f32 v{16+h}, v{64+h}, v{80+h}')
            for i in range(1, 4):
                for h in range(4): I(f'v_fmac_f32 v{16+h}, v{64+4*i+h}, v{80+4*i+h}')
            NS2 = 0
        if NS2: I(f'{L}:')
        hits = []
        for k in range(NS2):
            for i in range(4):
                I(f's_waitcnt vmcnt({4*(NS2-1) + 3-i})')
                self.tag_acc(T2B[k] + 4*i, i == 0)
            H = self.lab('t2h'); hits.append((H, T2B[k]))
            I(f"""v_cmp_ne_u32 vcc, 0, v16
s_cbranch_vccz {H}""")
            if p['sl2']: I(f"s_sleep {p['sl2']}")
            t2issue(k)
        if NS2: I(f"""s_add_u32 s48, s48, 1
s_cmp_le_u32 s48, {self.glim}
s_cbranch_scc1 {L}""")
        for j, (H, r) in enumerate(hits):
            I(f'{H}:')
            self.untag(range(r, r + 16))
            I('s_waitcnt lgkmcnt(0)')
            for h in range(4): I(f'v_mul_f32 v{16+h}, v{r+h}, v{80+h}')
            for i in range(1, 4):
                for h in range(4): I(f'v_fmac_f32 v{16+h}, v{r+4*i+h}, v{80+4*i+h}')
            if j + 1 < len(hits): I(f's_branch {Dn}')
        I(f'{Dn}:')
        self.stamp(9)
        I("""v_permlane16_swap_b32 v16, v17
v_permlane16_swap_b32 v18, v19
v_add_f32 v16, v16, v17
v_add_f32 v18, v18, v19
v_permlane32_swap_b32 v16, v18
v_add_f32 v16, v16, v18
v_cvt_pk_bf16_f32 v16, v16, v16
ds_write_b16 v60, v16
s_waitcnt lgkmcnt(0)""")
        I(f"""{Lng}:
s_barrier""")
        self.stamp(10)
        I("""ds_read_b64_tr_b16 v[16:17], v59 offset:16384
ds_read_b64_tr_b16 v[18:19], v59 offset:20480
ds_read_b128 v[32:35], v62
ds_read_b64_tr_b16 v[20:21], v59
ds_read_b64_tr_b16 v[22:23], v59 offset:4096
ds_read_b128 v[36:39], v62 offset:64
ds_read_b64_tr_b16 v[24:25], v59 offset:8192
ds_read_b64_tr_b16 v[26:27], v59 offset:12288
s_waitcnt lgkmcnt(6)
v_mfma_f32_16x16x32_bf16 v[8:11], v[52:55], v[16:19], 0
s_waitcnt lgkmcnt(3)
v_mfma_f32_16x16x32_bf16 v[8:11], v[32:35], v[20:23], v[8:11]
s_waitcnt lgkmcnt(0)
v_mfma_f32_16x16x32_bf16 v[8:11], v[36:39], v[24:27], v[8:11]""")
        I(f"""v_perm_b32 v8, v8, v49, v50
v_perm_b32 v9, v9, v49, v51
s_mov_b64 exec, 0xffff
buffer_store_dwordx2 v[8:9], v63, s[20:23], 0 offen{(SC, ' sc0 sc1')[p['t3stf']]}
s_mov_b64 exec, -1""")
        self.stamp(11)
        Lend = 'L_CW_end'
        I(f"""s_cmp_ge_u32 s2, 32
s_cbranch_scc1 {Lend}
s_cmp_gt_u32 s8, 3
s_cbranch_scc1 {Lend}
s_mov_b32 s7, 4096""")
        NS = p['t3sets']
        L = self.lab('t3'); Dn = self.lab('t3d')
        def issue(k):
            r = 64 + 8*k
            fl = (SC, ' sc0 sc1', ' sc1 nt', ' sc0 sc1 nt')[p['t3ld']]
            I(f'buffer_load_dwordx4 v[{r}:{r+3}], v14, s[20:23], 0 offen{fl}')
            I(f'buffer_load_dwordx4 v[{r+4}:{r+7}], v14, s[20:23], s7 offen{fl}')
        if p['t3wait']: I('s_waitcnt vmcnt(0)')
        if p['t3delay']: I(f"s_sleep {p['t3delay']}")
        self.stamp(13)
        if p['stamps'] and not p['light']: I('s_mov_b32 s59, s48')
        if p['t3mask']:
            fl = (SC, ' sc0 sc1', ' sc1 nt', ' sc0 sc1 nt')[p['t3ld']]
            issue(0)
            La = self.lab('t3a'); Lb = self.lab('t3b'); Lh = self.lab('t3m')
            I(f'{L}:\ns_waitcnt vmcnt(0)')
            self.tag_acc(64, True)
            I('v_cmp_ne_u32 s[40:41], 0, v16')
            self.tag_acc(68, True)
            I(f"""v_cmp_ne_u32 s[42:43], 0, v16
s_or_b64 s[44:45], s[40:41], s[42:43]
s_cbranch_scc0 {Lh}
s_add_u32 s48, s48, 1
s_cmp_gt_u32 s48, {self.glim}
s_cbranch_scc1 {Lh}""")
            if p['sl3']: I(f"s_sleep {p['sl3']}")
            I(f"""s_mov_b64 exec, s[40:41]
s_cbranch_execz {La}
buffer_load_dwordx4 v[64:67], v14, s[20:23], 0 offen{fl}
{La}:
s_mov_b64 exec, s[42:43]
s_cbranch_execz {Lb}
buffer_load_dwordx4 v[68:71], v14, s[20:23], s7 offen{fl}
{Lb}:
s_mov_b64 exec, -1
s_branch {L}
{Lh}:""")
            self.untag(range(64, 72))
            for e in range(4): I(f'v_add_f32 v{20+e}, v{64+e}, v{68+e}')
            NS = 0
        for k in range(NS):
            issue(k)
            if k + 1 < NS and p['t3st']: I(f"s_sleep {p['t3st']}")
        if NS: I(f'{L}:')
        hits = []
        for k in range(NS):
            r = 64 + 8*k
            I(f's_waitcnt vmcnt({2*(NS-1)})')
            self.tag_acc(r, True)
            self.tag_acc(r + 4, False)
            H = self.lab('t3h'); hits.append((H, r))
            I(f"""v_cmp_ne_u32 vcc, 0, v16
s_cbranch_vccz {H}""")
            issue(k)
        if NS: I(f"""s_add_u32 s48, s48, 1
s_cmp_le_u32 s48, {self.glim}
s_cbranch_scc1 {L}""")
        for j, (H, r) in enumerate(hits):
            I(f'{H}:')
            self.untag(range(r, r + 8))
            for e in range(4): I(f'v_add_f32 v{20+e}, v{r+e}, v{r+4+e}')
            if j + 1 < len(hits): I(f's_branch {Dn}')
        I(f'{Dn}:')
        if p['stamps'] and not p['light']:
            I('s_sub_u32 s92, s48, s59\ns_add_u32 s92, s92, 1')
            self.stamp(15)
        I("""v_permlane16_swap_b32 v20, v21
v_permlane16_swap_b32 v22, v23
v_add_f32 v20, v20, v21
v_add_f32 v22, v22, v23
v_permlane32_swap_b32 v20, v22
v_add_f32 v20, v20, v22""")
        for rr in (2, 4, 8):
            I(f'v_add_f32_dpp v20, v20, v20 row_ror:{rr} row_mask:0xf bank_mask:0xf')
        I(f"""v_cvt_pk_bf16_f32 v20, v20, v20
s_mov_b32 exec_lo, 0x00030003
s_mov_b32 exec_hi, 0x00030003
buffer_store_short v20, v15, s[24:27], 0 offen
s_mov_b64 exec, -1""")
        I(f"""s_cmp_lg_u32 s2, 0
s_cbranch_scc1 L_CW_noe
s_cmp_lg_u32 s8, 0
s_cbranch_scc1 L_CW_noe
v_mov_b32 v5, {WS_E}
s_mov_b64 exec, 1
buffer_store_dword v49, v5, s[20:23], 0 offen{SC}
s_mov_b64 exec, -1
L_CW_noe:""")
        self.stamp(12)
        I(f'{Lend}:')
        self.stamp_dump('s[20:23]', 16)
        I('s_endpgm')

    def build(self):
        I = self.I
        I('''s_cmp_ge_u32 s2, 256
s_cbranch_scc1 L_exit''')
        if self.p['stamps']:
            for i in range(16): I(f's_mov_b32 s{64+2*i}, 0')
            self.stamp(0)
        I(f'''v_lshrrev_b32 v1, 6, v0
s_and_b32 s4, s2, 7
s_lshr_b32 s5, s2, 3
s_mov_b32 s48, 0
v_readfirstlane_b32 s3, v1
s_cmp_ge_u32 s3, {W_L0}
s_cbranch_scc1 L_LD
s_cmp_ge_u32 s3, {W_C0}
s_cbranch_scc1 L_CW
s_cmp_eq_u32 s3, {W_J1}
s_cbranch_scc1 L_J1''')
        self.role_j0()
        self.role_j1()
        self.role_compute()
        self.role_loader()
        I('L_exit:\ns_endpgm\nL_codeend:')
        head = f'''; Fused decode step: GQA attention over the KV cache + SwiGLU FFN + sigmoid-gated mix (gfx950).
;
;
; @launch grid=(256,1,1) block=(896,1,1) lds={LDS_BYTES}
.amdgcn_target "amdgcn-amd-amdhsa--gfx950"
.text
.globl {KNAME}
.p2align 8
.type {KNAME},@function
{KNAME}:
'''
        foot = f'''.section .rodata,"a"
.p2align 6
.amdhsa_kernel {KNAME}
  .amdhsa_next_free_vgpr 128
  .amdhsa_next_free_sgpr 102
  .amdhsa_accum_offset 128
  .amdhsa_group_segment_fixed_size 0
  .amdhsa_kernarg_size 104
  .amdhsa_user_sgpr_count 2
  .amdhsa_user_sgpr_kernarg_segment_ptr 1
  .amdhsa_system_sgpr_workgroup_id_x 1
.end_amdhsa_kernel
'''
        return head + self.a.text() + foot

def main():
    out = sys.argv[1]
    kw = {}
    for arg in sys.argv[2:]:
        k, v = arg.split('=')
        assert k in DEF or k in ('pfn',), k
        kw[k] = (v == 'True') if v in ('True', 'False') else int(v)
    open(out, 'w').write(G(**kw).build())

if __name__ == '__main__':
    main()
```

```python
import sys, math, struct
from emit import Asm

def fhex(x): return '0x%08x' % struct.unpack('<I', struct.pack('<f', x))[0]
KNAME = 'gated_mix__gqa_block_cached__swiglu_ffn__decode_kernel'

WS_Q  = 0x000000
WS_F  = 0x020000
WS_ID = 0x030000
COPYB = 0x040000
WS_ST = 0x080000
WS_E  = 0x088000
WS_T1 = 0x100000
WS_T3 = 0x180000
WS_DBG = 0x200000
WS_SIZE = 0x400000

V_OFF = 0
STG0 = 0
STG1 = 16384
WO_OFF = 131072
WD_OFF = 147456
P_OFF = 155648
Q_OFF = 159744
MISC = 160768
MX = MISC
LX = MISC + 128
A1 = MISC + 256
A2 = MISC + 512
GATE = MISC + 640
CNT = MISC + 704
WL = MISC + 1024
C_Q, C_H, C_K, C_1, C_2, C_A, C_M, C_W, C_T = 0, 4, 8, 12, 16, 20, 24, 28, 32
LDS_BYTES = 163840

SPIN_LIMIT = 300000
SC = ' sc1'
W_J0, W_J1, W_C0, W_L0 = 0, 1, 2, 10

DEF = dict(nt_k=True, nt_v=True, nt_w=True, dk=4, dv=6, dv2=4, dvn=0, stamps=False, na=14, ksig=0, kthr=4,
           slq=2, slf=2, sls=2, sl2=0, sl3=0, pf=False, na_polls=10, force_remote=False, nopoll=False,
           t3sets=1, t3st=4, tlb=True, sw=2, t3delay=0, t3ld=0, t3stf=0, x_nob=False, qdelay=0,
           x_stream=False, rka=1, rkb=3, rkc=0, x_start=False, t2sets=1, t2st=3, wpos=32, wsplit=6, light=False, t3mask=True, t3wait=True, t2wait=False, t2mask=False, prio_ld=0, prio_j=0, sla=1, slk=2, rcb=1, rcc=0, owarm=0, pre1=False, pre3=False, x_dirty=0, locf=0)

class G:
    def __init__(self, **kw):
        self.p = dict(DEF); self.p.update(kw)
        self.a = Asm()
        self.uid = 0
        self.glim = 0 if self.p['nopoll'] else SPIN_LIMIT
    def I(self, s): self.a.I(s)
    def lab(self, base):
        self.uid += 1
        return f'L_{base}_{self.uid}'
    def stamp(self, i):
        if self.p['stamps'] and (not self.p['light'] or i in (0, 12)):
            self.I(f's_memrealtime s[{64+2*i}:{65+2*i}]')
            self.I('s_waitcnt lgkmcnt(0)')
    def stamp_dump(self, srd, n=12):
        if not self.p['stamps']: return
        I = self.I
        I('s_mov_b64 exec, -1')
        I('s_lshl_b32 s6, s2, 4')
        I('s_add_u32 s6, s6, s3')
        I('s_lshl_b32 s6, s6, 6')
        I(f's_add_u32 s6, s6, {WS_DBG}')
        I('v_mov_b32 v1, s6')
        I('s_mov_b64 exec, 1')
        for j in range(0, n, 4):
            for t in range(4):
                I(f'v_mov_b32 v{4+t}, s{64+2*(j+t)}')
            I(f'buffer_store_dwordx4 v[4:7], v1, {srd}, 0 offen offset:{j*4}')
        I('s_mov_b64 exec, -1')
    def signal(self, vC, vOne, off):
        self.I(f'''s_mov_b64 exec, 1
ds_add_u32 {vC}, {vOne} offset:{off}
s_mov_b64 exec, -1''')
    def lds_wait(self, vC, vT, off, n, sleep=1):
        L = self.lab('lw'); D = self.lab('lwd')
        self.I(f'''{L}:
ds_read_b32 {vT}, {vC} offset:{off}
s_add_u32 s48, s48, 1
s_waitcnt lgkmcnt(0)
v_readfirstlane_b32 s49, {vT}
s_cmp_ge_u32 s49, {n}
s_cbranch_scc1 {D}
s_cmp_gt_u32 s48, {SPIN_LIMIT}
s_cbranch_scc1 {D}''')
        if sleep: self.I(f's_sleep {sleep}')
        self.I(f'''s_branch {L}
{D}:''')
    def tag_load(self, wsbase):
        self.I(f's_load_dword s52, s[{wsbase}:{wsbase+1}], {WS_E}')
        for i in range(4): self.I(f's_mov_b32 s{53+i}, 0x0706050{i}')
        self.I('s_mov_b32 s57, 0x0c0c0400\ns_mov_b32 s58, 0x04000c0c\ns_mov_b32 s63, 0xffffff00')
    def untag(self, regs):
        for r in regs: self.I(f'v_and_b32 v{r}, s63, v{r}')
    def tag_ready(self):
        self.I('s_waitcnt lgkmcnt(0)\ns_add_u32 s52, s52, 1')
    def tag_acc(self, r, first, acc='v16', t1='v17', t2='v18', t3='v19'):
        self.I(f'v_perm_b32 {t2}, v{r+1}, v{r}, s57\nv_perm_b32 {t3}, v{r+3}, v{r+2}, s58\nv_or_b32 {t2}, {t2}, {t3}')
        if first: self.I(f'v_xor_b32 {acc}, s52, {t2}')
        else: self.I(f'v_xor_b32 {t1}, s52, {t2}\nv_or_b32 {acc}, {acc}, {t1}')
    def poll_tail(self, L, D, acc, sleep):
        self.I(f'''v_cmp_ne_u32 vcc, 0, {acc}
s_cbranch_vccz {D}
s_cmp_gt_u32 s48, {self.glim}
s_cbranch_scc1 {D}''')
        if sleep: self.I(f's_sleep {sleep}')
    def srd(self, base, karg_off, size):
        self.I(f's_load_dwordx2 s[{base}:{base+1}], s[0:1], {karg_off}')
        self.I(f's_mov_b32 s{base+2}, {size}')
        self.I(f's_mov_b32 s{base+3}, 0x20000')
    def stats_loads(self):
        self.I(f"""buffer_load_dwordx4 v[64:67], v61, s[20:23], 0 offen{SC}
buffer_load_dwordx4 v[68:71], v61, s[20:23], 0 offen offset:16{SC}""")
    def stats_check(self):
        self.tag_acc(64, True, 'v5', 'v6', 'v7', 'v4')
        self.tag_acc(68, False, 'v5', 'v6', 'v7', 'v4')
    def lane_setup(self):
        self.I('''v_and_b32 v1, 63, v0
v_lshrrev_b32 v2, 4, v1
v_and_b32 v3, 15, v1''')
    def mode_store(self, ins, smode):
        Lr = self.lab('ms'); Le = self.lab('mse')
        self.I(f'''s_cmp_eq_u32 {smode}, 0
s_cbranch_scc1 {Lr}
{ins}{('', ' nt', ' sc0', ' sc0 nt')[self.p['locf']]}
s_branch {Le}
{Lr}:
{ins}{SC}
{Le}:''')

    def qtile_issue(self, srdW, srdX, sBase, sKs):
        I = self.I; pitch = 8192; stg = STG0
        ntf = ' nt' if self.p['nt_w'] else ''
        I(f'''v_lshrrev_b32 v4, 5, v1
v_lshlrev_b32 v4, 3, v4
v_bfe_u32 v5, v1, 3, 2
v_add_u32 v4, v4, v5
v_mul_u32_u24 v4, {pitch}, v4
v_and_b32 v5, 7, v1
v_bfe_u32 v6, v1, 4, 2
v_lshlrev_b32 v6, 1, v6
v_xor_b32 v5, v5, v6
v_lshlrev_b32 v5, 4, v5
v_add_u32 v4, v4, v5''')
        for i in range(16):
            rowi = 32*(i >> 2) + 16*(i & 1) + 4*((i >> 1) & 1)
            I(f's_mov_b32 m0, {stg + i*1024}')
            I(f's_add_u32 s7, {sBase}, {rowi*pitch}')
            I(f'buffer_load_dwordx4 v4, {srdW}, s7 offen{ntf} lds')
        I(f'''v_and_b32 v5, 1, v3
v_lshlrev_b32 v5, 10, v5
v_lshlrev_b32 v6, 4, v2
v_add_u32 v5, v5, v6
s_lshl_b32 s6, {sKs}, 8
v_add_u32 v5, s6, v5''')
        for kk in range(4):
            I(f'buffer_load_dwordx4 v[{8+4*kk}:{11+4*kk}], v5, {srdX}, 0 offen offset:{kk*64}')
        I(f'''v_lshrrev_b32 v6, 2, v3
v_and_b32 v7, 3, v3
v_lshlrev_b32 v28, 2, v2
v_add_u32 v28, v28, v6
v_lshlrev_b32 v28, 7, v28
v_lshlrev_b32 v7, 3, v7
v_add_u32 v28, v28, v7
v_add_u32 v28, {stg}, v28
v_lshlrev_b32 v29, 1, v2
v_lshrrev_b32 v6, 1, v6
v_add_u32 v29, v29, v6
v_and_b32 v29, 3, v29''')
        for nt_ in range(4):
            I(f'''v_xor_b32 v6, {nt_}, v29
v_lshlrev_b32 v6, 5, v6
v_add_u32 v{24+nt_}, v28, v6''')
    def qtile_compute(self):
        I = self.I
        def reads(kk, setb):
            for nt_ in range(4):
                for hf in range(2):
                    r = setb + 4*nt_ + 2*hf
                    I(f'ds_read_b64_tr_b16 v[{r}:{r+1}], v{24+nt_} offset:{kk*4096 + hf*2048}')
        def mf(kk, setb):
            for nt_ in range(4):
                c = '0' if kk == 0 else f'v[{64+4*nt_}:{67+4*nt_}]'
                I(f'v_mfma_f32_16x16x32_bf16 v[{64+4*nt_}:{67+4*nt_}], v[{8+4*kk}:{11+4*kk}], v[{setb+4*nt_}:{setb+4*nt_+3}], {c}')
        sets = (32, 48)
        reads(0, sets[0])
        for kk in range(4):
            I('s_waitcnt lgkmcnt(0)')
            if kk < 3: reads(kk+1, sets[(kk+1) & 1])
            mf(kk, sets[kk & 1])
        I('''s_mov_b32 s40, 0xffff0000
s_mov_b32 s41, 0
s_mov_b32 s42, 0
s_mov_b32 s43, 0x0000ffff
s_mov_b32 s44, 0
s_mov_b32 s45, 0xffff0000''')
        for b in range(2):
            I(f'''v_cndmask_b32 v{40+b}, v{64+b}, v{68+b}, s[40:41]
v_cndmask_b32 v{40+b}, v{40+b}, v{72+b}, s[42:43]
v_cndmask_b32 v{40+b}, v{40+b}, v{76+b}, s[44:45]''')

    def ftile_issue(self, srdW, srdX, sBase, sKs):
        I = self.I; pitch = 3584; stg = STG1
        ntf = ' nt' if self.p['nt_w'] else ''
        I(f'''v_lshrrev_b32 v4, 4, v1
v_lshlrev_b32 v4, 3, v4
v_bfe_u32 v5, v1, 2, 2
v_add_u32 v4, v4, v5
v_mul_u32_u24 v4, {pitch}, v4
v_and_b32 v5, 3, v1
v_bfe_u32 v6, v1, 4, 1
v_lshlrev_b32 v6, 1, v6
v_xor_b32 v5, v5, v6
v_lshlrev_b32 v5, 4, v5
v_add_u32 v4, v4, v5''')
        for i in range(16):
            rowi = 32*(i >> 1) + 4*(i & 1)
            I(f's_mov_b32 m0, {stg + i*1024}')
            I(f's_add_u32 s7, {sBase}, {rowi*pitch}')
            I(f'buffer_load_dwordx4 v4, {srdW}, s7 offen{ntf} lds')
        I(f'''v_and_b32 v5, 1, v3
v_lshlrev_b32 v5, 10, v5
v_lshlrev_b32 v6, 4, v2
v_add_u32 v5, v5, v6
s_lshl_b32 s6, {sKs}, 9
v_add_u32 v5, s6, v5''')
        for kk in range(8):
            I(f'buffer_load_dwordx4 v[{96+4*kk}:{99+4*kk}], v5, {srdX}, 0 offen offset:{kk*64}')
        I(f'''v_lshrrev_b32 v6, 2, v3
v_and_b32 v7, 3, v3
v_lshlrev_b32 v28, 2, v2
v_add_u32 v28, v28, v6
v_lshlrev_b32 v28, 6, v28
v_lshlrev_b32 v7, 3, v7
v_add_u32 v28, v28, v7
v_add_u32 v28, {stg}, v28
v_and_b32 v29, 1, v2
v_lshlrev_b32 v6, 5, v29
v_add_u32 v24, v28, v6
v_xor_b32 v6, 1, v29
v_lshlrev_b32 v6, 5, v6
v_add_u32 v25, v28, v6''')
    def ftile_compute(self):
        I = self.I
        def reads(k2, setb):
            for kq in range(2):
                kk = 2*k2 + kq
                for nt_ in range(2):
                    for hf in range(2):
                        r = setb + 8*kq + 4*nt_ + 2*hf
                        I(f'ds_read_b64_tr_b16 v[{r}:{r+1}], v{24+nt_} offset:{kk*2048 + hf*1024}')
        def mf(k2, setb):
            for kq in range(2):
                kk = 2*k2 + kq
                for nt_ in range(2):
                    c = '0' if kk == 0 else f'v[{64+4*nt_}:{67+4*nt_}]'
                    r = setb + 8*kq + 4*nt_
                    I(f'v_mfma_f32_16x16x32_bf16 v[{64+4*nt_}:{67+4*nt_}], v[{96+4*kk}:{99+4*kk}], v[{r}:{r+3}], {c}')
        sets = (32, 48)
        reads(0, sets[0])
        for k2 in range(4):
            I('s_waitcnt lgkmcnt(0)')
            if k2 < 3: reads(k2+1, sets[(k2+1) & 1])
            mf(k2, sets[k2 & 1])
        I('''s_mov_b32 s40, 0xffff0000
s_mov_b32 s41, 0
s_mov_b32 s42, 0
s_mov_b32 s43, 0x0000ffff
s_mov_b32 s44, 0
s_mov_b32 s45, 0xffff0000
v_cndmask_b32 v40, v64, v68, s[40:41]
v_cndmask_b32 v40, v40, v65, s[42:43]
v_cndmask_b32 v40, v40, v69, s[44:45]''')

    def role_j0(self):
        I = self.I; p = self.p
        LF = ('', ' nt', ' sc0', ' sc0 nt')[p['locf']]
        I('L_J0:')
        if p['prio_j']: I(f"s_setprio {p['prio_j']}")
        self.srd(16, 24, 0x400000)
        self.srd(20, 0, 2048)
        self.srd(24, 96, WS_SIZE)
        I('s_barrier')
        if p['x_stream']: I('s_endpgm')
        self.lane_setup()
        I(f"""s_lshr_b32 s8, s5, 2          ; qcl
s_and_b32 s9, s5, 3           ; ks
s_mul_i32 s10, s9, 128*8192
s_lshl_b32 s6, s4, 10
s_add_u32 s10, s10, s6
s_lshl_b32 s6, s8, 7
s_add_u32 s10, s10, s6
s_getreg_b32 s12, hwreg(HW_REG_XCC_ID, 0, 4)
v_mov_b32 v90, {CNT}
v_mov_b32 v91, 1
s_waitcnt lgkmcnt(0)""")
        self.qtile_issue('s[16:19]', 's[20:23]', 's10', 's9')
        self.tag_load(24)
        I("""v_and_b32 v81, 3, v1
v_add_u32 v81, 0x07060500, v81
s_lshl_b32 s13, s12, 8
v_mov_b32 v82, s13""")
        if p['pre3']:
            self.tag_ready()
            I(f"""s_not_b32 s6, s52
v_mov_b32 v83, s6
s_lshl_b32 s6, s4, 3
s_add_u32 s6, s6, s9
s_lshl_b32 s6, s6, 11
s_lshl_b32 s7, s8, 8
s_add_u32 s6, s6, s7
v_lshlrev_b32 v84, 2, v1
v_add_u32 v85, s6, v84
v_add_u32 v86, {4*2048}, v85
s_lshl_b32 s6, s4, 5
s_add_u32 s6, s6, s5
s_lshl_b32 s6, s6, 7
s_add_u32 s6, s6, {WS_ID}
v_add_u32 v87, s6, v84
buffer_store_dword v83, v85, s[24:27], 0 offen
buffer_store_dword v83, v86, s[24:27], 0 offen
s_mov_b32 exec_hi, 0
buffer_store_dword v83, v87, s[24:27], 0 offen
s_mov_b32 exec_hi, -1""")
        self.stamp(1)
        I('s_waitcnt vmcnt(0)')
        if not p['pre3']: self.tag_ready()
        I('v_mov_b32 v80, s52')
        self.stamp(2)
        self.qtile_compute()
        self.signal('v90', 'v91', C_T)
        I(f"""v_perm_b32 v40, v40, v80, v81
v_perm_b32 v41, v41, v80, v81
v_perm_b32 v82, v82, v80, v81
s_lshl_b32 s6, s4, 3
s_add_u32 s6, s6, s9
s_lshl_b32 s6, s6, 11         ; (g*8 + ks)*2048
s_lshl_b32 s7, s8, 8
s_add_u32 s6, s6, s7
v_lshlrev_b32 v4, 2, v1
v_add_u32 v5, s6, v4
v_add_u32 v6, {4*2048}, v5
s_lshl_b32 s6, s4, 5
s_add_u32 s6, s6, s5
s_lshl_b32 s6, s6, 7
s_add_u32 s6, s6, {WS_ID}
v_add_u32 v7, s6, v4
s_mov_b32 s14, {COPYB}
buffer_store_dword v40, v5, s[24:27], 0 offen{LF}
buffer_store_dword v41, v6, s[24:27], 0 offen{LF}
s_mov_b32 exec_hi, 0
buffer_store_dword v82, v7, s[24:27], 0 offen{LF}
s_mov_b32 exec_hi, -1
""")
        if not p['x_nob']:
            I(f"""buffer_store_dword v40, v5, s[24:27], s14 offen{SC}
buffer_store_dword v41, v6, s[24:27], s14 offen{SC}
s_mov_b32 exec_hi, 0
buffer_store_dword v82, v7, s[24:27], s14 offen{SC}
s_mov_b32 exec_hi, -1""")
        if p['qdelay']: I(f"s_sleep {p['qdelay']}")
        self.stamp(3)
        I(f"""s_lshl_b32 s6, s4, 1
s_lshr_b32 s7, s5, 4          ; b
s_add_u32 s6, s6, s7
s_lshl_b32 s6, s6, 13
v_lshlrev_b32 v4, 4, v1
v_add_u32 v4, s6, v4
v_and_b32 v5, 31, v1
v_lshlrev_b32 v5, 7, v5
s_lshl_b32 s6, s4, 12
s_add_u32 s6, s6, {WS_ID}
v_add_u32 v5, s6, v5
s_mov_b32 s15, {COPYB if p['force_remote'] else 0}
s_mov_b32 s11, 0""")
        L = self.lab('qg'); D = self.lab('qgd'); Lk = self.lab('qgk')
        I(f'{L}:')
        for ks in range(4):
            I(f's_add_u32 s7, s15, {ks*2048}')
            for i in range(2):
                r = 8 + 8*ks + 4*i
                I(f'buffer_load_dwordx4 v[{r}:{r+3}], v4, s[24:27], s7 offen offset:{i*1024}{SC}')
        I(f'buffer_load_dwordx4 v[40:43], v5, s[24:27], s15 offen{SC}')
        I('s_add_u32 s48, s48, 1\ns_add_u32 s11, s11, 1\ns_waitcnt vmcnt(0)')
        for j in range(9):
            self.tag_acc(8 + 4*j, j == 0, 'v44', 'v45', 'v46', 'v47')
        self.poll_tail(L, D, 'v44', p['slq'])
        if not p['force_remote']:
            I(f"""s_cmp_lt_u32 s11, {p['na_polls']}
s_cbranch_scc1 {L}
s_xor_b32 s15, s15, {COPYB}""")
        I(f"""s_branch {L}
{D}:""")
        self.stamp(5)
        I(f"""v_bfe_u32 v40, v40, 8, 4
v_cmp_ne_u32 vcc, s12, v40
s_cmp_eq_u64 vcc, 0
s_cselect_b32 s6, {0 if p['force_remote'] else 1}, 0
v_mov_b32 v44, s6
s_mov_b64 exec, 1
ds_write_b32 v90, v44 offset:{C_M}
s_mov_b64 exec, -1""")
        self.untag(range(8, 40))
        for e in range(8):
            I(f'v_add_f32 v{8+e}, v{8+e}, v{16+e}')
            I(f'v_add_f32 v{24+e}, v{24+e}, v{32+e}')
        for e in range(8):
            I(f'v_add_f32 v{8+e}, v{8+e}, v{24+e}')
        I(f"""v_cvt_pk_bf16_f32 v40, v8, v9
v_cvt_pk_bf16_f32 v41, v10, v11
v_cvt_pk_bf16_f32 v42, v12, v13
v_cvt_pk_bf16_f32 v43, v14, v15
v_lshlrev_b32 v4, 3, v1
v_add_u32 v4, {Q_OFF}, v4
ds_write_b64 v4, v[40:41]
ds_write_b64 v4, v[42:43] offset:512""")
        self.signal('v90', 'v91', C_Q)
        I('s_waitcnt lgkmcnt(0)')
        self.stamp(6)
        self.stamp_dump('s[24:27]')
        I('s_endpgm')

    def role_j1(self):
        I = self.I; p = self.p
        LF = ('', ' nt', ' sc0', ' sc0 nt')[p['locf']]
        I('L_J1:')
        I('s_load_dwordx4 s[8:11], s[0:1], 48')
        self.srd(20, 0, 2048)
        self.srd(24, 96, WS_SIZE)
        self.srd(28, 72, 1024)
        I('s_barrier')
        if p['x_stream']: I('s_endpgm')
        self.lane_setup()
        I(f"""s_mul_i32 s12, s5, 9363
s_lshr_b32 s12, s12, 16
s_mul_i32 s13, s12, 7
s_sub_u32 s13, s5, s13        ; cf
s_and_b32 s14, s12, 1         ; mat
s_lshr_b32 s15, s12, 1        ; ks
v_mov_b32 v90, {CNT}
v_mov_b32 v91, 1
s_waitcnt lgkmcnt(0)
s_cmp_eq_u32 s14, 0
s_cselect_b32 s16, s8, s10
s_cselect_b32 s17, s9, s11
s_mov_b32 s18, {512*1792*2}
s_mov_b32 s19, 0x20000
s_mul_i32 s8, s15, 256*3584
s_mul_i32 s6, s4, 448
s_add_u32 s8, s8, s6
s_lshl_b32 s6, s13, 6
s_add_u32 s8, s8, s6""")
        Lskip = self.lab('nof1'); Lj = self.lab('f1j')
        I(f"""s_cmp_ge_u32 s5, 28
s_cbranch_scc1 {Lskip}""")
        self.ftile_issue('s[16:19]', 's[20:23]', 's8', 's15')
        I(f'{Lskip}:')
        I("""v_lshlrev_b32 v80, 4, v1
buffer_load_dwordx4 v[84:87], v80, s[20:23], 0 offen
buffer_load_dwordx4 v[88:91], v80, s[20:23], 0 offen offset:1024
buffer_load_dwordx4 v[92:95], v80, s[28:31], 0 offen""")
        self.tag_load(24)
        I("""v_and_b32 v81, 3, v1
v_add_u32 v81, 0x07060500, v81""")
        if p['pre3']:
            self.tag_ready()
            Lf = self.lab('pf1')
            I(f"""s_cmp_ge_u32 s5, 28
s_cbranch_scc1 {Lf}
s_not_b32 s6, s52
v_mov_b32 v83, s6
s_lshl_b32 s6, s4, 2
s_lshl_b32 s7, s14, 1
s_add_u32 s6, s6, s7
s_add_u32 s6, s6, s15
s_lshl_b32 s6, s6, 11
s_lshl_b32 s7, s13, 7
s_add_u32 s6, s6, s7
s_add_u32 s6, s6, {WS_F}
v_lshrrev_b32 v82, 5, v1
v_lshlrev_b32 v82, 10, v82
v_and_b32 v79, 31, v1
v_lshlrev_b32 v79, 2, v79
v_add_u32 v82, v82, v79
v_add_u32 v82, s6, v82
buffer_store_dword v83, v82, s[24:27], 0 offen
{Lf}:""")
        self.stamp(1)
        I('s_waitcnt vmcnt(0)')
        if not p['pre3']: self.tag_ready()
        I('v_mov_b32 v80, s52')
        self.stamp(2)
        I(f"""s_cmp_ge_u32 s5, 28
s_cbranch_scc1 {Lj}""")
        self.ftile_compute()
        I(f"""v_perm_b32 v40, v40, v80, v81
s_lshl_b32 s6, s4, 2
s_add_u32 s6, s6, s12
s_lshl_b32 s6, s4, 2
s_lshl_b32 s7, s14, 1
s_add_u32 s6, s6, s7
s_add_u32 s6, s6, s15
s_lshl_b32 s6, s6, 11         ; *[b 2][256] f32
s_lshl_b32 s7, s13, 7
s_add_u32 s6, s6, s7
s_add_u32 s6, s6, {WS_F}
v_lshrrev_b32 v4, 5, v1
v_lshlrev_b32 v4, 10, v4
v_and_b32 v5, 31, v1
v_lshlrev_b32 v5, 2, v5
v_add_u32 v4, v4, v5
v_add_u32 v4, s6, v4
s_mov_b32 s7, {COPYB}
buffer_store_dword v40, v4, s[24:27], 0 offen{LF}""")
        if not p['x_nob']: I(f'buffer_store_dword v40, v4, s[24:27], s7 offen{SC}')
        if p['qdelay']: I(f"s_sleep {p['qdelay']}")
        I(f'{Lj}:')
        I(f'v_mov_b32 v82, {CNT}\nv_mov_b32 v83, 1')
        self.signal('v82', 'v83', C_T)
        self.stamp(3)
        I('v_mov_b32 v8, 0\nv_mov_b32 v9, 0')
        for e in range(4):
            I(f"""v_lshlrev_b32 v10, 16, v{92+e}
v_and_b32 v11, 0xffff0000, v{92+e}
v_lshlrev_b32 v12, 16, v{84+e}
v_and_b32 v13, 0xffff0000, v{84+e}
v_lshlrev_b32 v14, 16, v{88+e}
v_and_b32 v15, 0xffff0000, v{88+e}
v_fmac_f32 v8, v10, v12
v_fmac_f32 v9, v10, v14
v_fmac_f32 v8, v11, v13
v_fmac_f32 v9, v11, v15""")
        for rr in (8, 4, 2, 1):
            I(f'v_add_f32_dpp v8, v8, v8 row_ror:{rr} row_mask:0xf bank_mask:0xf')
            I(f'v_add_f32_dpp v9, v9, v9 row_ror:{rr} row_mask:0xf bank_mask:0xf')
        for sw in ('v_permlane16_swap_b32', 'v_permlane32_swap_b32'):
            I(f"""v_mov_b32 v10, v8
v_mov_b32 v11, v9
{sw} v8, v10
{sw} v9, v11
v_add_f32 v8, v8, v10
v_add_f32 v9, v9, v11""")
        I(f"""v_mul_f32 v8, {fhex(-math.log2(math.e))}, v8
v_mul_f32 v9, {fhex(-math.log2(math.e))}, v9
v_exp_f32 v8, v8
v_exp_f32 v9, v9
v_add_f32 v8, 1.0, v8
v_add_f32 v9, 1.0, v9
v_rcp_f32 v8, v8
v_rcp_f32 v9, v9
v_mov_b32 v10, {GATE}
s_mov_b64 exec, 1
ds_write_b64 v10, v[8:9]
s_mov_b64 exec, -1
s_mov_b32 s40, 0
s_mov_b32 s41, -1
v_cndmask_b32 v16, v8, v9, s[40:41]
v_sub_f32 v16, 1.0, v16""")
        I('v_mov_b32 v90, %d\nv_mov_b32 v91, 1' % CNT)
        self.signal('v90', 'v91', C_H)
        I(f"""s_lshl_b32 s6, s4, 13         ; g*[mat][ks][b][256]*4
s_lshr_b32 s7, s5, 2
s_mul_i32 s7, s7, 112
s_add_u32 s6, s6, s7
s_add_u32 s6, s6, {WS_F}
v_and_b32 v4, 31, v1
v_min_u32 v5, 27, v4
v_and_b32 v17, 3, v5
v_lshlrev_b32 v17, 3, v17
v_lshrrev_b32 v17, v17, v80
v_lshlrev_b32 v5, 2, v5
v_lshrrev_b32 v6, 5, v1
v_lshlrev_b32 v6, 10, v6
v_add_u32 v5, v5, v6
v_add_u32 v5, s6, v5
s_mov_b32 s15, {COPYB if p['force_remote'] else 0}
s_mov_b32 s11, 0""")
        L = self.lab('hg'); D = self.lab('hgd')
        I(f'{L}:')
        for m in range(4):
            I(f's_add_u32 s7, s15, {m*2048}')
            I(f'buffer_load_dword v{24+m}, v5, s[24:27], s7 offen{SC}')
        I('s_add_u32 s48, s48, 1\ns_add_u32 s11, s11, 1\ns_waitcnt vmcnt(0)')
        I('v_xor_b32 v18, v24, v17')
        for j in range(1, 4):
            I(f'v_xor_b32 v19, v{24+j}, v17\nv_or_b32 v18, v18, v19')
        I('v_and_b32 v18, 0xff, v18')
        self.poll_tail(L, D, 'v18', p['slf'])
        if not p['force_remote']:
            I(f"""s_cmp_lt_u32 s11, {p['na_polls']}
s_cbranch_scc1 {L}
s_xor_b32 s15, s15, {COPYB}""")
        I(f"""s_branch {L}
{D}:""")
        self.stamp(5)
        self.untag(range(24, 28))
        I(f"""v_add_f32 v24, v24, v25
v_add_f32 v28, v26, v27
v_mul_f32 v25, {fhex(-math.log2(math.e))}, v24
v_exp_f32 v25, v25
v_add_f32 v25, 1.0, v25
v_rcp_f32 v25, v25
v_mul_f32 v24, v24, v25
v_mul_f32 v24, v24, v28
v_mul_f32 v24, v24, v16
v_cmp_gt_u32 vcc, 28, v4
v_cndmask_b32 v24, 0, v24, vcc
v_cvt_pk_bf16_f32 v24, v24, v24
v_bfe_u32 v6, v4, 2, 2
v_lshlrev_b32 v6, 4, v6
v_lshrrev_b32 v7, 4, v4
v_lshlrev_b32 v7, 3, v7
v_add_u32 v6, v6, v7
v_and_b32 v7, 3, v4
v_lshlrev_b32 v7, 1, v7
v_add_u32 v6, v6, v7
v_lshrrev_b32 v7, 5, v1
v_lshlrev_b32 v7, 6, v7
v_add_u32 v6, v6, v7
v_add_u32 v6, {A2}, v6
ds_write_b16 v6, v24
s_waitcnt lgkmcnt(0)""")
        self.stamp(6)
        self.stamp_dump('s[24:27]')
        I('s_endpgm')

    def role_loader(self):
        I = self.I; p = self.p
        ntv = ' nt' if p['nt_v'] else ''
        ntw = ' nt' if p['nt_w'] else ''
        I('L_LD:')
        if p['prio_ld']: I(f"s_setprio {p['prio_ld']}")
        I(f"""s_sub_u32 s8, s3, {W_L0}           ; loader j
v_mov_b32 v90, {CNT}
v_mov_b32 v91, 1
s_cmp_lg_u32 s8, 0
s_cbranch_scc1 L_LD_noinit
v_mov_b32 v8, 0
v_mov_b32 v9, 0
v_mov_b32 v10, 0
v_mov_b32 v11, 0
ds_write_b128 v90, v[8:11]
ds_write_b128 v90, v[8:11] offset:16
ds_write_b128 v90, v[8:11] offset:32
s_waitcnt lgkmcnt(0)
L_LD_noinit:
s_barrier""")
        self.srd(16, 16, 0x2000000)
        self.srd(20, 32, 0x400000)
        self.srd(24, 64, 1792*512*2)
        self.srd(28, 96, WS_SIZE)
        self.lane_setup()
        if p['pf']:
            I(f"""s_cmp_lg_u32 s8, 3
s_cbranch_scc1 L_LD_nopf
s_getpc_b64 s[36:37]
L_PC:
s_add_u32 s36, s36, {KNAME}-L_PC
s_addc_u32 s37, s37, -1
v_lshlrev_b32 v4, 4, v1
s_mov_b32 s6, L_codeend-{KNAME}-16""")
            for j in range(p.get('pfn', 14)):
                I(f"""v_min_u32 v5, s6, v4
global_load_dwordx4 v[12:15], v5, s[36:37]
v_add_u32 v4, 1024, v4""")
            I('L_LD_nopf:')
        I('s_waitcnt lgkmcnt(0)')
        TLBMARK = True
        I(f"""s_and_b32 s6, s8, 1
s_lshl_b32 s6, s6, 2
v_add_u32 v5, s6, v2          ; (4*(j&1) + rho)
v_lshlrev_b32 v5, 1, v5
v_xor_b32 v5, v5, v3          ; chunk
v_lshlrev_b32 v5, 4, v5
v_lshlrev_b32 v6, 8, v2
v_add_u32 v10, v5, v6         ; V voffset
v_lshlrev_b32 v6, 17, v2
v_add_u32 v11, v5, v6
v_lshlrev_b32 v6, 10, v2
v_add_u32 v16, v5, v6
s_lshr_b32 s6, s5, 4          ; b
s_lshl_b32 s6, s6, 3
s_add_u32 s6, s6, s4          ; bh
s_lshl_b32 s10, s6, 21
s_and_b32 s6, s5, 15          ; t
s_lshl_b32 s6, s6, 17
s_add_u32 s10, s10, s6
s_and_b32 s6, s8, 1
s_lshl_b32 s6, s6, 10
s_add_u32 s10, s10, s6        ; V base + (j & 1) * 1024
s_lshr_b32 s11, s5, 2         ; w'
s_and_b32 s12, s5, 3          ; cg
s_lshl_b32 s13, s4, 9
s_lshl_b32 s6, s11, 4
s_add_u32 s13, s13, s6
s_add_u32 s13, s13, s8
s_lshl_b32 s13, s13, 10
s_lshl_b32 s6, s12, 8
s_add_u32 s13, s13, s6
s_lshl_b32 s14, s4, 3
s_add_u32 s14, s14, s11       ; rg
s_mul_i32 s14, s14, 28
s_lshl_b32 s6, s8, 2
s_add_u32 s15, s14, s6
s_add_u32 s6, s8, 4
s_min_u32 s6, s6, 6
s_lshl_b32 s6, s6, 2
s_add_u32 s14, s14, s6
s_lshl_b32 s15, s15, 10
s_lshl_b32 s14, s14, 10
s_lshl_b32 s6, s12, 8
s_add_u32 s15, s15, s6
s_add_u32 s14, s14, s6
s_lshl_b32 s9, s8, 10         ; j*1024""")
        if p['tlb']:
            Lt = self.lab('tlb')
            I(f"""s_cmp_lg_u32 s8, 2
s_cbranch_scc1 {Lt}
v_mov_b32 v20, 0
s_mov_b64 exec, 1
buffer_load_dword v21, v20, s[16:19], s10 offen
buffer_load_dword v22, v20, s[20:23], s13 offen
buffer_load_dword v23, v20, s[24:27], s15 offen
s_mov_b32 s6, {WS_T1}
buffer_load_dword v24, v20, s[28:31], s6 offen
s_mov_b32 s6, {WS_T3}
buffer_load_dword v25, v20, s[28:31], s6 offen
s_mov_b32 s6, {WS_ST}
buffer_load_dword v26, v20, s[28:31], s6 offen
s_mov_b64 exec, -1
{Lt}:""")
        self.stamp(1)
        self.lds_wait('v90', 'v7', C_K, p['kthr'], sleep=p['slk'])
        self.lds_wait('v90', 'v7', C_T, 2, sleep=p['slk'])
        I('s_waitcnt vmcnt(0)')
        self.stamp(2)
        loads = []
        I(f"""s_mul_i32 s61, s5, {p['rkb']}
s_mul_i32 s6, s4, {p['rkc']}
s_add_u32 s61, s61, s6
s_lshr_b32 s6, s8, 1
s_add_u32 s61, s61, s6
s_mul_i32 s62, s5, {p['rcb']}
s_mul_i32 s6, s4, {p['rcc']}
s_add_u32 s62, s62, s6""")
        for q in range(32):
            cw = q >> 2
            loads.append([f's_add_u32 m0, s9, {V_OFF + q*4096}',
                          f's_add_u32 s6, s61, {cw*p["rka"] + 2*(q & 3)}',
                          f's_and_b32 s6, s6, 7',
                          f's_lshl_b32 s6, s6, 11',
                          f's_add_u32 s6, s6, s10',
                          f's_add_u32 s7, s62, {cw}',
                          f's_and_b32 s7, s7, 7',
                          f's_lshl_b32 s7, s7, 14',
                          f's_add_u32 s6, s6, s7',
                          f'buffer_load_dwordx4 v10, s[16:19], s6 offen{ntv} lds'])
        for q in range(4):
            loads.append([f's_add_u32 m0, s9, {WO_OFF + q*4096}',
                          f's_add_u32 s6, s13, {q*4096}',
                          f'buffer_load_dwordx4 v11, s[20:23], s6 offen{ntw} lds'])
        loads.append([f's_add_u32 m0, s9, {WD_OFF}', 's_nop 0', f'buffer_load_dwordx4 v16, s[24:27], s15 offen{ntw} lds'])
        loads.append([f's_add_u32 m0, s9, {WD_OFF + 4096}', 's_nop 0', f'buffer_load_dwordx4 v16, s[24:27], s14 offen{ntw} lds'])
        vl, wl = loads[:32], loads[32:]
        wp, ws_ = p['wpos'], p['wsplit']
        loads = vl[:wp] + wl[:ws_] + vl[wp:] + wl[ws_:]
        def vpos(q): return q if q < wp else q + ws_
        n = len(loads)
        nA = 2 * p['na']
        marks = {vpos(nA - 1): 'A', vpos(31): 'V'}
        def mark(m):
            if m == 'A': self.signal('v90', 'v91', C_A)
            elif not p['x_stream']: I('s_barrier')
            self.stamp(3 if m == 'A' else 4)
        def depth(i): return p['dv2'] if i >= n - p['dvn'] else p['dv']
        done = -1
        issued = 0
        pend = sorted(marks)
        while issued < n:
            D = depth(issued)
            need_done = issued - D
            if need_done > done:
                I(f's_waitcnt vmcnt({issued - 1 - need_done})')
                done = need_done
            for l in loads[issued]: I(l)
            issued += 1
            while pend and pend[0] <= done:
                mark(marks[pend.pop(0)])
        while done < n - 1:
            done += 1
            if pend and pend[0] == done or done == n - 1:
                I(f's_waitcnt vmcnt({n - 1 - done})')
            while pend and pend[0] <= done:
                mark(marks[pend.pop(0)])
        self.stamp(5)
        if not p['x_stream']: I('s_barrier')
        if p['x_dirty']:
            I(f"""s_lshl_b32 s6, s2, 2
s_add_u32 s6, s6, s8
s_mul_i32 s6, s6, {p['x_dirty']*1024}
s_add_u32 s6, s6, 0x400000
s_mov_b32 s30, 0x10000000
v_lshlrev_b32 v4, 4, v1""")
            for j in range(p['x_dirty']):
                I(f's_add_u32 s7, s6, {j*1024}\nbuffer_store_dwordx4 v[8:11], v4, s[28:31], s7 offen')
        self.stamp_dump('s[28:31]')
        I('s_endpgm')

    def role_compute(self):
        I = self.I; p = self.p
        ntk = ' nt' if p['nt_k'] else ''
        cexp = math.log2(math.e) / math.sqrt(128.0)
        I('L_CW:')
        self.srd(16, 8, 0x2000000)
        self.srd(20, 96, WS_SIZE)
        self.srd(24, 80, 2048)
        if p['x_start']: I('s_memrealtime s[90:91]')
        I('s_barrier')
        if p['x_start']: I('s_memrealtime s[92:93]')
        self.lane_setup()
        I(f"""s_sub_u32 s8, s3, {W_C0}           ; cw
s_lshr_b32 s6, s5, 4          ; b
s_lshl_b32 s6, s6, 3
s_add_u32 s6, s6, s4
s_lshl_b32 s10, s6, 21
s_and_b32 s6, s5, 15
s_lshl_b32 s6, s6, 17
s_add_u32 s10, s10, s6
s_mul_i32 s6, s5, {p['rcb']}
s_mul_i32 s7, s4, {p['rcc']}
s_add_u32 s6, s6, s7
s_add_u32 s6, s6, s8
s_and_b32 s6, s6, 7
s_lshl_b32 s6, s6, 14
s_add_u32 s10, s10, s6
v_and_b32 v4, 7, v1
v_lshlrev_b32 v4, 8, v4
v_bfe_u32 v5, v1, 3, 1
v_lshlrev_b32 v5, 6, v5
v_add_u32 v4, v4, v5
v_lshlrev_b32 v5, 4, v2
v_add_u32 v4, v4, v5          ; K voffset
s_mul_i32 s61, s8, {p['rka']}
s_mul_i32 s6, s5, {p['rkb']}
s_add_u32 s61, s61, s6
s_mul_i32 s6, s4, {p['rkc']}
s_add_u32 s61, s61, s6
v_mov_b32 v62, {CNT}
v_mov_b32 v63, 1
s_waitcnt lgkmcnt(0)""")
        D = p['dk']
        def kload(i):
            o, hx = divmod(i, 2)
            if hx == 0:
                I(f's_add_u32 s11, s61, {o}\ns_and_b32 s11, s11, 7\ns_lshl_b32 s11, s11, 11\ns_add_u32 s11, s11, s10')
            I(f'buffer_load_dwordx4 v[{64+4*i}:{67+4*i}], v4, s[16:19], s11 offen offset:{hx*128}{ntk}')
        if p['x_start']: I('s_memrealtime s[94:95]')
        for i in range(D): kload(i)
        self.tag_load(20)
        self.stamp(1)
        vC, vOne = 'v62', 'v63'
        for i in range(D, 16):
            I(f's_waitcnt vmcnt({D-1})')
            kload(i)
            if i == 15 - p['ksig']:
                self.signal(vC, vOne, C_K)
        self.stamp(2)
        if p['x_stream']:
            I('s_waitcnt vmcnt(0)')
            self.stamp(3)
            self.stamp_dump('s[20:23]', 16)
            I('s_endpgm')
        self.tag_ready()
        I(f"""v_and_b32 v5, 3, v3           ; head = n&3
v_lshlrev_b32 v6, 8, v5
v_lshlrev_b32 v7, 4, v2
v_add_u32 v60, v6, v7
v_bfe_u32 v6, v3, 3, 1
v_lshlrev_b32 v6, 6, v6
v_add_u32 v60, v60, v6
v_add_u32 v60, {Q_OFF}, v60
v_lshlrev_b32 v61, 5, v5
v_add_u32 v61, {MX}, v61
s_lshl_b32 s6, s8, 2
v_add_u32 v59, s6, v61""")
        self.lds_wait(vC, 'v5', C_Q, 1, sleep=2)
        self.stamp(3)
        for hx in range(2):
            I(f'ds_read_b128 v[{48+4*hx}:{51+4*hx}], v60 offset:{hx*128}')
        I(f'ds_read_b32 v5, {vC} offset:{C_M}')
        I('s_waitcnt lgkmcnt(0)\nv_readfirstlane_b32 s51, v5')
        for o in range(8):
            I(f's_waitcnt vmcnt({14 - 2*o})')
            for hx in range(2):
                c = '0' if hx == 0 else f'v[{16+4*o}:{19+4*o}]'
                r = 64 + 8*o + 4*hx
                I(f'v_mfma_f32_16x16x32_bf16 v[{16+4*o}:{19+4*o}], v[{r}:{r+3}], v[{48+4*hx}:{51+4*hx}], {c}')
        for j in range(4):
            for r in range(4): I(f'v_permlane32_swap_b32 v{16+8*j+r}, v{20+8*j+r}')
            for r in range(4): I(f'v_add_f32_dpp v{16+4*j+r}, v{20+8*j+r}, v{16+8*j+r} row_ror:8 row_mask:0xf bank_mask:0xf')
        I('v_max3_f32 v5, v16, v17, v18')
        for e in range(19, 31, 2):
            I(f'v_max3_f32 v5, v5, v{e}, v{e+1}')
        I('v_max_f32 v5, v5, v31')
        for sw in ('v_permlane16_swap_b32', 'v_permlane32_swap_b32'):
            I(f"""v_mov_b32 v6, v5
{sw} v5, v6
v_max_f32 v5, v5, v6""")
        I("""s_mov_b64 exec, 15
ds_write_b32 v59, v5
s_mov_b64 exec, -1""")
        self.signal(vC, vOne, C_1)
        self.lds_wait(vC, 'v6', C_1, 8, sleep=0)
        I(f"""ds_read_b128 v[48:51], v61
ds_read_b128 v[52:55], v61 offset:16
s_mov_b32 s50, {fhex(cexp)}
s_waitcnt lgkmcnt(0)
v_max3_f32 v48, v48, v49, v50
v_max3_f32 v51, v51, v52, v53
v_max3_f32 v48, v48, v54, v55
v_max_f32 v48, v48, v51
v_mul_f32 v58, s50, v48
v_and_b32 v58, s63, v58""")
        for e in range(16):
            I(f'v_fma_f32 v{16+e}, v{16+e}, s50, -v58')
        for e in range(16):
            I(f'v_exp_f32 v{16+e}, v{16+e}')
        for q in range(8):
            I(f'v_cvt_pk_bf16_f32 v{48+q}, v{16+2*q}, v{17+2*q}')
        I(f"""s_lshl_b32 s6, s8, 9
s_add_u32 s6, s6, {P_OFF}
v_lshlrev_b32 v6, 6, v2
v_lshlrev_b32 v7, 4, v3
v_add_u32 v6, v6, v7
v_add_u32 v6, s6, v6
s_mov_b32 s40, 0x000f000f
s_mov_b32 s41, 0x000f000f
s_mov_b64 exec, s[40:41]
ds_write_b128 v6, v[48:51]
ds_write_b128 v6, v[52:55] offset:256
s_mov_b64 exec, -1""")
        for e in range(8): I(f'v_add_f32 v{16+e}, v{16+e}, v{24+e}')
        for e in range(4): I(f'v_add_f32 v{16+e}, v{16+e}, v{20+e}')
        I("""v_add_f32 v16, v16, v17
v_add_f32 v18, v18, v19
v_add_f32 v5, v16, v18""")
        for sw in ('v_permlane16_swap_b32', 'v_permlane32_swap_b32'):
            I(f"""v_mov_b32 v6, v5
{sw} v5, v6
v_add_f32 v5, v5, v6""")
        I("""s_mov_b64 exec, 15
ds_write_b32 v59, v5 offset:128
s_mov_b64 exec, -1""")
        self.signal(vC, vOne, C_2)
        self.lds_wait(vC, 'v6', C_2, 8, sleep=0)
        self.stamp(4)
        I(f"""s_lshl_b32 s12, s4, 5
s_add_u32 s12, s12, s5        ; slot
v_mov_b32 v47, s52""")
        Ls = self.lab('nostat')
        I(f"""s_cmp_lg_u32 s8, 0
s_cbranch_scc1 {Ls}
ds_read_b128 v[48:51], v61 offset:128
ds_read_b128 v[52:55], v61 offset:144
v_and_b32 v6, 3, v1
v_add_u32 v6, 0x07060500, v6
s_waitcnt lgkmcnt(0)
v_add_f32 v48, v48, v49
v_add_f32 v50, v50, v51
v_add_f32 v52, v52, v53
v_add_f32 v54, v54, v55
v_add_f32 v48, v48, v50
v_add_f32 v52, v52, v54
v_add_f32 v48, v48, v52
s_mov_b32 s40, 0xf0f0f0f0
s_mov_b32 s41, 0
v_cndmask_b32 v48, v58, v48, s[40:41]
v_perm_b32 v48, v48, v47, v6
s_lshl_b32 s6, s12, 7
s_add_u32 s6, s6, {WS_ST}
v_lshlrev_b32 v6, 2, v1
s_mov_b32 exec_hi, 0""")
        self.mode_store('buffer_store_dword v48, v6, s[20:23], s6 offen', 's51')
        I('s_mov_b32 exec_hi, -1')
        I(f'{Ls}:')
        I(f"""v_and_b32 v5, 3, v3
v_lshlrev_b32 v5, 4, v5
v_lshlrev_b32 v6, 6, v2
v_add_u32 v5, v5, v6
v_add_u32 v5, {P_OFF}, v5""")
        for st in range(16):
            if st == 8: I('s_waitcnt lgkmcnt(0)')
            I(f'ds_read_b128 v[{64+4*st}:{67+4*st}], v5 offset:{st*256}')
        I(f"""v_lshrrev_b32 v5, 2, v3       ; r
v_and_b32 v6, 3, v3           ; c4
v_lshlrev_b32 v7, 2, v2
v_add_u32 v7, v7, v5          ; 4s + r
v_and_b32 v48, 7, v7          ; (4(s&1) + r)
v_xor_b32 v48, s8, v48
v_lshlrev_b32 v48, 5, v48
v_lshlrev_b32 v7, 8, v7
v_add_u32 v7, v7, v48
v_lshlrev_b32 v6, 3, v6
v_add_u32 v56, v7, v6
v_add_u32 v57, 0x10000, v56
v_add_u32 v59, 0x20000, v56""")
        I(f"""s_lshr_b32 s13, s5, 2         ; w'
s_and_b32 s14, s5, 3          ; cg
s_and_b32 s15, s8, 1
s_lshl_b32 s6, s15, 4
v_add_u32 v5, s6, v2          ; b*16 + tq
v_lshlrev_b32 v12, 4, v5
v_add_u32 v12, {WL}, v12
s_lshl_b32 s6, s4, 5
v_add_u32 v61, s6, v5         ; slot' (i = 0)
v_lshlrev_b32 v61, 11, v61
s_lshl_b32 s6, s13, 4
v_add_u32 v6, s6, v3
v_lshlrev_b32 v6, 4, v6
v_add_u32 v61, v61, v6
v_add_u32 v61, {WS_T1}, v61
v_lshrrev_b32 v6, 3, v3
v_lshlrev_b32 v6, 6, v6
v_bfe_u32 v7, v3, 2, 1
v_lshlrev_b32 v7, 3, v7       ; half*8
v_add_u32 v6, v6, v7
v_and_b32 v7, 3, v3
v_lshlrev_b32 v7, 4, v7       ; sA*16
v_add_u32 v6, v6, v7
v_lshlrev_b32 v7, 1, v2
v_add_u32 v6, v6, v7          ; + hh*2
s_lshl_b32 s6, s15, 7
s_add_u32 s6, s6, {A1}
v_add_u32 v60, s6, v6
s_lshl_b32 s6, s12, 11
s_lshl_b32 s7, s8, 8
s_add_u32 s6, s6, s7
s_add_u32 s6, s6, {WS_T1}
v_lshlrev_b32 v58, 4, v3
v_add_u32 v58, s6, v58
v_and_b32 v6, 1, v3
v_lshlrev_b32 v44, 1, v6
v_add_u32 v50, 0x07060500, v44
v_add_u32 v51, 1, v50
v_mov_b32 v49, s52               ; T
v_lshlrev_b32 v7, 6, v6
v_lshlrev_b32 v6, 7, v6
v_lshlrev_b32 v48, 4, v2
v_add_u32 v6, v6, v48
v_add_u32 v62, {A1}, v6
v_add_u32 v7, v7, v48
v_add_u32 v48, {A2}, v7
s_lshl_b32 s6, s14, 3
s_add_u32 s6, s6, s8
s_lshl_b32 s6, s6, 6
s_lshl_b32 s7, s4, 3
s_add_u32 s7, s7, s13
s_add_u32 s6, s6, s7
s_lshl_b32 s6, s6, 7
s_add_u32 s6, s6, {WS_T3}
v_lshlrev_b32 v63, 3, v3
v_add_u32 v63, s6, v63
v_mov_b32 v13, {CNT}
s_and_b32 s13, s2, 3          ; cg3
s_lshr_b32 s14, s2, 2         ; o8
s_lshl_b32 s6, s13, 3
s_add_u32 s6, s6, s14
s_lshl_b32 s6, s6, 13
s_lshl_b32 s7, s8, 5
s_add_u32 s6, s6, s7
s_add_u32 s6, s6, {WS_T3}
v_lshrrev_b32 v14, 1, v1
v_lshlrev_b32 v14, 7, v14
v_and_b32 v6, 1, v1
v_lshlrev_b32 v7, 4, v6
v_add_u32 v14, v14, v7
v_add_u32 v14, s6, v14
s_lshl_b32 s6, s13, 8
s_lshl_b32 s7, s14, 5
s_add_u32 s6, s6, s7
s_lshl_b32 s7, s8, 3
s_add_u32 s6, s6, s7
v_and_b32 v15, 1, v2
v_lshlrev_b32 v15, 10, v15
v_lshlrev_b32 v6, 2, v6
v_add_u32 v15, v15, v6
v_lshrrev_b32 v6, 1, v2
v_lshlrev_b32 v6, 1, v6
v_add_u32 v15, v15, v6
v_add_u32 v15, s6, v15
s_waitcnt lgkmcnt(0)""")
        Lsa = self.lab('sa')
        I(f"""s_mov_b32 s60, 0
s_cmp_lg_u32 s8, {p['sw']}
s_cbranch_scc1 {Lsa}""")
        self.lds_wait('v13', 'v5', C_H, 1, sleep=1)
        I(f"""v_mov_b32 v5, {GATE}
ds_read_b64 v[6:7], v5
s_mov_b32 s40, 0
s_mov_b32 s41, -1
v_lshrrev_b32 v5, 5, v1
v_lshlrev_b32 v5, 4, v5
v_add_u32 v5, v5, v3          ; b'*16 + t'
v_lshlrev_b32 v60, 4, v5
v_add_u32 v60, {WL}, v60
s_lshl_b32 s6, s4, 5
v_add_u32 v5, s6, v5          ; slot'
v_lshlrev_b32 v5, 7, v5
v_add_u32 v61, {WS_ST}, v5
s_waitcnt lgkmcnt(0)
v_cndmask_b32 v12, v6, v7, s[40:41]   ; g_b (b = lane>>5)
{Lsa}:""")
        if p['pre1']:
            Lp = self.lab('p1')
            I(f"""s_cmp_eq_u32 s51, 0
s_cbranch_scc1 {Lp}
v_not_b32 v16, v49
v_not_b32 v17, v49
v_not_b32 v18, v49
v_not_b32 v19, v49
s_mov_b64 exec, 0xffff
buffer_store_dwordx4 v[16:19], v58, s[20:23], 0 offen
s_mov_b64 exec, -1
{Lp}:""")
        if p['owarm']:
            Lo = self.lab('ow')
            I(f"""s_cmp_ge_u32 s2, 32
s_cbranch_scc1 {Lo}
s_cmp_gt_u32 s8, 3
s_cbranch_scc1 {Lo}
s_mov_b32 exec_lo, 0x00030003
s_mov_b32 exec_hi, 0x00030003""")
            if p['owarm'] == 1: I('v_mov_b32 v5, 0\nbuffer_store_short v5, v15, s[24:27], 0 offen')
            else: I('buffer_load_ushort v5, v15, s[24:27], 0 offen')
            I(f's_mov_b64 exec, -1\ns_waitcnt vmcnt(0)\n{Lo}:')
        self.stamp(5)
        self.lds_wait('v13', 'v5', C_A, 4, sleep=p['sla'])
        self.stamp(6)
        def vread(st, r):
            base = 'v56' if st < 8 else 'v57'
            o = (st & 7) * 8192
            I(f'ds_read_b64_tr_b16 v[{r}:{r+1}], {base} offset:{o}')
            I(f'ds_read_b64_tr_b16 v[{r+2}:{r+3}], {base} offset:{o+4096}')
        def vmfma(st, r):
            c = '0' if st == 0 else 'v[8:11]'
            I(f'v_mfma_f32_16x16x32_bf16 v[8:11], v[{64+4*st}:{67+4*st}], v[{r}:{r+3}], {c}')
        na = p['na']
        batches = []
        st = 0
        while st < na:
            b = list(range(st, min(st + 4, na))); batches.append(b); st += len(b)
        sets = (16, 32)
        for k, b in enumerate(batches):
            if k == 0:
                for j, st in enumerate(b): vread(st, sets[0] + 4*j)
            I('s_waitcnt lgkmcnt(0)')
            if k + 1 < len(batches):
                for j, st in enumerate(batches[k+1]): vread(st, sets[(k+1) & 1] + 4*j)
            for j, st in enumerate(b): vmfma(st, sets[k & 1] + 4*j)
            if k == 0:
                Lq = self.lab('nsl')
                I(f"s_cmp_lg_u32 s8, {p['sw']}\ns_cbranch_scc1 {Lq}")
                self.stats_loads()
                I(f'{Lq}:')
        I('s_barrier')
        self.stamp(7)
        rest = list(range(na, 16))
        for j, st in enumerate(rest): vread(st, 16 + 4*j)
        for j, st in enumerate(rest):
            I(f's_waitcnt lgkmcnt({2*(len(rest)-1-j)})')
            vmfma(st, 16 + 4*j)
        for e in range(4): I(f'v_perm_b32 v{8+e}, v{8+e}, v49, s{53+e}')
        I('s_mov_b64 exec, 0xffff')
        self.mode_store('buffer_store_dwordx4 v[8:11], v58, s[20:23], 0 offen', 's51')
        I('s_mov_b64 exec, -1')
        I('ds_read_b128 v[52:55], v48')
        self.stamp(8)
        Lns = self.lab('nsw'); Lw = self.lab('sw'); Lr = self.lab('swr')
        I(f"""s_cmp_lg_u32 s8, {p['sw']}
s_cbranch_scc1 {Lns}
s_waitcnt vmcnt(1)""")
        self.stats_check()
        I(f"""v_cmp_ne_u32 vcc, 0, v5
s_cbranch_vccz {Lw}
{Lr}:""")
        self.stats_loads()
        I('s_add_u32 s48, s48, 1\ns_waitcnt vmcnt(0)')
        self.stats_check()
        self.poll_tail(Lr, Lw, 'v5', p['sls'])
        I(f"""s_branch {Lr}
{Lw}:""")
        self.untag(range(64, 72))
        for h in range(4): I(f'v_mov_b32 v{72+h}, v{64+h}')
        for rr in (8, 4, 2, 1):
            for h in range(4): I(f'v_max_f32_dpp v{72+h}, v{72+h}, v{72+h} row_ror:{rr} row_mask:0xf bank_mask:0xf')
        for h in range(4): I(f'v_sub_f32 v{64+h}, v{64+h}, v{72+h}')
        for h in range(4): I(f'v_exp_f32 v{64+h}, v{64+h}')
        for h in range(4): I(f'v_mul_f32 v{68+h}, v{68+h}, v{64+h}')
        for rr in (8, 4, 2, 1):
            for h in range(4): I(f'v_add_f32_dpp v{68+h}, v{68+h}, v{68+h} row_ror:{rr} row_mask:0xf bank_mask:0xf')
        for h in range(4): I(f'v_rcp_f32 v{68+h}, v{68+h}')
        for h in range(4): I(f'v_mul_f32 v{64+h}, v{64+h}, v12')
        for h in range(4): I(f'v_mul_f32 v{64+h}, v{64+h}, v{68+h}')
        I('ds_write_b128 v60, v[64:67]\nv_mov_b32 v5, 1')
        self.signal('v13', 'v5', C_W)
        I(f'{Lns}:')
        Lng = self.lab('nog')
        I(f"""s_cmp_gt_u32 s8, 1
s_cbranch_scc1 {Lng}""")
        I(f's_mov_b32 s6, {4*2048}\ns_mov_b32 s7, {8*2048}\ns_mov_b32 s9, {12*2048}')
        T2B = (64, 96, 112)
        NS2 = p['t2sets']
        def t2issue(k):
            for i, so in enumerate(('0', 's6', 's7', 's9')):
                r = T2B[k] + 4*i
                I(f'buffer_load_dwordx4 v[{r}:{r+3}], v61, s[20:23], {so} offen{SC}')
        if p['t2wait']: I('s_waitcnt vmcnt(0)')
        t2issue(0)
        self.lds_wait('v13', 'v5', C_W, 1, sleep=0)
        for i in range(4): I(f'ds_read_b128 v[{80+4*i}:{83+4*i}], v12 offset:{i*64}')
        for k in range(1, NS2):
            if p['t2st']: I(f"s_sleep {p['t2st']}")
            t2issue(k)
        L = self.lab('t2'); Dn = self.lab('t2d')
        if p['t2mask']:
            Lh = self.lab('t2m')
            I(f'{L}:\ns_waitcnt vmcnt(0)')
            for i in range(4):
                self.tag_acc(64 + 4*i, True)
                I(f'v_cmp_ne_u32 s[{40+2*i}:{41+2*i}], 0, v16')
            I(f"""s_or_b64 vcc, s[40:41], s[42:43]
s_or_b64 s[36:37], s[44:45], s[46:47]
s_or_b64 vcc, vcc, s[36:37]
s_cbranch_scc0 {Lh}
s_add_u32 s48, s48, 1
s_cmp_gt_u32 s48, {self.glim}
s_cbranch_scc1 {Lh}""")
            if p['sl2']: I(f"s_sleep {p['sl2']}")
            for i, so in enumerate(('0', 's6', 's7', 's9')):
                La = self.lab('t2s')
                I(f"""s_mov_b64 exec, s[{40+2*i}:{41+2*i}]
s_cbranch_execz {La}
buffer_load_dwordx4 v[{64+4*i}:{67+4*i}], v61, s[20:23], {so} offen{SC}
{La}:""")
            I(f's_mov_b64 exec, -1\ns_branch {L}\n{Lh}:\ns_waitcnt lgkmcnt(0)')
            self.untag(range(64, 80))
            for h in range(4): I(f'v_mul_f32 v{16+h}, v{64+h}, v{80+h}')
            for i in range(1, 4):
                for h in range(4): I(f'v_fmac_f32 v{16+h}, v{64+4*i+h}, v{80+4*i+h}')
            NS2 = 0
        if NS2: I(f'{L}:')
        hits = []
        for k in range(NS2):
            for i in range(4):
                I(f's_waitcnt vmcnt({4*(NS2-1) + 3-i})')
                self.tag_acc(T2B[k] + 4*i, i == 0)
            H = self.lab('t2h'); hits.append((H, T2B[k]))
            I(f"""v_cmp_ne_u32 vcc, 0, v16
s_cbranch_vccz {H}""")
            if p['sl2']: I(f"s_sleep {p['sl2']}")
            t2issue(k)
        if NS2: I(f"""s_add_u32 s48, s48, 1
s_cmp_le_u32 s48, {self.glim}
s_cbranch_scc1 {L}""")
        for j, (H, r) in enumerate(hits):
            I(f'{H}:')
            self.untag(range(r, r + 16))
            I('s_waitcnt lgkmcnt(0)')
            for h in range(4): I(f'v_mul_f32 v{16+h}, v{r+h}, v{80+h}')
            for i in range(1, 4):
                for h in range(4): I(f'v_fmac_f32 v{16+h}, v{r+4*i+h}, v{80+4*i+h}')
            if j + 1 < len(hits): I(f's_branch {Dn}')
        I(f'{Dn}:')
        self.stamp(9)
        I("""v_permlane16_swap_b32 v16, v17
v_permlane16_swap_b32 v18, v19
v_add_f32 v16, v16, v17
v_add_f32 v18, v18, v19
v_permlane32_swap_b32 v16, v18
v_add_f32 v16, v16, v18
v_cvt_pk_bf16_f32 v16, v16, v16
ds_write_b16 v60, v16
s_waitcnt lgkmcnt(0)""")
        I(f"""{Lng}:
s_barrier""")
        self.stamp(10)
        I("""ds_read_b64_tr_b16 v[16:17], v59 offset:16384
ds_read_b64_tr_b16 v[18:19], v59 offset:20480
ds_read_b128 v[32:35], v62
ds_read_b64_tr_b16 v[20:21], v59
ds_read_b64_tr_b16 v[22:23], v59 offset:4096
ds_read_b128 v[36:39], v62 offset:64
ds_read_b64_tr_b16 v[24:25], v59 offset:8192
ds_read_b64_tr_b16 v[26:27], v59 offset:12288
s_waitcnt lgkmcnt(6)
v_mfma_f32_16x16x32_bf16 v[8:11], v[52:55], v[16:19], 0
s_waitcnt lgkmcnt(3)
v_mfma_f32_16x16x32_bf16 v[8:11], v[32:35], v[20:23], v[8:11]
s_waitcnt lgkmcnt(0)
v_mfma_f32_16x16x32_bf16 v[8:11], v[36:39], v[24:27], v[8:11]""")
        I(f"""v_perm_b32 v8, v8, v49, v50
v_perm_b32 v9, v9, v49, v51
s_mov_b64 exec, 0xffff
buffer_store_dwordx2 v[8:9], v63, s[20:23], 0 offen{(SC, ' sc0 sc1')[p['t3stf']]}
s_mov_b64 exec, -1""")
        self.stamp(11)
        Lend = 'L_CW_end'
        I(f"""s_cmp_ge_u32 s2, 32
s_cbranch_scc1 {Lend}
s_cmp_gt_u32 s8, 3
s_cbranch_scc1 {Lend}
s_mov_b32 s7, 4096""")
        NS = p['t3sets']
        L = self.lab('t3'); Dn = self.lab('t3d')
        def issue(k):
            r = 64 + 8*k
            fl = (SC, ' sc0 sc1', ' sc1 nt', ' sc0 sc1 nt')[p['t3ld']]
            I(f'buffer_load_dwordx4 v[{r}:{r+3}], v14, s[20:23], 0 offen{fl}')
            I(f'buffer_load_dwordx4 v[{r+4}:{r+7}], v14, s[20:23], s7 offen{fl}')
        if p['t3wait']: I('s_waitcnt vmcnt(0)')
        if p['t3delay']: I(f"s_sleep {p['t3delay']}")
        self.stamp(13)
        if p['stamps'] and not p['light']: I('s_mov_b32 s59, s48')
        if p['t3mask']:
            fl = (SC, ' sc0 sc1', ' sc1 nt', ' sc0 sc1 nt')[p['t3ld']]
            issue(0)
            La = self.lab('t3a'); Lb = self.lab('t3b'); Lh = self.lab('t3m')
            I(f'{L}:\ns_waitcnt vmcnt(0)')
            self.tag_acc(64, True)
            I('v_cmp_ne_u32 s[40:41], 0, v16')
            self.tag_acc(68, True)
            I(f"""v_cmp_ne_u32 s[42:43], 0, v16
s_or_b64 s[44:45], s[40:41], s[42:43]
s_cbranch_scc0 {Lh}
s_add_u32 s48, s48, 1
s_cmp_gt_u32 s48, {self.glim}
s_cbranch_scc1 {Lh}""")
            if p['sl3']: I(f"s_sleep {p['sl3']}")
            I(f"""s_mov_b64 exec, s[40:41]
s_cbranch_execz {La}
buffer_load_dwordx4 v[64:67], v14, s[20:23], 0 offen{fl}
{La}:
s_mov_b64 exec, s[42:43]
s_cbranch_execz {Lb}
buffer_load_dwordx4 v[68:71], v14, s[20:23], s7 offen{fl}
{Lb}:
s_mov_b64 exec, -1
s_branch {L}
{Lh}:""")
            self.untag(range(64, 72))
            for e in range(4): I(f'v_add_f32 v{20+e}, v{64+e}, v{68+e}')
            NS = 0
        for k in range(NS):
            issue(k)
            if k + 1 < NS and p['t3st']: I(f"s_sleep {p['t3st']}")
        if NS: I(f'{L}:')
        hits = []
        for k in range(NS):
            r = 64 + 8*k
            I(f's_waitcnt vmcnt({2*(NS-1)})')
            self.tag_acc(r, True)
            self.tag_acc(r + 4, False)
            H = self.lab('t3h'); hits.append((H, r))
            I(f"""v_cmp_ne_u32 vcc, 0, v16
s_cbranch_vccz {H}""")
            issue(k)
        if NS: I(f"""s_add_u32 s48, s48, 1
s_cmp_le_u32 s48, {self.glim}
s_cbranch_scc1 {L}""")
        for j, (H, r) in enumerate(hits):
            I(f'{H}:')
            self.untag(range(r, r + 8))
            for e in range(4): I(f'v_add_f32 v{20+e}, v{r+e}, v{r+4+e}')
            if j + 1 < len(hits): I(f's_branch {Dn}')
        I(f'{Dn}:')
        if p['stamps'] and not p['light']:
            I('s_sub_u32 s92, s48, s59\ns_add_u32 s92, s92, 1')
            self.stamp(15)
        I("""v_permlane16_swap_b32 v20, v21
v_permlane16_swap_b32 v22, v23
v_add_f32 v20, v20, v21
v_add_f32 v22, v22, v23
v_permlane32_swap_b32 v20, v22
v_add_f32 v20, v20, v22""")
        for rr in (2, 4, 8):
            I(f'v_add_f32_dpp v20, v20, v20 row_ror:{rr} row_mask:0xf bank_mask:0xf')
        I(f"""v_cvt_pk_bf16_f32 v20, v20, v20
s_mov_b32 exec_lo, 0x00030003
s_mov_b32 exec_hi, 0x00030003
buffer_store_short v20, v15, s[24:27], 0 offen
s_mov_b64 exec, -1""")
        I(f"""s_cmp_lg_u32 s2, 0
s_cbranch_scc1 L_CW_noe
s_cmp_lg_u32 s8, 0
s_cbranch_scc1 L_CW_noe
v_mov_b32 v5, {WS_E}
s_mov_b64 exec, 1
buffer_store_dword v49, v5, s[20:23], 0 offen{SC}
s_mov_b64 exec, -1
L_CW_noe:""")
        self.stamp(12)
        I(f'{Lend}:')
        self.stamp_dump('s[20:23]', 16)
        I('s_endpgm')

    def build(self):
        I = self.I
        I('''s_cmp_ge_u32 s2, 256
s_cbranch_scc1 L_exit''')
        if self.p['stamps']:
            for i in range(16): I(f's_mov_b32 s{64+2*i}, 0')
            self.stamp(0)
        I(f'''v_lshrrev_b32 v1, 6, v0
s_and_b32 s4, s2, 7
s_lshr_b32 s5, s2, 3
s_mov_b32 s48, 0
v_readfirstlane_b32 s3, v1
s_cmp_ge_u32 s3, {W_L0}
s_cbranch_scc1 L_LD
s_cmp_ge_u32 s3, {W_C0}
s_cbranch_scc1 L_CW
s_cmp_eq_u32 s3, {W_J1}
s_cbranch_scc1 L_J1''')
        self.role_j0()
        self.role_j1()
        self.role_compute()
        self.role_loader()
        I('L_exit:\ns_endpgm\nL_codeend:')
        head = f'''; Fused decode step: GQA attention over the KV cache + SwiGLU FFN + sigmoid-gated mix (gfx950).
;
;
; @launch grid=(256,1,1) block=(896,1,1) lds={LDS_BYTES}
.amdgcn_target "amdgcn-amd-amdhsa--gfx950"
.text
.globl {KNAME}
.p2align 8
.type {KNAME},@function
{KNAME}:
'''
        foot = f'''.section .rodata,"a"
.p2align 6
.amdhsa_kernel {KNAME}
  .amdhsa_next_free_vgpr 128
  .amdhsa_next_free_sgpr 102
  .amdhsa_accum_offset 128
  .amdhsa_group_segment_fixed_size 0
  .amdhsa_kernarg_size 104
  .amdhsa_user_sgpr_count 2
  .amdhsa_user_sgpr_kernarg_segment_ptr 1
  .amdhsa_system_sgpr_workgroup_id_x 1
.end_amdhsa_kernel
'''
        return head + self.a.text() + foot

def main():
    out = sys.argv[1]
    kw = {}
    for arg in sys.argv[2:]:
        k, v = arg.split('=')
        assert k in DEF or k in ('pfn',), k
        kw[k] = (v == 'True') if v in ('True', 'False') else int(v)
    open(out, 'w').write(G(**kw).build())

if __name__ == '__main__':
    main()
```

```python
import sys, math, struct
from emit import Asm

def fhex(x): return '0x%08x' % struct.unpack('<I', struct.pack('<f', x))[0]
KNAME = 'gated_mix__gqa_block_cached__swiglu_ffn__decode_kernel'

WS_Q  = 0x000000
WS_F  = 0x020000
WS_ID = 0x030000
COPYB = 0x040000
WS_ST = 0x080000
WS_E  = 0x088000
WS_T1 = 0x100000
WS_T3 = 0x180000
WS_DBG = 0x200000
WS_SIZE = 0x400000

V_OFF = 0
STG0 = 0
STG1 = 16384
WO_OFF = 131072
WD_OFF = 147456
P_OFF = 155648
Q_OFF = 159744
MISC = 160768
MX = MISC
LX = MISC + 128
A1 = MISC + 256
A2 = MISC + 512
GATE = MISC + 640
CNT = MISC + 704
WL = MISC + 1024
C_Q, C_H, C_K, C_1, C_2, C_A, C_M, C_W, C_T = 0, 4, 8, 12, 16, 20, 24, 28, 32
LDS_BYTES = 163840

SPIN_LIMIT = 300000
SC = ' sc1'
W_J0, W_J1, W_C0, W_L0 = 0, 1, 2, 10

DEF = dict(nt_k=True, nt_v=True, nt_w=True, dk=4, dv=6, dv2=4, dvn=0, stamps=False, na=14, ksig=0, kthr=4,
           slq=2, slf=2, sls=2, sl2=0, sl3=0, pf=False, na_polls=10, force_remote=False, nopoll=False,
           t3sets=1, t3st=4, tlb=True, sw=2, t3delay=0, t3ld=0, t3stf=0, x_nob=False, qdelay=0,
           x_stream=False, rka=1, rkb=3, rkc=0, x_start=False, t2sets=1, t2st=3, wpos=32, wsplit=6, light=False, t3mask=True, t3wait=True, t2wait=False, t2mask=False, prio_ld=0, prio_j=0, sla=1, slk=2, rcb=1, rcc=0, owarm=0, pre1=False, pre3=False, x_dirty=0, locf=0, x_dbg=False)

class G:
    def __init__(self, **kw):
        self.p = dict(DEF); self.p.update(kw)
        self.a = Asm()
        self.uid = 0
        self.glim = 0 if self.p['nopoll'] else SPIN_LIMIT
    def I(self, s): self.a.I(s)
    def lab(self, base):
        self.uid += 1
        return f'L_{base}_{self.uid}'
    def stamp(self, i):
        if self.p['stamps'] and (not self.p['light'] or i in (0, 12)):
            self.I(f's_memrealtime s[{64+2*i}:{65+2*i}]')
            self.I('s_waitcnt lgkmcnt(0)')
    def stamp_dump(self, srd, n=12):
        if not self.p['stamps']: return
        I = self.I
        I('s_mov_b64 exec, -1')
        I('s_lshl_b32 s6, s2, 4')
        I('s_add_u32 s6, s6, s3')
        I('s_lshl_b32 s6, s6, 6')
        I(f's_add_u32 s6, s6, {WS_DBG}')
        I('v_mov_b32 v1, s6')
        I('s_mov_b64 exec, 1')
        for j in range(0, n, 4):
            for t in range(4):
                I(f'v_mov_b32 v{4+t}, s{64+2*(j+t)}')
            I(f'buffer_store_dwordx4 v[4:7], v1, {srd}, 0 offen offset:{j*4}')
        I('s_mov_b64 exec, -1')
    def signal(self, vC, vOne, off):
        self.I(f'''s_mov_b64 exec, 1
ds_add_u32 {vC}, {vOne} offset:{off}
s_mov_b64 exec, -1''')
    def lds_wait(self, vC, vT, off, n, sleep=1):
        L = self.lab('lw'); D = self.lab('lwd')
        self.I(f'''{L}:
ds_read_b32 {vT}, {vC} offset:{off}
s_add_u32 s48, s48, 1
s_waitcnt lgkmcnt(0)
v_readfirstlane_b32 s49, {vT}
s_cmp_ge_u32 s49, {n}
s_cbranch_scc1 {D}
s_cmp_gt_u32 s48, {SPIN_LIMIT}
s_cbranch_scc1 {D}''')
        if sleep: self.I(f's_sleep {sleep}')
        self.I(f'''s_branch {L}
{D}:''')
    def tag_load(self, wsbase):
        self.I(f's_load_dword s52, s[{wsbase}:{wsbase+1}], {WS_E}')
        for i in range(4): self.I(f's_mov_b32 s{53+i}, 0x0706050{i}')
        self.I('s_mov_b32 s57, 0x0c0c0400\ns_mov_b32 s58, 0x04000c0c\ns_mov_b32 s63, 0xffffff00')
    def untag(self, regs):
        for r in regs: self.I(f'v_and_b32 v{r}, s63, v{r}')
    def tag_ready(self):
        self.I('s_waitcnt lgkmcnt(0)\ns_add_u32 s52, s52, 1')
    def tag_acc(self, r, first, acc='v16', t1='v17', t2='v18', t3='v19'):
        self.I(f'v_perm_b32 {t2}, v{r+1}, v{r}, s57\nv_perm_b32 {t3}, v{r+3}, v{r+2}, s58\nv_or_b32 {t2}, {t2}, {t3}')
        if first: self.I(f'v_xor_b32 {acc}, s52, {t2}')
        else: self.I(f'v_xor_b32 {t1}, s52, {t2}\nv_or_b32 {acc}, {acc}, {t1}')
    def poll_tail(self, L, D, acc, sleep):
        self.I(f'''v_cmp_ne_u32 vcc, 0, {acc}
s_cbranch_vccz {D}
s_cmp_gt_u32 s48, {self.glim}
s_cbranch_scc1 {D}''')
        if sleep: self.I(f's_sleep {sleep}')
    def srd(self, base, karg_off, size):
        self.I(f's_load_dwordx2 s[{base}:{base+1}], s[0:1], {karg_off}')
        self.I(f's_mov_b32 s{base+2}, {size}')
        self.I(f's_mov_b32 s{base+3}, 0x20000')
    def stats_loads(self):
        self.I(f"""buffer_load_dwordx4 v[64:67], v61, s[20:23], 0 offen{SC}
buffer_load_dwordx4 v[68:71], v61, s[20:23], 0 offen offset:16{SC}""")
    def stats_check(self):
        self.tag_acc(64, True, 'v5', 'v6', 'v7', 'v4')
        self.tag_acc(68, False, 'v5', 'v6', 'v7', 'v4')
    def lane_setup(self):
        self.I('''v_and_b32 v1, 63, v0
v_lshrrev_b32 v2, 4, v1
v_and_b32 v3, 15, v1''')
    def mode_store(self, ins, smode):
        Lr = self.lab('ms'); Le = self.lab('mse')
        self.I(f'''s_cmp_eq_u32 {smode}, 0
s_cbranch_scc1 {Lr}
{ins}{('', ' nt', ' sc0', ' sc0 nt')[self.p['locf']]}
s_branch {Le}
{Lr}:
{ins}{SC}
{Le}:''')

    def qtile_issue(self, srdW, srdX, sBase, sKs):
        I = self.I; pitch = 8192; stg = STG0
        ntf = ' nt' if self.p['nt_w'] else ''
        I(f'''v_lshrrev_b32 v4, 5, v1
v_lshlrev_b32 v4, 3, v4
v_bfe_u32 v5, v1, 3, 2
v_add_u32 v4, v4, v5
v_mul_u32_u24 v4, {pitch}, v4
v_and_b32 v5, 7, v1
v_bfe_u32 v6, v1, 4, 2
v_lshlrev_b32 v6, 1, v6
v_xor_b32 v5, v5, v6
v_lshlrev_b32 v5, 4, v5
v_add_u32 v4, v4, v5''')
        for i in range(16):
            rowi = 32*(i >> 2) + 16*(i & 1) + 4*((i >> 1) & 1)
            I(f's_mov_b32 m0, {stg + i*1024}')
            I(f's_add_u32 s7, {sBase}, {rowi*pitch}')
            I(f'buffer_load_dwordx4 v4, {srdW}, s7 offen{ntf} lds')
        I(f'''v_and_b32 v5, 1, v3
v_lshlrev_b32 v5, 10, v5
v_lshlrev_b32 v6, 4, v2
v_add_u32 v5, v5, v6
s_lshl_b32 s6, {sKs}, 8
v_add_u32 v5, s6, v5''')
        for kk in range(4):
            I(f'buffer_load_dwordx4 v[{8+4*kk}:{11+4*kk}], v5, {srdX}, 0 offen offset:{kk*64}')
        I(f'''v_lshrrev_b32 v6, 2, v3
v_and_b32 v7, 3, v3
v_lshlrev_b32 v28, 2, v2
v_add_u32 v28, v28, v6
v_lshlrev_b32 v28, 7, v28
v_lshlrev_b32 v7, 3, v7
v_add_u32 v28, v28, v7
v_add_u32 v28, {stg}, v28
v_lshlrev_b32 v29, 1, v2
v_lshrrev_b32 v6, 1, v6
v_add_u32 v29, v29, v6
v_and_b32 v29, 3, v29''')
        for nt_ in range(4):
            I(f'''v_xor_b32 v6, {nt_}, v29
v_lshlrev_b32 v6, 5, v6
v_add_u32 v{24+nt_}, v28, v6''')
    def qtile_compute(self):
        I = self.I
        def reads(kk, setb):
            for nt_ in range(4):
                for hf in range(2):
                    r = setb + 4*nt_ + 2*hf
                    I(f'ds_read_b64_tr_b16 v[{r}:{r+1}], v{24+nt_} offset:{kk*4096 + hf*2048}')
        def mf(kk, setb):
            for nt_ in range(4):
                c = '0' if kk == 0 else f'v[{64+4*nt_}:{67+4*nt_}]'
                I(f'v_mfma_f32_16x16x32_bf16 v[{64+4*nt_}:{67+4*nt_}], v[{8+4*kk}:{11+4*kk}], v[{setb+4*nt_}:{setb+4*nt_+3}], {c}')
        sets = (32, 48)
        reads(0, sets[0])
        for kk in range(4):
            I('s_waitcnt lgkmcnt(0)')
            if kk < 3: reads(kk+1, sets[(kk+1) & 1])
            mf(kk, sets[kk & 1])
        I('''s_mov_b32 s40, 0xffff0000
s_mov_b32 s41, 0
s_mov_b32 s42, 0
s_mov_b32 s43, 0x0000ffff
s_mov_b32 s44, 0
s_mov_b32 s45, 0xffff0000''')
        for b in range(2):
            I(f'''v_cndmask_b32 v{40+b}, v{64+b}, v{68+b}, s[40:41]
v_cndmask_b32 v{40+b}, v{40+b}, v{72+b}, s[42:43]
v_cndmask_b32 v{40+b}, v{40+b}, v{76+b}, s[44:45]''')

    def ftile_issue(self, srdW, srdX, sBase, sKs):
        I = self.I; pitch = 3584; stg = STG1
        ntf = ' nt' if self.p['nt_w'] else ''
        I(f'''v_lshrrev_b32 v4, 4, v1
v_lshlrev_b32 v4, 3, v4
v_bfe_u32 v5, v1, 2, 2
v_add_u32 v4, v4, v5
v_mul_u32_u24 v4, {pitch}, v4
v_and_b32 v5, 3, v1
v_bfe_u32 v6, v1, 4, 1
v_lshlrev_b32 v6, 1, v6
v_xor_b32 v5, v5, v6
v_lshlrev_b32 v5, 4, v5
v_add_u32 v4, v4, v5''')
        for i in range(16):
            rowi = 32*(i >> 1) + 4*(i & 1)
            I(f's_mov_b32 m0, {stg + i*1024}')
            I(f's_add_u32 s7, {sBase}, {rowi*pitch}')
            I(f'buffer_load_dwordx4 v4, {srdW}, s7 offen{ntf} lds')
        I(f'''v_and_b32 v5, 1, v3
v_lshlrev_b32 v5, 10, v5
v_lshlrev_b32 v6, 4, v2
v_add_u32 v5, v5, v6
s_lshl_b32 s6, {sKs}, 9
v_add_u32 v5, s6, v5''')
        for kk in range(8):
            I(f'buffer_load_dwordx4 v[{96+4*kk}:{99+4*kk}], v5, {srdX}, 0 offen offset:{kk*64}')
        I(f'''v_lshrrev_b32 v6, 2, v3
v_and_b32 v7, 3, v3
v_lshlrev_b32 v28, 2, v2
v_add_u32 v28, v28, v6
v_lshlrev_b32 v28, 6, v28
v_lshlrev_b32 v7, 3, v7
v_add_u32 v28, v28, v7
v_add_u32 v28, {stg}, v28
v_and_b32 v29, 1, v2
v_lshlrev_b32 v6, 5, v29
v_add_u32 v24, v28, v6
v_xor_b32 v6, 1, v29
v_lshlrev_b32 v6, 5, v6
v_add_u32 v25, v28, v6''')
    def ftile_compute(self):
        I = self.I
        def reads(k2, setb):
            for kq in range(2):
                kk = 2*k2 + kq
                for nt_ in range(2):
                    for hf in range(2):
                        r = setb + 8*kq + 4*nt_ + 2*hf
                        I(f'ds_read_b64_tr_b16 v[{r}:{r+1}], v{24+nt_} offset:{kk*2048 + hf*1024}')
        def mf(k2, setb):
            for kq in range(2):
                kk = 2*k2 + kq
                for nt_ in range(2):
                    c = '0' if kk == 0 else f'v[{64+4*nt_}:{67+4*nt_}]'
                    r = setb + 8*kq + 4*nt_
                    I(f'v_mfma_f32_16x16x32_bf16 v[{64+4*nt_}:{67+4*nt_}], v[{96+4*kk}:{99+4*kk}], v[{r}:{r+3}], {c}')
        sets = (32, 48)
        reads(0, sets[0])
        for k2 in range(4):
            I('s_waitcnt lgkmcnt(0)')
            if k2 < 3: reads(k2+1, sets[(k2+1) & 1])
            mf(k2, sets[k2 & 1])
        I('''s_mov_b32 s40, 0xffff0000
s_mov_b32 s41, 0
s_mov_b32 s42, 0
s_mov_b32 s43, 0x0000ffff
s_mov_b32 s44, 0
s_mov_b32 s45, 0xffff0000
v_cndmask_b32 v40, v64, v68, s[40:41]
v_cndmask_b32 v40, v40, v65, s[42:43]
v_cndmask_b32 v40, v40, v69, s[44:45]''')

    def role_j0(self):
        I = self.I; p = self.p
        LF = ('', ' nt', ' sc0', ' sc0 nt')[p['locf']]
        I('L_J0:')
        if p['prio_j']: I(f"s_setprio {p['prio_j']}")
        self.srd(16, 24, 0x400000)
        self.srd(20, 0, 2048)
        self.srd(24, 96, WS_SIZE)
        I('s_barrier')
        if p['x_stream']: I('s_endpgm')
        self.lane_setup()
        I(f"""s_lshr_b32 s8, s5, 2          ; qcl
s_and_b32 s9, s5, 3           ; ks
s_mul_i32 s10, s9, 128*8192
s_lshl_b32 s6, s4, 10
s_add_u32 s10, s10, s6
s_lshl_b32 s6, s8, 7
s_add_u32 s10, s10, s6
s_getreg_b32 s12, hwreg(HW_REG_XCC_ID, 0, 4)
v_mov_b32 v90, {CNT}
v_mov_b32 v91, 1
s_waitcnt lgkmcnt(0)""")
        self.qtile_issue('s[16:19]', 's[20:23]', 's10', 's9')
        self.tag_load(24)
        I("""v_and_b32 v81, 3, v1
v_add_u32 v81, 0x07060500, v81
s_lshl_b32 s13, s12, 8
v_mov_b32 v82, s13""")
        if p['pre3']:
            self.tag_ready()
            I(f"""s_not_b32 s6, s52
v_mov_b32 v83, s6
s_lshl_b32 s6, s4, 3
s_add_u32 s6, s6, s9
s_lshl_b32 s6, s6, 11
s_lshl_b32 s7, s8, 8
s_add_u32 s6, s6, s7
v_lshlrev_b32 v84, 2, v1
v_add_u32 v85, s6, v84
v_add_u32 v86, {4*2048}, v85
s_lshl_b32 s6, s4, 5
s_add_u32 s6, s6, s5
s_lshl_b32 s6, s6, 7
s_add_u32 s6, s6, {WS_ID}
v_add_u32 v87, s6, v84
buffer_store_dword v83, v85, s[24:27], 0 offen
buffer_store_dword v83, v86, s[24:27], 0 offen
s_mov_b32 exec_hi, 0
buffer_store_dword v83, v87, s[24:27], 0 offen
s_mov_b32 exec_hi, -1""")
        self.stamp(1)
        I('s_waitcnt vmcnt(0)')
        if not p['pre3']: self.tag_ready()
        I('v_mov_b32 v80, s52')
        self.stamp(2)
        self.qtile_compute()
        self.signal('v90', 'v91', C_T)
        I(f"""v_perm_b32 v40, v40, v80, v81
v_perm_b32 v41, v41, v80, v81
v_perm_b32 v82, v82, v80, v81
s_lshl_b32 s6, s4, 3
s_add_u32 s6, s6, s9
s_lshl_b32 s6, s6, 11         ; (g*8 + ks)*2048
s_lshl_b32 s7, s8, 8
s_add_u32 s6, s6, s7
v_lshlrev_b32 v4, 2, v1
v_add_u32 v5, s6, v4
v_add_u32 v6, {4*2048}, v5
s_lshl_b32 s6, s4, 5
s_add_u32 s6, s6, s5
s_lshl_b32 s6, s6, 7
s_add_u32 s6, s6, {WS_ID}
v_add_u32 v7, s6, v4
s_mov_b32 s14, {COPYB}
buffer_store_dword v40, v5, s[24:27], 0 offen{LF}
buffer_store_dword v41, v6, s[24:27], 0 offen{LF}
s_mov_b32 exec_hi, 0
buffer_store_dword v82, v7, s[24:27], 0 offen{LF}
s_mov_b32 exec_hi, -1
""")
        if not p['x_nob']:
            I(f"""buffer_store_dword v40, v5, s[24:27], s14 offen{SC}
buffer_store_dword v41, v6, s[24:27], s14 offen{SC}
s_mov_b32 exec_hi, 0
buffer_store_dword v82, v7, s[24:27], s14 offen{SC}
s_mov_b32 exec_hi, -1""")
        if p['qdelay']: I(f"s_sleep {p['qdelay']}")
        self.stamp(3)
        I(f"""s_lshl_b32 s6, s4, 1
s_lshr_b32 s7, s5, 4          ; b
s_add_u32 s6, s6, s7
s_lshl_b32 s6, s6, 13
v_lshlrev_b32 v4, 4, v1
v_add_u32 v4, s6, v4
v_and_b32 v5, 31, v1
v_lshlrev_b32 v5, 7, v5
s_lshl_b32 s6, s4, 12
s_add_u32 s6, s6, {WS_ID}
v_add_u32 v5, s6, v5
s_mov_b32 s15, {COPYB if p['force_remote'] else 0}
s_mov_b32 s11, 0""")
        L = self.lab('qg'); D = self.lab('qgd'); Lk = self.lab('qgk')
        I(f'{L}:')
        for ks in range(4):
            I(f's_add_u32 s7, s15, {ks*2048}')
            for i in range(2):
                r = 8 + 8*ks + 4*i
                I(f'buffer_load_dwordx4 v[{r}:{r+3}], v4, s[24:27], s7 offen offset:{i*1024}{SC}')
        I(f'buffer_load_dwordx4 v[40:43], v5, s[24:27], s15 offen{SC}')
        I('s_add_u32 s48, s48, 1\ns_add_u32 s11, s11, 1\ns_waitcnt vmcnt(0)')
        for j in range(9):
            self.tag_acc(8 + 4*j, j == 0, 'v44', 'v45', 'v46', 'v47')
        self.poll_tail(L, D, 'v44', p['slq'])
        if not p['force_remote']:
            I(f"""s_cmp_lt_u32 s11, {p['na_polls']}
s_cbranch_scc1 {L}
s_xor_b32 s15, s15, {COPYB}""")
        I(f"""s_branch {L}
{D}:""")
        self.stamp(5)
        I(f"""v_bfe_u32 v40, v40, 8, 4
v_cmp_ne_u32 vcc, s12, v40
s_cmp_eq_u64 vcc, 0
s_cselect_b32 s6, {0 if p['force_remote'] else 1}, 0
v_mov_b32 v44, s6
s_mov_b64 exec, 1
ds_write_b32 v90, v44 offset:{C_M}
s_mov_b64 exec, -1""")
        self.untag(range(8, 40))
        for e in range(8):
            I(f'v_add_f32 v{8+e}, v{8+e}, v{16+e}')
            I(f'v_add_f32 v{24+e}, v{24+e}, v{32+e}')
        for e in range(8):
            I(f'v_add_f32 v{8+e}, v{8+e}, v{24+e}')
        I(f"""v_cvt_pk_bf16_f32 v40, v8, v9
v_cvt_pk_bf16_f32 v41, v10, v11
v_cvt_pk_bf16_f32 v42, v12, v13
v_cvt_pk_bf16_f32 v43, v14, v15
v_lshlrev_b32 v4, 3, v1
v_add_u32 v4, {Q_OFF}, v4
ds_write_b64 v4, v[40:41]
ds_write_b64 v4, v[42:43] offset:512""")
        self.signal('v90', 'v91', C_Q)
        I('s_waitcnt lgkmcnt(0)')
        self.stamp(6)
        self.stamp_dump('s[24:27]')
        I('s_endpgm')

    def role_j1(self):
        I = self.I; p = self.p
        LF = ('', ' nt', ' sc0', ' sc0 nt')[p['locf']]
        I('L_J1:')
        I('s_load_dwordx4 s[8:11], s[0:1], 48')
        self.srd(20, 0, 2048)
        self.srd(24, 96, WS_SIZE)
        self.srd(28, 72, 1024)
        I('s_barrier')
        if p['x_stream']: I('s_endpgm')
        self.lane_setup()
        I(f"""s_mul_i32 s12, s5, 9363
s_lshr_b32 s12, s12, 16
s_mul_i32 s13, s12, 7
s_sub_u32 s13, s5, s13        ; cf
s_and_b32 s14, s12, 1         ; mat
s_lshr_b32 s15, s12, 1        ; ks
v_mov_b32 v90, {CNT}
v_mov_b32 v91, 1
s_waitcnt lgkmcnt(0)
s_cmp_eq_u32 s14, 0
s_cselect_b32 s16, s8, s10
s_cselect_b32 s17, s9, s11
s_mov_b32 s18, {512*1792*2}
s_mov_b32 s19, 0x20000
s_mul_i32 s8, s15, 256*3584
s_mul_i32 s6, s4, 448
s_add_u32 s8, s8, s6
s_lshl_b32 s6, s13, 6
s_add_u32 s8, s8, s6""")
        Lskip = self.lab('nof1'); Lj = self.lab('f1j')
        I(f"""s_cmp_ge_u32 s5, 28
s_cbranch_scc1 {Lskip}""")
        self.ftile_issue('s[16:19]', 's[20:23]', 's8', 's15')
        I(f'{Lskip}:')
        I("""v_lshlrev_b32 v80, 4, v1
buffer_load_dwordx4 v[84:87], v80, s[20:23], 0 offen
buffer_load_dwordx4 v[88:91], v80, s[20:23], 0 offen offset:1024
buffer_load_dwordx4 v[92:95], v80, s[28:31], 0 offen""")
        self.tag_load(24)
        I("""v_and_b32 v81, 3, v1
v_add_u32 v81, 0x07060500, v81""")
        if p['pre3']:
            self.tag_ready()
            Lf = self.lab('pf1')
            I(f"""s_cmp_ge_u32 s5, 28
s_cbranch_scc1 {Lf}
s_not_b32 s6, s52
v_mov_b32 v83, s6
s_lshl_b32 s6, s4, 2
s_lshl_b32 s7, s14, 1
s_add_u32 s6, s6, s7
s_add_u32 s6, s6, s15
s_lshl_b32 s6, s6, 11
s_lshl_b32 s7, s13, 7
s_add_u32 s6, s6, s7
s_add_u32 s6, s6, {WS_F}
v_lshrrev_b32 v82, 5, v1
v_lshlrev_b32 v82, 10, v82
v_and_b32 v79, 31, v1
v_lshlrev_b32 v79, 2, v79
v_add_u32 v82, v82, v79
v_add_u32 v82, s6, v82
buffer_store_dword v83, v82, s[24:27], 0 offen
{Lf}:""")
        self.stamp(1)
        I('s_waitcnt vmcnt(0)')
        if not p['pre3']: self.tag_ready()
        I('v_mov_b32 v80, s52')
        self.stamp(2)
        I(f"""s_cmp_ge_u32 s5, 28
s_cbranch_scc1 {Lj}""")
        self.ftile_compute()
        I(f"""v_perm_b32 v40, v40, v80, v81
s_lshl_b32 s6, s4, 2
s_add_u32 s6, s6, s12
s_lshl_b32 s6, s4, 2
s_lshl_b32 s7, s14, 1
s_add_u32 s6, s6, s7
s_add_u32 s6, s6, s15
s_lshl_b32 s6, s6, 11         ; *[b 2][256] f32
s_lshl_b32 s7, s13, 7
s_add_u32 s6, s6, s7
s_add_u32 s6, s6, {WS_F}
v_lshrrev_b32 v4, 5, v1
v_lshlrev_b32 v4, 10, v4
v_and_b32 v5, 31, v1
v_lshlrev_b32 v5, 2, v5
v_add_u32 v4, v4, v5
v_add_u32 v4, s6, v4
s_mov_b32 s7, {COPYB}
buffer_store_dword v40, v4, s[24:27], 0 offen{LF}""")
        if not p['x_nob']: I(f'buffer_store_dword v40, v4, s[24:27], s7 offen{SC}')
        if p['qdelay']: I(f"s_sleep {p['qdelay']}")
        I(f'{Lj}:')
        I(f'v_mov_b32 v82, {CNT}\nv_mov_b32 v83, 1')
        self.signal('v82', 'v83', C_T)
        self.stamp(3)
        I('v_mov_b32 v8, 0\nv_mov_b32 v9, 0')
        for e in range(4):
            I(f"""v_lshlrev_b32 v10, 16, v{92+e}
v_and_b32 v11, 0xffff0000, v{92+e}
v_lshlrev_b32 v12, 16, v{84+e}
v_and_b32 v13, 0xffff0000, v{84+e}
v_lshlrev_b32 v14, 16, v{88+e}
v_and_b32 v15, 0xffff0000, v{88+e}
v_fmac_f32 v8, v10, v12
v_fmac_f32 v9, v10, v14
v_fmac_f32 v8, v11, v13
v_fmac_f32 v9, v11, v15""")
        for rr in (8, 4, 2, 1):
            I(f'v_add_f32_dpp v8, v8, v8 row_ror:{rr} row_mask:0xf bank_mask:0xf')
            I(f'v_add_f32_dpp v9, v9, v9 row_ror:{rr} row_mask:0xf bank_mask:0xf')
        for sw in ('v_permlane16_swap_b32', 'v_permlane32_swap_b32'):
            I(f"""v_mov_b32 v10, v8
v_mov_b32 v11, v9
{sw} v8, v10
{sw} v9, v11
v_add_f32 v8, v8, v10
v_add_f32 v9, v9, v11""")
        I(f"""v_mul_f32 v8, {fhex(-math.log2(math.e))}, v8
v_mul_f32 v9, {fhex(-math.log2(math.e))}, v9
v_exp_f32 v8, v8
v_exp_f32 v9, v9
v_add_f32 v8, 1.0, v8
v_add_f32 v9, 1.0, v9
v_rcp_f32 v8, v8
v_rcp_f32 v9, v9
v_mov_b32 v10, {GATE}
s_mov_b64 exec, 1
ds_write_b64 v10, v[8:9]
s_mov_b64 exec, -1
s_mov_b32 s40, 0
s_mov_b32 s41, -1
v_cndmask_b32 v16, v8, v9, s[40:41]
v_sub_f32 v16, 1.0, v16""")
        I('v_mov_b32 v90, %d\nv_mov_b32 v91, 1' % CNT)
        self.signal('v90', 'v91', C_H)
        I(f"""s_lshl_b32 s6, s4, 13         ; g*[mat][ks][b][256]*4
s_lshr_b32 s7, s5, 2
s_mul_i32 s7, s7, 112
s_add_u32 s6, s6, s7
s_add_u32 s6, s6, {WS_F}
v_and_b32 v4, 31, v1
v_min_u32 v5, 27, v4
v_and_b32 v17, 3, v5
v_lshlrev_b32 v17, 3, v17
v_lshrrev_b32 v17, v17, v80
v_lshlrev_b32 v5, 2, v5
v_lshrrev_b32 v6, 5, v1
v_lshlrev_b32 v6, 10, v6
v_add_u32 v5, v5, v6
v_add_u32 v5, s6, v5
s_mov_b32 s15, {COPYB if p['force_remote'] else 0}
s_mov_b32 s11, 0""")
        L = self.lab('hg'); D = self.lab('hgd')
        I(f'{L}:')
        for m in range(4):
            I(f's_add_u32 s7, s15, {m*2048}')
            I(f'buffer_load_dword v{24+m}, v5, s[24:27], s7 offen{SC}')
        I('s_add_u32 s48, s48, 1\ns_add_u32 s11, s11, 1\ns_waitcnt vmcnt(0)')
        I('v_xor_b32 v18, v24, v17')
        for j in range(1, 4):
            I(f'v_xor_b32 v19, v{24+j}, v17\nv_or_b32 v18, v18, v19')
        I('v_and_b32 v18, 0xff, v18')
        self.poll_tail(L, D, 'v18', p['slf'])
        if not p['force_remote']:
            I(f"""s_cmp_lt_u32 s11, {p['na_polls']}
s_cbranch_scc1 {L}
s_xor_b32 s15, s15, {COPYB}""")
        I(f"""s_branch {L}
{D}:""")
        self.stamp(5)
        self.untag(range(24, 28))
        I(f"""v_add_f32 v24, v24, v25
v_add_f32 v28, v26, v27
v_mul_f32 v25, {fhex(-math.log2(math.e))}, v24
v_exp_f32 v25, v25
v_add_f32 v25, 1.0, v25
v_rcp_f32 v25, v25
v_mul_f32 v24, v24, v25
v_mul_f32 v24, v24, v28
v_mul_f32 v24, v24, v16
v_cmp_gt_u32 vcc, 28, v4
v_cndmask_b32 v24, 0, v24, vcc
v_cvt_pk_bf16_f32 v24, v24, v24
v_bfe_u32 v6, v4, 2, 2
v_lshlrev_b32 v6, 4, v6
v_lshrrev_b32 v7, 4, v4
v_lshlrev_b32 v7, 3, v7
v_add_u32 v6, v6, v7
v_and_b32 v7, 3, v4
v_lshlrev_b32 v7, 1, v7
v_add_u32 v6, v6, v7
v_lshrrev_b32 v7, 5, v1
v_lshlrev_b32 v7, 6, v7
v_add_u32 v6, v6, v7
v_add_u32 v6, {A2}, v6
ds_write_b16 v6, v24
s_waitcnt lgkmcnt(0)""")
        self.stamp(6)
        self.stamp_dump('s[24:27]')
        I('s_endpgm')

    def role_loader(self):
        I = self.I; p = self.p
        ntv = ' nt' if p['nt_v'] else ''
        ntw = ' nt' if p['nt_w'] else ''
        I('L_LD:')
        if p['prio_ld']: I(f"s_setprio {p['prio_ld']}")
        I(f"""s_sub_u32 s8, s3, {W_L0}           ; loader j
v_mov_b32 v90, {CNT}
v_mov_b32 v91, 1
s_cmp_lg_u32 s8, 0
s_cbranch_scc1 L_LD_noinit
v_mov_b32 v8, 0
v_mov_b32 v9, 0
v_mov_b32 v10, 0
v_mov_b32 v11, 0
ds_write_b128 v90, v[8:11]
ds_write_b128 v90, v[8:11] offset:16
ds_write_b128 v90, v[8:11] offset:32
s_waitcnt lgkmcnt(0)
L_LD_noinit:
s_barrier""")
        self.srd(16, 16, 0x2000000)
        self.srd(20, 32, 0x400000)
        self.srd(24, 64, 1792*512*2)
        self.srd(28, 96, WS_SIZE)
        self.lane_setup()
        if p['pf']:
            I(f"""s_cmp_lg_u32 s8, 3
s_cbranch_scc1 L_LD_nopf
s_getpc_b64 s[36:37]
L_PC:
s_add_u32 s36, s36, {KNAME}-L_PC
s_addc_u32 s37, s37, -1
v_lshlrev_b32 v4, 4, v1
s_mov_b32 s6, L_codeend-{KNAME}-16""")
            for j in range(p.get('pfn', 14)):
                I(f"""v_min_u32 v5, s6, v4
global_load_dwordx4 v[12:15], v5, s[36:37]
v_add_u32 v4, 1024, v4""")
            I('L_LD_nopf:')
        I('s_waitcnt lgkmcnt(0)')
        TLBMARK = True
        I(f"""s_and_b32 s6, s8, 1
s_lshl_b32 s6, s6, 2
v_add_u32 v5, s6, v2          ; (4*(j&1) + rho)
v_lshlrev_b32 v5, 1, v5
v_xor_b32 v5, v5, v3          ; chunk
v_lshlrev_b32 v5, 4, v5
v_lshlrev_b32 v6, 8, v2
v_add_u32 v10, v5, v6         ; V voffset
v_lshlrev_b32 v6, 17, v2
v_add_u32 v11, v5, v6
v_lshlrev_b32 v6, 10, v2
v_add_u32 v16, v5, v6
s_lshr_b32 s6, s5, 4          ; b
s_lshl_b32 s6, s6, 3
s_add_u32 s6, s6, s4          ; bh
s_lshl_b32 s10, s6, 21
s_and_b32 s6, s5, 15          ; t
s_lshl_b32 s6, s6, 17
s_add_u32 s10, s10, s6
s_and_b32 s6, s8, 1
s_lshl_b32 s6, s6, 10
s_add_u32 s10, s10, s6        ; V base + (j & 1) * 1024
s_lshr_b32 s11, s5, 2         ; w'
s_and_b32 s12, s5, 3          ; cg
s_lshl_b32 s13, s4, 9
s_lshl_b32 s6, s11, 4
s_add_u32 s13, s13, s6
s_add_u32 s13, s13, s8
s_lshl_b32 s13, s13, 10
s_lshl_b32 s6, s12, 8
s_add_u32 s13, s13, s6
s_lshl_b32 s14, s4, 3
s_add_u32 s14, s14, s11       ; rg
s_mul_i32 s14, s14, 28
s_lshl_b32 s6, s8, 2
s_add_u32 s15, s14, s6
s_add_u32 s6, s8, 4
s_min_u32 s6, s6, 6
s_lshl_b32 s6, s6, 2
s_add_u32 s14, s14, s6
s_lshl_b32 s15, s15, 10
s_lshl_b32 s14, s14, 10
s_lshl_b32 s6, s12, 8
s_add_u32 s15, s15, s6
s_add_u32 s14, s14, s6
s_lshl_b32 s9, s8, 10         ; j*1024""")
        if p['tlb']:
            Lt = self.lab('tlb')
            I(f"""s_cmp_lg_u32 s8, 2
s_cbranch_scc1 {Lt}
v_mov_b32 v20, 0
s_mov_b64 exec, 1
buffer_load_dword v21, v20, s[16:19], s10 offen
buffer_load_dword v22, v20, s[20:23], s13 offen
buffer_load_dword v23, v20, s[24:27], s15 offen
s_mov_b32 s6, {WS_T1}
buffer_load_dword v24, v20, s[28:31], s6 offen
s_mov_b32 s6, {WS_T3}
buffer_load_dword v25, v20, s[28:31], s6 offen
s_mov_b32 s6, {WS_ST}
buffer_load_dword v26, v20, s[28:31], s6 offen
s_mov_b64 exec, -1
{Lt}:""")
        self.stamp(1)
        self.lds_wait('v90', 'v7', C_K, p['kthr'], sleep=p['slk'])
        self.lds_wait('v90', 'v7', C_T, 2, sleep=p['slk'])
        I('s_waitcnt vmcnt(0)')
        self.stamp(2)
        loads = []
        I(f"""s_mul_i32 s61, s5, {p['rkb']}
s_mul_i32 s6, s4, {p['rkc']}
s_add_u32 s61, s61, s6
s_lshr_b32 s6, s8, 1
s_add_u32 s61, s61, s6
s_mul_i32 s62, s5, {p['rcb']}
s_mul_i32 s6, s4, {p['rcc']}
s_add_u32 s62, s62, s6""")
        for q in range(32):
            cw = q >> 2
            loads.append([f's_add_u32 m0, s9, {V_OFF + q*4096}',
                          f's_add_u32 s6, s61, {cw*p["rka"] + 2*(q & 3)}',
                          f's_and_b32 s6, s6, 7',
                          f's_lshl_b32 s6, s6, 11',
                          f's_add_u32 s6, s6, s10',
                          f's_add_u32 s7, s62, {cw}',
                          f's_and_b32 s7, s7, 7',
                          f's_lshl_b32 s7, s7, 14',
                          f's_add_u32 s6, s6, s7',
                          f'buffer_load_dwordx4 v10, s[16:19], s6 offen{ntv} lds'])
        for q in range(4):
            loads.append([f's_add_u32 m0, s9, {WO_OFF + q*4096}',
                          f's_add_u32 s6, s13, {q*4096}',
                          f'buffer_load_dwordx4 v11, s[20:23], s6 offen{ntw} lds'])
        loads.append([f's_add_u32 m0, s9, {WD_OFF}', 's_nop 0', f'buffer_load_dwordx4 v16, s[24:27], s15 offen{ntw} lds'])
        loads.append([f's_add_u32 m0, s9, {WD_OFF + 4096}', 's_nop 0', f'buffer_load_dwordx4 v16, s[24:27], s14 offen{ntw} lds'])
        vl, wl = loads[:32], loads[32:]
        wp, ws_ = p['wpos'], p['wsplit']
        loads = vl[:wp] + wl[:ws_] + vl[wp:] + wl[ws_:]
        def vpos(q): return q if q < wp else q + ws_
        n = len(loads)
        nA = 2 * p['na']
        marks = {vpos(nA - 1): 'A', vpos(31): 'V'}
        def mark(m):
            if m == 'A': self.signal('v90', 'v91', C_A)
            elif not p['x_stream']: I('s_barrier')
            self.stamp(3 if m == 'A' else 4)
        def depth(i): return p['dv2'] if i >= n - p['dvn'] else p['dv']
        done = -1
        issued = 0
        pend = sorted(marks)
        while issued < n:
            D = depth(issued)
            need_done = issued - D
            if need_done > done:
                I(f's_waitcnt vmcnt({issued - 1 - need_done})')
                done = need_done
            for l in loads[issued]: I(l)
            issued += 1
            while pend and pend[0] <= done:
                mark(marks[pend.pop(0)])
        while done < n - 1:
            done += 1
            if pend and pend[0] == done or done == n - 1:
                I(f's_waitcnt vmcnt({n - 1 - done})')
            while pend and pend[0] <= done:
                mark(marks[pend.pop(0)])
        self.stamp(5)
        if not p['x_stream']: I('s_barrier')
        if p['x_dirty']:
            I(f"""s_lshl_b32 s6, s2, 2
s_add_u32 s6, s6, s8
s_mul_i32 s6, s6, {p['x_dirty']*1024}
s_add_u32 s6, s6, 0x400000
s_mov_b32 s30, 0x10000000
v_lshlrev_b32 v4, 4, v1""")
            for j in range(p['x_dirty']):
                I(f's_add_u32 s7, s6, {j*1024}\nbuffer_store_dwordx4 v[8:11], v4, s[28:31], s7 offen')
        self.stamp_dump('s[28:31]')
        I('s_endpgm')

    def role_compute(self):
        I = self.I; p = self.p
        ntk = ' nt' if p['nt_k'] else ''
        cexp = math.log2(math.e) / math.sqrt(128.0)
        I('L_CW:')
        self.srd(16, 8, 0x2000000)
        self.srd(20, 96, WS_SIZE)
        self.srd(24, 80, 2048)
        if p['x_start']: I('s_memrealtime s[90:91]')
        I('s_barrier')
        if p['x_start']: I('s_memrealtime s[92:93]')
        self.lane_setup()
        I(f"""s_sub_u32 s8, s3, {W_C0}           ; cw
s_lshr_b32 s6, s5, 4          ; b
s_lshl_b32 s6, s6, 3
s_add_u32 s6, s6, s4
s_lshl_b32 s10, s6, 21
s_and_b32 s6, s5, 15
s_lshl_b32 s6, s6, 17
s_add_u32 s10, s10, s6
s_mul_i32 s6, s5, {p['rcb']}
s_mul_i32 s7, s4, {p['rcc']}
s_add_u32 s6, s6, s7
s_add_u32 s6, s6, s8
s_and_b32 s6, s6, 7
s_lshl_b32 s6, s6, 14
s_add_u32 s10, s10, s6
v_and_b32 v4, 7, v1
v_lshlrev_b32 v4, 8, v4
v_bfe_u32 v5, v1, 3, 1
v_lshlrev_b32 v5, 6, v5
v_add_u32 v4, v4, v5
v_lshlrev_b32 v5, 4, v2
v_add_u32 v4, v4, v5          ; K voffset
s_mul_i32 s61, s8, {p['rka']}
s_mul_i32 s6, s5, {p['rkb']}
s_add_u32 s61, s61, s6
s_mul_i32 s6, s4, {p['rkc']}
s_add_u32 s61, s61, s6
v_mov_b32 v62, {CNT}
v_mov_b32 v63, 1
s_waitcnt lgkmcnt(0)""")
        D = p['dk']
        def kload(i):
            o, hx = divmod(i, 2)
            if hx == 0:
                I(f's_add_u32 s11, s61, {o}\ns_and_b32 s11, s11, 7\ns_lshl_b32 s11, s11, 11\ns_add_u32 s11, s11, s10')
            I(f'buffer_load_dwordx4 v[{64+4*i}:{67+4*i}], v4, s[16:19], s11 offen offset:{hx*128}{ntk}')
        if p['x_start']: I('s_memrealtime s[94:95]')
        for i in range(D): kload(i)
        self.tag_load(20)
        self.stamp(1)
        vC, vOne = 'v62', 'v63'
        for i in range(D, 16):
            I(f's_waitcnt vmcnt({D-1})')
            kload(i)
            if i == 15 - p['ksig']:
                self.signal(vC, vOne, C_K)
        self.stamp(2)
        if p['x_stream']:
            I('s_waitcnt vmcnt(0)')
            self.stamp(3)
            self.stamp_dump('s[20:23]', 16)
            I('s_endpgm')
        self.tag_ready()
        I(f"""v_and_b32 v5, 3, v3           ; head = n&3
v_lshlrev_b32 v6, 8, v5
v_lshlrev_b32 v7, 4, v2
v_add_u32 v60, v6, v7
v_bfe_u32 v6, v3, 3, 1
v_lshlrev_b32 v6, 6, v6
v_add_u32 v60, v60, v6
v_add_u32 v60, {Q_OFF}, v60
v_lshlrev_b32 v61, 5, v5
v_add_u32 v61, {MX}, v61
s_lshl_b32 s6, s8, 2
v_add_u32 v59, s6, v61""")
        self.lds_wait(vC, 'v5', C_Q, 1, sleep=2)
        self.stamp(3)
        for hx in range(2):
            I(f'ds_read_b128 v[{48+4*hx}:{51+4*hx}], v60 offset:{hx*128}')
        I(f'ds_read_b32 v5, {vC} offset:{C_M}')
        I('s_waitcnt lgkmcnt(0)\nv_readfirstlane_b32 s51, v5')
        for o in range(8):
            I(f's_waitcnt vmcnt({14 - 2*o})')
            for hx in range(2):
                c = '0' if hx == 0 else f'v[{16+4*o}:{19+4*o}]'
                r = 64 + 8*o + 4*hx
                I(f'v_mfma_f32_16x16x32_bf16 v[{16+4*o}:{19+4*o}], v[{r}:{r+3}], v[{48+4*hx}:{51+4*hx}], {c}')
        for j in range(4):
            for r in range(4): I(f'v_permlane32_swap_b32 v{16+8*j+r}, v{20+8*j+r}')
            for r in range(4): I(f'v_add_f32_dpp v{16+4*j+r}, v{20+8*j+r}, v{16+8*j+r} row_ror:8 row_mask:0xf bank_mask:0xf')
        I('v_max3_f32 v5, v16, v17, v18')
        for e in range(19, 31, 2):
            I(f'v_max3_f32 v5, v5, v{e}, v{e+1}')
        I('v_max_f32 v5, v5, v31')
        for sw in ('v_permlane16_swap_b32', 'v_permlane32_swap_b32'):
            I(f"""v_mov_b32 v6, v5
{sw} v5, v6
v_max_f32 v5, v5, v6""")
        I("""s_mov_b64 exec, 15
ds_write_b32 v59, v5
s_mov_b64 exec, -1""")
        self.signal(vC, vOne, C_1)
        self.lds_wait(vC, 'v6', C_1, 8, sleep=0)
        I(f"""ds_read_b128 v[48:51], v61
ds_read_b128 v[52:55], v61 offset:16
s_mov_b32 s50, {fhex(cexp)}
s_waitcnt lgkmcnt(0)
v_max3_f32 v48, v48, v49, v50
v_max3_f32 v51, v51, v52, v53
v_max3_f32 v48, v48, v54, v55
v_max_f32 v48, v48, v51
v_mul_f32 v58, s50, v48
v_and_b32 v58, s63, v58""")
        for e in range(16):
            I(f'v_fma_f32 v{16+e}, v{16+e}, s50, -v58')
        for e in range(16):
            I(f'v_exp_f32 v{16+e}, v{16+e}')
        for q in range(8):
            I(f'v_cvt_pk_bf16_f32 v{48+q}, v{16+2*q}, v{17+2*q}')
        I(f"""s_lshl_b32 s6, s8, 9
s_add_u32 s6, s6, {P_OFF}
v_lshlrev_b32 v6, 6, v2
v_lshlrev_b32 v7, 4, v3
v_add_u32 v6, v6, v7
v_add_u32 v6, s6, v6
s_mov_b32 s40, 0x000f000f
s_mov_b32 s41, 0x000f000f
s_mov_b64 exec, s[40:41]
ds_write_b128 v6, v[48:51]
ds_write_b128 v6, v[52:55] offset:256
s_mov_b64 exec, -1""")
        for e in range(8): I(f'v_add_f32 v{16+e}, v{16+e}, v{24+e}')
        for e in range(4): I(f'v_add_f32 v{16+e}, v{16+e}, v{20+e}')
        I("""v_add_f32 v16, v16, v17
v_add_f32 v18, v18, v19
v_add_f32 v5, v16, v18""")
        for sw in ('v_permlane16_swap_b32', 'v_permlane32_swap_b32'):
            I(f"""v_mov_b32 v6, v5
{sw} v5, v6
v_add_f32 v5, v5, v6""")
        I("""s_mov_b64 exec, 15
ds_write_b32 v59, v5 offset:128
s_mov_b64 exec, -1""")
        self.signal(vC, vOne, C_2)
        self.lds_wait(vC, 'v6', C_2, 8, sleep=0)
        self.stamp(4)
        I(f"""s_lshl_b32 s12, s4, 5
s_add_u32 s12, s12, s5        ; slot
v_mov_b32 v47, s52""")
        Ls = self.lab('nostat')
        I(f"""s_cmp_lg_u32 s8, 0
s_cbranch_scc1 {Ls}
ds_read_b128 v[48:51], v61 offset:128
ds_read_b128 v[52:55], v61 offset:144
v_and_b32 v6, 3, v1
v_add_u32 v6, 0x07060500, v6
s_waitcnt lgkmcnt(0)
v_add_f32 v48, v48, v49
v_add_f32 v50, v50, v51
v_add_f32 v52, v52, v53
v_add_f32 v54, v54, v55
v_add_f32 v48, v48, v50
v_add_f32 v52, v52, v54
v_add_f32 v48, v48, v52
s_mov_b32 s40, 0xf0f0f0f0
s_mov_b32 s41, 0
v_cndmask_b32 v48, v58, v48, s[40:41]
v_perm_b32 v48, v48, v47, v6
s_lshl_b32 s6, s12, 7
s_add_u32 s6, s6, {WS_ST}
v_lshlrev_b32 v6, 2, v1
s_mov_b32 exec_hi, 0""")
        self.mode_store('buffer_store_dword v48, v6, s[20:23], s6 offen', 's51')
        I('s_mov_b32 exec_hi, -1')
        I(f'{Ls}:')
        I(f"""v_and_b32 v5, 3, v3
v_lshlrev_b32 v5, 4, v5
v_lshlrev_b32 v6, 6, v2
v_add_u32 v5, v5, v6
v_add_u32 v5, {P_OFF}, v5""")
        for st in range(16):
            if st == 8: I('s_waitcnt lgkmcnt(0)')
            I(f'ds_read_b128 v[{64+4*st}:{67+4*st}], v5 offset:{st*256}')
        I(f"""v_lshrrev_b32 v5, 2, v3       ; r
v_and_b32 v6, 3, v3           ; c4
v_lshlrev_b32 v7, 2, v2
v_add_u32 v7, v7, v5          ; 4s + r
v_and_b32 v48, 7, v7          ; (4(s&1) + r)
v_xor_b32 v48, s8, v48
v_lshlrev_b32 v48, 5, v48
v_lshlrev_b32 v7, 8, v7
v_add_u32 v7, v7, v48
v_lshlrev_b32 v6, 3, v6
v_add_u32 v56, v7, v6
v_add_u32 v57, 0x10000, v56
v_add_u32 v59, 0x20000, v56""")
        I(f"""s_lshr_b32 s13, s5, 2         ; w'
s_and_b32 s14, s5, 3          ; cg
s_and_b32 s15, s8, 1
s_lshl_b32 s6, s15, 4
v_add_u32 v5, s6, v2          ; b*16 + tq
v_lshlrev_b32 v12, 4, v5
v_add_u32 v12, {WL}, v12
s_lshl_b32 s6, s4, 5
v_add_u32 v61, s6, v5         ; slot' (i = 0)
v_lshlrev_b32 v61, 11, v61
s_lshl_b32 s6, s13, 4
v_add_u32 v6, s6, v3
v_lshlrev_b32 v6, 4, v6
v_add_u32 v61, v61, v6
v_add_u32 v61, {WS_T1}, v61
v_lshrrev_b32 v6, 3, v3
v_lshlrev_b32 v6, 6, v6
v_bfe_u32 v7, v3, 2, 1
v_lshlrev_b32 v7, 3, v7       ; half*8
v_add_u32 v6, v6, v7
v_and_b32 v7, 3, v3
v_lshlrev_b32 v7, 4, v7       ; sA*16
v_add_u32 v6, v6, v7
v_lshlrev_b32 v7, 1, v2
v_add_u32 v6, v6, v7          ; + hh*2
s_lshl_b32 s6, s15, 7
s_add_u32 s6, s6, {A1}
v_add_u32 v60, s6, v6
s_lshl_b32 s6, s12, 11
s_lshl_b32 s7, s8, 8
s_add_u32 s6, s6, s7
s_add_u32 s6, s6, {WS_T1}
v_lshlrev_b32 v58, 4, v3
v_add_u32 v58, s6, v58
v_and_b32 v6, 1, v3
v_lshlrev_b32 v44, 1, v6
v_add_u32 v50, 0x07060500, v44
v_add_u32 v51, 1, v50
v_mov_b32 v49, s52               ; T
v_lshlrev_b32 v7, 6, v6
v_lshlrev_b32 v6, 7, v6
v_lshlrev_b32 v48, 4, v2
v_add_u32 v6, v6, v48
v_add_u32 v62, {A1}, v6
v_add_u32 v7, v7, v48
v_add_u32 v48, {A2}, v7
s_lshl_b32 s6, s14, 3
s_add_u32 s6, s6, s8
s_lshl_b32 s6, s6, 6
s_lshl_b32 s7, s4, 3
s_add_u32 s7, s7, s13
s_add_u32 s6, s6, s7
s_lshl_b32 s6, s6, 7
s_add_u32 s6, s6, {WS_T3}
v_lshlrev_b32 v63, 3, v3
v_add_u32 v63, s6, v63
v_mov_b32 v13, {CNT}
s_and_b32 s13, s2, 3          ; cg3
s_lshr_b32 s14, s2, 2         ; o8
s_lshl_b32 s6, s13, 3
s_add_u32 s6, s6, s14
s_lshl_b32 s6, s6, 13
s_lshl_b32 s7, s8, 5
s_add_u32 s6, s6, s7
s_add_u32 s6, s6, {WS_T3}
v_lshrrev_b32 v14, 1, v1
v_lshlrev_b32 v14, 7, v14
v_and_b32 v6, 1, v1
v_lshlrev_b32 v7, 4, v6
v_add_u32 v14, v14, v7
v_add_u32 v14, s6, v14
s_lshl_b32 s6, s13, 8
s_lshl_b32 s7, s14, 5
s_add_u32 s6, s6, s7
s_lshl_b32 s7, s8, 3
s_add_u32 s6, s6, s7
v_and_b32 v15, 1, v2
v_lshlrev_b32 v15, 10, v15
v_lshlrev_b32 v6, 2, v6
v_add_u32 v15, v15, v6
v_lshrrev_b32 v6, 1, v2
v_lshlrev_b32 v6, 1, v6
v_add_u32 v15, v15, v6
v_add_u32 v15, s6, v15
s_waitcnt lgkmcnt(0)""")
        Lsa = self.lab('sa')
        I(f"""s_mov_b32 s60, 0
s_cmp_lg_u32 s8, {p['sw']}
s_cbranch_scc1 {Lsa}""")
        self.lds_wait('v13', 'v5', C_H, 1, sleep=1)
        I(f"""v_mov_b32 v5, {GATE}
ds_read_b64 v[6:7], v5
s_mov_b32 s40, 0
s_mov_b32 s41, -1
v_lshrrev_b32 v5, 5, v1
v_lshlrev_b32 v5, 4, v5
v_add_u32 v5, v5, v3          ; b'*16 + t'
v_lshlrev_b32 v60, 4, v5
v_add_u32 v60, {WL}, v60
s_lshl_b32 s6, s4, 5
v_add_u32 v5, s6, v5          ; slot'
v_lshlrev_b32 v5, 7, v5
v_add_u32 v61, {WS_ST}, v5
s_waitcnt lgkmcnt(0)
v_cndmask_b32 v12, v6, v7, s[40:41]   ; g_b (b = lane>>5)
{Lsa}:""")
        if p['pre1']:
            Lp = self.lab('p1')
            I(f"""s_cmp_eq_u32 s51, 0
s_cbranch_scc1 {Lp}
v_not_b32 v16, v49
v_not_b32 v17, v49
v_not_b32 v18, v49
v_not_b32 v19, v49
s_mov_b64 exec, 0xffff
buffer_store_dwordx4 v[16:19], v58, s[20:23], 0 offen
s_mov_b64 exec, -1
{Lp}:""")
        if p['owarm']:
            Lo = self.lab('ow')
            I(f"""s_cmp_ge_u32 s2, 32
s_cbranch_scc1 {Lo}
s_cmp_gt_u32 s8, 3
s_cbranch_scc1 {Lo}
s_mov_b32 exec_lo, 0x00030003
s_mov_b32 exec_hi, 0x00030003""")
            if p['owarm'] == 1: I('v_mov_b32 v5, 0\nbuffer_store_short v5, v15, s[24:27], 0 offen')
            else: I('buffer_load_ushort v5, v15, s[24:27], 0 offen')
            I(f's_mov_b64 exec, -1\ns_waitcnt vmcnt(0)\n{Lo}:')
        self.stamp(5)
        self.lds_wait('v13', 'v5', C_A, 4, sleep=p['sla'])
        self.stamp(6)
        def vread(st, r):
            base = 'v56' if st < 8 else 'v57'
            o = (st & 7) * 8192
            I(f'ds_read_b64_tr_b16 v[{r}:{r+1}], {base} offset:{o}')
            I(f'ds_read_b64_tr_b16 v[{r+2}:{r+3}], {base} offset:{o+4096}')
        def vmfma(st, r):
            c = '0' if st == 0 else 'v[8:11]'
            I(f'v_mfma_f32_16x16x32_bf16 v[8:11], v[{64+4*st}:{67+4*st}], v[{r}:{r+3}], {c}')
        na = p['na']
        batches = []
        st = 0
        while st < na:
            b = list(range(st, min(st + 4, na))); batches.append(b); st += len(b)
        sets = (16, 32)
        for k, b in enumerate(batches):
            if k == 0:
                for j, st in enumerate(b): vread(st, sets[0] + 4*j)
            I('s_waitcnt lgkmcnt(0)')
            if k + 1 < len(batches):
                for j, st in enumerate(batches[k+1]): vread(st, sets[(k+1) & 1] + 4*j)
            for j, st in enumerate(b): vmfma(st, sets[k & 1] + 4*j)
            if k == 0:
                Lq = self.lab('nsl')
                I(f"s_cmp_lg_u32 s8, {p['sw']}\ns_cbranch_scc1 {Lq}")
                self.stats_loads()
                I(f'{Lq}:')
        I('s_barrier')
        self.stamp(7)
        rest = list(range(na, 16))
        for j, st in enumerate(rest): vread(st, 16 + 4*j)
        for j, st in enumerate(rest):
            I(f's_waitcnt lgkmcnt({2*(len(rest)-1-j)})')
            vmfma(st, 16 + 4*j)
        for e in range(4): I(f'v_perm_b32 v{8+e}, v{8+e}, v49, s{53+e}')
        I('s_mov_b64 exec, 0xffff')
        self.mode_store('buffer_store_dwordx4 v[8:11], v58, s[20:23], 0 offen', 's51')
        I('s_mov_b64 exec, -1')
        I('ds_read_b128 v[52:55], v48')
        self.stamp(8)
        Lns = self.lab('nsw'); Lw = self.lab('sw'); Lr = self.lab('swr')
        I(f"""s_cmp_lg_u32 s8, {p['sw']}
s_cbranch_scc1 {Lns}
s_waitcnt vmcnt(1)""")
        self.stats_check()
        I(f"""v_cmp_ne_u32 vcc, 0, v5
s_cbranch_vccz {Lw}
{Lr}:""")
        self.stats_loads()
        I('s_add_u32 s48, s48, 1\ns_waitcnt vmcnt(0)')
        self.stats_check()
        self.poll_tail(Lr, Lw, 'v5', p['sls'])
        I(f"""s_branch {Lr}
{Lw}:""")
        self.untag(range(64, 72))
        for h in range(4): I(f'v_mov_b32 v{72+h}, v{64+h}')
        for rr in (8, 4, 2, 1):
            for h in range(4): I(f'v_max_f32_dpp v{72+h}, v{72+h}, v{72+h} row_ror:{rr} row_mask:0xf bank_mask:0xf')
        for h in range(4): I(f'v_sub_f32 v{64+h}, v{64+h}, v{72+h}')
        for h in range(4): I(f'v_exp_f32 v{64+h}, v{64+h}')
        for h in range(4): I(f'v_mul_f32 v{68+h}, v{68+h}, v{64+h}')
        for rr in (8, 4, 2, 1):
            for h in range(4): I(f'v_add_f32_dpp v{68+h}, v{68+h}, v{68+h} row_ror:{rr} row_mask:0xf bank_mask:0xf')
        for h in range(4): I(f'v_rcp_f32 v{68+h}, v{68+h}')
        for h in range(4): I(f'v_mul_f32 v{64+h}, v{64+h}, v12')
        for h in range(4): I(f'v_mul_f32 v{64+h}, v{64+h}, v{68+h}')
        I('ds_write_b128 v60, v[64:67]\nv_mov_b32 v5, 1')
        self.signal('v13', 'v5', C_W)
        I(f'{Lns}:')
        Lng = self.lab('nog')
        I(f"""s_cmp_gt_u32 s8, 1
s_cbranch_scc1 {Lng}""")
        I(f's_mov_b32 s6, {4*2048}\ns_mov_b32 s7, {8*2048}\ns_mov_b32 s9, {12*2048}')
        T2B = (64, 96, 112)
        NS2 = p['t2sets']
        def t2issue(k):
            for i, so in enumerate(('0', 's6', 's7', 's9')):
                r = T2B[k] + 4*i
                I(f'buffer_load_dwordx4 v[{r}:{r+3}], v61, s[20:23], {so} offen{SC}')
        if p['t2wait']: I('s_waitcnt vmcnt(0)')
        t2issue(0)
        self.lds_wait('v13', 'v5', C_W, 1, sleep=0)
        for i in range(4): I(f'ds_read_b128 v[{80+4*i}:{83+4*i}], v12 offset:{i*64}')
        for k in range(1, NS2):
            if p['t2st']: I(f"s_sleep {p['t2st']}")
            t2issue(k)
        L = self.lab('t2'); Dn = self.lab('t2d')
        if p['t2mask']:
            Lh = self.lab('t2m')
            I(f'{L}:\ns_waitcnt vmcnt(0)')
            for i in range(4):
                self.tag_acc(64 + 4*i, True)
                I(f'v_cmp_ne_u32 s[{40+2*i}:{41+2*i}], 0, v16')
            I(f"""s_or_b64 vcc, s[40:41], s[42:43]
s_or_b64 s[36:37], s[44:45], s[46:47]
s_or_b64 vcc, vcc, s[36:37]
s_cbranch_scc0 {Lh}
s_add_u32 s48, s48, 1
s_cmp_gt_u32 s48, {self.glim}
s_cbranch_scc1 {Lh}""")
            if p['sl2']: I(f"s_sleep {p['sl2']}")
            for i, so in enumerate(('0', 's6', 's7', 's9')):
                La = self.lab('t2s')
                I(f"""s_mov_b64 exec, s[{40+2*i}:{41+2*i}]
s_cbranch_execz {La}
buffer_load_dwordx4 v[{64+4*i}:{67+4*i}], v61, s[20:23], {so} offen{SC}
{La}:""")
            I(f's_mov_b64 exec, -1\ns_branch {L}\n{Lh}:\ns_waitcnt lgkmcnt(0)')
            self.untag(range(64, 80))
            for h in range(4): I(f'v_mul_f32 v{16+h}, v{64+h}, v{80+h}')
            for i in range(1, 4):
                for h in range(4): I(f'v_fmac_f32 v{16+h}, v{64+4*i+h}, v{80+4*i+h}')
            NS2 = 0
        if NS2: I(f'{L}:')
        hits = []
        for k in range(NS2):
            for i in range(4):
                I(f's_waitcnt vmcnt({4*(NS2-1) + 3-i})')
                self.tag_acc(T2B[k] + 4*i, i == 0)
            H = self.lab('t2h'); hits.append((H, T2B[k]))
            I(f"""v_cmp_ne_u32 vcc, 0, v16
s_cbranch_vccz {H}""")
            if p['sl2']: I(f"s_sleep {p['sl2']}")
            t2issue(k)
        if NS2: I(f"""s_add_u32 s48, s48, 1
s_cmp_le_u32 s48, {self.glim}
s_cbranch_scc1 {L}""")
        for j, (H, r) in enumerate(hits):
            I(f'{H}:')
            self.untag(range(r, r + 16))
            I('s_waitcnt lgkmcnt(0)')
            for h in range(4): I(f'v_mul_f32 v{16+h}, v{r+h}, v{80+h}')
            for i in range(1, 4):
                for h in range(4): I(f'v_fmac_f32 v{16+h}, v{r+4*i+h}, v{80+4*i+h}')
            if j + 1 < len(hits): I(f's_branch {Dn}')
        I(f'{Dn}:')
        self.stamp(9)
        I("""v_permlane16_swap_b32 v16, v17
v_permlane16_swap_b32 v18, v19
v_add_f32 v16, v16, v17
v_add_f32 v18, v18, v19
v_permlane32_swap_b32 v16, v18
v_add_f32 v16, v16, v18
v_cvt_pk_bf16_f32 v16, v16, v16
ds_write_b16 v60, v16
s_waitcnt lgkmcnt(0)""")
        I(f"""{Lng}:
s_barrier""")
        self.stamp(10)
        I("""ds_read_b64_tr_b16 v[16:17], v59 offset:16384
ds_read_b64_tr_b16 v[18:19], v59 offset:20480
ds_read_b128 v[32:35], v62
ds_read_b64_tr_b16 v[20:21], v59
ds_read_b64_tr_b16 v[22:23], v59 offset:4096
ds_read_b128 v[36:39], v62 offset:64
ds_read_b64_tr_b16 v[24:25], v59 offset:8192
ds_read_b64_tr_b16 v[26:27], v59 offset:12288
s_waitcnt lgkmcnt(6)
v_mfma_f32_16x16x32_bf16 v[8:11], v[52:55], v[16:19], 0
s_waitcnt lgkmcnt(3)
v_mfma_f32_16x16x32_bf16 v[8:11], v[32:35], v[20:23], v[8:11]
s_waitcnt lgkmcnt(0)
v_mfma_f32_16x16x32_bf16 v[8:11], v[36:39], v[24:27], v[8:11]""")
        I(f"""v_perm_b32 v8, v8, v49, v50
v_perm_b32 v9, v9, v49, v51
s_mov_b64 exec, 0xffff
buffer_store_dwordx2 v[8:9], v63, s[20:23], 0 offen{(SC, ' sc0 sc1')[p['t3stf']]}
s_mov_b64 exec, -1""")
        self.stamp(11)
        Lend = 'L_CW_end'
        I(f"""s_cmp_ge_u32 s2, 32
s_cbranch_scc1 {Lend}
s_cmp_gt_u32 s8, 3
s_cbranch_scc1 {Lend}
s_mov_b32 s7, 4096""")
        NS = p['t3sets']
        L = self.lab('t3'); Dn = self.lab('t3d')
        def issue(k):
            r = 64 + 8*k
            fl = (SC, ' sc0 sc1', ' sc1 nt', ' sc0 sc1 nt')[p['t3ld']]
            I(f'buffer_load_dwordx4 v[{r}:{r+3}], v14, s[20:23], 0 offen{fl}')
            I(f'buffer_load_dwordx4 v[{r+4}:{r+7}], v14, s[20:23], s7 offen{fl}')
        if p['t3wait']: I('s_waitcnt vmcnt(0)')
        if p['t3delay']: I(f"s_sleep {p['t3delay']}")
        self.stamp(13)
        if p['stamps'] and not p['light']: I('s_mov_b32 s59, s48')
        if p['t3mask']:
            fl = (SC, ' sc0 sc1', ' sc1 nt', ' sc0 sc1 nt')[p['t3ld']]
            issue(0)
            La = self.lab('t3a'); Lb = self.lab('t3b'); Lh = self.lab('t3m')
            I(f'{L}:\ns_waitcnt vmcnt(0)')
            self.tag_acc(64, True)
            I('v_cmp_ne_u32 s[40:41], 0, v16')
            self.tag_acc(68, True)
            I(f"""v_cmp_ne_u32 s[42:43], 0, v16
s_or_b64 s[44:45], s[40:41], s[42:43]
s_cbranch_scc0 {Lh}
s_add_u32 s48, s48, 1
s_cmp_gt_u32 s48, {self.glim}
s_cbranch_scc1 {Lh}""")
            if p['sl3']: I(f"s_sleep {p['sl3']}")
            I(f"""s_mov_b64 exec, s[40:41]
s_cbranch_execz {La}
buffer_load_dwordx4 v[64:67], v14, s[20:23], 0 offen{fl}
{La}:
s_mov_b64 exec, s[42:43]
s_cbranch_execz {Lb}
buffer_load_dwordx4 v[68:71], v14, s[20:23], s7 offen{fl}
{Lb}:
s_mov_b64 exec, -1
s_branch {L}
{Lh}:""")
            self.untag(range(64, 72))
            for e in range(4): I(f'v_add_f32 v{20+e}, v{64+e}, v{68+e}')
            NS = 0
        for k in range(NS):
            issue(k)
            if k + 1 < NS and p['t3st']: I(f"s_sleep {p['t3st']}")
        if NS: I(f'{L}:')
        hits = []
        for k in range(NS):
            r = 64 + 8*k
            I(f's_waitcnt vmcnt({2*(NS-1)})')
            self.tag_acc(r, True)
            self.tag_acc(r + 4, False)
            H = self.lab('t3h'); hits.append((H, r))
            I(f"""v_cmp_ne_u32 vcc, 0, v16
s_cbranch_vccz {H}""")
            issue(k)
        if NS: I(f"""s_add_u32 s48, s48, 1
s_cmp_le_u32 s48, {self.glim}
s_cbranch_scc1 {L}""")
        for j, (H, r) in enumerate(hits):
            I(f'{H}:')
            self.untag(range(r, r + 8))
            for e in range(4): I(f'v_add_f32 v{20+e}, v{r+e}, v{r+4+e}')
            if j + 1 < len(hits): I(f's_branch {Dn}')
        I(f'{Dn}:')
        if p['stamps'] and not p['light']:
            I('s_sub_u32 s92, s48, s59\ns_add_u32 s92, s92, 1')
            self.stamp(15)
        I("""v_permlane16_swap_b32 v20, v21
v_permlane16_swap_b32 v22, v23
v_add_f32 v20, v20, v21
v_add_f32 v22, v22, v23
v_permlane32_swap_b32 v20, v22
v_add_f32 v20, v20, v22""")
        for rr in (2, 4, 8):
            I(f'v_add_f32_dpp v20, v20, v20 row_ror:{rr} row_mask:0xf bank_mask:0xf')
        I(f"""v_cvt_pk_bf16_f32 v20, v20, v20
s_mov_b32 exec_lo, 0x00030003
s_mov_b32 exec_hi, 0x00030003
buffer_store_short v20, v15, s[24:27], 0 offen
s_mov_b64 exec, -1""")
        I(f"""s_cmp_lg_u32 s2, 0
s_cbranch_scc1 L_CW_noe
s_cmp_lg_u32 s8, 0
s_cbranch_scc1 L_CW_noe
v_mov_b32 v5, {WS_E}
s_mov_b64 exec, 1
buffer_store_dword v49, v5, s[20:23], 0 offen{SC}
s_mov_b64 exec, -1
L_CW_noe:""")
        self.stamp(12)
        if p['x_dbg']:
            Ld = self.lab('xd')
            I(f"""s_cmp_lg_u32 s8, 0
s_cbranch_scc1 {Ld}
s_memrealtime s[92:93]
s_load_dwordx2 s[32:33], s[0:1], 88
s_mov_b32 s34, 256
s_mov_b32 s35, 0x20000
s_waitcnt lgkmcnt(0)
s_sub_u32 s6, s92, s90
v_mov_b32 v5, s6
s_lshl_b32 s7, s2, 2
v_mov_b32 v6, s7
s_mov_b64 exec, 1
buffer_store_dword v5, v6, s[32:35], 0 offen
s_mov_b64 exec, -1
{Ld}:""")
        I(f'{Lend}:')
        self.stamp_dump('s[20:23]', 16)
        I('s_endpgm')

    def build(self):
        I = self.I
        I('''s_cmp_ge_u32 s2, 256
s_cbranch_scc1 L_exit''')
        if self.p['x_dbg']: I('s_memrealtime s[90:91]')
        if self.p['stamps']:
            for i in range(16): I(f's_mov_b32 s{64+2*i}, 0')
            self.stamp(0)
        I(f'''v_lshrrev_b32 v1, 6, v0
s_and_b32 s4, s2, 7
s_lshr_b32 s5, s2, 3
s_mov_b32 s48, 0
v_readfirstlane_b32 s3, v1
s_cmp_ge_u32 s3, {W_L0}
s_cbranch_scc1 L_LD
s_cmp_ge_u32 s3, {W_C0}
s_cbranch_scc1 L_CW
s_cmp_eq_u32 s3, {W_J1}
s_cbranch_scc1 L_J1''')
        self.role_j0()
        self.role_j1()
        self.role_compute()
        self.role_loader()
        I('L_exit:\ns_endpgm\nL_codeend:')
        head = f'''; Fused decode step: GQA attention over the KV cache + SwiGLU FFN + sigmoid-gated mix (gfx950).
;
;
; @launch grid=(256,1,1) block=(896,1,1) lds={LDS_BYTES}
.amdgcn_target "amdgcn-amd-amdhsa--gfx950"
.text
.globl {KNAME}
.p2align 8
.type {KNAME},@function
{KNAME}:
'''
        foot = f'''.section .rodata,"a"
.p2align 6
.amdhsa_kernel {KNAME}
  .amdhsa_next_free_vgpr 128
  .amdhsa_next_free_sgpr 102
  .amdhsa_accum_offset 128
  .amdhsa_group_segment_fixed_size 0
  .amdhsa_kernarg_size 104
  .amdhsa_user_sgpr_count 2
  .amdhsa_user_sgpr_kernarg_segment_ptr 1
  .amdhsa_system_sgpr_workgroup_id_x 1
.end_amdhsa_kernel
'''
        return head + self.a.text() + foot

def main():
    out = sys.argv[1]
    kw = {}
    for arg in sys.argv[2:]:
        k, v = arg.split('=')
        assert k in DEF or k in ('pfn',), k
        kw[k] = (v == 'True') if v in ('True', 'False') else int(v)
    open(out, 'w').write(G(**kw).build())

if __name__ == '__main__':
    main()
```

```python
import sys, math, struct
from emit import Asm

def fhex(x): return '0x%08x' % struct.unpack('<I', struct.pack('<f', x))[0]
KNAME = 'gated_mix__gqa_block_cached__swiglu_ffn__decode_kernel'

WS_Q  = 0x000000
WS_F  = 0x020000
WS_ID = 0x030000
COPYB = 0x040000
WS_ST = 0x080000
WS_E  = 0x088000
WS_T1 = 0x100000
WS_T3 = 0x180000
WS_DBG = 0x200000
WS_SIZE = 0x400000

V_OFF = 0
STG0 = 0
STG1 = 16384
WO_OFF = 131072
WD_OFF = 147456
P_OFF = 155648
Q_OFF = 159744
MISC = 160768
MX = MISC
LX = MISC + 128
A1 = MISC + 256
A2 = MISC + 512
GATE = MISC + 640
CNT = MISC + 704
WL = MISC + 1024
C_Q, C_H, C_K, C_1, C_2, C_A, C_M, C_W, C_T = 0, 4, 8, 12, 16, 20, 24, 28, 32
LDS_BYTES = 163840

SPIN_LIMIT = 300000
SC = ' sc1'
W_J0, W_J1, W_C0, W_L0 = 0, 1, 2, 10

DEF = dict(nt_k=True, nt_v=True, nt_w=True, dk=4, dv=6, dv2=4, dvn=0, stamps=False, na=14, ksig=0, kthr=4,
           slq=2, slf=2, sls=2, sl2=0, sl3=0, pf=False, na_polls=10, force_remote=False, nopoll=False,
           t3sets=1, t3st=4, tlb=True, sw=2, t3delay=0, t3ld=0, t3stf=0, x_nob=False, qdelay=0,
           x_stream=False, rka=1, rkb=3, rkc=0, x_start=False, t2sets=1, t2st=3, wpos=32, wsplit=6, light=False, t3mask=True, t3wait=True, t2wait=False, t2mask=False, prio_ld=0, prio_j=0, sla=1, slk=2, rcb=1, rcc=0, owarm=0, pre1=False, pre3=False, x_dirty=0, locf=0, x_dbg=False)

class G:
    def __init__(self, **kw):
        self.p = dict(DEF); self.p.update(kw)
        self.a = Asm()
        self.uid = 0
        self.glim = 0 if self.p['nopoll'] else SPIN_LIMIT
    def I(self, s): self.a.I(s)
    def lab(self, base):
        self.uid += 1
        return f'L_{base}_{self.uid}'
    def stamp(self, i):
        if self.p['stamps'] and (not self.p['light'] or i in (0, 12)):
            self.I(f's_memrealtime s[{64+2*i}:{65+2*i}]')
            self.I('s_waitcnt lgkmcnt(0)')
    def stamp_dump(self, srd, n=12):
        if not self.p['stamps']: return
        I = self.I
        I('s_mov_b64 exec, -1')
        I('s_lshl_b32 s6, s2, 4')
        I('s_add_u32 s6, s6, s3')
        I('s_lshl_b32 s6, s6, 6')
        I(f's_add_u32 s6, s6, {WS_DBG}')
        I('v_mov_b32 v1, s6')
        I('s_mov_b64 exec, 1')
        for j in range(0, n, 4):
            for t in range(4):
                I(f'v_mov_b32 v{4+t}, s{64+2*(j+t)}')
            I(f'buffer_store_dwordx4 v[4:7], v1, {srd}, 0 offen offset:{j*4}')
        I('s_mov_b64 exec, -1')
    def signal(self, vC, vOne, off):
        self.I(f'''s_mov_b64 exec, 1
ds_add_u32 {vC}, {vOne} offset:{off}
s_mov_b64 exec, -1''')
    def lds_wait(self, vC, vT, off, n, sleep=1):
        L = self.lab('lw'); D = self.lab('lwd')
        self.I(f'''{L}:
ds_read_b32 {vT}, {vC} offset:{off}
s_add_u32 s48, s48, 1
s_waitcnt lgkmcnt(0)
v_readfirstlane_b32 s49, {vT}
s_cmp_ge_u32 s49, {n}
s_cbranch_scc1 {D}
s_cmp_gt_u32 s48, {SPIN_LIMIT}
s_cbranch_scc1 {D}''')
        if sleep: self.I(f's_sleep {sleep}')
        self.I(f'''s_branch {L}
{D}:''')
    def tag_load(self, wsbase):
        self.I(f's_load_dword s52, s[{wsbase}:{wsbase+1}], {WS_E}')
        for i in range(4): self.I(f's_mov_b32 s{53+i}, 0x0706050{i}')
        self.I('s_mov_b32 s57, 0x0c0c0400\ns_mov_b32 s58, 0x04000c0c\ns_mov_b32 s63, 0xffffff00')
    def untag(self, regs):
        for r in regs: self.I(f'v_and_b32 v{r}, s63, v{r}')
    def tag_ready(self):
        self.I('s_waitcnt lgkmcnt(0)\ns_add_u32 s52, s52, 1')
    def tag_acc(self, r, first, acc='v16', t1='v17', t2='v18', t3='v19'):
        self.I(f'v_perm_b32 {t2}, v{r+1}, v{r}, s57\nv_perm_b32 {t3}, v{r+3}, v{r+2}, s58\nv_or_b32 {t2}, {t2}, {t3}')
        if first: self.I(f'v_xor_b32 {acc}, s52, {t2}')
        else: self.I(f'v_xor_b32 {t1}, s52, {t2}\nv_or_b32 {acc}, {acc}, {t1}')
    def poll_tail(self, L, D, acc, sleep):
        self.I(f'''v_cmp_ne_u32 vcc, 0, {acc}
s_cbranch_vccz {D}
s_cmp_gt_u32 s48, {self.glim}
s_cbranch_scc1 {D}''')
        if sleep: self.I(f's_sleep {sleep}')
    def srd(self, base, karg_off, size):
        self.I(f's_load_dwordx2 s[{base}:{base+1}], s[0:1], {karg_off}')
        self.I(f's_mov_b32 s{base+2}, {size}')
        self.I(f's_mov_b32 s{base+3}, 0x20000')
    def stats_loads(self):
        self.I(f"""buffer_load_dwordx4 v[64:67], v61, s[20:23], 0 offen{SC}
buffer_load_dwordx4 v[68:71], v61, s[20:23], 0 offen offset:16{SC}""")
    def stats_check(self):
        self.tag_acc(64, True, 'v5', 'v6', 'v7', 'v4')
        self.tag_acc(68, False, 'v5', 'v6', 'v7', 'v4')
    def lane_setup(self):
        self.I('''v_and_b32 v1, 63, v0
v_lshrrev_b32 v2, 4, v1
v_and_b32 v3, 15, v1''')
    def mode_store(self, ins, smode):
        Lr = self.lab('ms'); Le = self.lab('mse')
        self.I(f'''s_cmp_eq_u32 {smode}, 0
s_cbranch_scc1 {Lr}
{ins}{('', ' nt', ' sc0', ' sc0 nt')[self.p['locf']]}
s_branch {Le}
{Lr}:
{ins}{SC}
{Le}:''')

    def qtile_issue(self, srdW, srdX, sBase, sKs):
        I = self.I; pitch = 8192; stg = STG0
        ntf = ' nt' if self.p['nt_w'] else ''
        I(f'''v_lshrrev_b32 v4, 5, v1
v_lshlrev_b32 v4, 3, v4
v_bfe_u32 v5, v1, 3, 2
v_add_u32 v4, v4, v5
v_mul_u32_u24 v4, {pitch}, v4
v_and_b32 v5, 7, v1
v_bfe_u32 v6, v1, 4, 2
v_lshlrev_b32 v6, 1, v6
v_xor_b32 v5, v5, v6
v_lshlrev_b32 v5, 4, v5
v_add_u32 v4, v4, v5''')
        for i in range(16):
            rowi = 32*(i >> 2) + 16*(i & 1) + 4*((i >> 1) & 1)
            I(f's_mov_b32 m0, {stg + i*1024}')
            I(f's_add_u32 s7, {sBase}, {rowi*pitch}')
            I(f'buffer_load_dwordx4 v4, {srdW}, s7 offen{ntf} lds')
        I(f'''v_and_b32 v5, 1, v3
v_lshlrev_b32 v5, 10, v5
v_lshlrev_b32 v6, 4, v2
v_add_u32 v5, v5, v6
s_lshl_b32 s6, {sKs}, 8
v_add_u32 v5, s6, v5''')
        for kk in range(4):
            I(f'buffer_load_dwordx4 v[{8+4*kk}:{11+4*kk}], v5, {srdX}, 0 offen offset:{kk*64}')
        I(f'''v_lshrrev_b32 v6, 2, v3
v_and_b32 v7, 3, v3
v_lshlrev_b32 v28, 2, v2
v_add_u32 v28, v28, v6
v_lshlrev_b32 v28, 7, v28
v_lshlrev_b32 v7, 3, v7
v_add_u32 v28, v28, v7
v_add_u32 v28, {stg}, v28
v_lshlrev_b32 v29, 1, v2
v_lshrrev_b32 v6, 1, v6
v_add_u32 v29, v29, v6
v_and_b32 v29, 3, v29''')
        for nt_ in range(4):
            I(f'''v_xor_b32 v6, {nt_}, v29
v_lshlrev_b32 v6, 5, v6
v_add_u32 v{24+nt_}, v28, v6''')
    def qtile_compute(self):
        I = self.I
        def reads(kk, setb):
            for nt_ in range(4):
                for hf in range(2):
                    r = setb + 4*nt_ + 2*hf
                    I(f'ds_read_b64_tr_b16 v[{r}:{r+1}], v{24+nt_} offset:{kk*4096 + hf*2048}')
        def mf(kk, setb):
            for nt_ in range(4):
                c = '0' if kk == 0 else f'v[{64+4*nt_}:{67+4*nt_}]'
                I(f'v_mfma_f32_16x16x32_bf16 v[{64+4*nt_}:{67+4*nt_}], v[{8+4*kk}:{11+4*kk}], v[{setb+4*nt_}:{setb+4*nt_+3}], {c}')
        sets = (32, 48)
        reads(0, sets[0])
        for kk in range(4):
            I('s_waitcnt lgkmcnt(0)')
            if kk < 3: reads(kk+1, sets[(kk+1) & 1])
            mf(kk, sets[kk & 1])
        I('''s_mov_b32 s40, 0xffff0000
s_mov_b32 s41, 0
s_mov_b32 s42, 0
s_mov_b32 s43, 0x0000ffff
s_mov_b32 s44, 0
s_mov_b32 s45, 0xffff0000''')
        for b in range(2):
            I(f'''v_cndmask_b32 v{40+b}, v{64+b}, v{68+b}, s[40:41]
v_cndmask_b32 v{40+b}, v{40+b}, v{72+b}, s[42:43]
v_cndmask_b32 v{40+b}, v{40+b}, v{76+b}, s[44:45]''')

    def ftile_issue(self, srdW, srdX, sBase, sKs):
        I = self.I; pitch = 3584; stg = STG1
        ntf = ' nt' if self.p['nt_w'] else ''
        I(f'''v_lshrrev_b32 v4, 4, v1
v_lshlrev_b32 v4, 3, v4
v_bfe_u32 v5, v1, 2, 2
v_add_u32 v4, v4, v5
v_mul_u32_u24 v4, {pitch}, v4
v_and_b32 v5, 3, v1
v_bfe_u32 v6, v1, 4, 1
v_lshlrev_b32 v6, 1, v6
v_xor_b32 v5, v5, v6
v_lshlrev_b32 v5, 4, v5
v_add_u32 v4, v4, v5''')
        for i in range(16):
            rowi = 32*(i >> 1) + 4*(i & 1)
            I(f's_mov_b32 m0, {stg + i*1024}')
            I(f's_add_u32 s7, {sBase}, {rowi*pitch}')
            I(f'buffer_load_dwordx4 v4, {srdW}, s7 offen{ntf} lds')
        I(f'''v_and_b32 v5, 1, v3
v_lshlrev_b32 v5, 10, v5
v_lshlrev_b32 v6, 4, v2
v_add_u32 v5, v5, v6
s_lshl_b32 s6, {sKs}, 9
v_add_u32 v5, s6, v5''')
        for kk in range(8):
            I(f'buffer_load_dwordx4 v[{96+4*kk}:{99+4*kk}], v5, {srdX}, 0 offen offset:{kk*64}')
        I(f'''v_lshrrev_b32 v6, 2, v3
v_and_b32 v7, 3, v3
v_lshlrev_b32 v28, 2, v2
v_add_u32 v28, v28, v6
v_lshlrev_b32 v28, 6, v28
v_lshlrev_b32 v7, 3, v7
v_add_u32 v28, v28, v7
v_add_u32 v28, {stg}, v28
v_and_b32 v29, 1, v2
v_lshlrev_b32 v6, 5, v29
v_add_u32 v24, v28, v6
v_xor_b32 v6, 1, v29
v_lshlrev_b32 v6, 5, v6
v_add_u32 v25, v28, v6''')
    def ftile_compute(self):
        I = self.I
        def reads(k2, setb):
            for kq in range(2):
                kk = 2*k2 + kq
                for nt_ in range(2):
                    for hf in range(2):
                        r = setb + 8*kq + 4*nt_ + 2*hf
                        I(f'ds_read_b64_tr_b16 v[{r}:{r+1}], v{24+nt_} offset:{kk*2048 + hf*1024}')
        def mf(k2, setb):
            for kq in range(2):
                kk = 2*k2 + kq
                for nt_ in range(2):
                    c = '0' if kk == 0 else f'v[{64+4*nt_}:{67+4*nt_}]'
                    r = setb + 8*kq + 4*nt_
                    I(f'v_mfma_f32_16x16x32_bf16 v[{64+4*nt_}:{67+4*nt_}], v[{96+4*kk}:{99+4*kk}], v[{r}:{r+3}], {c}')
        sets = (32, 48)
        reads(0, sets[0])
        for k2 in range(4):
            I('s_waitcnt lgkmcnt(0)')
            if k2 < 3: reads(k2+1, sets[(k2+1) & 1])
            mf(k2, sets[k2 & 1])
        I('''s_mov_b32 s40, 0xffff0000
s_mov_b32 s41, 0
s_mov_b32 s42, 0
s_mov_b32 s43, 0x0000ffff
s_mov_b32 s44, 0
s_mov_b32 s45, 0xffff0000
v_cndmask_b32 v40, v64, v68, s[40:41]
v_cndmask_b32 v40, v40, v65, s[42:43]
v_cndmask_b32 v40, v40, v69, s[44:45]''')

    def role_j0(self):
        I = self.I; p = self.p
        LF = ('', ' nt', ' sc0', ' sc0 nt')[p['locf']]
        I('L_J0:')
        if p['prio_j']: I(f"s_setprio {p['prio_j']}")
        self.srd(16, 24, 0x400000)
        self.srd(20, 0, 2048)
        self.srd(24, 96, WS_SIZE)
        I('s_barrier')
        if p['x_stream']: I('s_endpgm')
        self.lane_setup()
        I(f"""s_lshr_b32 s8, s5, 2          ; qcl
s_and_b32 s9, s5, 3           ; ks
s_mul_i32 s10, s9, 128*8192
s_lshl_b32 s6, s4, 10
s_add_u32 s10, s10, s6
s_lshl_b32 s6, s8, 7
s_add_u32 s10, s10, s6
s_getreg_b32 s12, hwreg(HW_REG_XCC_ID, 0, 4)
v_mov_b32 v90, {CNT}
v_mov_b32 v91, 1
s_waitcnt lgkmcnt(0)""")
        self.qtile_issue('s[16:19]', 's[20:23]', 's10', 's9')
        self.tag_load(24)
        I("""v_and_b32 v81, 3, v1
v_add_u32 v81, 0x07060500, v81
s_lshl_b32 s13, s12, 8
v_mov_b32 v82, s13""")
        if p['pre3']:
            self.tag_ready()
            I(f"""s_not_b32 s6, s52
v_mov_b32 v83, s6
s_lshl_b32 s6, s4, 3
s_add_u32 s6, s6, s9
s_lshl_b32 s6, s6, 11
s_lshl_b32 s7, s8, 8
s_add_u32 s6, s6, s7
v_lshlrev_b32 v84, 2, v1
v_add_u32 v85, s6, v84
v_add_u32 v86, {4*2048}, v85
s_lshl_b32 s6, s4, 5
s_add_u32 s6, s6, s5
s_lshl_b32 s6, s6, 7
s_add_u32 s6, s6, {WS_ID}
v_add_u32 v87, s6, v84
buffer_store_dword v83, v85, s[24:27], 0 offen
buffer_store_dword v83, v86, s[24:27], 0 offen
s_mov_b32 exec_hi, 0
buffer_store_dword v83, v87, s[24:27], 0 offen
s_mov_b32 exec_hi, -1""")
        self.stamp(1)
        I('s_waitcnt vmcnt(0)')
        if not p['pre3']: self.tag_ready()
        I('v_mov_b32 v80, s52')
        self.stamp(2)
        self.qtile_compute()
        self.signal('v90', 'v91', C_T)
        I(f"""v_perm_b32 v40, v40, v80, v81
v_perm_b32 v41, v41, v80, v81
v_perm_b32 v82, v82, v80, v81
s_lshl_b32 s6, s4, 3
s_add_u32 s6, s6, s9
s_lshl_b32 s6, s6, 11         ; (g*8 + ks)*2048
s_lshl_b32 s7, s8, 8
s_add_u32 s6, s6, s7
v_lshlrev_b32 v4, 2, v1
v_add_u32 v5, s6, v4
v_add_u32 v6, {4*2048}, v5
s_lshl_b32 s6, s4, 5
s_add_u32 s6, s6, s5
s_lshl_b32 s6, s6, 7
s_add_u32 s6, s6, {WS_ID}
v_add_u32 v7, s6, v4
s_mov_b32 s14, {COPYB}
buffer_store_dword v40, v5, s[24:27], 0 offen{LF}
buffer_store_dword v41, v6, s[24:27], 0 offen{LF}
s_mov_b32 exec_hi, 0
buffer_store_dword v82, v7, s[24:27], 0 offen{LF}
s_mov_b32 exec_hi, -1
""")
        if not p['x_nob']:
            I(f"""buffer_store_dword v40, v5, s[24:27], s14 offen{SC}
buffer_store_dword v41, v6, s[24:27], s14 offen{SC}
s_mov_b32 exec_hi, 0
buffer_store_dword v82, v7, s[24:27], s14 offen{SC}
s_mov_b32 exec_hi, -1""")
        if p['qdelay']: I(f"s_sleep {p['qdelay']}")
        self.stamp(3)
        I(f"""s_lshl_b32 s6, s4, 1
s_lshr_b32 s7, s5, 4          ; b
s_add_u32 s6, s6, s7
s_lshl_b32 s6, s6, 13
v_lshlrev_b32 v4, 4, v1
v_add_u32 v4, s6, v4
v_and_b32 v5, 31, v1
v_lshlrev_b32 v5, 7, v5
s_lshl_b32 s6, s4, 12
s_add_u32 s6, s6, {WS_ID}
v_add_u32 v5, s6, v5
s_mov_b32 s15, {COPYB if p['force_remote'] else 0}
s_mov_b32 s11, 0""")
        L = self.lab('qg'); D = self.lab('qgd'); Lk = self.lab('qgk')
        I(f'{L}:')
        for ks in range(4):
            I(f's_add_u32 s7, s15, {ks*2048}')
            for i in range(2):
                r = 8 + 8*ks + 4*i
                I(f'buffer_load_dwordx4 v[{r}:{r+3}], v4, s[24:27], s7 offen offset:{i*1024}{SC}')
        I(f'buffer_load_dwordx4 v[40:43], v5, s[24:27], s15 offen{SC}')
        I('s_add_u32 s48, s48, 1\ns_add_u32 s11, s11, 1\ns_waitcnt vmcnt(0)')
        for j in range(9):
            self.tag_acc(8 + 4*j, j == 0, 'v44', 'v45', 'v46', 'v47')
        self.poll_tail(L, D, 'v44', p['slq'])
        if not p['force_remote']:
            I(f"""s_cmp_lt_u32 s11, {p['na_polls']}
s_cbranch_scc1 {L}
s_xor_b32 s15, s15, {COPYB}""")
        I(f"""s_branch {L}
{D}:""")
        self.stamp(5)
        I(f"""v_bfe_u32 v40, v40, 8, 4
v_cmp_ne_u32 vcc, s12, v40
s_cmp_eq_u64 vcc, 0
s_cselect_b32 s6, {0 if p['force_remote'] else 1}, 0
v_mov_b32 v44, s6
s_mov_b64 exec, 1
ds_write_b32 v90, v44 offset:{C_M}
s_mov_b64 exec, -1""")
        self.untag(range(8, 40))
        for e in range(8):
            I(f'v_add_f32 v{8+e}, v{8+e}, v{16+e}')
            I(f'v_add_f32 v{24+e}, v{24+e}, v{32+e}')
        for e in range(8):
            I(f'v_add_f32 v{8+e}, v{8+e}, v{24+e}')
        I(f"""v_cvt_pk_bf16_f32 v40, v8, v9
v_cvt_pk_bf16_f32 v41, v10, v11
v_cvt_pk_bf16_f32 v42, v12, v13
v_cvt_pk_bf16_f32 v43, v14, v15
v_lshlrev_b32 v4, 3, v1
v_add_u32 v4, {Q_OFF}, v4
ds_write_b64 v4, v[40:41]
ds_write_b64 v4, v[42:43] offset:512""")
        self.signal('v90', 'v91', C_Q)
        I('s_waitcnt lgkmcnt(0)')
        self.stamp(6)
        self.stamp_dump('s[24:27]')
        I('s_endpgm')

    def role_j1(self):
        I = self.I; p = self.p
        LF = ('', ' nt', ' sc0', ' sc0 nt')[p['locf']]
        I('L_J1:')
        I('s_load_dwordx4 s[8:11], s[0:1], 48')
        self.srd(20, 0, 2048)
        self.srd(24, 96, WS_SIZE)
        self.srd(28, 72, 1024)
        I('s_barrier')
        if p['x_stream']: I('s_endpgm')
        self.lane_setup()
        I(f"""s_mul_i32 s12, s5, 9363
s_lshr_b32 s12, s12, 16
s_mul_i32 s13, s12, 7
s_sub_u32 s13, s5, s13        ; cf
s_and_b32 s14, s12, 1         ; mat
s_lshr_b32 s15, s12, 1        ; ks
v_mov_b32 v90, {CNT}
v_mov_b32 v91, 1
s_waitcnt lgkmcnt(0)
s_cmp_eq_u32 s14, 0
s_cselect_b32 s16, s8, s10
s_cselect_b32 s17, s9, s11
s_mov_b32 s18, {512*1792*2}
s_mov_b32 s19, 0x20000
s_mul_i32 s8, s15, 256*3584
s_mul_i32 s6, s4, 448
s_add_u32 s8, s8, s6
s_lshl_b32 s6, s13, 6
s_add_u32 s8, s8, s6""")
        Lskip = self.lab('nof1'); Lj = self.lab('f1j')
        I(f"""s_cmp_ge_u32 s5, 28
s_cbranch_scc1 {Lskip}""")
        self.ftile_issue('s[16:19]', 's[20:23]', 's8', 's15')
        I(f'{Lskip}:')
        I("""v_lshlrev_b32 v80, 4, v1
buffer_load_dwordx4 v[84:87], v80, s[20:23], 0 offen
buffer_load_dwordx4 v[88:91], v80, s[20:23], 0 offen offset:1024
buffer_load_dwordx4 v[92:95], v80, s[28:31], 0 offen""")
        self.tag_load(24)
        I("""v_and_b32 v81, 3, v1
v_add_u32 v81, 0x07060500, v81""")
        if p['pre3']:
            self.tag_ready()
            Lf = self.lab('pf1')
            I(f"""s_cmp_ge_u32 s5, 28
s_cbranch_scc1 {Lf}
s_not_b32 s6, s52
v_mov_b32 v83, s6
s_lshl_b32 s6, s4, 2
s_lshl_b32 s7, s14, 1
s_add_u32 s6, s6, s7
s_add_u32 s6, s6, s15
s_lshl_b32 s6, s6, 11
s_lshl_b32 s7, s13, 7
s_add_u32 s6, s6, s7
s_add_u32 s6, s6, {WS_F}
v_lshrrev_b32 v82, 5, v1
v_lshlrev_b32 v82, 10, v82
v_and_b32 v79, 31, v1
v_lshlrev_b32 v79, 2, v79
v_add_u32 v82, v82, v79
v_add_u32 v82, s6, v82
buffer_store_dword v83, v82, s[24:27], 0 offen
{Lf}:""")
        self.stamp(1)
        I('s_waitcnt vmcnt(0)')
        if not p['pre3']: self.tag_ready()
        I('v_mov_b32 v80, s52')
        self.stamp(2)
        I(f"""s_cmp_ge_u32 s5, 28
s_cbranch_scc1 {Lj}""")
        self.ftile_compute()
        I(f"""v_perm_b32 v40, v40, v80, v81
s_lshl_b32 s6, s4, 2
s_add_u32 s6, s6, s12
s_lshl_b32 s6, s4, 2
s_lshl_b32 s7, s14, 1
s_add_u32 s6, s6, s7
s_add_u32 s6, s6, s15
s_lshl_b32 s6, s6, 11         ; *[b 2][256] f32
s_lshl_b32 s7, s13, 7
s_add_u32 s6, s6, s7
s_add_u32 s6, s6, {WS_F}
v_lshrrev_b32 v4, 5, v1
v_lshlrev_b32 v4, 10, v4
v_and_b32 v5, 31, v1
v_lshlrev_b32 v5, 2, v5
v_add_u32 v4, v4, v5
v_add_u32 v4, s6, v4
s_mov_b32 s7, {COPYB}
buffer_store_dword v40, v4, s[24:27], 0 offen{LF}""")
        if not p['x_nob']: I(f'buffer_store_dword v40, v4, s[24:27], s7 offen{SC}')
        if p['qdelay']: I(f"s_sleep {p['qdelay']}")
        I(f'{Lj}:')
        I(f'v_mov_b32 v82, {CNT}\nv_mov_b32 v83, 1')
        self.signal('v82', 'v83', C_T)
        self.stamp(3)
        I('v_mov_b32 v8, 0\nv_mov_b32 v9, 0')
        for e in range(4):
            I(f"""v_lshlrev_b32 v10, 16, v{92+e}
v_and_b32 v11, 0xffff0000, v{92+e}
v_lshlrev_b32 v12, 16, v{84+e}
v_and_b32 v13, 0xffff0000, v{84+e}
v_lshlrev_b32 v14, 16, v{88+e}
v_and_b32 v15, 0xffff0000, v{88+e}
v_fmac_f32 v8, v10, v12
v_fmac_f32 v9, v10, v14
v_fmac_f32 v8, v11, v13
v_fmac_f32 v9, v11, v15""")
        for rr in (8, 4, 2, 1):
            I(f'v_add_f32_dpp v8, v8, v8 row_ror:{rr} row_mask:0xf bank_mask:0xf')
            I(f'v_add_f32_dpp v9, v9, v9 row_ror:{rr} row_mask:0xf bank_mask:0xf')
        for sw in ('v_permlane16_swap_b32', 'v_permlane32_swap_b32'):
            I(f"""v_mov_b32 v10, v8
v_mov_b32 v11, v9
{sw} v8, v10
{sw} v9, v11
v_add_f32 v8, v8, v10
v_add_f32 v9, v9, v11""")
        I(f"""v_mul_f32 v8, {fhex(-math.log2(math.e))}, v8
v_mul_f32 v9, {fhex(-math.log2(math.e))}, v9
v_exp_f32 v8, v8
v_exp_f32 v9, v9
v_add_f32 v8, 1.0, v8
v_add_f32 v9, 1.0, v9
v_rcp_f32 v8, v8
v_rcp_f32 v9, v9
v_mov_b32 v10, {GATE}
s_mov_b64 exec, 1
ds_write_b64 v10, v[8:9]
s_mov_b64 exec, -1
s_mov_b32 s40, 0
s_mov_b32 s41, -1
v_cndmask_b32 v16, v8, v9, s[40:41]
v_sub_f32 v16, 1.0, v16""")
        I('v_mov_b32 v90, %d\nv_mov_b32 v91, 1' % CNT)
        self.signal('v90', 'v91', C_H)
        I(f"""s_lshl_b32 s6, s4, 13         ; g*[mat][ks][b][256]*4
s_lshr_b32 s7, s5, 2
s_mul_i32 s7, s7, 112
s_add_u32 s6, s6, s7
s_add_u32 s6, s6, {WS_F}
v_and_b32 v4, 31, v1
v_min_u32 v5, 27, v4
v_and_b32 v17, 3, v5
v_lshlrev_b32 v17, 3, v17
v_lshrrev_b32 v17, v17, v80
v_lshlrev_b32 v5, 2, v5
v_lshrrev_b32 v6, 5, v1
v_lshlrev_b32 v6, 10, v6
v_add_u32 v5, v5, v6
v_add_u32 v5, s6, v5
s_mov_b32 s15, {COPYB if p['force_remote'] else 0}
s_mov_b32 s11, 0""")
        L = self.lab('hg'); D = self.lab('hgd')
        I(f'{L}:')
        for m in range(4):
            I(f's_add_u32 s7, s15, {m*2048}')
            I(f'buffer_load_dword v{24+m}, v5, s[24:27], s7 offen{SC}')
        I('s_add_u32 s48, s48, 1\ns_add_u32 s11, s11, 1\ns_waitcnt vmcnt(0)')
        I('v_xor_b32 v18, v24, v17')
        for j in range(1, 4):
            I(f'v_xor_b32 v19, v{24+j}, v17\nv_or_b32 v18, v18, v19')
        I('v_and_b32 v18, 0xff, v18')
        self.poll_tail(L, D, 'v18', p['slf'])
        if not p['force_remote']:
            I(f"""s_cmp_lt_u32 s11, {p['na_polls']}
s_cbranch_scc1 {L}
s_xor_b32 s15, s15, {COPYB}""")
        I(f"""s_branch {L}
{D}:""")
        self.stamp(5)
        self.untag(range(24, 28))
        I(f"""v_add_f32 v24, v24, v25
v_add_f32 v28, v26, v27
v_mul_f32 v25, {fhex(-math.log2(math.e))}, v24
v_exp_f32 v25, v25
v_add_f32 v25, 1.0, v25
v_rcp_f32 v25, v25
v_mul_f32 v24, v24, v25
v_mul_f32 v24, v24, v28
v_mul_f32 v24, v24, v16
v_cmp_gt_u32 vcc, 28, v4
v_cndmask_b32 v24, 0, v24, vcc
v_cvt_pk_bf16_f32 v24, v24, v24
v_bfe_u32 v6, v4, 2, 2
v_lshlrev_b32 v6, 4, v6
v_lshrrev_b32 v7, 4, v4
v_lshlrev_b32 v7, 3, v7
v_add_u32 v6, v6, v7
v_and_b32 v7, 3, v4
v_lshlrev_b32 v7, 1, v7
v_add_u32 v6, v6, v7
v_lshrrev_b32 v7, 5, v1
v_lshlrev_b32 v7, 6, v7
v_add_u32 v6, v6, v7
v_add_u32 v6, {A2}, v6
ds_write_b16 v6, v24
s_waitcnt lgkmcnt(0)""")
        self.stamp(6)
        self.stamp_dump('s[24:27]')
        I('s_endpgm')

    def role_loader(self):
        I = self.I; p = self.p
        ntv = ' nt' if p['nt_v'] else ''
        ntw = ' nt' if p['nt_w'] else ''
        I('L_LD:')
        if p['prio_ld']: I(f"s_setprio {p['prio_ld']}")
        I(f"""s_sub_u32 s8, s3, {W_L0}           ; loader j
v_mov_b32 v90, {CNT}
v_mov_b32 v91, 1
s_cmp_lg_u32 s8, 0
s_cbranch_scc1 L_LD_noinit
v_mov_b32 v8, 0
v_mov_b32 v9, 0
v_mov_b32 v10, 0
v_mov_b32 v11, 0
ds_write_b128 v90, v[8:11]
ds_write_b128 v90, v[8:11] offset:16
ds_write_b128 v90, v[8:11] offset:32
s_waitcnt lgkmcnt(0)
L_LD_noinit:
s_barrier""")
        self.srd(16, 16, 0x2000000)
        self.srd(20, 32, 0x400000)
        self.srd(24, 64, 1792*512*2)
        self.srd(28, 96, WS_SIZE)
        self.lane_setup()
        if p['pf']:
            I(f"""s_cmp_lg_u32 s8, 3
s_cbranch_scc1 L_LD_nopf
s_getpc_b64 s[36:37]
L_PC:
s_add_u32 s36, s36, {KNAME}-L_PC
s_addc_u32 s37, s37, -1
v_lshlrev_b32 v4, 4, v1
s_mov_b32 s6, L_codeend-{KNAME}-16""")
            for j in range(p.get('pfn', 14)):
                I(f"""v_min_u32 v5, s6, v4
global_load_dwordx4 v[12:15], v5, s[36:37]
v_add_u32 v4, 1024, v4""")
            I('L_LD_nopf:')
        I('s_waitcnt lgkmcnt(0)')
        TLBMARK = True
        I(f"""s_and_b32 s6, s8, 1
s_lshl_b32 s6, s6, 2
v_add_u32 v5, s6, v2          ; (4*(j&1) + rho)
v_lshlrev_b32 v5, 1, v5
v_xor_b32 v5, v5, v3          ; chunk
v_lshlrev_b32 v5, 4, v5
v_lshlrev_b32 v6, 8, v2
v_add_u32 v10, v5, v6         ; V voffset
v_lshlrev_b32 v6, 17, v2
v_add_u32 v11, v5, v6
v_lshlrev_b32 v6, 10, v2
v_add_u32 v16, v5, v6
s_lshr_b32 s6, s5, 4          ; b
s_lshl_b32 s6, s6, 3
s_add_u32 s6, s6, s4          ; bh
s_lshl_b32 s10, s6, 21
s_and_b32 s6, s5, 15          ; t
s_lshl_b32 s6, s6, 17
s_add_u32 s10, s10, s6
s_and_b32 s6, s8, 1
s_lshl_b32 s6, s6, 10
s_add_u32 s10, s10, s6        ; V base + (j & 1) * 1024
s_lshr_b32 s11, s5, 2         ; w'
s_and_b32 s12, s5, 3          ; cg
s_lshl_b32 s13, s4, 9
s_lshl_b32 s6, s11, 4
s_add_u32 s13, s13, s6
s_add_u32 s13, s13, s8
s_lshl_b32 s13, s13, 10
s_lshl_b32 s6, s12, 8
s_add_u32 s13, s13, s6
s_lshl_b32 s14, s4, 3
s_add_u32 s14, s14, s11       ; rg
s_mul_i32 s14, s14, 28
s_lshl_b32 s6, s8, 2
s_add_u32 s15, s14, s6
s_add_u32 s6, s8, 4
s_min_u32 s6, s6, 6
s_lshl_b32 s6, s6, 2
s_add_u32 s14, s14, s6
s_lshl_b32 s15, s15, 10
s_lshl_b32 s14, s14, 10
s_lshl_b32 s6, s12, 8
s_add_u32 s15, s15, s6
s_add_u32 s14, s14, s6
s_lshl_b32 s9, s8, 10         ; j*1024""")
        if p['tlb']:
            Lt = self.lab('tlb')
            I(f"""; loader 2 touches the pages that are first used late (V, wo, w_down, hand-off area): translation warm-up
s_cmp_lg_u32 s8, 2
s_cbranch_scc1 {Lt}
v_mov_b32 v20, 0
s_mov_b64 exec, 1
buffer_load_dword v21, v20, s[16:19], s10 offen
buffer_load_dword v22, v20, s[20:23], s13 offen
buffer_load_dword v23, v20, s[24:27], s15 offen
s_mov_b32 s6, {WS_T1}
buffer_load_dword v24, v20, s[28:31], s6 offen
s_mov_b32 s6, {WS_T3}
buffer_load_dword v25, v20, s[28:31], s6 offen
s_mov_b32 s6, {WS_ST}
buffer_load_dword v26, v20, s[28:31], s6 offen
s_mov_b64 exec, -1
{Lt}:""")
        self.stamp(1)
        self.lds_wait('v90', 'v7', C_K, p['kthr'], sleep=p['slk'])
        self.lds_wait('v90', 'v7', C_T, 2, sleep=p['slk'])
        I('s_waitcnt vmcnt(0)')
        self.stamp(2)
        loads = []
        I(f"""s_mul_i32 s61, s5, {p['rkb']}
s_mul_i32 s6, s4, {p['rkc']}
s_add_u32 s61, s61, s6
s_lshr_b32 s6, s8, 1
s_add_u32 s61, s61, s6
s_mul_i32 s62, s5, {p['rcb']}
s_mul_i32 s6, s4, {p['rcc']}
s_add_u32 s62, s62, s6""")
        for q in range(32):
            cw = q >> 2
            loads.append([f's_add_u32 m0, s9, {V_OFF + q*4096}',
                          f's_add_u32 s6, s61, {cw*p["rka"] + 2*(q & 3)}',
                          f's_and_b32 s6, s6, 7',
                          f's_lshl_b32 s6, s6, 11',
                          f's_add_u32 s6, s6, s10',
                          f's_add_u32 s7, s62, {cw}',
                          f's_and_b32 s7, s7, 7',
                          f's_lshl_b32 s7, s7, 14',
                          f's_add_u32 s6, s6, s7',
                          f'buffer_load_dwordx4 v10, s[16:19], s6 offen{ntv} lds'])
        for q in range(4):
            loads.append([f's_add_u32 m0, s9, {WO_OFF + q*4096}',
                          f's_add_u32 s6, s13, {q*4096}',
                          f'buffer_load_dwordx4 v11, s[20:23], s6 offen{ntw} lds'])
        loads.append([f's_add_u32 m0, s9, {WD_OFF}', 's_nop 0', f'buffer_load_dwordx4 v16, s[24:27], s15 offen{ntw} lds'])
        loads.append([f's_add_u32 m0, s9, {WD_OFF + 4096}', 's_nop 0', f'buffer_load_dwordx4 v16, s[24:27], s14 offen{ntw} lds'])
        vl, wl = loads[:32], loads[32:]
        wp, ws_ = p['wpos'], p['wsplit']
        loads = vl[:wp] + wl[:ws_] + vl[wp:] + wl[ws_:]
        def vpos(q): return q if q < wp else q + ws_
        n = len(loads)
        nA = 2 * p['na']
        marks = {vpos(nA - 1): 'A', vpos(31): 'V'}
        def mark(m):
            if m == 'A': self.signal('v90', 'v91', C_A)
            elif not p['x_stream']: I('s_barrier')
            self.stamp(3 if m == 'A' else 4)
        def depth(i): return p['dv2'] if i >= n - p['dvn'] else p['dv']
        done = -1
        issued = 0
        pend = sorted(marks)
        while issued < n:
            D = depth(issued)
            need_done = issued - D
            if need_done > done:
                I(f's_waitcnt vmcnt({issued - 1 - need_done})')
                done = need_done
            for l in loads[issued]: I(l)
            issued += 1
            while pend and pend[0] <= done:
                mark(marks[pend.pop(0)])
        while done < n - 1:
            done += 1
            if pend and pend[0] == done or done == n - 1:
                I(f's_waitcnt vmcnt({n - 1 - done})')
            while pend and pend[0] <= done:
                mark(marks[pend.pop(0)])
        self.stamp(5)
        if not p['x_stream']: I('s_barrier')
        if p['x_dirty']:
            I(f"""s_lshl_b32 s6, s2, 2
s_add_u32 s6, s6, s8
s_mul_i32 s6, s6, {p['x_dirty']*1024}
s_add_u32 s6, s6, 0x400000
s_mov_b32 s30, 0x10000000
v_lshlrev_b32 v4, 4, v1""")
            for j in range(p['x_dirty']):
                I(f's_add_u32 s7, s6, {j*1024}\nbuffer_store_dwordx4 v[8:11], v4, s[28:31], s7 offen')
        self.stamp_dump('s[28:31]')
        I('s_endpgm')

    def role_compute(self):
        I = self.I; p = self.p
        ntk = ' nt' if p['nt_k'] else ''
        cexp = math.log2(math.e) / math.sqrt(128.0)
        I('L_CW:')
        self.srd(16, 8, 0x2000000)
        self.srd(20, 96, WS_SIZE)
        self.srd(24, 80, 2048)
        if p['x_start']: I('s_memrealtime s[90:91]')
        I('s_barrier')
        if p['x_start']: I('s_memrealtime s[92:93]')
        self.lane_setup()
        I(f"""s_sub_u32 s8, s3, {W_C0}           ; cw
s_lshr_b32 s6, s5, 4          ; b
s_lshl_b32 s6, s6, 3
s_add_u32 s6, s6, s4
s_lshl_b32 s10, s6, 21
s_and_b32 s6, s5, 15
s_lshl_b32 s6, s6, 17
s_add_u32 s10, s10, s6
s_mul_i32 s6, s5, {p['rcb']}
s_mul_i32 s7, s4, {p['rcc']}
s_add_u32 s6, s6, s7
s_add_u32 s6, s6, s8
s_and_b32 s6, s6, 7
s_lshl_b32 s6, s6, 14
s_add_u32 s10, s10, s6
v_and_b32 v4, 7, v1
v_lshlrev_b32 v4, 8, v4
v_bfe_u32 v5, v1, 3, 1
v_lshlrev_b32 v5, 6, v5
v_add_u32 v4, v4, v5
v_lshlrev_b32 v5, 4, v2
v_add_u32 v4, v4, v5          ; K voffset
s_mul_i32 s61, s8, {p['rka']}
s_mul_i32 s6, s5, {p['rkb']}
s_add_u32 s61, s61, s6
s_mul_i32 s6, s4, {p['rkc']}
s_add_u32 s61, s61, s6
v_mov_b32 v62, {CNT}
v_mov_b32 v63, 1
s_waitcnt lgkmcnt(0)""")
        D = p['dk']
        def kload(i):
            o, hx = divmod(i, 2)
            if hx == 0:
                I(f's_add_u32 s11, s61, {o}\ns_and_b32 s11, s11, 7\ns_lshl_b32 s11, s11, 11\ns_add_u32 s11, s11, s10')
            I(f'buffer_load_dwordx4 v[{64+4*i}:{67+4*i}], v4, s[16:19], s11 offen offset:{hx*128}{ntk}')
        if p['x_start']: I('s_memrealtime s[94:95]')
        for i in range(D): kload(i)
        self.tag_load(20)
        self.stamp(1)
        vC, vOne = 'v62', 'v63'
        for i in range(D, 16):
            I(f's_waitcnt vmcnt({D-1})')
            kload(i)
            if i == 15 - p['ksig']:
                self.signal(vC, vOne, C_K)
        self.stamp(2)
        if p['x_stream']:
            I('s_waitcnt vmcnt(0)')
            self.stamp(3)
            self.stamp_dump('s[20:23]', 16)
            I('s_endpgm')
        self.tag_ready()
        I(f"""v_and_b32 v5, 3, v3           ; head = n&3
v_lshlrev_b32 v6, 8, v5
v_lshlrev_b32 v7, 4, v2
v_add_u32 v60, v6, v7
v_bfe_u32 v6, v3, 3, 1
v_lshlrev_b32 v6, 6, v6
v_add_u32 v60, v60, v6
v_add_u32 v60, {Q_OFF}, v60
v_lshlrev_b32 v61, 5, v5
v_add_u32 v61, {MX}, v61
s_lshl_b32 s6, s8, 2
v_add_u32 v59, s6, v61""")
        self.lds_wait(vC, 'v5', C_Q, 1, sleep=2)
        self.stamp(3)
        for hx in range(2):
            I(f'ds_read_b128 v[{48+4*hx}:{51+4*hx}], v60 offset:{hx*128}')
        I(f'ds_read_b32 v5, {vC} offset:{C_M}')
        I('s_waitcnt lgkmcnt(0)\nv_readfirstlane_b32 s51, v5')
        for o in range(8):
            I(f's_waitcnt vmcnt({14 - 2*o})')
            for hx in range(2):
                c = '0' if hx == 0 else f'v[{16+4*o}:{19+4*o}]'
                r = 64 + 8*o + 4*hx
                I(f'v_mfma_f32_16x16x32_bf16 v[{16+4*o}:{19+4*o}], v[{r}:{r+3}], v[{48+4*hx}:{51+4*hx}], {c}')
        for j in range(4):
            for r in range(4): I(f'v_permlane32_swap_b32 v{16+8*j+r}, v{20+8*j+r}')
            for r in range(4): I(f'v_add_f32_dpp v{16+4*j+r}, v{20+8*j+r}, v{16+8*j+r} row_ror:8 row_mask:0xf bank_mask:0xf')
        I('v_max3_f32 v5, v16, v17, v18')
        for e in range(19, 31, 2):
            I(f'v_max3_f32 v5, v5, v{e}, v{e+1}')
        I('v_max_f32 v5, v5, v31')
        for sw in ('v_permlane16_swap_b32', 'v_permlane32_swap_b32'):
            I(f"""v_mov_b32 v6, v5
{sw} v5, v6
v_max_f32 v5, v5, v6""")
        I("""s_mov_b64 exec, 15
ds_write_b32 v59, v5
s_mov_b64 exec, -1""")
        self.signal(vC, vOne, C_1)
        self.lds_wait(vC, 'v6', C_1, 8, sleep=0)
        I(f"""ds_read_b128 v[48:51], v61
ds_read_b128 v[52:55], v61 offset:16
s_mov_b32 s50, {fhex(cexp)}
s_waitcnt lgkmcnt(0)
v_max3_f32 v48, v48, v49, v50
v_max3_f32 v51, v51, v52, v53
v_max3_f32 v48, v48, v54, v55
v_max_f32 v48, v48, v51
v_mul_f32 v58, s50, v48
v_and_b32 v58, s63, v58""")
        for e in range(16):
            I(f'v_fma_f32 v{16+e}, v{16+e}, s50, -v58')
        for e in range(16):
            I(f'v_exp_f32 v{16+e}, v{16+e}')
        for q in range(8):
            I(f'v_cvt_pk_bf16_f32 v{48+q}, v{16+2*q}, v{17+2*q}')
        I(f"""s_lshl_b32 s6, s8, 9
s_add_u32 s6, s6, {P_OFF}
v_lshlrev_b32 v6, 6, v2
v_lshlrev_b32 v7, 4, v3
v_add_u32 v6, v6, v7
v_add_u32 v6, s6, v6
s_mov_b32 s40, 0x000f000f
s_mov_b32 s41, 0x000f000f
s_mov_b64 exec, s[40:41]
ds_write_b128 v6, v[48:51]
ds_write_b128 v6, v[52:55] offset:256
s_mov_b64 exec, -1""")
        for e in range(8): I(f'v_add_f32 v{16+e}, v{16+e}, v{24+e}')
        for e in range(4): I(f'v_add_f32 v{16+e}, v{16+e}, v{20+e}')
        I("""v_add_f32 v16, v16, v17
v_add_f32 v18, v18, v19
v_add_f32 v5, v16, v18""")
        for sw in ('v_permlane16_swap_b32', 'v_permlane32_swap_b32'):
            I(f"""v_mov_b32 v6, v5
{sw} v5, v6
v_add_f32 v5, v5, v6""")
        I("""s_mov_b64 exec, 15
ds_write_b32 v59, v5 offset:128
s_mov_b64 exec, -1""")
        self.signal(vC, vOne, C_2)
        self.lds_wait(vC, 'v6', C_2, 8, sleep=0)
        self.stamp(4)
        I(f"""s_lshl_b32 s12, s4, 5
s_add_u32 s12, s12, s5        ; slot
v_mov_b32 v47, s52""")
        Ls = self.lab('nostat')
        I(f"""s_cmp_lg_u32 s8, 0
s_cbranch_scc1 {Ls}
ds_read_b128 v[48:51], v61 offset:128
ds_read_b128 v[52:55], v61 offset:144
v_and_b32 v6, 3, v1
v_add_u32 v6, 0x07060500, v6
s_waitcnt lgkmcnt(0)
v_add_f32 v48, v48, v49
v_add_f32 v50, v50, v51
v_add_f32 v52, v52, v53
v_add_f32 v54, v54, v55
v_add_f32 v48, v48, v50
v_add_f32 v52, v52, v54
v_add_f32 v48, v48, v52
s_mov_b32 s40, 0xf0f0f0f0
s_mov_b32 s41, 0
v_cndmask_b32 v48, v58, v48, s[40:41]
v_perm_b32 v48, v48, v47, v6
s_lshl_b32 s6, s12, 7
s_add_u32 s6, s6, {WS_ST}
v_lshlrev_b32 v6, 2, v1
s_mov_b32 exec_hi, 0""")
        self.mode_store('buffer_store_dword v48, v6, s[20:23], s6 offen', 's51')
        I('s_mov_b32 exec_hi, -1')
        I(f'{Ls}:')
        I(f"""v_and_b32 v5, 3, v3
v_lshlrev_b32 v5, 4, v5
v_lshlrev_b32 v6, 6, v2
v_add_u32 v5, v5, v6
v_add_u32 v5, {P_OFF}, v5""")
        for st in range(16):
            if st == 8: I('s_waitcnt lgkmcnt(0)')
            I(f'ds_read_b128 v[{64+4*st}:{67+4*st}], v5 offset:{st*256}')
        I(f"""v_lshrrev_b32 v5, 2, v3       ; r
v_and_b32 v6, 3, v3           ; c4
v_lshlrev_b32 v7, 2, v2
v_add_u32 v7, v7, v5          ; 4s + r
v_and_b32 v48, 7, v7          ; (4(s&1) + r)
v_xor_b32 v48, s8, v48
v_lshlrev_b32 v48, 5, v48
v_lshlrev_b32 v7, 8, v7
v_add_u32 v7, v7, v48
v_lshlrev_b32 v6, 3, v6
v_add_u32 v56, v7, v6
v_add_u32 v57, 0x10000, v56
v_add_u32 v59, 0x20000, v56""")
        I(f"""s_lshr_b32 s13, s5, 2         ; w'
s_and_b32 s14, s5, 3          ; cg
s_and_b32 s15, s8, 1
s_lshl_b32 s6, s15, 4
v_add_u32 v5, s6, v2          ; b*16 + tq
v_lshlrev_b32 v12, 4, v5
v_add_u32 v12, {WL}, v12
s_lshl_b32 s6, s4, 5
v_add_u32 v61, s6, v5         ; slot' (i = 0)
v_lshlrev_b32 v61, 11, v61
s_lshl_b32 s6, s13, 4
v_add_u32 v6, s6, v3
v_lshlrev_b32 v6, 4, v6
v_add_u32 v61, v61, v6
v_add_u32 v61, {WS_T1}, v61
v_lshrrev_b32 v6, 3, v3
v_lshlrev_b32 v6, 6, v6
v_bfe_u32 v7, v3, 2, 1
v_lshlrev_b32 v7, 3, v7       ; half*8
v_add_u32 v6, v6, v7
v_and_b32 v7, 3, v3
v_lshlrev_b32 v7, 4, v7       ; sA*16
v_add_u32 v6, v6, v7
v_lshlrev_b32 v7, 1, v2
v_add_u32 v6, v6, v7          ; + hh*2
s_lshl_b32 s6, s15, 7
s_add_u32 s6, s6, {A1}
v_add_u32 v60, s6, v6
s_lshl_b32 s6, s12, 11
s_lshl_b32 s7, s8, 8
s_add_u32 s6, s6, s7
s_add_u32 s6, s6, {WS_T1}
v_lshlrev_b32 v58, 4, v3
v_add_u32 v58, s6, v58
v_and_b32 v6, 1, v3
v_lshlrev_b32 v44, 1, v6
v_add_u32 v50, 0x07060500, v44
v_add_u32 v51, 1, v50
v_mov_b32 v49, s52               ; T
v_lshlrev_b32 v7, 6, v6
v_lshlrev_b32 v6, 7, v6
v_lshlrev_b32 v48, 4, v2
v_add_u32 v6, v6, v48
v_add_u32 v62, {A1}, v6
v_add_u32 v7, v7, v48
v_add_u32 v48, {A2}, v7
s_lshl_b32 s6, s14, 3
s_add_u32 s6, s6, s8
s_lshl_b32 s6, s6, 6
s_lshl_b32 s7, s4, 3
s_add_u32 s7, s7, s13
s_add_u32 s6, s6, s7
s_lshl_b32 s6, s6, 7
s_add_u32 s6, s6, {WS_T3}
v_lshlrev_b32 v63, 3, v3
v_add_u32 v63, s6, v63
v_mov_b32 v13, {CNT}
s_and_b32 s13, s2, 3          ; cg3
s_lshr_b32 s14, s2, 2         ; o8
s_lshl_b32 s6, s13, 3
s_add_u32 s6, s6, s14
s_lshl_b32 s6, s6, 13
s_lshl_b32 s7, s8, 5
s_add_u32 s6, s6, s7
s_add_u32 s6, s6, {WS_T3}
v_lshrrev_b32 v14, 1, v1
v_lshlrev_b32 v14, 7, v14
v_and_b32 v6, 1, v1
v_lshlrev_b32 v7, 4, v6
v_add_u32 v14, v14, v7
v_add_u32 v14, s6, v14
s_lshl_b32 s6, s13, 8
s_lshl_b32 s7, s14, 5
s_add_u32 s6, s6, s7
s_lshl_b32 s7, s8, 3
s_add_u32 s6, s6, s7
v_and_b32 v15, 1, v2
v_lshlrev_b32 v15, 10, v15
v_lshlrev_b32 v6, 2, v6
v_add_u32 v15, v15, v6
v_lshrrev_b32 v6, 1, v2
v_lshlrev_b32 v6, 1, v6
v_add_u32 v15, v15, v6
v_add_u32 v15, s6, v15
s_waitcnt lgkmcnt(0)""")
        Lsa = self.lab('sa')
        I(f"""s_mov_b32 s60, 0
s_cmp_lg_u32 s8, {p['sw']}
s_cbranch_scc1 {Lsa}""")
        self.lds_wait('v13', 'v5', C_H, 1, sleep=1)
        I(f"""v_mov_b32 v5, {GATE}
ds_read_b64 v[6:7], v5
s_mov_b32 s40, 0
s_mov_b32 s41, -1
v_lshrrev_b32 v5, 5, v1
v_lshlrev_b32 v5, 4, v5
v_add_u32 v5, v5, v3          ; b'*16 + t'
v_lshlrev_b32 v60, 4, v5
v_add_u32 v60, {WL}, v60
s_lshl_b32 s6, s4, 5
v_add_u32 v5, s6, v5          ; slot'
v_lshlrev_b32 v5, 7, v5
v_add_u32 v61, {WS_ST}, v5
s_waitcnt lgkmcnt(0)
v_cndmask_b32 v12, v6, v7, s[40:41]   ; g_b (b = lane>>5)
{Lsa}:""")
        if p['pre1']:
            Lp = self.lab('p1')
            I(f"""s_cmp_eq_u32 s51, 0
s_cbranch_scc1 {Lp}
v_not_b32 v16, v49
v_not_b32 v17, v49
v_not_b32 v18, v49
v_not_b32 v19, v49
s_mov_b64 exec, 0xffff
buffer_store_dwordx4 v[16:19], v58, s[20:23], 0 offen
s_mov_b64 exec, -1
{Lp}:""")
        if p['owarm']:
            Lo = self.lab('ow')
            I(f"""s_cmp_ge_u32 s2, 32
s_cbranch_scc1 {Lo}
s_cmp_gt_u32 s8, 3
s_cbranch_scc1 {Lo}
s_mov_b32 exec_lo, 0x00030003
s_mov_b32 exec_hi, 0x00030003""")
            if p['owarm'] == 1: I('v_mov_b32 v5, 0\nbuffer_store_short v5, v15, s[24:27], 0 offen')
            else: I('buffer_load_ushort v5, v15, s[24:27], 0 offen')
            I(f's_mov_b64 exec, -1\ns_waitcnt vmcnt(0)\n{Lo}:')
        self.stamp(5)
        self.lds_wait('v13', 'v5', C_A, 4, sleep=p['sla'])
        self.stamp(6)
        def vread(st, r):
            base = 'v56' if st < 8 else 'v57'
            o = (st & 7) * 8192
            I(f'ds_read_b64_tr_b16 v[{r}:{r+1}], {base} offset:{o}')
            I(f'ds_read_b64_tr_b16 v[{r+2}:{r+3}], {base} offset:{o+4096}')
        def vmfma(st, r):
            c = '0' if st == 0 else 'v[8:11]'
            I(f'v_mfma_f32_16x16x32_bf16 v[8:11], v[{64+4*st}:{67+4*st}], v[{r}:{r+3}], {c}')
        na = p['na']
        batches = []
        st = 0
        while st < na:
            b = list(range(st, min(st + 4, na))); batches.append(b); st += len(b)
        sets = (16, 32)
        for k, b in enumerate(batches):
            if k == 0:
                for j, st in enumerate(b): vread(st, sets[0] + 4*j)
            I('s_waitcnt lgkmcnt(0)')
            if k + 1 < len(batches):
                for j, st in enumerate(batches[k+1]): vread(st, sets[(k+1) & 1] + 4*j)
            for j, st in enumerate(b): vmfma(st, sets[k & 1] + 4*j)
            if k == 0:
                Lq = self.lab('nsl')
                I(f"s_cmp_lg_u32 s8, {p['sw']}\ns_cbranch_scc1 {Lq}")
                self.stats_loads()
                I(f'{Lq}:')
        I('s_barrier')
        self.stamp(7)
        rest = list(range(na, 16))
        for j, st in enumerate(rest): vread(st, 16 + 4*j)
        for j, st in enumerate(rest):
            I(f's_waitcnt lgkmcnt({2*(len(rest)-1-j)})')
            vmfma(st, 16 + 4*j)
        for e in range(4): I(f'v_perm_b32 v{8+e}, v{8+e}, v49, s{53+e}')
        I('s_mov_b64 exec, 0xffff')
        self.mode_store('buffer_store_dwordx4 v[8:11], v58, s[20:23], 0 offen', 's51')
        I('s_mov_b64 exec, -1')
        I('ds_read_b128 v[52:55], v48')
        self.stamp(8)
        Lns = self.lab('nsw'); Lw = self.lab('sw'); Lr = self.lab('swr')
        I(f"""s_cmp_lg_u32 s8, {p['sw']}
s_cbranch_scc1 {Lns}
s_waitcnt vmcnt(1)""")
        self.stats_check()
        I(f"""v_cmp_ne_u32 vcc, 0, v5
s_cbranch_vccz {Lw}
{Lr}:""")
        self.stats_loads()
        I('s_add_u32 s48, s48, 1\ns_waitcnt vmcnt(0)')
        self.stats_check()
        self.poll_tail(Lr, Lw, 'v5', p['sls'])
        I(f"""s_branch {Lr}
{Lw}:""")
        self.untag(range(64, 72))
        for h in range(4): I(f'v_mov_b32 v{72+h}, v{64+h}')
        for rr in (8, 4, 2, 1):
            for h in range(4): I(f'v_max_f32_dpp v{72+h}, v{72+h}, v{72+h} row_ror:{rr} row_mask:0xf bank_mask:0xf')
        for h in range(4): I(f'v_sub_f32 v{64+h}, v{64+h}, v{72+h}')
        for h in range(4): I(f'v_exp_f32 v{64+h}, v{64+h}')
        for h in range(4): I(f'v_mul_f32 v{68+h}, v{68+h}, v{64+h}')
        for rr in (8, 4, 2, 1):
            for h in range(4): I(f'v_add_f32_dpp v{68+h}, v{68+h}, v{68+h} row_ror:{rr} row_mask:0xf bank_mask:0xf')
        for h in range(4): I(f'v_rcp_f32 v{68+h}, v{68+h}')
        for h in range(4): I(f'v_mul_f32 v{64+h}, v{64+h}, v12')
        for h in range(4): I(f'v_mul_f32 v{64+h}, v{64+h}, v{68+h}')
        I('ds_write_b128 v60, v[64:67]\nv_mov_b32 v5, 1')
        self.signal('v13', 'v5', C_W)
        I(f'{Lns}:')
        Lng = self.lab('nog')
        I(f"""s_cmp_gt_u32 s8, 1
s_cbranch_scc1 {Lng}""")
        I(f's_mov_b32 s6, {4*2048}\ns_mov_b32 s7, {8*2048}\ns_mov_b32 s9, {12*2048}')
        T2B = (64, 96, 112)
        NS2 = p['t2sets']
        def t2issue(k):
            for i, so in enumerate(('0', 's6', 's7', 's9')):
                r = T2B[k] + 4*i
                I(f'buffer_load_dwordx4 v[{r}:{r+3}], v61, s[20:23], {so} offen{SC}')
        if p['t2wait']: I('s_waitcnt vmcnt(0)')
        t2issue(0)
        self.lds_wait('v13', 'v5', C_W, 1, sleep=0)
        for i in range(4): I(f'ds_read_b128 v[{80+4*i}:{83+4*i}], v12 offset:{i*64}')
        for k in range(1, NS2):
            if p['t2st']: I(f"s_sleep {p['t2st']}")
            t2issue(k)
        L = self.lab('t2'); Dn = self.lab('t2d')
        if p['t2mask']:
            Lh = self.lab('t2m')
            I(f'{L}:\ns_waitcnt vmcnt(0)')
            for i in range(4):
                self.tag_acc(64 + 4*i, True)
                I(f'v_cmp_ne_u32 s[{40+2*i}:{41+2*i}], 0, v16')
            I(f"""s_or_b64 vcc, s[40:41], s[42:43]
s_or_b64 s[36:37], s[44:45], s[46:47]
s_or_b64 vcc, vcc, s[36:37]
s_cbranch_scc0 {Lh}
s_add_u32 s48, s48, 1
s_cmp_gt_u32 s48, {self.glim}
s_cbranch_scc1 {Lh}""")
            if p['sl2']: I(f"s_sleep {p['sl2']}")
            for i, so in enumerate(('0', 's6', 's7', 's9')):
                La = self.lab('t2s')
                I(f"""s_mov_b64 exec, s[{40+2*i}:{41+2*i}]
s_cbranch_execz {La}
buffer_load_dwordx4 v[{64+4*i}:{67+4*i}], v61, s[20:23], {so} offen{SC}
{La}:""")
            I(f's_mov_b64 exec, -1\ns_branch {L}\n{Lh}:\ns_waitcnt lgkmcnt(0)')
            self.untag(range(64, 80))
            for h in range(4): I(f'v_mul_f32 v{16+h}, v{64+h}, v{80+h}')
            for i in range(1, 4):
                for h in range(4): I(f'v_fmac_f32 v{16+h}, v{64+4*i+h}, v{80+4*i+h}')
            NS2 = 0
        if NS2: I(f'{L}:')
        hits = []
        for k in range(NS2):
            for i in range(4):
                I(f's_waitcnt vmcnt({4*(NS2-1) + 3-i})')
                self.tag_acc(T2B[k] + 4*i, i == 0)
            H = self.lab('t2h'); hits.append((H, T2B[k]))
            I(f"""v_cmp_ne_u32 vcc, 0, v16
s_cbranch_vccz {H}""")
            if p['sl2']: I(f"s_sleep {p['sl2']}")
            t2issue(k)
        if NS2: I(f"""s_add_u32 s48, s48, 1
s_cmp_le_u32 s48, {self.glim}
s_cbranch_scc1 {L}""")
        for j, (H, r) in enumerate(hits):
            I(f'{H}:')
            self.untag(range(r, r + 16))
            I('s_waitcnt lgkmcnt(0)')
            for h in range(4): I(f'v_mul_f32 v{16+h}, v{r+h}, v{80+h}')
            for i in range(1, 4):
                for h in range(4): I(f'v_fmac_f32 v{16+h}, v{r+4*i+h}, v{80+4*i+h}')
            if j + 1 < len(hits): I(f's_branch {Dn}')
        I(f'{Dn}:')
        self.stamp(9)
        I("""v_permlane16_swap_b32 v16, v17
v_permlane16_swap_b32 v18, v19
v_add_f32 v16, v16, v17
v_add_f32 v18, v18, v19
v_permlane32_swap_b32 v16, v18
v_add_f32 v16, v16, v18
v_cvt_pk_bf16_f32 v16, v16, v16
ds_write_b16 v60, v16
s_waitcnt lgkmcnt(0)""")
        I(f"""{Lng}:
s_barrier""")
        self.stamp(10)
        I("""ds_read_b64_tr_b16 v[16:17], v59 offset:16384
ds_read_b64_tr_b16 v[18:19], v59 offset:20480
ds_read_b128 v[32:35], v62
ds_read_b64_tr_b16 v[20:21], v59
ds_read_b64_tr_b16 v[22:23], v59 offset:4096
ds_read_b128 v[36:39], v62 offset:64
ds_read_b64_tr_b16 v[24:25], v59 offset:8192
ds_read_b64_tr_b16 v[26:27], v59 offset:12288
s_waitcnt lgkmcnt(6)
v_mfma_f32_16x16x32_bf16 v[8:11], v[52:55], v[16:19], 0
s_waitcnt lgkmcnt(3)
v_mfma_f32_16x16x32_bf16 v[8:11], v[32:35], v[20:23], v[8:11]
s_waitcnt lgkmcnt(0)
v_mfma_f32_16x16x32_bf16 v[8:11], v[36:39], v[24:27], v[8:11]""")
        I(f"""v_perm_b32 v8, v8, v49, v50
v_perm_b32 v9, v9, v49, v51
s_mov_b64 exec, 0xffff
buffer_store_dwordx2 v[8:9], v63, s[20:23], 0 offen{(SC, ' sc0 sc1')[p['t3stf']]}
s_mov_b64 exec, -1""")
        self.stamp(11)
        Lend = 'L_CW_end'
        I(f"""s_cmp_ge_u32 s2, 32
s_cbranch_scc1 {Lend}
s_cmp_gt_u32 s8, 3
s_cbranch_scc1 {Lend}
s_mov_b32 s7, 4096""")
        NS = p['t3sets']
        L = self.lab('t3'); Dn = self.lab('t3d')
        def issue(k):
            r = 64 + 8*k
            fl = (SC, ' sc0 sc1', ' sc1 nt', ' sc0 sc1 nt')[p['t3ld']]
            I(f'buffer_load_dwordx4 v[{r}:{r+3}], v14, s[20:23], 0 offen{fl}')
            I(f'buffer_load_dwordx4 v[{r+4}:{r+7}], v14, s[20:23], s7 offen{fl}')
        if p['t3wait']: I('s_waitcnt vmcnt(0)')
        if p['t3delay']: I(f"s_sleep {p['t3delay']}")
        self.stamp(13)
        if p['stamps'] and not p['light']: I('s_mov_b32 s59, s48')
        if p['t3mask']:
            fl = (SC, ' sc0 sc1', ' sc1 nt', ' sc0 sc1 nt')[p['t3ld']]
            issue(0)
            La = self.lab('t3a'); Lb = self.lab('t3b'); Lh = self.lab('t3m')
            I(f'{L}:\ns_waitcnt vmcnt(0)')
            self.tag_acc(64, True)
            I('v_cmp_ne_u32 s[40:41], 0, v16')
            self.tag_acc(68, True)
            I(f"""v_cmp_ne_u32 s[42:43], 0, v16
s_or_b64 s[44:45], s[40:41], s[42:43]
s_cbranch_scc0 {Lh}
s_add_u32 s48, s48, 1
s_cmp_gt_u32 s48, {self.glim}
s_cbranch_scc1 {Lh}""")
            if p['sl3']: I(f"s_sleep {p['sl3']}")
            I(f"""s_mov_b64 exec, s[40:41]
s_cbranch_execz {La}
buffer_load_dwordx4 v[64:67], v14, s[20:23], 0 offen{fl}
{La}:
s_mov_b64 exec, s[42:43]
s_cbranch_execz {Lb}
buffer_load_dwordx4 v[68:71], v14, s[20:23], s7 offen{fl}
{Lb}:
s_mov_b64 exec, -1
s_branch {L}
{Lh}:""")
            self.untag(range(64, 72))
            for e in range(4): I(f'v_add_f32 v{20+e}, v{64+e}, v{68+e}')
            NS = 0
        for k in range(NS):
            issue(k)
            if k + 1 < NS and p['t3st']: I(f"s_sleep {p['t3st']}")
        if NS: I(f'{L}:')
        hits = []
        for k in range(NS):
            r = 64 + 8*k
            I(f's_waitcnt vmcnt({2*(NS-1)})')
            self.tag_acc(r, True)
            self.tag_acc(r + 4, False)
            H = self.lab('t3h'); hits.append((H, r))
            I(f"""v_cmp_ne_u32 vcc, 0, v16
s_cbranch_vccz {H}""")
            issue(k)
        if NS: I(f"""s_add_u32 s48, s48, 1
s_cmp_le_u32 s48, {self.glim}
s_cbranch_scc1 {L}""")
        for j, (H, r) in enumerate(hits):
            I(f'{H}:')
            self.untag(range(r, r + 8))
            for e in range(4): I(f'v_add_f32 v{20+e}, v{r+e}, v{r+4+e}')
            if j + 1 < len(hits): I(f's_branch {Dn}')
        I(f'{Dn}:')
        if p['stamps'] and not p['light']:
            I('s_sub_u32 s92, s48, s59\ns_add_u32 s92, s92, 1')
            self.stamp(15)
        I("""v_permlane16_swap_b32 v20, v21
v_permlane16_swap_b32 v22, v23
v_add_f32 v20, v20, v21
v_add_f32 v22, v22, v23
v_permlane32_swap_b32 v20, v22
v_add_f32 v20, v20, v22""")
        for rr in (2, 4, 8):
            I(f'v_add_f32_dpp v20, v20, v20 row_ror:{rr} row_mask:0xf bank_mask:0xf')
        I(f"""v_cvt_pk_bf16_f32 v20, v20, v20
s_mov_b32 exec_lo, 0x00030003
s_mov_b32 exec_hi, 0x00030003
buffer_store_short v20, v15, s[24:27], 0 offen
s_mov_b64 exec, -1""")
        I(f"""s_cmp_lg_u32 s2, 0
s_cbranch_scc1 L_CW_noe
s_cmp_lg_u32 s8, 0
s_cbranch_scc1 L_CW_noe
v_mov_b32 v5, {WS_E}
s_mov_b64 exec, 1
buffer_store_dword v49, v5, s[20:23], 0 offen{SC}
s_mov_b64 exec, -1
L_CW_noe:""")
        self.stamp(12)
        if p['x_dbg']:
            Ld = self.lab('xd')
            I(f"""s_cmp_lg_u32 s8, 0
s_cbranch_scc1 {Ld}
s_memrealtime s[92:93]
s_load_dwordx2 s[32:33], s[0:1], 88
s_mov_b32 s34, 256
s_mov_b32 s35, 0x20000
s_waitcnt lgkmcnt(0)
s_sub_u32 s6, s92, s90
s_mul_i32 s7, s51, 100000
s_add_u32 s6, s6, s7
s_getreg_b32 s7, hwreg(HW_REG_XCC_ID, 0, 4)
s_mul_i32 s7, s7, 1000000
s_add_u32 s6, s6, s7
v_mov_b32 v5, s6
s_lshl_b32 s7, s2, 2
v_mov_b32 v6, s7
s_mov_b64 exec, 1
buffer_store_dword v5, v6, s[32:35], 0 offen
s_mov_b64 exec, -1
{Ld}:""")
        I(f'{Lend}:')
        self.stamp_dump('s[20:23]', 16)
        I('s_endpgm')

    def build(self):
        I = self.I
        I('''s_cmp_ge_u32 s2, 256
s_cbranch_scc1 L_exit''')
        if self.p['x_dbg']: I('s_memrealtime s[90:91]')
        if self.p['stamps']:
            for i in range(16): I(f's_mov_b32 s{64+2*i}, 0')
            self.stamp(0)
        I(f'''v_lshrrev_b32 v1, 6, v0
s_and_b32 s4, s2, 7
s_lshr_b32 s5, s2, 3
s_mov_b32 s48, 0
v_readfirstlane_b32 s3, v1
s_cmp_ge_u32 s3, {W_L0}
s_cbranch_scc1 L_LD
s_cmp_ge_u32 s3, {W_C0}
s_cbranch_scc1 L_CW
s_cmp_eq_u32 s3, {W_J1}
s_cbranch_scc1 L_J1''')
        self.role_j0()
        self.role_j1()
        self.role_compute()
        self.role_loader()
        I('L_exit:\ns_endpgm\nL_codeend:')
        head = f'''; Fused decode step: GQA attention over the KV cache + SwiGLU FFN + sigmoid-gated mix (gfx950).
;
;
; @launch grid=(256,1,1) block=(896,1,1) lds={LDS_BYTES}
.amdgcn_target "amdgcn-amd-amdhsa--gfx950"
.text
.globl {KNAME}
.p2align 8
.type {KNAME},@function
{KNAME}:
'''
        foot = f'''.section .rodata,"a"
.p2align 6
.amdhsa_kernel {KNAME}
  .amdhsa_next_free_vgpr 128
  .amdhsa_next_free_sgpr 102
  .amdhsa_accum_offset 128
  .amdhsa_group_segment_fixed_size 0
  .amdhsa_kernarg_size 104
  .amdhsa_user_sgpr_count 2
  .amdhsa_user_sgpr_kernarg_segment_ptr 1
  .amdhsa_system_sgpr_workgroup_id_x 1
.end_amdhsa_kernel
'''
        return head + self.a.text() + foot

def main():
    out = sys.argv[1]
    kw = {}
    for arg in sys.argv[2:]:
        k, v = arg.split('=')
        assert k in DEF or k in ('pfn',), k
        kw[k] = (v == 'True') if v in ('True', 'False') else int(v)
    open(out, 'w').write(G(**kw).build())

if __name__ == '__main__':
    main()
```

```python
import sys, math, struct
from emit import Asm

def fhex(x): return '0x%08x' % struct.unpack('<I', struct.pack('<f', x))[0]
KNAME = 'gated_mix__gqa_block_cached__swiglu_ffn__decode_kernel'

WS_Q  = 0x000000
WS_F  = 0x020000
WS_ID = 0x040000
COPYB = 0x050000
WS_ST = 0x0A0000
WS_E  = 0x0A8000
WS_T1 = 0x100000
WS_T3 = 0x180000
WS_DBG = 0x200000
WS_SIZE = 0x400000

V_OFF = 0
STG0 = 0
STG1 = 16384
WO_OFF = 131072
WD_OFF = 147456
P_OFF = 155648
Q_OFF = 159744
MISC = 160768
MX = MISC
LX = MISC + 128
A1 = MISC + 256
A2 = MISC + 512
GATE = MISC + 640
CNT = MISC + 704
WL = MISC + 1024
C_Q, C_H, C_K, C_1, C_2, C_A, C_M, C_W, C_T = 0, 4, 8, 12, 16, 20, 24, 28, 32
LDS_BYTES = 163840

SPIN_LIMIT = 300000
SC = ' sc1'
W_J0, W_J1, W_C0, W_L0 = 0, 1, 2, 10

DEF = dict(nt_k=True, nt_v=True, nt_w=True, dk=4, dv=6, dv2=4, dvn=0, stamps=False, na=14, ksig=0, kthr=4,
           slq=2, slf=2, sls=2, sl2=0, sl3=0, pf=False, na_polls=10, force_remote=False, nopoll=False,
           t3sets=1, t3st=4, tlb=True, sw=2, t3delay=0, t3ld=0, t3stf=0, x_nob=False, qdelay=0,
           x_stream=False, rka=1, rkb=3, rkc=0, x_start=False, t2sets=1, t2st=3, wpos=32, wsplit=6, light=False, t3mask=True, t3wait=True, t2wait=False, t2mask=False, prio_ld=0, prio_j=0, sla=1, slk=2, rcb=1, rcc=0, owarm=0, pre1=False, pre3=False, x_dirty=0, locf=0, x_dbg=False, early=False, x_noq=False, x_nof=False, jthr=0, x_contig=False)

class G:
    def __init__(self, **kw):
        self.p = dict(DEF); self.p.update(kw)
        self.a = Asm()
        self.uid = 0
        self.glim = 0 if self.p['nopoll'] else SPIN_LIMIT
    def I(self, s): self.a.I(s)
    def lab(self, base):
        self.uid += 1
        return f'L_{base}_{self.uid}'
    def stamp(self, i):
        if self.p['stamps'] and (not self.p['light'] or i in (0, 12)):
            self.I(f's_memrealtime s[{64+2*i}:{65+2*i}]')
            self.I('s_waitcnt lgkmcnt(0)')
    def stamp_dump(self, srd, n=12):
        if not self.p['stamps']: return
        I = self.I
        I('s_mov_b64 exec, -1')
        I('s_lshl_b32 s6, s2, 4')
        I('s_add_u32 s6, s6, s3')
        I('s_lshl_b32 s6, s6, 6')
        I(f's_add_u32 s6, s6, {WS_DBG}')
        I('v_mov_b32 v1, s6')
        I('s_mov_b64 exec, 1')
        for j in range(0, n, 4):
            for t in range(4):
                I(f'v_mov_b32 v{4+t}, s{64+2*(j+t)}')
            I(f'buffer_store_dwordx4 v[4:7], v1, {srd}, 0 offen offset:{j*4}')
        I('s_mov_b64 exec, -1')
    def signal(self, vC, vOne, off):
        self.I(f'''s_mov_b64 exec, 1
ds_add_u32 {vC}, {vOne} offset:{off}
s_mov_b64 exec, -1''')
    def lds_wait(self, vC, vT, off, n, sleep=1):
        L = self.lab('lw'); D = self.lab('lwd')
        self.I(f'''{L}:
ds_read_b32 {vT}, {vC} offset:{off}
s_add_u32 s48, s48, 1
s_waitcnt lgkmcnt(0)
v_readfirstlane_b32 s49, {vT}
s_cmp_ge_u32 s49, {n}
s_cbranch_scc1 {D}
s_cmp_gt_u32 s48, {SPIN_LIMIT}
s_cbranch_scc1 {D}''')
        if sleep: self.I(f's_sleep {sleep}')
        self.I(f'''s_branch {L}
{D}:''')
    def tag_load(self, wsbase):
        self.I(f's_load_dword s52, s[{wsbase}:{wsbase+1}], {WS_E}')
        for i in range(4): self.I(f's_mov_b32 s{53+i}, 0x0706050{i}')
        self.I('s_mov_b32 s57, 0x0c0c0400\ns_mov_b32 s58, 0x04000c0c\ns_mov_b32 s63, 0xffffff00')
    def untag(self, regs):
        for r in regs: self.I(f'v_and_b32 v{r}, s63, v{r}')
    def tag_ready(self):
        self.I('s_waitcnt lgkmcnt(0)\ns_add_u32 s52, s52, 1')
    def tag_acc(self, r, first, acc='v16', t1='v17', t2='v18', t3='v19'):
        self.I(f'v_perm_b32 {t2}, v{r+1}, v{r}, s57\nv_perm_b32 {t3}, v{r+3}, v{r+2}, s58\nv_or_b32 {t2}, {t2}, {t3}')
        if first: self.I(f'v_xor_b32 {acc}, s52, {t2}')
        else: self.I(f'v_xor_b32 {t1}, s52, {t2}\nv_or_b32 {acc}, {acc}, {t1}')
    def poll_tail(self, L, D, acc, sleep):
        self.I(f'''v_cmp_ne_u32 vcc, 0, {acc}
s_cbranch_vccz {D}
s_cmp_gt_u32 s48, {self.glim}
s_cbranch_scc1 {D}''')
        if sleep: self.I(f's_sleep {sleep}')
    def srd(self, base, karg_off, size):
        self.I(f's_load_dwordx2 s[{base}:{base+1}], s[0:1], {karg_off}')
        self.I(f's_mov_b32 s{base+2}, {size}')
        self.I(f's_mov_b32 s{base+3}, 0x20000')
    def stats_loads(self):
        self.I(f"""buffer_load_dwordx4 v[64:67], v61, s[20:23], 0 offen{SC}
buffer_load_dwordx4 v[68:71], v61, s[20:23], 0 offen offset:16{SC}""")
    def stats_check(self):
        self.tag_acc(64, True, 'v5', 'v6', 'v7', 'v4')
        self.tag_acc(68, False, 'v5', 'v6', 'v7', 'v4')
    def lane_setup(self):
        self.I('''v_and_b32 v1, 63, v0
v_lshrrev_b32 v2, 4, v1
v_and_b32 v3, 15, v1''')
    def mode_store(self, ins, smode):
        Lr = self.lab('ms'); Le = self.lab('mse')
        self.I(f'''s_cmp_eq_u32 {smode}, 0
s_cbranch_scc1 {Lr}
{ins}{('', ' nt', ' sc0', ' sc0 nt')[self.p['locf']]}
s_branch {Le}
{Lr}:
{ins}{SC}
{Le}:''')

    def qtile_issue(self, srdW, srdX, sBase, sKs, pitch=8192, stg=STG0, skip=False):
        I = self.I
        ntf = ' nt' if self.p['nt_w'] else ''
        I(f'''v_lshrrev_b32 v4, 5, v1
v_lshlrev_b32 v4, 3, v4
v_bfe_u32 v5, v1, 3, 2
v_add_u32 v4, v4, v5
v_mul_u32_u24 v4, {pitch}, v4
v_and_b32 v5, 7, v1
v_bfe_u32 v6, v1, 4, 2
v_lshlrev_b32 v6, 1, v6
v_xor_b32 v5, v5, v6
v_lshlrev_b32 v5, 4, v5
v_add_u32 v4, v4, v5''')
        if self.p['x_contig']:
            I(f'v_lshlrev_b32 v4, 4, v1\ns_lshl_b32 {sBase}, s2, 14')
        for i in range(0 if skip else 16):
            rowi = 32*(i >> 2) + 16*(i & 1) + 4*((i >> 1) & 1)
            if self.p['jthr'] and i >= self.p['jthr']: I(f"s_waitcnt vmcnt({self.p['jthr']-1})")
            I(f's_mov_b32 m0, {stg + i*1024}')
            I(f's_add_u32 s7, {sBase}, {i*1024 if self.p["x_contig"] else rowi*pitch}')
            I(f'buffer_load_dwordx4 v4, {srdW}, s7 offen{ntf} lds')
        I(f'''v_and_b32 v5, 1, v3
v_lshlrev_b32 v5, 10, v5
v_lshlrev_b32 v6, 4, v2
v_add_u32 v5, v5, v6
s_lshl_b32 s6, {sKs}, 8
v_add_u32 v5, s6, v5''')
        for kk in range(4):
            I(f'buffer_load_dwordx4 v[{8+4*kk}:{11+4*kk}], v5, {srdX}, 0 offen offset:{kk*64}')
        I(f'''v_lshrrev_b32 v6, 2, v3
v_and_b32 v7, 3, v3
v_lshlrev_b32 v28, 2, v2
v_add_u32 v28, v28, v6
v_lshlrev_b32 v28, 7, v28
v_lshlrev_b32 v7, 3, v7
v_add_u32 v28, v28, v7
v_add_u32 v28, {stg}, v28
v_lshlrev_b32 v29, 1, v2
v_lshrrev_b32 v6, 1, v6
v_add_u32 v29, v29, v6
v_and_b32 v29, 3, v29''')
        for nt_ in range(4):
            I(f'''v_xor_b32 v6, {nt_}, v29
v_lshlrev_b32 v6, 5, v6
v_add_u32 v{24+nt_}, v28, v6''')
    def qtile_compute(self):
        I = self.I
        def reads(kk, setb):
            for nt_ in range(4):
                for hf in range(2):
                    r = setb + 4*nt_ + 2*hf
                    I(f'ds_read_b64_tr_b16 v[{r}:{r+1}], v{24+nt_} offset:{kk*4096 + hf*2048}')
        def mf(kk, setb):
            for nt_ in range(4):
                c = '0' if kk == 0 else f'v[{64+4*nt_}:{67+4*nt_}]'
                I(f'v_mfma_f32_16x16x32_bf16 v[{64+4*nt_}:{67+4*nt_}], v[{8+4*kk}:{11+4*kk}], v[{setb+4*nt_}:{setb+4*nt_+3}], {c}')
        sets = (32, 48)
        reads(0, sets[0])
        for kk in range(4):
            I('s_waitcnt lgkmcnt(0)')
            if kk < 3: reads(kk+1, sets[(kk+1) & 1])
            mf(kk, sets[kk & 1])
        I('''s_mov_b32 s40, 0xffff0000
s_mov_b32 s41, 0
s_mov_b32 s42, 0
s_mov_b32 s43, 0x0000ffff
s_mov_b32 s44, 0
s_mov_b32 s45, 0xffff0000''')
        for b in range(2):
            I(f'''v_cndmask_b32 v{40+b}, v{64+b}, v{68+b}, s[40:41]
v_cndmask_b32 v{40+b}, v{40+b}, v{72+b}, s[42:43]
v_cndmask_b32 v{40+b}, v{40+b}, v{76+b}, s[44:45]''')

    def ftile_issue(self, srdW, srdX, sBase, sKs):
        I = self.I; pitch = 3584; stg = STG1
        ntf = ' nt' if self.p['nt_w'] else ''
        I(f'''v_lshrrev_b32 v4, 4, v1
v_lshlrev_b32 v4, 3, v4
v_bfe_u32 v5, v1, 2, 2
v_add_u32 v4, v4, v5
v_mul_u32_u24 v4, {pitch}, v4
v_and_b32 v5, 3, v1
v_bfe_u32 v6, v1, 4, 1
v_lshlrev_b32 v6, 1, v6
v_xor_b32 v5, v5, v6
v_lshlrev_b32 v5, 4, v5
v_add_u32 v4, v4, v5''')
        if self.p['x_contig']:
            I(f'v_lshlrev_b32 v4, 4, v1\ns_mul_i32 {sBase}, s15, 7\ns_add_u32 {sBase}, {sBase}, s13\ns_lshl_b32 {sBase}, {sBase}, 3\ns_add_u32 {sBase}, {sBase}, s4\ns_lshl_b32 {sBase}, {sBase}, 14')
        for i in range(0 if self.p['x_nof'] else 16):
            rowi = 32*(i >> 1) + 4*(i & 1)
            if self.p['jthr'] and i >= self.p['jthr']: I(f"s_waitcnt vmcnt({self.p['jthr']-1})")
            I(f's_mov_b32 m0, {stg + i*1024}')
            I(f's_add_u32 s7, {sBase}, {i*1024 if self.p["x_contig"] else rowi*pitch}')
            I(f'buffer_load_dwordx4 v4, {srdW}, s7 offen{ntf} lds')
        I(f'''v_and_b32 v5, 1, v3
v_lshlrev_b32 v5, 10, v5
v_lshlrev_b32 v6, 4, v2
v_add_u32 v5, v5, v6
s_lshl_b32 s6, {sKs}, 9
v_add_u32 v5, s6, v5''')
        for kk in range(8):
            I(f'buffer_load_dwordx4 v[{96+4*kk}:{99+4*kk}], v5, {srdX}, 0 offen offset:{kk*64}')
        I(f'''v_lshrrev_b32 v6, 2, v3
v_and_b32 v7, 3, v3
v_lshlrev_b32 v28, 2, v2
v_add_u32 v28, v28, v6
v_lshlrev_b32 v28, 6, v28
v_lshlrev_b32 v7, 3, v7
v_add_u32 v28, v28, v7
v_add_u32 v28, {stg}, v28
v_and_b32 v29, 1, v2
v_lshlrev_b32 v6, 5, v29
v_add_u32 v24, v28, v6
v_xor_b32 v6, 1, v29
v_lshlrev_b32 v6, 5, v6
v_add_u32 v25, v28, v6''')
    def ftile_compute(self):
        I = self.I
        def reads(k2, setb):
            for kq in range(2):
                kk = 2*k2 + kq
                for nt_ in range(2):
                    for hf in range(2):
                        r = setb + 8*kq + 4*nt_ + 2*hf
                        I(f'ds_read_b64_tr_b16 v[{r}:{r+1}], v{24+nt_} offset:{kk*2048 + hf*1024}')
        def mf(k2, setb):
            for kq in range(2):
                kk = 2*k2 + kq
                for nt_ in range(2):
                    c = '0' if kk == 0 else f'v[{64+4*nt_}:{67+4*nt_}]'
                    r = setb + 8*kq + 4*nt_
                    I(f'v_mfma_f32_16x16x32_bf16 v[{64+4*nt_}:{67+4*nt_}], v[{96+4*kk}:{99+4*kk}], v[{r}:{r+3}], {c}')
        sets = (32, 48)
        reads(0, sets[0])
        for k2 in range(4):
            I('s_waitcnt lgkmcnt(0)')
            if k2 < 3: reads(k2+1, sets[(k2+1) & 1])
            mf(k2, sets[k2 & 1])
        I('''s_mov_b32 s40, 0xffff0000
s_mov_b32 s41, 0
s_mov_b32 s42, 0
s_mov_b32 s43, 0x0000ffff
s_mov_b32 s44, 0
s_mov_b32 s45, 0xffff0000
v_cndmask_b32 v40, v64, v68, s[40:41]
v_cndmask_b32 v40, v40, v65, s[42:43]
v_cndmask_b32 v40, v40, v69, s[44:45]''')

    def role_j0(self):
        I = self.I; p = self.p
        LF = ('', ' nt', ' sc0', ' sc0 nt')[p['locf']]
        I('L_J0:')
        if p['prio_j']: I(f"s_setprio {p['prio_j']}")
        if p['early']: I('s_mov_b32 s18, 0x400000\ns_mov_b32 s19, 0x20000')
        else: self.srd(16, 24, 0x400000)
        self.srd(20, 0, 2048)
        self.srd(24, 96, WS_SIZE)
        I('s_barrier')
        if p['x_stream'] == 1: I('s_endpgm')
        self.lane_setup()
        I(f"""s_lshr_b32 s8, s5, 2          ; qcl
s_and_b32 s9, s5, 3           ; ks
s_mul_i32 s10, s9, 128*8192
s_lshl_b32 s6, s4, 10
s_add_u32 s10, s10, s6
s_lshl_b32 s6, s8, 7
s_add_u32 s10, s10, s6
s_getreg_b32 s12, hwreg(HW_REG_XCC_ID, 0, 4)
v_mov_b32 v90, {CNT}
v_mov_b32 v91, 1
s_waitcnt lgkmcnt(0)""")
        self.qtile_issue('s[16:19]', 's[20:23]', 's10', 's9', skip=p['x_noq'])
        self.tag_load(24)
        I("""v_and_b32 v81, 3, v1
v_add_u32 v81, 0x07060500, v81
s_lshl_b32 s13, s12, 8
v_mov_b32 v82, s13""")
        if p['pre3']:
            self.tag_ready()
            I(f"""s_not_b32 s6, s52
v_mov_b32 v83, s6
s_lshl_b32 s6, s4, 3
s_add_u32 s6, s6, s9
s_lshl_b32 s6, s6, 11
s_lshl_b32 s7, s8, 8
s_add_u32 s6, s6, s7
v_lshlrev_b32 v84, 2, v1
v_add_u32 v85, s6, v84
v_add_u32 v86, {4*2048}, v85
s_lshl_b32 s6, s4, 5
s_add_u32 s6, s6, s5
s_lshl_b32 s6, s6, 7
s_add_u32 s6, s6, {WS_ID}
v_add_u32 v87, s6, v84
buffer_store_dword v83, v85, s[24:27], 0 offen
buffer_store_dword v83, v86, s[24:27], 0 offen
s_mov_b32 exec_hi, 0
buffer_store_dword v83, v87, s[24:27], 0 offen
s_mov_b32 exec_hi, -1""")
        self.stamp(1)
        I('s_waitcnt vmcnt(0)')
        if not p['pre3']: self.tag_ready()
        I('v_mov_b32 v80, s52')
        self.stamp(2)
        self.qtile_compute()
        self.signal('v90', 'v91', C_T)
        if p['x_stream'] == 2: I('s_endpgm')
        I(f"""v_perm_b32 v40, v40, v80, v81
v_perm_b32 v41, v41, v80, v81
v_perm_b32 v82, v82, v80, v81
s_lshl_b32 s6, s4, 3
s_add_u32 s6, s6, s9
s_lshl_b32 s6, s6, 11         ; (g*8 + ks)*2048
s_lshl_b32 s7, s8, 8
s_add_u32 s6, s6, s7
v_lshlrev_b32 v4, 2, v1
v_add_u32 v5, s6, v4
v_add_u32 v6, {4*2048}, v5
s_lshl_b32 s6, s4, 5
s_add_u32 s6, s6, s5
s_lshl_b32 s6, s6, 7
s_add_u32 s6, s6, {WS_ID}
v_add_u32 v7, s6, v4
s_mov_b32 s14, {COPYB}
buffer_store_dword v40, v5, s[24:27], 0 offen{LF}
buffer_store_dword v41, v6, s[24:27], 0 offen{LF}
s_mov_b32 exec_hi, 0
buffer_store_dword v82, v7, s[24:27], 0 offen{LF}
s_mov_b32 exec_hi, -1
""")
        if not p['x_nob']:
            I(f"""buffer_store_dword v40, v5, s[24:27], s14 offen{SC}
buffer_store_dword v41, v6, s[24:27], s14 offen{SC}
s_mov_b32 exec_hi, 0
buffer_store_dword v82, v7, s[24:27], s14 offen{SC}
s_mov_b32 exec_hi, -1""")
        if p['qdelay']: I(f"s_sleep {p['qdelay']}")
        self.stamp(3)
        I(f"""s_lshl_b32 s6, s4, 1
s_lshr_b32 s7, s5, 4          ; b
s_add_u32 s6, s6, s7
s_lshl_b32 s6, s6, 13
v_lshlrev_b32 v4, 4, v1
v_add_u32 v4, s6, v4
v_and_b32 v5, 31, v1
v_lshlrev_b32 v5, 7, v5
s_lshl_b32 s6, s4, 12
s_add_u32 s6, s6, {WS_ID}
v_add_u32 v5, s6, v5
s_mov_b32 s15, {COPYB if p['force_remote'] else 0}
s_mov_b32 s11, 0""")
        L = self.lab('qg'); D = self.lab('qgd'); Lk = self.lab('qgk')
        I(f'{L}:')
        for ks in range(4):
            I(f's_add_u32 s7, s15, {ks*2048}')
            for i in range(2):
                r = 8 + 8*ks + 4*i
                I(f'buffer_load_dwordx4 v[{r}:{r+3}], v4, s[24:27], s7 offen offset:{i*1024}{SC}')
        I(f'buffer_load_dwordx4 v[40:43], v5, s[24:27], s15 offen{SC}')
        I('s_add_u32 s48, s48, 1\ns_add_u32 s11, s11, 1\ns_waitcnt vmcnt(0)')
        for j in range(9):
            self.tag_acc(8 + 4*j, j == 0, 'v44', 'v45', 'v46', 'v47')
        self.poll_tail(L, D, 'v44', p['slq'])
        if not p['force_remote']:
            I(f"""s_cmp_lt_u32 s11, {p['na_polls']}
s_cbranch_scc1 {L}
s_xor_b32 s15, s15, {COPYB}""")
        I(f"""s_branch {L}
{D}:""")
        self.stamp(5)
        I(f"""v_bfe_u32 v40, v40, 8, 4
v_cmp_ne_u32 vcc, s12, v40
s_cmp_eq_u64 vcc, 0
s_cselect_b32 s6, {0 if p['force_remote'] else 1}, 0
v_mov_b32 v44, s6
s_mov_b64 exec, 1
ds_write_b32 v90, v44 offset:{C_M}
s_mov_b64 exec, -1""")
        self.untag(range(8, 40))
        for e in range(8):
            I(f'v_add_f32 v{8+e}, v{8+e}, v{16+e}')
            I(f'v_add_f32 v{24+e}, v{24+e}, v{32+e}')
        for e in range(8):
            I(f'v_add_f32 v{8+e}, v{8+e}, v{24+e}')
        I(f"""v_cvt_pk_bf16_f32 v40, v8, v9
v_cvt_pk_bf16_f32 v41, v10, v11
v_cvt_pk_bf16_f32 v42, v12, v13
v_cvt_pk_bf16_f32 v43, v14, v15
v_lshlrev_b32 v4, 3, v1
v_add_u32 v4, {Q_OFF}, v4
ds_write_b64 v4, v[40:41]
ds_write_b64 v4, v[42:43] offset:512""")
        self.signal('v90', 'v91', C_Q)
        I('s_waitcnt lgkmcnt(0)')
        self.stamp(6)
        self.stamp_dump('s[24:27]')
        I('s_endpgm')

    def role_j1(self):
        I = self.I; p = self.p
        LF = ('', ' nt', ' sc0', ' sc0 nt')[p['locf']]
        I('L_J1:')
        I('s_load_dwordx4 s[8:11], s[0:1], 48')
        self.srd(20, 0, 2048)
        self.srd(24, 96, WS_SIZE)
        self.srd(28, 72, 1024)
        I('s_barrier')
        if p['x_stream'] == 1: I('s_endpgm')
        self.lane_setup()
        I(f"""s_and_b32 s6, s4, 1
s_sub_u32 s12, 4, s6
s_lshr_b32 s13, s4, 1
s_mul_i32 s13, s13, 7
s_lshl_b32 s6, s6, 2
s_add_u32 s13, s13, s6
s_lshr_b32 s33, s5, 3
s_bfe_u32 s14, s5, 0x10002
s_and_b32 s15, s5, 3          ; ks
s_lshl_b32 s34, s12, 3
v_mov_b32 v90, {CNT}
v_mov_b32 v91, 1
s_waitcnt lgkmcnt(0)
s_cmp_eq_u32 s14, 0
s_cselect_b32 s16, s8, s10
s_cselect_b32 s17, s9, s11
s_mov_b32 s18, {512*1792*2}
s_mov_b32 s19, 0x20000
s_mul_i32 s8, s15, 128*3584
s_add_u32 s6, s13, s33
s_lshl_b32 s6, s6, 7
s_add_u32 s8, s8, s6""")
        Lskip = self.lab('nof1'); Lj = self.lab('f1j')
        I(f"""s_cmp_ge_u32 s5, s34
s_cbranch_scc1 {Lskip}""")
        self.qtile_issue('s[16:19]', 's[20:23]', 's8', 's15', pitch=3584, stg=STG1, skip=p['x_nof'])
        I(f'{Lskip}:')
        I("""v_lshlrev_b32 v80, 4, v1
buffer_load_dwordx4 v[84:87], v80, s[20:23], 0 offen
buffer_load_dwordx4 v[88:91], v80, s[20:23], 0 offen offset:1024
buffer_load_dwordx4 v[92:95], v80, s[28:31], 0 offen""")
        self.tag_load(24)
        I("""v_and_b32 v81, 3, v1
v_add_u32 v81, 0x07060500, v81""")
        if p['pre3']:
            self.tag_ready()
            Lf = self.lab('pf1')
            I(f"""s_cmp_ge_u32 s5, 28
s_cbranch_scc1 {Lf}
s_not_b32 s6, s52
v_mov_b32 v83, s6
s_lshl_b32 s6, s4, 2
s_lshl_b32 s7, s14, 1
s_add_u32 s6, s6, s7
s_add_u32 s6, s6, s15
s_lshl_b32 s6, s6, 11
s_lshl_b32 s7, s13, 7
s_add_u32 s6, s6, s7
s_add_u32 s6, s6, {WS_F}
v_lshrrev_b32 v82, 5, v1
v_lshlrev_b32 v82, 10, v82
v_and_b32 v79, 31, v1
v_lshlrev_b32 v79, 2, v79
v_add_u32 v82, v82, v79
v_add_u32 v82, s6, v82
buffer_store_dword v83, v82, s[24:27], 0 offen
{Lf}:""")
        self.stamp(1)
        I('s_waitcnt vmcnt(0)')
        if not p['pre3']: self.tag_ready()
        I('v_mov_b32 v80, s52')
        self.stamp(2)
        I(f"""s_cmp_ge_u32 s5, s34
s_cbranch_scc1 {Lj}""")
        self.qtile_compute()
        I(f"""v_perm_b32 v40, v40, v80, v81
v_perm_b32 v41, v41, v80, v81
s_lshl_b32 s6, s4, 1
s_add_u32 s6, s6, s14
s_lshl_b32 s6, s6, 2
s_add_u32 s6, s6, s15
s_lshl_b32 s6, s6, 11
s_lshl_b32 s7, s33, 8
s_add_u32 s6, s6, s7
s_add_u32 s6, s6, {WS_F}
v_lshlrev_b32 v4, 2, v1
v_add_u32 v4, s6, v4
s_mov_b32 s7, {COPYB}
buffer_store_dword v40, v4, s[24:27], 0 offen{LF}
buffer_store_dword v41, v4, s[24:27], 0 offen offset:1024{LF}""")
        if not p['x_nob']: I(f'buffer_store_dword v40, v4, s[24:27], s7 offen{SC}\nbuffer_store_dword v41, v4, s[24:27], s7 offen offset:1024{SC}')
        if p['qdelay']: I(f"s_sleep {p['qdelay']}")
        I(f'{Lj}:')
        I(f'v_mov_b32 v82, {CNT}\nv_mov_b32 v83, 1')
        self.signal('v82', 'v83', C_T)
        if p['x_stream'] == 2: I('s_endpgm')
        self.stamp(3)
        I('v_mov_b32 v8, 0\nv_mov_b32 v9, 0')
        for e in range(4):
            I(f"""v_lshlrev_b32 v10, 16, v{92+e}
v_and_b32 v11, 0xffff0000, v{92+e}
v_lshlrev_b32 v12, 16, v{84+e}
v_and_b32 v13, 0xffff0000, v{84+e}
v_lshlrev_b32 v14, 16, v{88+e}
v_and_b32 v15, 0xffff0000, v{88+e}
v_fmac_f32 v8, v10, v12
v_fmac_f32 v9, v10, v14
v_fmac_f32 v8, v11, v13
v_fmac_f32 v9, v11, v15""")
        for rr in (8, 4, 2, 1):
            I(f'v_add_f32_dpp v8, v8, v8 row_ror:{rr} row_mask:0xf bank_mask:0xf')
            I(f'v_add_f32_dpp v9, v9, v9 row_ror:{rr} row_mask:0xf bank_mask:0xf')
        for sw in ('v_permlane16_swap_b32', 'v_permlane32_swap_b32'):
            I(f"""v_mov_b32 v10, v8
v_mov_b32 v11, v9
{sw} v8, v10
{sw} v9, v11
v_add_f32 v8, v8, v10
v_add_f32 v9, v9, v11""")
        I(f"""v_mul_f32 v8, {fhex(-math.log2(math.e))}, v8
v_mul_f32 v9, {fhex(-math.log2(math.e))}, v9
v_exp_f32 v8, v8
v_exp_f32 v9, v9
v_add_f32 v8, 1.0, v8
v_add_f32 v9, 1.0, v9
v_rcp_f32 v8, v8
v_rcp_f32 v9, v9
v_mov_b32 v10, {GATE}
s_mov_b64 exec, 1
ds_write_b64 v10, v[8:9]
s_mov_b64 exec, -1
s_mov_b32 s40, 0
s_mov_b32 s41, -1
v_cndmask_b32 v16, v8, v9, s[40:41]
v_sub_f32 v16, 1.0, v16""")
        I('v_mov_b32 v90, %d\nv_mov_b32 v91, 1' % CNT)
        self.signal('v90', 'v91', C_H)
        I(f"""s_lshl_b32 s35, s12, 3
s_lshl_b32 s6, s4, 14         ; g*[mat][ks][b][256]*4
s_lshr_b32 s7, s5, 2
s_mul_i32 s7, s7, s35
s_lshl_b32 s7, s7, 2
s_add_u32 s6, s6, s7
s_add_u32 s6, s6, {WS_F}
s_sub_u32 s7, s35, 1
v_and_b32 v4, 31, v1
v_min_u32 v5, s7, v4
v_and_b32 v17, 3, v5
v_lshlrev_b32 v17, 3, v17
v_lshrrev_b32 v17, v17, v80
v_lshlrev_b32 v5, 2, v5
v_lshrrev_b32 v6, 5, v1
v_lshlrev_b32 v6, 10, v6
v_add_u32 v5, v5, v6
v_add_u32 v5, s6, v5
s_mov_b32 s15, {COPYB if p['force_remote'] else 0}
s_mov_b32 s11, 0""")
        L = self.lab('hg'); D = self.lab('hgd')
        I(f'{L}:')
        for m in range(8):
            I(f's_add_u32 s7, s15, {m*2048}')
            I(f'buffer_load_dword v{24+m}, v5, s[24:27], s7 offen{SC}')
        I('s_add_u32 s48, s48, 1\ns_add_u32 s11, s11, 1\ns_waitcnt vmcnt(0)')
        I('v_xor_b32 v18, v24, v17')
        for j in range(1, 8):
            I(f'v_xor_b32 v19, v{24+j}, v17\nv_or_b32 v18, v18, v19')
        I('v_and_b32 v18, 0xff, v18')
        self.poll_tail(L, D, 'v18', p['slf'])
        if not p['force_remote']:
            I(f"""s_cmp_lt_u32 s11, {p['na_polls']}
s_cbranch_scc1 {L}
s_xor_b32 s15, s15, {COPYB}""")
        I(f"""s_branch {L}
{D}:""")
        self.stamp(5)
        self.untag(range(24, 32))
        I(f"""v_add_f32 v24, v24, v25
v_add_f32 v26, v26, v27
v_add_f32 v28, v28, v29
v_add_f32 v30, v30, v31
v_add_f32 v24, v24, v26
v_add_f32 v28, v28, v30
v_mul_f32 v25, {fhex(-math.log2(math.e))}, v24
v_exp_f32 v25, v25
v_add_f32 v25, 1.0, v25
v_rcp_f32 v25, v25
v_mul_f32 v24, v24, v25
v_mul_f32 v24, v24, v28
v_mul_f32 v24, v24, v16
v_cmp_gt_u32 vcc, s35, v4
v_cndmask_b32 v24, 0, v24, vcc
v_cvt_pk_bf16_f32 v24, v24, v24
v_bfe_u32 v6, v4, 2, 2
v_lshlrev_b32 v6, 4, v6
v_lshrrev_b32 v7, 4, v4
v_lshlrev_b32 v7, 3, v7
v_add_u32 v6, v6, v7
v_and_b32 v7, 3, v4
v_lshlrev_b32 v7, 1, v7
v_add_u32 v6, v6, v7
v_lshrrev_b32 v7, 5, v1
v_lshlrev_b32 v7, 6, v7
v_add_u32 v6, v6, v7
v_add_u32 v6, {A2}, v6
ds_write_b16 v6, v24
s_waitcnt lgkmcnt(0)""")
        self.stamp(6)
        self.stamp_dump('s[24:27]')
        I('s_endpgm')

    def role_loader(self):
        I = self.I; p = self.p
        ntv = ' nt' if p['nt_v'] else ''
        ntw = ' nt' if p['nt_w'] else ''
        I('L_LD:')
        if p['prio_ld']: I(f"s_setprio {p['prio_ld']}")
        I(f"""s_sub_u32 s8, s3, {W_L0}           ; loader j
v_mov_b32 v90, {CNT}
v_mov_b32 v91, 1
s_cmp_lg_u32 s8, 0
s_cbranch_scc1 L_LD_noinit
v_mov_b32 v8, 0
v_mov_b32 v9, 0
v_mov_b32 v10, 0
v_mov_b32 v11, 0
ds_write_b128 v90, v[8:11]
ds_write_b128 v90, v[8:11] offset:16
ds_write_b128 v90, v[8:11] offset:32
s_waitcnt lgkmcnt(0)
L_LD_noinit:
s_barrier""")
        self.srd(16, 16, 0x2000000)
        self.srd(20, 32, 0x400000)
        self.srd(24, 64, 1792*512*2)
        self.srd(28, 96, WS_SIZE)
        self.lane_setup()
        if p['pf']:
            I(f"""s_cmp_lg_u32 s8, 3
s_cbranch_scc1 L_LD_nopf
s_getpc_b64 s[36:37]
L_PC:
s_add_u32 s36, s36, {KNAME}-L_PC
s_addc_u32 s37, s37, -1
v_lshlrev_b32 v4, 4, v1
s_mov_b32 s6, L_codeend-{KNAME}-16""")
            for j in range(p.get('pfn', 14)):
                I(f"""v_min_u32 v5, s6, v4
global_load_dwordx4 v[12:15], v5, s[36:37]
v_add_u32 v4, 1024, v4""")
            I('L_LD_nopf:')
        I('s_waitcnt lgkmcnt(0)')
        TLBMARK = True
        I(f"""s_and_b32 s6, s8, 1
s_lshl_b32 s6, s6, 2
v_add_u32 v5, s6, v2          ; (4*(j&1) + rho)
v_lshlrev_b32 v5, 1, v5
v_xor_b32 v5, v5, v3          ; chunk
v_lshlrev_b32 v5, 4, v5
v_lshlrev_b32 v6, 8, v2
v_add_u32 v10, v5, v6         ; V voffset
v_lshlrev_b32 v6, 17, v2
v_add_u32 v11, v5, v6
v_lshlrev_b32 v6, 10, v2
v_add_u32 v16, v5, v6
s_lshr_b32 s6, s5, 4          ; b
s_lshl_b32 s6, s6, 3
s_add_u32 s6, s6, s4          ; bh
s_lshl_b32 s10, s6, 21
s_and_b32 s6, s5, 15          ; t
s_lshl_b32 s6, s6, 17
s_add_u32 s10, s10, s6
s_and_b32 s6, s8, 1
s_lshl_b32 s6, s6, 10
s_add_u32 s10, s10, s6        ; V base + (j & 1) * 1024
s_lshr_b32 s11, s5, 2         ; w'
s_and_b32 s12, s5, 3          ; cg
s_lshl_b32 s13, s4, 9
s_lshl_b32 s6, s11, 4
s_add_u32 s13, s13, s6
s_add_u32 s13, s13, s8
s_lshl_b32 s13, s13, 10
s_lshl_b32 s6, s12, 8
s_add_u32 s13, s13, s6
s_and_b32 s6, s4, 1
s_sub_u32 s33, 4, s6
s_lshr_b32 s14, s4, 1
s_mul_i32 s14, s14, 7
s_lshl_b32 s6, s6, 2
s_add_u32 s14, s14, s6
s_lshl_b32 s14, s14, 6
s_lshl_b32 s34, s33, 3
s_mul_i32 s6, s34, s11
s_add_u32 s14, s14, s6
s_lshl_b32 s6, s8, 2
s_add_u32 s15, s14, s6
s_lshl_b32 s33, s33, 1
s_sub_u32 s33, s33, 1
s_add_u32 s6, s8, 4
s_min_u32 s6, s6, s33
s_lshl_b32 s6, s6, 2
s_add_u32 s14, s14, s6
s_lshl_b32 s15, s15, 10
s_lshl_b32 s14, s14, 10
s_lshl_b32 s6, s12, 8
s_add_u32 s15, s15, s6
s_add_u32 s14, s14, s6
s_lshl_b32 s9, s8, 10         ; j*1024""")
        if p['tlb']:
            Lt = self.lab('tlb')
            I(f"""; loader 2 touches the pages that are first used late (V, wo, w_down, hand-off area): translation warm-up
s_cmp_lg_u32 s8, 2
s_cbranch_scc1 {Lt}
v_mov_b32 v20, 0
s_mov_b64 exec, 1
buffer_load_dword v21, v20, s[16:19], s10 offen
buffer_load_dword v22, v20, s[20:23], s13 offen
buffer_load_dword v23, v20, s[24:27], s15 offen
s_mov_b32 s6, {WS_T1}
buffer_load_dword v24, v20, s[28:31], s6 offen
s_mov_b32 s6, {WS_T3}
buffer_load_dword v25, v20, s[28:31], s6 offen
s_mov_b32 s6, {WS_ST}
buffer_load_dword v26, v20, s[28:31], s6 offen
s_mov_b64 exec, -1
{Lt}:""")
        self.stamp(1)
        self.lds_wait('v90', 'v7', C_K, p['kthr'], sleep=p['slk'])
        if p['x_stream'] != 1: self.lds_wait('v90', 'v7', C_T, 2, sleep=p['slk'])
        I('s_waitcnt vmcnt(0)')
        self.stamp(2)
        loads = []
        I(f"""s_mul_i32 s61, s5, {p['rkb']}
s_mul_i32 s6, s4, {p['rkc']}
s_add_u32 s61, s61, s6
s_lshr_b32 s6, s8, 1
s_add_u32 s61, s61, s6
s_mul_i32 s62, s5, {p['rcb']}
s_mul_i32 s6, s4, {p['rcc']}
s_add_u32 s62, s62, s6""")
        for q in range(32):
            cw = q >> 2
            loads.append([f's_add_u32 m0, s9, {V_OFF + q*4096}',
                          f's_add_u32 s6, s61, {cw*p["rka"] + 2*(q & 3)}',
                          f's_and_b32 s6, s6, 7',
                          f's_lshl_b32 s6, s6, 11',
                          f's_add_u32 s6, s6, s10',
                          f's_add_u32 s7, s62, {cw}',
                          f's_and_b32 s7, s7, 7',
                          f's_lshl_b32 s7, s7, 14',
                          f's_add_u32 s6, s6, s7',
                          f'buffer_load_dwordx4 v10, s[16:19], s6 offen{ntv} lds'])
        for q in range(4):
            loads.append([f's_add_u32 m0, s9, {WO_OFF + q*4096}',
                          f's_add_u32 s6, s13, {q*4096}',
                          f'buffer_load_dwordx4 v11, s[20:23], s6 offen{ntw} lds'])
        loads.append([f's_add_u32 m0, s9, {WD_OFF}', 's_nop 0', f'buffer_load_dwordx4 v16, s[24:27], s15 offen{ntw} lds'])
        loads.append([f's_add_u32 m0, s9, {WD_OFF + 4096}', 's_nop 0', f'buffer_load_dwordx4 v16, s[24:27], s14 offen{ntw} lds'])
        vl, wl = loads[:32], loads[32:]
        wp, ws_ = p['wpos'], p['wsplit']
        loads = vl[:wp] + wl[:ws_] + vl[wp:] + wl[ws_:]
        def vpos(q): return q if q < wp else q + ws_
        n = len(loads)
        nA = 2 * p['na']
        marks = {vpos(nA - 1): 'A', vpos(31): 'V'}
        def mark(m):
            if m == 'A': self.signal('v90', 'v91', C_A)
            elif not p['x_stream']: I('s_barrier')
            self.stamp(3 if m == 'A' else 4)
        def depth(i): return p['dv2'] if i >= n - p['dvn'] else p['dv']
        done = -1
        issued = 0
        pend = sorted(marks)
        while issued < n:
            D = depth(issued)
            need_done = issued - D
            if need_done > done:
                I(f's_waitcnt vmcnt({issued - 1 - need_done})')
                done = need_done
            for l in loads[issued]: I(l)
            issued += 1
            while pend and pend[0] <= done:
                mark(marks[pend.pop(0)])
        while done < n - 1:
            done += 1
            if pend and pend[0] == done or done == n - 1:
                I(f's_waitcnt vmcnt({n - 1 - done})')
            while pend and pend[0] <= done:
                mark(marks[pend.pop(0)])
        self.stamp(5)
        if not p['x_stream']: I('s_barrier')
        if p['x_dirty']:
            I(f"""s_lshl_b32 s6, s2, 2
s_add_u32 s6, s6, s8
s_mul_i32 s6, s6, {p['x_dirty']*1024}
s_add_u32 s6, s6, 0x400000
s_mov_b32 s30, 0x10000000
v_lshlrev_b32 v4, 4, v1""")
            for j in range(p['x_dirty']):
                I(f's_add_u32 s7, s6, {j*1024}\nbuffer_store_dwordx4 v[8:11], v4, s[28:31], s7 offen')
        self.stamp_dump('s[28:31]')
        I('s_endpgm')

    def role_compute(self):
        I = self.I; p = self.p
        ntk = ' nt' if p['nt_k'] else ''
        cexp = math.log2(math.e) / math.sqrt(128.0)
        I('L_CW:')
        if p['early']:
            I('s_mov_b32 s18, 0x2000000\ns_mov_b32 s19, 0x20000')
        else:
            self.srd(16, 8, 0x2000000)
            self.srd(20, 96, WS_SIZE)
            self.srd(24, 80, 2048)
        if p['x_start']: I('s_memrealtime s[90:91]')
        I('s_barrier')
        if p['x_start']: I('s_memrealtime s[92:93]')
        self.lane_setup()
        I(f"""s_sub_u32 s8, s3, {W_C0}           ; cw
s_lshr_b32 s6, s5, 4          ; b
s_lshl_b32 s6, s6, 3
s_add_u32 s6, s6, s4
s_lshl_b32 s10, s6, 21
s_and_b32 s6, s5, 15
s_lshl_b32 s6, s6, 17
s_add_u32 s10, s10, s6
s_mul_i32 s6, s5, {p['rcb']}
s_mul_i32 s7, s4, {p['rcc']}
s_add_u32 s6, s6, s7
s_add_u32 s6, s6, s8
s_and_b32 s6, s6, 7
s_lshl_b32 s6, s6, 14
s_add_u32 s10, s10, s6
v_and_b32 v4, 7, v1
v_lshlrev_b32 v4, 8, v4
v_bfe_u32 v5, v1, 3, 1
v_lshlrev_b32 v5, 6, v5
v_add_u32 v4, v4, v5
v_lshlrev_b32 v5, 4, v2
v_add_u32 v4, v4, v5          ; K voffset
s_mul_i32 s61, s8, {p['rka']}
s_mul_i32 s6, s5, {p['rkb']}
s_add_u32 s61, s61, s6
s_mul_i32 s6, s4, {p['rkc']}
s_add_u32 s61, s61, s6
v_mov_b32 v62, {CNT}
v_mov_b32 v63, 1
s_waitcnt lgkmcnt(0)""")
        D = p['dk']
        def kload(i):
            o, hx = divmod(i, 2)
            if hx == 0:
                I(f's_add_u32 s11, s61, {o}\ns_and_b32 s11, s11, 7\ns_lshl_b32 s11, s11, 11\ns_add_u32 s11, s11, s10')
            I(f'buffer_load_dwordx4 v[{64+4*i}:{67+4*i}], v4, s[16:19], s11 offen offset:{hx*128}{ntk}')
        if p['x_start']: I('s_memrealtime s[94:95]')
        for i in range(D): kload(i)
        if p['early']:
            self.srd(20, 96, WS_SIZE)
            self.srd(24, 80, 2048)
            I('s_waitcnt lgkmcnt(0)')
        self.tag_load(20)
        self.stamp(1)
        vC, vOne = 'v62', 'v63'
        for i in range(D, 16):
            I(f's_waitcnt vmcnt({D-1})')
            kload(i)
            if i == 15 - p['ksig']:
                self.signal(vC, vOne, C_K)
        self.stamp(2)
        if p['x_stream']:
            I('s_waitcnt vmcnt(0)')
            self.stamp(3)
            self.stamp_dump('s[20:23]', 16)
            I('s_endpgm')
        self.tag_ready()
        I(f"""v_and_b32 v5, 3, v3           ; head = n&3
v_lshlrev_b32 v6, 8, v5
v_lshlrev_b32 v7, 4, v2
v_add_u32 v60, v6, v7
v_bfe_u32 v6, v3, 3, 1
v_lshlrev_b32 v6, 6, v6
v_add_u32 v60, v60, v6
v_add_u32 v60, {Q_OFF}, v60
v_lshlrev_b32 v61, 5, v5
v_add_u32 v61, {MX}, v61
s_lshl_b32 s6, s8, 2
v_add_u32 v59, s6, v61""")
        self.lds_wait(vC, 'v5', C_Q, 1, sleep=2)
        self.stamp(3)
        for hx in range(2):
            I(f'ds_read_b128 v[{48+4*hx}:{51+4*hx}], v60 offset:{hx*128}')
        I(f'ds_read_b32 v5, {vC} offset:{C_M}')
        I('s_waitcnt lgkmcnt(0)\nv_readfirstlane_b32 s51, v5')
        for o in range(8):
            I(f's_waitcnt vmcnt({14 - 2*o})')
            for hx in range(2):
                c = '0' if hx == 0 else f'v[{16+4*o}:{19+4*o}]'
                r = 64 + 8*o + 4*hx
                I(f'v_mfma_f32_16x16x32_bf16 v[{16+4*o}:{19+4*o}], v[{r}:{r+3}], v[{48+4*hx}:{51+4*hx}], {c}')
        for j in range(4):
            for r in range(4): I(f'v_permlane32_swap_b32 v{16+8*j+r}, v{20+8*j+r}')
            for r in range(4): I(f'v_add_f32_dpp v{16+4*j+r}, v{20+8*j+r}, v{16+8*j+r} row_ror:8 row_mask:0xf bank_mask:0xf')
        I('v_max3_f32 v5, v16, v17, v18')
        for e in range(19, 31, 2):
            I(f'v_max3_f32 v5, v5, v{e}, v{e+1}')
        I('v_max_f32 v5, v5, v31')
        for sw in ('v_permlane16_swap_b32', 'v_permlane32_swap_b32'):
            I(f"""v_mov_b32 v6, v5
{sw} v5, v6
v_max_f32 v5, v5, v6""")
        I("""s_mov_b64 exec, 15
ds_write_b32 v59, v5
s_mov_b64 exec, -1""")
        self.signal(vC, vOne, C_1)
        self.lds_wait(vC, 'v6', C_1, 8, sleep=0)
        I(f"""ds_read_b128 v[48:51], v61
ds_read_b128 v[52:55], v61 offset:16
s_mov_b32 s50, {fhex(cexp)}
s_waitcnt lgkmcnt(0)
v_max3_f32 v48, v48, v49, v50
v_max3_f32 v51, v51, v52, v53
v_max3_f32 v48, v48, v54, v55
v_max_f32 v48, v48, v51
v_mul_f32 v58, s50, v48
v_and_b32 v58, s63, v58""")
        for e in range(16):
            I(f'v_fma_f32 v{16+e}, v{16+e}, s50, -v58')
        for e in range(16):
            I(f'v_exp_f32 v{16+e}, v{16+e}')
        for q in range(8):
            I(f'v_cvt_pk_bf16_f32 v{48+q}, v{16+2*q}, v{17+2*q}')
        I(f"""s_lshl_b32 s6, s8, 9
s_add_u32 s6, s6, {P_OFF}
v_lshlrev_b32 v6, 6, v2
v_lshlrev_b32 v7, 4, v3
v_add_u32 v6, v6, v7
v_add_u32 v6, s6, v6
s_mov_b32 s40, 0x000f000f
s_mov_b32 s41, 0x000f000f
s_mov_b64 exec, s[40:41]
ds_write_b128 v6, v[48:51]
ds_write_b128 v6, v[52:55] offset:256
s_mov_b64 exec, -1""")
        for e in range(8): I(f'v_add_f32 v{16+e}, v{16+e}, v{24+e}')
        for e in range(4): I(f'v_add_f32 v{16+e}, v{16+e}, v{20+e}')
        I("""v_add_f32 v16, v16, v17
v_add_f32 v18, v18, v19
v_add_f32 v5, v16, v18""")
        for sw in ('v_permlane16_swap_b32', 'v_permlane32_swap_b32'):
            I(f"""v_mov_b32 v6, v5
{sw} v5, v6
v_add_f32 v5, v5, v6""")
        I("""s_mov_b64 exec, 15
ds_write_b32 v59, v5 offset:128
s_mov_b64 exec, -1""")
        self.signal(vC, vOne, C_2)
        self.lds_wait(vC, 'v6', C_2, 8, sleep=0)
        self.stamp(4)
        I(f"""s_lshl_b32 s12, s4, 5
s_add_u32 s12, s12, s5        ; slot
v_mov_b32 v47, s52""")
        Ls = self.lab('nostat')
        I(f"""s_cmp_lg_u32 s8, 0
s_cbranch_scc1 {Ls}
ds_read_b128 v[48:51], v61 offset:128
ds_read_b128 v[52:55], v61 offset:144
v_and_b32 v6, 3, v1
v_add_u32 v6, 0x07060500, v6
s_waitcnt lgkmcnt(0)
v_add_f32 v48, v48, v49
v_add_f32 v50, v50, v51
v_add_f32 v52, v52, v53
v_add_f32 v54, v54, v55
v_add_f32 v48, v48, v50
v_add_f32 v52, v52, v54
v_add_f32 v48, v48, v52
s_mov_b32 s40, 0xf0f0f0f0
s_mov_b32 s41, 0
v_cndmask_b32 v48, v58, v48, s[40:41]
v_perm_b32 v48, v48, v47, v6
s_lshl_b32 s6, s12, 7
s_add_u32 s6, s6, {WS_ST}
v_lshlrev_b32 v6, 2, v1
s_mov_b32 exec_hi, 0""")
        self.mode_store('buffer_store_dword v48, v6, s[20:23], s6 offen', 's51')
        I('s_mov_b32 exec_hi, -1')
        I(f'{Ls}:')
        I(f"""v_and_b32 v5, 3, v3
v_lshlrev_b32 v5, 4, v5
v_lshlrev_b32 v6, 6, v2
v_add_u32 v5, v5, v6
v_add_u32 v5, {P_OFF}, v5""")
        for st in range(16):
            if st == 8: I('s_waitcnt lgkmcnt(0)')
            I(f'ds_read_b128 v[{64+4*st}:{67+4*st}], v5 offset:{st*256}')
        I(f"""v_lshrrev_b32 v5, 2, v3       ; r
v_and_b32 v6, 3, v3           ; c4
v_lshlrev_b32 v7, 2, v2
v_add_u32 v7, v7, v5          ; 4s + r
v_and_b32 v48, 7, v7          ; (4(s&1) + r)
v_xor_b32 v48, s8, v48
v_lshlrev_b32 v48, 5, v48
v_lshlrev_b32 v7, 8, v7
v_add_u32 v7, v7, v48
v_lshlrev_b32 v6, 3, v6
v_add_u32 v56, v7, v6
v_add_u32 v57, 0x10000, v56
v_add_u32 v59, 0x20000, v56""")
        I(f"""s_lshr_b32 s13, s5, 2         ; w'
s_and_b32 s14, s5, 3          ; cg
s_and_b32 s15, s8, 1
s_lshl_b32 s6, s15, 4
v_add_u32 v5, s6, v2          ; b*16 + tq
v_lshlrev_b32 v12, 4, v5
v_add_u32 v12, {WL}, v12
s_lshl_b32 s6, s4, 5
v_add_u32 v61, s6, v5         ; slot' (i = 0)
v_lshlrev_b32 v61, 11, v61
s_lshl_b32 s6, s13, 4
v_add_u32 v6, s6, v3
v_lshlrev_b32 v6, 4, v6
v_add_u32 v61, v61, v6
v_add_u32 v61, {WS_T1}, v61
v_lshrrev_b32 v6, 3, v3
v_lshlrev_b32 v6, 6, v6
v_bfe_u32 v7, v3, 2, 1
v_lshlrev_b32 v7, 3, v7       ; half*8
v_add_u32 v6, v6, v7
v_and_b32 v7, 3, v3
v_lshlrev_b32 v7, 4, v7       ; sA*16
v_add_u32 v6, v6, v7
v_lshlrev_b32 v7, 1, v2
v_add_u32 v6, v6, v7          ; + hh*2
s_lshl_b32 s6, s15, 7
s_add_u32 s6, s6, {A1}
v_add_u32 v60, s6, v6
s_lshl_b32 s6, s12, 11
s_lshl_b32 s7, s8, 8
s_add_u32 s6, s6, s7
s_add_u32 s6, s6, {WS_T1}
v_lshlrev_b32 v58, 4, v3
v_add_u32 v58, s6, v58
v_and_b32 v6, 1, v3
v_lshlrev_b32 v44, 1, v6
v_add_u32 v50, 0x07060500, v44
v_add_u32 v51, 1, v50
v_mov_b32 v49, s52               ; T
v_lshlrev_b32 v7, 6, v6
v_lshlrev_b32 v6, 7, v6
v_lshlrev_b32 v48, 4, v2
v_add_u32 v6, v6, v48
v_add_u32 v62, {A1}, v6
v_add_u32 v7, v7, v48
v_add_u32 v48, {A2}, v7
s_lshl_b32 s6, s14, 3
s_add_u32 s6, s6, s8
s_lshl_b32 s6, s6, 6
s_lshl_b32 s7, s4, 3
s_add_u32 s7, s7, s13
s_add_u32 s6, s6, s7
s_lshl_b32 s6, s6, 7
s_add_u32 s6, s6, {WS_T3}
v_lshlrev_b32 v63, 3, v3
v_add_u32 v63, s6, v63
v_mov_b32 v13, {CNT}
s_and_b32 s13, s2, 3          ; cg3
s_lshr_b32 s14, s2, 2         ; o8
s_lshl_b32 s6, s13, 3
s_add_u32 s6, s6, s14
s_lshl_b32 s6, s6, 13
s_lshl_b32 s7, s8, 5
s_add_u32 s6, s6, s7
s_add_u32 s6, s6, {WS_T3}
v_lshrrev_b32 v14, 1, v1
v_lshlrev_b32 v14, 7, v14
v_and_b32 v6, 1, v1
v_lshlrev_b32 v7, 4, v6
v_add_u32 v14, v14, v7
v_add_u32 v14, s6, v14
s_lshl_b32 s6, s13, 8
s_lshl_b32 s7, s14, 5
s_add_u32 s6, s6, s7
s_lshl_b32 s7, s8, 3
s_add_u32 s6, s6, s7
v_and_b32 v15, 1, v2
v_lshlrev_b32 v15, 10, v15
v_lshlrev_b32 v6, 2, v6
v_add_u32 v15, v15, v6
v_lshrrev_b32 v6, 1, v2
v_lshlrev_b32 v6, 1, v6
v_add_u32 v15, v15, v6
v_add_u32 v15, s6, v15
s_waitcnt lgkmcnt(0)""")
        Lsa = self.lab('sa')
        I(f"""s_mov_b32 s60, 0
s_cmp_lg_u32 s8, {p['sw']}
s_cbranch_scc1 {Lsa}""")
        self.lds_wait('v13', 'v5', C_H, 1, sleep=1)
        I(f"""v_mov_b32 v5, {GATE}
ds_read_b64 v[6:7], v5
s_mov_b32 s40, 0
s_mov_b32 s41, -1
v_lshrrev_b32 v5, 5, v1
v_lshlrev_b32 v5, 4, v5
v_add_u32 v5, v5, v3          ; b'*16 + t'
v_lshlrev_b32 v60, 4, v5
v_add_u32 v60, {WL}, v60
s_lshl_b32 s6, s4, 5
v_add_u32 v5, s6, v5          ; slot'
v_lshlrev_b32 v5, 7, v5
v_add_u32 v61, {WS_ST}, v5
s_waitcnt lgkmcnt(0)
v_cndmask_b32 v12, v6, v7, s[40:41]   ; g_b (b = lane>>5)
{Lsa}:""")
        if p['pre1']:
            Lp = self.lab('p1')
            I(f"""s_cmp_eq_u32 s51, 0
s_cbranch_scc1 {Lp}
v_not_b32 v16, v49
v_not_b32 v17, v49
v_not_b32 v18, v49
v_not_b32 v19, v49
s_mov_b64 exec, 0xffff
buffer_store_dwordx4 v[16:19], v58, s[20:23], 0 offen
s_mov_b64 exec, -1
{Lp}:""")
        if p['owarm']:
            Lo = self.lab('ow')
            I(f"""s_cmp_ge_u32 s2, 32
s_cbranch_scc1 {Lo}
s_cmp_gt_u32 s8, 3
s_cbranch_scc1 {Lo}
s_mov_b32 exec_lo, 0x00030003
s_mov_b32 exec_hi, 0x00030003""")
            if p['owarm'] == 1: I('v_mov_b32 v5, 0\nbuffer_store_short v5, v15, s[24:27], 0 offen')
            else: I('buffer_load_ushort v5, v15, s[24:27], 0 offen')
            I(f's_mov_b64 exec, -1\ns_waitcnt vmcnt(0)\n{Lo}:')
        self.stamp(5)
        self.lds_wait('v13', 'v5', C_A, 4, sleep=p['sla'])
        self.stamp(6)
        def vread(st, r):
            base = 'v56' if st < 8 else 'v57'
            o = (st & 7) * 8192
            I(f'ds_read_b64_tr_b16 v[{r}:{r+1}], {base} offset:{o}')
            I(f'ds_read_b64_tr_b16 v[{r+2}:{r+3}], {base} offset:{o+4096}')
        def vmfma(st, r):
            c = '0' if st == 0 else 'v[8:11]'
            I(f'v_mfma_f32_16x16x32_bf16 v[8:11], v[{64+4*st}:{67+4*st}], v[{r}:{r+3}], {c}')
        na = p['na']
        batches = []
        st = 0
        while st < na:
            b = list(range(st, min(st + 4, na))); batches.append(b); st += len(b)
        sets = (16, 32)
        for k, b in enumerate(batches):
            if k == 0:
                for j, st in enumerate(b): vread(st, sets[0] + 4*j)
            I('s_waitcnt lgkmcnt(0)')
            if k + 1 < len(batches):
                for j, st in enumerate(batches[k+1]): vread(st, sets[(k+1) & 1] + 4*j)
            for j, st in enumerate(b): vmfma(st, sets[k & 1] + 4*j)
            if k == 0:
                Lq = self.lab('nsl')
                I(f"s_cmp_lg_u32 s8, {p['sw']}\ns_cbranch_scc1 {Lq}")
                self.stats_loads()
                I(f'{Lq}:')
        I('s_barrier')
        self.stamp(7)
        rest = list(range(na, 16))
        for j, st in enumerate(rest): vread(st, 16 + 4*j)
        for j, st in enumerate(rest):
            I(f's_waitcnt lgkmcnt({2*(len(rest)-1-j)})')
            vmfma(st, 16 + 4*j)
        for e in range(4): I(f'v_perm_b32 v{8+e}, v{8+e}, v49, s{53+e}')
        I('s_mov_b64 exec, 0xffff')
        self.mode_store('buffer_store_dwordx4 v[8:11], v58, s[20:23], 0 offen', 's51')
        I('s_mov_b64 exec, -1')
        I('ds_read_b128 v[52:55], v48')
        self.stamp(8)
        Lns = self.lab('nsw'); Lw = self.lab('sw'); Lr = self.lab('swr')
        I(f"""s_cmp_lg_u32 s8, {p['sw']}
s_cbranch_scc1 {Lns}
s_waitcnt vmcnt(1)""")
        self.stats_check()
        I(f"""v_cmp_ne_u32 vcc, 0, v5
s_cbranch_vccz {Lw}
{Lr}:""")
        self.stats_loads()
        I('s_add_u32 s48, s48, 1\ns_waitcnt vmcnt(0)')
        self.stats_check()
        self.poll_tail(Lr, Lw, 'v5', p['sls'])
        I(f"""s_branch {Lr}
{Lw}:""")
        self.untag(range(64, 72))
        for h in range(4): I(f'v_mov_b32 v{72+h}, v{64+h}')
        for rr in (8, 4, 2, 1):
            for h in range(4): I(f'v_max_f32_dpp v{72+h}, v{72+h}, v{72+h} row_ror:{rr} row_mask:0xf bank_mask:0xf')
        for h in range(4): I(f'v_sub_f32 v{64+h}, v{64+h}, v{72+h}')
        for h in range(4): I(f'v_exp_f32 v{64+h}, v{64+h}')
        for h in range(4): I(f'v_mul_f32 v{68+h}, v{68+h}, v{64+h}')
        for rr in (8, 4, 2, 1):
            for h in range(4): I(f'v_add_f32_dpp v{68+h}, v{68+h}, v{68+h} row_ror:{rr} row_mask:0xf bank_mask:0xf')
        for h in range(4): I(f'v_rcp_f32 v{68+h}, v{68+h}')
        for h in range(4): I(f'v_mul_f32 v{64+h}, v{64+h}, v12')
        for h in range(4): I(f'v_mul_f32 v{64+h}, v{64+h}, v{68+h}')
        I('ds_write_b128 v60, v[64:67]\nv_mov_b32 v5, 1')
        self.signal('v13', 'v5', C_W)
        I(f'{Lns}:')
        Lng = self.lab('nog')
        I(f"""s_cmp_gt_u32 s8, 1
s_cbranch_scc1 {Lng}""")
        I(f's_mov_b32 s6, {4*2048}\ns_mov_b32 s7, {8*2048}\ns_mov_b32 s9, {12*2048}')
        T2B = (64, 96, 112)
        NS2 = p['t2sets']
        def t2issue(k):
            for i, so in enumerate(('0', 's6', 's7', 's9')):
                r = T2B[k] + 4*i
                I(f'buffer_load_dwordx4 v[{r}:{r+3}], v61, s[20:23], {so} offen{SC}')
        if p['t2wait']: I('s_waitcnt vmcnt(0)')
        t2issue(0)
        self.lds_wait('v13', 'v5', C_W, 1, sleep=0)
        for i in range(4): I(f'ds_read_b128 v[{80+4*i}:{83+4*i}], v12 offset:{i*64}')
        for k in range(1, NS2):
            if p['t2st']: I(f"s_sleep {p['t2st']}")
            t2issue(k)
        L = self.lab('t2'); Dn = self.lab('t2d')
        if p['t2mask']:
            Lh = self.lab('t2m')
            I(f'{L}:\ns_waitcnt vmcnt(0)')
            for i in range(4):
                self.tag_acc(64 + 4*i, True)
                I(f'v_cmp_ne_u32 s[{40+2*i}:{41+2*i}], 0, v16')
            I(f"""s_or_b64 vcc, s[40:41], s[42:43]
s_or_b64 s[36:37], s[44:45], s[46:47]
s_or_b64 vcc, vcc, s[36:37]
s_cbranch_scc0 {Lh}
s_add_u32 s48, s48, 1
s_cmp_gt_u32 s48, {self.glim}
s_cbranch_scc1 {Lh}""")
            if p['sl2']: I(f"s_sleep {p['sl2']}")
            for i, so in enumerate(('0', 's6', 's7', 's9')):
                La = self.lab('t2s')
                I(f"""s_mov_b64 exec, s[{40+2*i}:{41+2*i}]
s_cbranch_execz {La}
buffer_load_dwordx4 v[{64+4*i}:{67+4*i}], v61, s[20:23], {so} offen{SC}
{La}:""")
            I(f's_mov_b64 exec, -1\ns_branch {L}\n{Lh}:\ns_waitcnt lgkmcnt(0)')
            self.untag(range(64, 80))
            for h in range(4): I(f'v_mul_f32 v{16+h}, v{64+h}, v{80+h}')
            for i in range(1, 4):
                for h in range(4): I(f'v_fmac_f32 v{16+h}, v{64+4*i+h}, v{80+4*i+h}')
            NS2 = 0
        if NS2: I(f'{L}:')
        hits = []
        for k in range(NS2):
            for i in range(4):
                I(f's_waitcnt vmcnt({4*(NS2-1) + 3-i})')
                self.tag_acc(T2B[k] + 4*i, i == 0)
            H = self.lab('t2h'); hits.append((H, T2B[k]))
            I(f"""v_cmp_ne_u32 vcc, 0, v16
s_cbranch_vccz {H}""")
            if p['sl2']: I(f"s_sleep {p['sl2']}")
            t2issue(k)
        if NS2: I(f"""s_add_u32 s48, s48, 1
s_cmp_le_u32 s48, {self.glim}
s_cbranch_scc1 {L}""")
        for j, (H, r) in enumerate(hits):
            I(f'{H}:')
            self.untag(range(r, r + 16))
            I('s_waitcnt lgkmcnt(0)')
            for h in range(4): I(f'v_mul_f32 v{16+h}, v{r+h}, v{80+h}')
            for i in range(1, 4):
                for h in range(4): I(f'v_fmac_f32 v{16+h}, v{r+4*i+h}, v{80+4*i+h}')
            if j + 1 < len(hits): I(f's_branch {Dn}')
        I(f'{Dn}:')
        self.stamp(9)
        I("""v_permlane16_swap_b32 v16, v17
v_permlane16_swap_b32 v18, v19
v_add_f32 v16, v16, v17
v_add_f32 v18, v18, v19
v_permlane32_swap_b32 v16, v18
v_add_f32 v16, v16, v18
v_cvt_pk_bf16_f32 v16, v16, v16
ds_write_b16 v60, v16
s_waitcnt lgkmcnt(0)""")
        I(f"""{Lng}:
s_barrier""")
        self.stamp(10)
        I("""ds_read_b64_tr_b16 v[16:17], v59 offset:16384
ds_read_b64_tr_b16 v[18:19], v59 offset:20480
ds_read_b128 v[32:35], v62
ds_read_b64_tr_b16 v[20:21], v59
ds_read_b64_tr_b16 v[22:23], v59 offset:4096
ds_read_b128 v[36:39], v62 offset:64
ds_read_b64_tr_b16 v[24:25], v59 offset:8192
ds_read_b64_tr_b16 v[26:27], v59 offset:12288
s_waitcnt lgkmcnt(6)
v_mfma_f32_16x16x32_bf16 v[8:11], v[52:55], v[16:19], 0
s_waitcnt lgkmcnt(3)
v_mfma_f32_16x16x32_bf16 v[8:11], v[32:35], v[20:23], v[8:11]
s_waitcnt lgkmcnt(0)
v_mfma_f32_16x16x32_bf16 v[8:11], v[36:39], v[24:27], v[8:11]""")
        I(f"""v_perm_b32 v8, v8, v49, v50
v_perm_b32 v9, v9, v49, v51
s_mov_b64 exec, 0xffff
buffer_store_dwordx2 v[8:9], v63, s[20:23], 0 offen{(SC, ' sc0 sc1')[p['t3stf']]}
s_mov_b64 exec, -1""")
        self.stamp(11)
        Lend = 'L_CW_end'
        I(f"""s_cmp_ge_u32 s2, 32
s_cbranch_scc1 {Lend}
s_cmp_gt_u32 s8, 3
s_cbranch_scc1 {Lend}
s_mov_b32 s7, 4096""")
        NS = p['t3sets']
        L = self.lab('t3'); Dn = self.lab('t3d')
        def issue(k):
            r = 64 + 8*k
            fl = (SC, ' sc0 sc1', ' sc1 nt', ' sc0 sc1 nt')[p['t3ld']]
            I(f'buffer_load_dwordx4 v[{r}:{r+3}], v14, s[20:23], 0 offen{fl}')
            I(f'buffer_load_dwordx4 v[{r+4}:{r+7}], v14, s[20:23], s7 offen{fl}')
        if p['t3wait']: I('s_waitcnt vmcnt(0)')
        if p['t3delay']: I(f"s_sleep {p['t3delay']}")
        self.stamp(13)
        if p['stamps'] and not p['light']: I('s_mov_b32 s59, s48')
        if p['t3mask']:
            fl = (SC, ' sc0 sc1', ' sc1 nt', ' sc0 sc1 nt')[p['t3ld']]
            issue(0)
            La = self.lab('t3a'); Lb = self.lab('t3b'); Lh = self.lab('t3m')
            I(f'{L}:\ns_waitcnt vmcnt(0)')
            self.tag_acc(64, True)
            I('v_cmp_ne_u32 s[40:41], 0, v16')
            self.tag_acc(68, True)
            I(f"""v_cmp_ne_u32 s[42:43], 0, v16
s_or_b64 s[44:45], s[40:41], s[42:43]
s_cbranch_scc0 {Lh}
s_add_u32 s48, s48, 1
s_cmp_gt_u32 s48, {self.glim}
s_cbranch_scc1 {Lh}""")
            if p['sl3']: I(f"s_sleep {p['sl3']}")
            I(f"""s_mov_b64 exec, s[40:41]
s_cbranch_execz {La}
buffer_load_dwordx4 v[64:67], v14, s[20:23], 0 offen{fl}
{La}:
s_mov_b64 exec, s[42:43]
s_cbranch_execz {Lb}
buffer_load_dwordx4 v[68:71], v14, s[20:23], s7 offen{fl}
{Lb}:
s_mov_b64 exec, -1
s_branch {L}
{Lh}:""")
            self.untag(range(64, 72))
            for e in range(4): I(f'v_add_f32 v{20+e}, v{64+e}, v{68+e}')
            NS = 0
        for k in range(NS):
            issue(k)
            if k + 1 < NS and p['t3st']: I(f"s_sleep {p['t3st']}")
        if NS: I(f'{L}:')
        hits = []
        for k in range(NS):
            r = 64 + 8*k
            I(f's_waitcnt vmcnt({2*(NS-1)})')
            self.tag_acc(r, True)
            self.tag_acc(r + 4, False)
            H = self.lab('t3h'); hits.append((H, r))
            I(f"""v_cmp_ne_u32 vcc, 0, v16
s_cbranch_vccz {H}""")
            issue(k)
        if NS: I(f"""s_add_u32 s48, s48, 1
s_cmp_le_u32 s48, {self.glim}
s_cbranch_scc1 {L}""")
        for j, (H, r) in enumerate(hits):
            I(f'{H}:')
            self.untag(range(r, r + 8))
            for e in range(4): I(f'v_add_f32 v{20+e}, v{r+e}, v{r+4+e}')
            if j + 1 < len(hits): I(f's_branch {Dn}')
        I(f'{Dn}:')
        if p['stamps'] and not p['light']:
            I('s_sub_u32 s92, s48, s59\ns_add_u32 s92, s92, 1')
            self.stamp(15)
        I("""v_permlane16_swap_b32 v20, v21
v_permlane16_swap_b32 v22, v23
v_add_f32 v20, v20, v21
v_add_f32 v22, v22, v23
v_permlane32_swap_b32 v20, v22
v_add_f32 v20, v20, v22""")
        for rr in (2, 4, 8):
            I(f'v_add_f32_dpp v20, v20, v20 row_ror:{rr} row_mask:0xf bank_mask:0xf')
        I(f"""v_cvt_pk_bf16_f32 v20, v20, v20
s_mov_b32 exec_lo, 0x00030003
s_mov_b32 exec_hi, 0x00030003
buffer_store_short v20, v15, s[24:27], 0 offen
s_mov_b64 exec, -1""")
        I(f"""s_cmp_lg_u32 s2, 0
s_cbranch_scc1 L_CW_noe
s_cmp_lg_u32 s8, 0
s_cbranch_scc1 L_CW_noe
v_mov_b32 v5, {WS_E}
s_mov_b64 exec, 1
buffer_store_dword v49, v5, s[20:23], 0 offen{SC}
s_mov_b64 exec, -1
L_CW_noe:""")
        self.stamp(12)
        if p['x_dbg']:
            Ld = self.lab('xd')
            I(f"""s_cmp_lg_u32 s8, 0
s_cbranch_scc1 {Ld}
s_memrealtime s[92:93]
s_load_dwordx2 s[32:33], s[0:1], 88
s_mov_b32 s34, 256
s_mov_b32 s35, 0x20000
s_waitcnt lgkmcnt(0)
s_sub_u32 s6, s92, s90
s_mul_i32 s7, s51, 100000
s_add_u32 s6, s6, s7
s_getreg_b32 s7, hwreg(HW_REG_XCC_ID, 0, 4)
s_mul_i32 s7, s7, 1000000
s_add_u32 s6, s6, s7
v_mov_b32 v5, s6
s_lshl_b32 s7, s2, 2
v_mov_b32 v6, s7
s_mov_b64 exec, 1
buffer_store_dword v5, v6, s[32:35], 0 offen
s_mov_b64 exec, -1
{Ld}:""")
        I(f'{Lend}:')
        self.stamp_dump('s[20:23]', 16)
        I('s_endpgm')

    def build(self):
        I = self.I
        I('''s_cmp_ge_u32 s2, 256
s_cbranch_scc1 L_exit''')
        if self.p['x_dbg']: I('s_memrealtime s[90:91]')
        if self.p['stamps']:
            for i in range(16): I(f's_mov_b32 s{64+2*i}, 0')
            self.stamp(0)
        I(f'''v_lshrrev_b32 v1, 6, v0
s_and_b32 s4, s2, 7
s_lshr_b32 s5, s2, 3
s_mov_b32 s48, 0
v_readfirstlane_b32 s3, v1''')
        I(f'''s_cmp_ge_u32 s3, {W_L0}
s_cbranch_scc1 L_LD''')
        if self.p['early']:
            I(f'''s_cmp_eq_u32 s3, {W_J0}
s_cselect_b32 s6, 24, 8
s_load_dwordx2 s[16:17], s[0:1], s6''')
        I(f'''s_cmp_ge_u32 s3, {W_C0}
s_cbranch_scc1 L_CW
s_cmp_eq_u32 s3, {W_J1}
s_cbranch_scc1 L_J1''')
        self.role_j0()
        self.role_j1()
        self.role_compute()
        self.role_loader()
        I('L_exit:\ns_endpgm\nL_codeend:')
        head = f'''; Fused decode step: GQA attention over the KV cache + SwiGLU FFN + sigmoid-gated mix (gfx950).
;
;
; @launch grid=(256,1,1) block=(896,1,1) lds={LDS_BYTES}
.amdgcn_target "amdgcn-amd-amdhsa--gfx950"
.text
.globl {KNAME}
.p2align 8
.type {KNAME},@function
{KNAME}:
'''
        foot = f'''.section .rodata,"a"
.p2align 6
.amdhsa_kernel {KNAME}
  .amdhsa_next_free_vgpr 128
  .amdhsa_next_free_sgpr 102
  .amdhsa_accum_offset 128
  .amdhsa_group_segment_fixed_size 0
  .amdhsa_kernarg_size 104
  .amdhsa_user_sgpr_count 2
  .amdhsa_user_sgpr_kernarg_segment_ptr 1
  .amdhsa_system_sgpr_workgroup_id_x 1
.end_amdhsa_kernel
'''
        return head + self.a.text() + foot

def main():
    out = sys.argv[1]
    kw = {}
    for arg in sys.argv[2:]:
        k, v = arg.split('=')
        assert k in DEF or k in ('pfn',), k
        kw[k] = (v == 'True') if v in ('True', 'False') else int(v)
    open(out, 'w').write(G(**kw).build())

if __name__ == '__main__':
    main()
```
